```python
import torch

def _softmax(x, axis=-1):
    return torch.softmax(x, dim=axis)
def _gelu(x):
    return torch.nn.functional.gelu(x, approximate="tanh")
def _silu(x):
    return torch.nn.functional.silu(x)
def _sigmoid(x):
    return torch.sigmoid(x)
def _layernorm(x, axis=-1, eps=1e-5):
    m = x.mean(dim=axis, keepdim=True)
    v = x.var(dim=axis, keepdim=True, unbiased=False)
    return (x - m) / torch.sqrt(v + eps)
def _scatter_add(tgt, idx, src, axis=0):
    return tgt.clone().index_add_(axis, idx, src)
def _segment_sum(src, seg, n):
    out = torch.zeros((n,) + src.shape[1:], dtype=src.dtype)
    return out.index_add_(0, seg, src)
def _pad(x, pw):
    flat = tuple(v for pair in reversed(pw) for v in pair)
    return torch.nn.functional.pad(x, flat)

kernel_name = 'sequential_preLN__sliding_block_cached__mixer_channel_mlp__decode'

def setup_inputs():

    _w = (lambda a: (lambda t: t.to(torch.bfloat16) if t.is_floating_point() else t)(torch.as_tensor(a)))
    def _A_setup():
        B, Sq, D = 2, 1, 640
        Hq, Hkv, Sk, Dh = 32, 32, 4096, 128
        assert Hq % Hkv == 0, (Hq, Hkv)
        return {
            "x": _w((lambda *s: torch.randn(*s, dtype=torch.bfloat16) * 0.05)(B, Sq, D)),
            "k_cache": _w((lambda *s: torch.randn(*s, dtype=torch.bfloat16) * 3.2)(B, Hkv, Sk, Dh)),
            "v_cache": _w((lambda *s: torch.randn(*s, dtype=torch.bfloat16) * 0.4)(B, Hkv, Sk, Dh)),
            "wq": _w((lambda *s: torch.randn(*s, dtype=torch.bfloat16) * 3.2)(D, Hq * Dh) * (D ** -0.5)),
            "wo": _w((lambda *s: torch.randn(*s, dtype=torch.bfloat16) * 0.4)(Hq * Dh, D) * ((Hq * Dh) ** -0.5)),
        }
    _A_in = _A_setup()

    def _B_setup():
        B, S, D, F = 2, 1, 640, 1728
        return {
            "x": _w((lambda *s: torch.randn(*s, dtype=torch.bfloat16) * 0.05)(B, S, D)),
            "w1": _w((lambda *s: torch.randn(*s, dtype=torch.bfloat16) * 3.2)(D, F) * (D ** -0.5)),
            "b1": _w((lambda *s: torch.randn(*s, dtype=torch.bfloat16) * 1.6)(F)),
            "w2": _w((lambda *s: torch.randn(*s, dtype=torch.bfloat16) * 0.1)(F, D) * (F ** -0.5)),
            "b2": _w((lambda *s: torch.randn(*s, dtype=torch.bfloat16) * 0.1)(D)),
        }
    _B_in = _B_setup()

    return {
        "A_x": _A_in["x"],
        "A_k_cache": _A_in["k_cache"],
        "A_v_cache": _A_in["v_cache"],
        "A_wq": _A_in["wq"],
        "A_wo": _A_in["wo"],
        "B_x": _B_in["x"],
        "B_w1": _B_in["w1"],
        "B_b1": _B_in["b1"],
        "B_w2": _B_in["w2"],
        "B_b2": _B_in["b2"],
    }

def reference(A_x, A_k_cache, A_v_cache, A_wq, A_wo, B_x, B_w1, B_b1, B_w2, B_b2):
    def _A_ref(x, k_cache, v_cache, wq, wo):
        B, Sq, D = x.shape
        Hq, Dh = 32, 128
        Hkv, Sk = k_cache.shape[1], k_cache.shape[2]
        W = min(4096, max(256, Sk // 4))
        rep = Hq // Hkv
        q = (lambda x, *d: x.permute(*d))((x @ wq).reshape(B, Sq, Hq, Dh), 0, 2, 1, 3)
        k = (lambda x, n, axis: torch.repeat_interleave(x, n, dim=axis))(k_cache[:, :, Sk - W:, :], rep, axis=1)
        v = (lambda x, n, axis: torch.repeat_interleave(x, n, dim=axis))(v_cache[:, :, Sk - W:, :], rep, axis=1)
        scores = torch.einsum("bhqd,bhkd->bhqk", q, k) * (Dh ** -0.5)
        p = _softmax(scores, axis=-1)
        o = torch.einsum("bhqk,bhkd->bhqd", p, v)
        return (lambda x, *d: x.permute(*d))(o, 0, 2, 1, 3).reshape(B, Sq, Hq * Dh) @ wo

    def _B_ref(x, w1, b1, w2, b2):
        y = _layernorm(x, axis=-1)
        h = _gelu(torch.einsum("bsd,df->bsf", y, w1) + b1)
        return torch.einsum("bsf,fd->bsd", h, w2) + b2

    x = A_x
    h = x + _A_ref(_layernorm(x, axis=-1), A_k_cache, A_v_cache, A_wq, A_wo)
    h2 = h + _B_ref(_layernorm(h, axis=-1), B_w1, B_b1, B_w2, B_b2)
    return h2
```

```python
import re
TRANS = ("v_exp_f32", "v_log_f32", "v_rcp_f32", "v_rsq_f32", "v_sqrt_f32", "v_sin_f32", "v_cos_f32")
def regs(tok):
    tok = tok.strip().lstrip("-").replace("|", "")
    m = re.fullmatch(r"abs\((.*)\)", tok)
    if m: tok = m.group(1)
    m = re.fullmatch(r"([vsa])(\d+)", tok)
    if m: return {(m.group(1), int(m.group(2)))}
    m = re.fullmatch(r"([vsa])\[(\d+):(\d+)\]", tok)
    if m: return {(m.group(1), i) for i in range(int(m.group(2)), int(m.group(3)) + 1)}
    if tok == "vcc": return {("s", 106), ("s", 107)}
    if tok == "exec": return {("s", 126), ("s", 127)}
    if tok == "m0": return {("s", 124)}
    return set()
class I:
    def __init__(self, text):
        self.text = text
        t = text.split(";")[0].strip()
        p = t.split(None, 1)
        self.op = p[0]
        rest = p[1] if len(p) > 1 else ""
        ops = [o.strip() for o in re.split(r",(?![^\[]*\])", rest)] if rest else []
        self.mods = ""
        if ops:
            q = ops[-1].split(None, 1)
            ops[-1] = q[0]
            self.mods = q[1] if len(q) > 1 else ""
        self.ops = ops
        op = self.op
        self.mfma = op.startswith("v_mfma")
        self.valu = op.startswith("v_") and not self.mfma
        self.trans = any(op.startswith(x) for x in TRANS)
        self.dpp = self.valu and ("_dpp" in op or "quad_perm" in text or "row_" in text)
        self.permlane = op.startswith("v_permlane")
        self.rdlane = op.startswith("v_readlane") or op.startswith("v_readfirstlane")
        self.vmem = op.startswith(("global_", "buffer_", "flat_"))
        self.ds = op.startswith("ds_")
        self.salu = op.startswith("s_")
        self.ldsdma = self.vmem and "_lds_" in op
        R = [regs(o) for o in ops]
        self.w = set(); self.r = set(); self.srcC = set(); self.srcAB = set(); self.stdata = set()
        if self.mfma:
            self.w = R[0]; self.srcAB = R[1] | R[2]; self.srcC = R[3]; self.r = self.srcAB | self.srcC
        elif self.valu:
            self.w = set(R[0]); self.r = set().union(*R[1:]) if len(R) > 1 else set()
            if op.startswith(("v_fmac", "v_dot2c", "v_pk_fmac")) or self.dpp or op.startswith("v_writelane"): self.r |= R[0]
            if self.permlane: self.w = R[0] | R[1]; self.r = R[0] | R[1]
            if op.startswith(("v_add_co", "v_sub_co", "v_addc_co")): self.w |= R[1]
            if op.startswith("v_cndmask") and len(ops) == 3: self.r |= regs("vcc")
        elif self.vmem:
            if "store" in op or ("atomic" in op):
                self.r = set().union(*R)
                if "x4" in op or "x3" in op: self.stdata = R[1]
            elif self.ldsdma:
                self.r = set().union(*R) | regs("m0")
            else:
                self.w = R[0]; self.r = set().union(*R[1:])
                if "d16" in op: self.r |= R[0]
        elif self.ds:
            if op.startswith(("ds_read", "ds_bpermute", "ds_permute", "ds_swizzle")):
                self.w = R[0]; self.r = set().union(*R[1:])
            else: self.r = set().union(*R)
        elif self.salu:
            if op.startswith(("s_cmp", "s_bitcmp", "s_cbranch", "s_branch", "s_waitcnt", "s_nop", "s_barrier", "s_sleep", "s_setprio", "s_endpgm")):
                self.r = set().union(*R) if R else set()
            else:
                self.w = R[0] if R else set(); self.r = set().union(*R[1:]) if len(R) > 1 else set()
        self.states = 1
        if op == "s_nop": self.states = int(ops[0], 0) + 1
def V(s): return {x for x in s if x[0] in "va"}
def S(s): return {x for x in s if x[0] == "s"}
def need(p, c):
    n = 0
    if p.valu:
        vw = V(p.w); sw = S(p.w)
        if c.mfma and vw & c.r: n = max(n, 2)
        if c.dpp and vw & c.r: n = max(n, 2)
        if c.permlane and vw & c.r: n = max(n, 2)
        if c.rdlane and vw & c.r: n = max(n, 1)
        if p.trans and c.valu and vw & c.r: n = max(n, 1)
        if p.trans and (c.vmem or c.ds) and vw & c.r: n = max(n, 1)
        if sw:
            if c.valu and sw & c.r: n = max(n, 4 if (c.op.startswith(("v_readlane", "v_writelane"))) else 2)
            if c.vmem and sw & c.r: n = max(n, 5)
            if c.salu and sw & c.r: n = max(n, 1)
    if p.mfma:
        if c.mfma:
            if p.w & c.srcAB: n = max(n, 8)
            if p.w & c.srcC and p.w != c.srcC: n = max(n, 6)
            if p.w & c.w and not (p.w == c.srcC): n = max(n, 6)
        elif c.valu or c.vmem or c.ds:
            if p.w & (c.r | c.w): n = max(n, 8)
        if c.valu and p.srcC & c.w: n = max(n, 3)
    if p.stdata and (c.valu or c.mfma) and p.stdata & c.w: n = max(n, 2)
    if p.stdata and (c.vmem or c.ds) and p.stdata & c.w: n = max(n, 1)
    if p.salu and ("s", 124) in p.w and c.ldsdma: n = max(n, 1)
    if p.salu and (("s", 126) in p.w) and (c.dpp or c.mfma or c.rdlane or c.permlane): n = max(n, 1)
    return n
def process(lines):
    out = []; hist = []
    for ln in lines:
        t = ln.strip()
        if not t or t.startswith(";") or t.startswith(".") or t.endswith(":"):
            out.append(ln); continue
        c = I(t)
        dist = 0; pad = 0
        for p in reversed(hist):
            n = need(p, c)
            if n - dist > pad: pad = n - dist
            dist += p.states
            if dist >= 12: break
        if pad > 0:
            nop = I(f"s_nop {pad-1}")
            out.append(f"s_nop {pad-1}"); hist.append(nop)
        out.append(ln); hist.append(c)
        hist = hist[-16:]
    return out
```

```python
import sys, struct, math
from hz import process

NAME = "sequential_preLN__sliding_block_cached__mixer_channel_mlp__decode"

def f2u(x): return struct.unpack("<I", struct.pack("<f", x))[0]
def hx(x): return f"0x{f2u(x):08x}"

QP = 0x00000
OP = 0x40000
ML = 0x60000
AP = 0x70000
HB = 0xA0000
CP = 0xB0000
STAMP = 0x8000000
L_Y = 0x0000
YS = 1408
L_Q = 0x0B00
L_ML = 0x0C00
L_FL = 0x0C40
L_RED = 0x1000
L_RED2 = 0x2000
L_T1 = 0x3000
L_W1 = 0x4000
LDS_SIZE = 0x4000 + 5 * 6144

LOG2E = 1.4426950408889634
SPIN = 400000


class G:
    def __init__(self, diag=False, **kw):
        self.L = []
        self.diag = diag
        self.n = 0
        self.p = dict(paceK=8, paceV=0, wo_split=(3, 3, 2), fast=True, prefetch=True, nt="nt")
        self.p.update(kw)

    def __call__(self, s):
        for ln in s.split("\n"):
            ln = ln.strip()
            if ln:
                self.L.append(ln)

    def lab(self, p):
        self.n += 1
        return f"L_{p}_{self.n}"

    def stamp(self, idx):
        if not self.diag:
            return
        self(f"""s_memrealtime s[100:101]
        s_waitcnt lgkmcnt(0)
        v_writelane_b32 v255, s100, {idx}""")

    def finish(self):
        if self.diag:
            self.stamp(31)
            self("s_branch L_dump")
        else:
            self("s_endpgm")

    def ln(self, X, P, T, unpack):
        a = self
        pr = lambda r: f"v[{r}:{r+1}]"
        a(f"v_pk_add_f32 {pr(T)}, {pr(X)}, {pr(X+2)}")
        a(f"v_pk_mul_f32 {pr(T+2)}, {pr(X)}, {pr(X)}")
        for i in (4, 6, 8):
            a(f"v_pk_add_f32 {pr(T)}, {pr(T)}, {pr(X+i)}")
            a(f"v_pk_fma_f32 {pr(T+2)}, {pr(X+i-2)}, {pr(X+i-2)}, {pr(T+2)}")
        a(f"v_pk_fma_f32 {pr(T+2)}, {pr(X+8)}, {pr(X+8)}, {pr(T+2)}")
        a(f"v_add_f32 v{T}, v{T}, v{T+1}")
        a(f"v_add_f32 v{T+2}, v{T+2}, v{T+3}")
        a(f"v_permlane32_swap_b32 v{T}, v{T+2}")
        a(f"v_add_f32 v{T}, v{T}, v{T+2}")
        for d in ("quad_perm:[1,0,3,2]", "quad_perm:[2,3,0,1]", "row_half_mirror", "row_mirror"):
            a(f"v_add_f32_dpp v{T}, v{T}, v{T} {d} row_mask:0xf bank_mask:0xf")
        a(f"v_add_f32_dpp v{T}, v{T}, v{T} row_bcast:15 row_mask:0xa bank_mask:0xf")
        a(f"v_mul_f32 v{T}, {hx(1.0/640.0)}, v{T}")
        a(f"v_readlane_b32 s40, v{T}, 31")
        a(f"v_readlane_b32 s41, v{T}, 63")
        a(f"v_mov_b32 v{T}, s40")
        a(f"v_mov_b32 v{T+1}, s41")
        a(f"v_fma_f32 v{T+1}, -v{T}, v{T}, v{T+1}")
        a(f"v_max_f32 v{T+1}, 0, v{T+1}")
        a(f"v_cvt_pk_bf16_f32 v{T}, v{T}, v{T+1}")
        a(f"v_and_b32 v{T+1}, 0xffff0000, v{T}")
        a(f"v_lshlrev_b32 v{T}, 16, v{T}")
        a(f"v_add_f32 v{T+1}, {hx(1e-5)}, v{T+1}")
        a(f"v_pk_add_f32 {pr(X)}, {pr(X)}, {pr(T)} op_sel_hi:[1,0] neg_lo:[0,1] neg_hi:[0,1]")
        a(f"v_cvt_pk_bf16_f32 v{T+2}, v{T+1}, v{T+1}")
        a(f"v_pk_add_f32 {pr(X+2)}, {pr(X+2)}, {pr(T)} op_sel_hi:[1,0] neg_lo:[0,1] neg_hi:[0,1]")
        a(f"v_lshlrev_b32 v{T+2}, 16, v{T+2}")
        a(f"v_pk_add_f32 {pr(X+4)}, {pr(X+4)}, {pr(T)} op_sel_hi:[1,0] neg_lo:[0,1] neg_hi:[0,1]")
        a(f"v_sqrt_f32 v{T+2}, v{T+2}")
        a(f"v_pk_add_f32 {pr(X+6)}, {pr(X+6)}, {pr(T)} op_sel_hi:[1,0] neg_lo:[0,1] neg_hi:[0,1]")
        a(f"v_pk_add_f32 {pr(X+8)}, {pr(X+8)}, {pr(T)} op_sel_hi:[1,0] neg_lo:[0,1] neg_hi:[0,1]")
        a(f"v_cvt_pk_bf16_f32 v{T+2}, v{T+2}, v{T+2}")
        a(f"v_cvt_pk_bf16_f32 v{P}, v{X}, v{X+1}")
        a(f"v_lshlrev_b32 v{T+2}, 16, v{T+2}")
        a(f"v_cvt_pk_bf16_f32 v{P+1}, v{X+2}, v{X+3}")
        a(f"v_rcp_f32 v{T+2}, v{T+2}")
        for i in (2, 3, 4):
            a(f"v_cvt_pk_bf16_f32 v{P+i}, v{X+2*i}, v{X+2*i+1}")
        for i in range(5):
            a(f"v_lshlrev_b32 v{X+2*i}, 16, v{P+i}")
            a(f"v_and_b32 v{X+2*i+1}, 0xffff0000, v{P+i}")
        for i in range(5):
            a(f"v_pk_mul_f32 {pr(X+2*i)}, {pr(X+2*i)}, {pr(T+2)} op_sel_hi:[1,0]")
        for i in range(5):
            a(f"v_cvt_pk_bf16_f32 v{P+i}, v{X+2*i}, v{X+2*i+1}")
        if unpack:
            for i in range(5):
                a(f"v_lshlrev_b32 v{X+2*i}, 16, v{P+i}")
                a(f"v_and_b32 v{X+2*i+1}, 0xffff0000, v{P+i}")

    def frag(self, D, P, odd):
        base = 8 if odd else 4
        for r in range(4):
            self(f"v_perm_b32 v{D+r}, v{P}, v{P}, v{base+r}")

    def poll(self, name, loads, words, T, waitcnt="vmcnt(0)"):
        a = self
        lp = a.lab(name)
        done = a.lab(name + "_ok")
        a("s_mov_b32 s42, 0")
        a(f"{lp}:")
        loads()
        a(f"s_add_u32 s42, s42, 1")
        a(f"s_waitcnt {waitcnt}")
        w = list(words)
        if len(w) == 1:
            cur = w[0]
        else:
            if len(w) == 2:
                a(f"v_max_u32 v{T}, v{w[0]}, v{w[1]}"); w = []
            else:
                a(f"v_max3_u32 v{T}, v{w[0]}, v{w[1]}, v{w[2]}"); w = w[3:]
            while w:
                if len(w) >= 2:
                    a(f"v_max3_u32 v{T}, v{T}, v{w[0]}, v{w[1]}"); w = w[2:]
                else:
                    a(f"v_max_u32 v{T}, v{T}, v{w[0]}"); w = w[1:]
            cur = T
        a(f"v_cmp_eq_u32 vcc, -1, v{cur}")
        a(f"s_cbranch_vccz {done}")
        a(f"s_cmp_lt_u32 s42, {SPIN}")
        a(f"s_cbranch_scc1 {lp}")
        a(f"{done}:")

    def red16(self, A):
        a = self
        a(f"v_permlane32_swap_b32 v{A}, v{A+2}")
        a(f"v_permlane32_swap_b32 v{A+1}, v{A+3}")
        a(f"v_pk_add_f32 v[{A}:{A+1}], v[{A}:{A+1}], v[{A+2}:{A+3}]")
        a(f"v_permlane16_swap_b32 v{A}, v{A+1}")
        a(f"v_add_f32 v{A}, v{A}, v{A+1}")
        a(f"v_add_f32_dpp v{A}, v{A}, v{A} row_ror:4 row_mask:0xf bank_mask:0xf")
        a(f"v_add_f32_dpp v{A}, v{A}, v{A} row_ror:8 row_mask:0xf bank_mask:0xf")

    def selectors(self):
        a = self
        a("""v_and_b32 v2, 1, v0
        v_cmp_eq_u32 vcc, 1, v2
        v_mov_b32 v2, 0x0c0c0100
        v_mov_b32 v3, 0x01000c0c
        v_cndmask_b32 v12, v2, v3, vcc
        v_mov_b32 v2, 0x0c0c0302
        v_mov_b32 v3, 0x03020c0c
        v_cndmask_b32 v13, v2, v3, vcc
        v_bfe_u32 v2, v0, 1, 2
        v_mov_b32 v3, 0x0c0c0c0c""")
        for r in range(4):
            a(f"v_cmp_eq_u32 vcc, {r}, v2")
            a(f"v_cndmask_b32 v{4+r}, v3, v12, vcc")
            a(f"v_cndmask_b32 v{8+r}, v3, v13, vcc")

    def build(self):
        a = self
        p = self.p
        nt = p["nt"]
        a(f"""
        s_cmp_ge_u32 s2, 256
        s_cbranch_scc1 L_exit
        s_load_dwordx16 s[4:19], s[0:1], 0
        s_load_dwordx8 s[20:27], s[0:1], 64
        s_load_dwordx2 s[28:29], s[0:1], 96
        v_lshrrev_b32 v1, 6, v0
        v_and_b32 v0, 63, v0
        v_readfirstlane_b32 s3, v1
        s_and_b32 s30, s2, 7
        s_lshr_b32 s31, s2, 3
        s_lshl_b32 s34, s30, 5
        s_add_u32 s34, s34, s31
        s_lshr_b32 s32, s34, 3
        s_and_b32 s33, s34, 7
        """)
        if self.diag:
            a("v_mov_b32 v255, 0")
            a("s_memrealtime s[100:101]")
        a("""s_cmp_eq_u32 s3, 4
        s_cbranch_scc1 L_ctrl""")
        a(f"""
        s_lshr_b32 s35, s33, 2
        s_lshl_b32 s35, s35, 5
        s_add_u32 s35, s35, s32
        s_lshl_b32 s35, s35, 4
        s_and_b32 s36, s33, 3
        s_add_u32 s35, s35, s36
        s_add_u32 s35, s35, 12
        s_lshl_b32 s35, s35, 2
        s_add_u32 s35, s35, s3
        s_lshl_b32 s35, s35, 14
        s_add_u32 s35, s35, 4096
        v_bfe_u32 v1, v0, 2, 2
        v_lshlrev_b32 v1, 8, v1
        v_lshrrev_b32 v2, 4, v0
        v_lshl_add_u32 v1, v2, 6, v1
        v_and_b32 v2, 3, v0
        v_lshl_add_u32 v1, v2, 4, v1
        v_add_u32 v1, s35, v1
        v_lshl_add_u32 v14, v0, 4, s35
        s_waitcnt lgkmcnt(0)
        """)
        if self.diag:
            a("v_writelane_b32 v255, s100, 0")
        KR, VR, DR = 16, 80, 144
        cnt = 0
        for t in range(16):
            if t == 8:
                a("v_add_u32 v1, 8192, v1")
            if p["paceK"] and cnt >= p["paceK"]:
                a(f"s_waitcnt vmcnt({p['paceK']-1})")
            a(f"global_load_dwordx4 v[{KR+4*t}:{KR+4*t+3}], v1, s[6:7] offset:{(t%8)*1024-4096} {nt}")
            cnt += 1
        for t in range(16):
            if t == 8:
                a("v_add_u32 v14, 8192, v14")
            if p["paceV"] and t < p.get("paceVn", 16):
                a(f"s_waitcnt vmcnt({p['paceV']-1})")
            a(f"global_load_dwordx4 v[{VR+4*t}:{VR+4*t+3}], v14, s[8:9] offset:{(t%8)*1024-4096} {nt}")
        a.stamp(1)
        a.selectors()
        WOR = 208
        a(f"""
        s_lshl_b32 s36, s32, 2
        s_add_u32 s36, s36, s3
        s_lshl_b32 s36, s36, 5
        s_add_u32 s36, s36, 3
        s_mul_i32 s36, s36, 1280
        s_lshl_b32 s37, s33, 8
        s_add_u32 s36, s36, s37
        v_lshrrev_b32 v2, 4, v0
        v_mul_u32_u24 v2, 10240, v2
        v_and_b32 v3, 15, v0
        v_lshl_add_u32 v2, v3, 4, v2
        v_add_u32 v14, s36, v2
        v_add_u32 v15, 5120, v14
        v_lshrrev_b32 v2, 4, v0
        v_and_b32 v3, 3, v0
        v_lshl_add_u32 v2, v2, 2, v3
        v_lshlrev_b32 v2, 4, v2
        s_barrier
        """)
        a.stamp(2)
        a(f"ds_read_b128 v[240:243], v2 offset:{L_Q}")
        wo_done = 0

        def wo_loads(k):
            nonlocal wo_done
            if k == 0:
                return
            sk = a.lab("nowo")
            a(f"s_cmp_ge_u32 s33, 5\ns_cbranch_scc1 {sk}")
            for t in range(wo_done, wo_done + k):
                if t < 7:
                    a(f"global_load_dwordx4 v[{WOR+4*t}:{WOR+4*t+3}], v14, s[12:13] offset:{(t-3)*1280} {nt}")
                else:
                    a(f"global_load_dwordx4 v[{WOR+4*t}:{WOR+4*t+3}], v15, s[12:13] {nt}")
            a(f"{sk}:")
            wo_done += k
        a("s_waitcnt vmcnt(16)")
        wo_loads(p["wo_split"][0])
        a("s_waitcnt lgkmcnt(0)")
        for t in range(16):
            a(f"v_mfma_f32_16x16x32_bf16 v[{DR+4*t}:{DR+4*t+3}], v[{KR+4*t}:{KR+4*t+3}], v[240:243], 0")
        SR = 16
        for grp in range(4):
            ts = range(4 * grp, 4 * grp + 4)
            for t in ts:
                a(f"v_mov_b32_dpp v{SR+t}, v{DR+4*t} quad_perm:[0,0,0,0] row_mask:0xf bank_mask:0xf")
            for r in (1, 2, 3):
                for t in ts:
                    a(f"v_add_f32_dpp v{SR+t}, v{DR+4*t+r}, v{SR+t} quad_perm:[{r},{r},{r},{r}] row_mask:0xf bank_mask:0xf")
        wo_loads(p["wo_split"][1])
        PK = 32
        a(f"s_mov_b32 s38, {hx(128 ** -0.5)}")
        for rnd in range(2):
            for u in range(8):
                a(f"v_cvt_pk_bf16_f32 v{PK+u}, v{SR+2*u}, v{SR+2*u+1}")
            for u in range(8):
                a(f"v_lshlrev_b32 v{SR+2*u}, 16, v{PK+u}")
                a(f"v_and_b32 v{SR+2*u+1}, 0xffff0000, v{PK+u}")
            if rnd == 0:
                for u in range(8):
                    a(f"v_pk_mul_f32 v[{SR+2*u}:{SR+2*u+1}], v[{SR+2*u}:{SR+2*u+1}], s[38:39] op_sel_hi:[1,0]")
        a(f"v_max3_f32 v40, v{SR}, v{SR+1}, v{SR+2}")
        a(f"v_max3_f32 v41, v{SR+3}, v{SR+4}, v{SR+5}")
        for i in range(6, 14, 4):
            a(f"v_max3_f32 v40, v40, v{SR+i}, v{SR+i+1}")
            a(f"v_max3_f32 v41, v41, v{SR+i+2}, v{SR+i+3}")
        a(f"v_max3_f32 v40, v40, v{SR+14}, v{SR+15}")
        a("""v_max_f32 v40, v40, v41
        v_mov_b32 v41, v40
        v_permlane32_swap_b32 v40, v41
        v_max_f32 v40, v40, v41
        v_mov_b32 v41, v40
        v_permlane16_swap_b32 v40, v41
        v_max_f32 v40, v40, v41""")
        a(f"s_mov_b32 s38, {hx(LOG2E)}")
        for u in range(8):
            a(f"v_pk_add_f32 v[{SR+2*u}:{SR+2*u+1}], v[{SR+2*u}:{SR+2*u+1}], v[40:41] op_sel_hi:[1,0] neg_lo:[0,1] neg_hi:[0,1]")
        for u in range(8):
            a(f"v_pk_mul_f32 v[{SR+2*u}:{SR+2*u+1}], v[{SR+2*u}:{SR+2*u+1}], s[38:39] op_sel_hi:[1,0]")
        for t in range(16):
            a(f"v_exp_f32 v{SR+t}, v{SR+t}")
        a(f"v_pk_add_f32 v[42:43], v[{SR}:{SR+1}], v[{SR+2}:{SR+3}]")
        for u in range(2, 8):
            a(f"v_pk_add_f32 v[42:43], v[42:43], v[{SR+2*u}:{SR+2*u+1}]")
        a(f"""v_add_f32 v42, v42, v43
        v_mov_b32 v43, v42
        v_permlane32_swap_b32 v42, v43
        v_add_f32 v42, v42, v43
        v_mov_b32 v43, v42
        v_permlane16_swap_b32 v42, v43
        v_add_f32 v41, v42, v43
        s_lshl_b32 s36, s3, 3
        v_mov_b32 v2, s36
        ds_write_b64 v2, v[40:41] offset:{L_ML}
        v_mov_b32 v2, 0
        s_waitcnt lgkmcnt(0)
        s_barrier
        ds_read_b128 v[44:47], v2 offset:{L_ML}
        ds_read_b128 v[48:51], v2 offset:{L_ML+16}""")
        a.stamp(3)
        wo_loads(p["wo_split"][2])
        assert wo_done == 8
        a(f"""s_waitcnt lgkmcnt(0)
        v_max3_f32 v44, v44, v46, v48
        v_max_f32 v44, v44, v50
        v_sub_f32 v44, v40, v44
        v_mul_f32 v44, s38, v44
        v_exp_f32 v44, v44
        v_and_b32 v2, 8, v0
        v_cmp_eq_u32 vcc, 8, v2""")
        for u in range(8):
            a(f"v_pk_mul_f32 v[{SR+2*u}:{SR+2*u+1}], v[{SR+2*u}:{SR+2*u+1}], v[44:45] op_sel_hi:[1,0]")
        for u in range(8):
            a(f"v_cvt_pk_bf16_f32 v{PK+u}, v{SR+2*u}, v{SR+2*u+1}")
        for u in range(8):
            a(f"v_lshlrev_b32 v{44+2*(u%4)}, 16, v{PK+u}")
            a(f"v_and_b32 v{45+2*(u%4)}, 0xffff0000, v{PK+u}")
            a(f"v_pk_add_f32 v[{SR+2*u}:{SR+2*u+1}], v[{SR+2*u}:{SR+2*u+1}], v[{44+2*(u%4)}:{45+2*(u%4)}] neg_lo:[0,1] neg_hi:[0,1]")
        for u in range(8):
            a(f"v_cvt_pk_bf16_f32 v{SR+2*u}, v{SR+2*u}, v{SR+2*u+1}")
        for u in range(8):
            a(f"v_cndmask_b32 v{PK+u}, v{PK+u}, v{SR+2*u}, vcc")
        for t in range(16):
            a.frag(DR + 4 * t, PK + t // 2, t & 1)
        a(f"""v_and_b32 v2, 15, v0
        v_lshlrev_b32 v2, 5, v2
        v_and_b32 v3, 16, v0
        v_add_u32 v2, v2, v3
        v_and_b32 v3, 32, v0
        v_lshl_add_u32 v2, v3, 4, v2
        s_lshl_b32 s36, s3, 10
        v_add_u32 v1, s36, v2""")
        a.stamp(4)
        nowo = a.lab("pv_nowo"); pvd = a.lab("pv_done")
        a(f"s_cmp_ge_u32 s33, 5\ns_cbranch_scc1 {nowo}")
        for extra, lab in ((8, None), (0, nowo)):
            if lab:
                a(f"{lab}:")
            for t in range(16):
                a(f"s_waitcnt vmcnt({15-t+extra})")
                c = "0" if t == 0 else "v[44:47]"
                a(f"v_mfma_f32_16x16x32_bf16 v[44:47], v[{DR+4*t}:{DR+4*t+3}], v[{VR+4*t}:{VR+4*t+3}], {c}")
            if not lab:
                a(f"s_branch {pvd}")
        a(f"{pvd}:")
        a("s_nop 7")
        a(f"""ds_write_b128 v1, v[44:47] offset:{L_RED}
        s_waitcnt lgkmcnt(0)
        s_barrier""")
        a.stamp(5)
        a("""s_cmp_ge_u32 s33, 5
        s_cbranch_scc1 L_mlp""")
        a(f"""
        v_mov_b32 v2, 0
        ds_read_b32 v17, v2 offset:{L_FL}
        s_lshl_b32 s36, s32, 12
        s_lshl_b32 s37, s3, 7
        s_add_u32 s36, s36, s37
        s_add_u32 s36, s36, {OP}
        v_and_b32 v2, 8, v0
        v_lshlrev_b32 v2, 8, v2
        v_and_b32 v3, 3, v0
        v_lshl_add_u32 v2, v3, 9, v2
        v_lshrrev_b32 v3, 4, v0
        v_lshl_add_u32 v2, v3, 5, v2
        v_and_b32 v3, 4, v0
        v_lshl_add_u32 v2, v3, 2, v2
        v_add_u32 v16, s36, v2
        s_and_b32 s36, s32, 3
        s_mul_i32 s36, s36, 5
        s_add_u32 s36, s36, s33
        s_lshl_b32 s36, s36, 2
        s_add_u32 s36, s36, s3
        s_lshl_b32 s37, s36, 4
        v_and_b32 v2, 3, v0
        v_lshrrev_b32 v3, 4, v0
        v_lshl_add_u32 v2, v2, 2, v3
        v_add_u32 v18, s37, v2
        v_lshlrev_b32 v19, 1, v18
        global_load_ushort v20, v19, s[4:5]
        s_cmp_ge_u32 s36, 40
        s_cselect_b32 s38, 1280, 0
        v_subrev_u32 v2, s38, v19
        global_load_ushort v21, v2, s[22:23]
        s_lshl_b32 s37, s36, 6
        v_lshrrev_b32 v2, 2, v0
        v_mul_u32_u24 v2, 5120, v2
        v_and_b32 v3, 3, v0
        v_lshl_add_u32 v2, v3, 4, v2
        v_add_u32 v22, s37, v2
        v_add_u32 v23, {AP}, v22
        v_add_u32 v24, {AP + 16*5120}, v22
        s_lshl_b32 s37, s30, 13
        s_add_u32 s37, s37, {HB}
        v_lshl_add_u32 v25, v18, 2, s37
        """)
        a.poll("og", lambda: a("global_load_dwordx4 v[28:31], v16, s[28:29] sc1"), [28, 29, 30, 31], 26)
        a.stamp(6)
        for d in ("quad_perm:[1,0,3,2]", "quad_perm:[2,3,0,1]"):
            for r in range(4):
                a(f"v_add_f32_dpp v{28+r}, v{28+r}, v{28+r} {d} row_mask:0xf bank_mask:0xf")
        a("""v_cvt_pk_bf16_f32 v32, v28, v29
        v_cvt_pk_bf16_f32 v33, v30, v31
        v_mov_b32 v34, v32
        v_mov_b32 v35, v33
        v_mov_b32_dpp v34, v32 row_half_mirror row_mask:0xf bank_mask:0x5
        v_mov_b32_dpp v35, v33 row_half_mirror row_mask:0xf bank_mask:0x5
        v_mov_b32_dpp v32, v32 row_half_mirror row_mask:0xf bank_mask:0xa
        v_mov_b32_dpp v33, v33 row_half_mirror row_mask:0xf bank_mask:0xa""")
        order = [4, 5, 6, 7, 0, 1, 2, 3]
        a.frag(48, 32 + order[0] // 2, order[0] & 1)
        for i, t in enumerate(order):
            if i + 1 < 8:
                a.frag(48 + 4 * (i + 1), 32 + order[i + 1] // 2, order[i + 1] & 1)
            c = "0" if i == 0 else "v[44:47]"
            a(f"v_mfma_f32_16x16x32_bf16 v[44:47], v[{48+4*i}:{51+4*i}], v[{WOR+4*t}:{WOR+4*t+3}], {c}")
        a(f"""ds_write_b128 v1, v[44:47] offset:{L_RED2}
        s_waitcnt lgkmcnt(0)
        s_barrier""")
        a.stamp(7)
        a("v_readfirstlane_b32 s39, v17")
        a("v_lshlrev_b32 v20, 16, v20\nv_lshlrev_b32 v21, 16, v21")

        def ldA():
            a("global_load_dwordx4 v[28:31], v23, s[28:29] sc1")
            a("global_load_dwordx4 v[32:35], v24, s[28:29] sc1")
        a.poll("ha", ldA, list(range(28, 36)), 26)
        a.stamp(8)
        a("v_pk_add_f32 v[28:29], v[28:29], v[32:33]\nv_pk_add_f32 v[30:31], v[30:31], v[34:35]")
        a.red16(28)
        slow = a.lab("hb_slow"); hbd = a.lab("hb_done")
        a(f"""v_cvt_pk_bf16_f32 v28, v28, v28
        v_lshlrev_b32 v28, 16, v28
        v_add_f32 v28, v28, v20
        v_cvt_pk_bf16_f32 v28, v28, v28
        v_lshlrev_b32 v27, 16, v28
        s_mov_b32 exec_lo, 0x000f000f
        s_mov_b32 exec_hi, 0x000f000f
        s_cmp_eq_u32 s39, 0
        s_cbranch_scc1 {slow}
        global_store_dword v25, v27, s[28:29]
        s_branch {hbd}
        {slow}:
        global_store_dword v25, v27, s[28:29] sc1
        {hbd}:
        s_mov_b64 exec, -1""")
        a.stamp(9)
        fin = a.lab("fin")
        a(f"""s_and_b32 s37, s36, 7
        s_cmp_eq_u32 s37, s30
        s_cbranch_scc1 {fin}""")
        a.finish()
        a(f"{fin}:")
        for u in range(5):
            a(f"v_add_u32 v{48+u}, {CP + 16*5120*u}, v22")
        a("v_mov_b32 v44, 0\nv_mov_b32 v45, 0\nv_mov_b32 v46, 0\nv_mov_b32 v47, 0")

        def ldC():
            for u in range(4):
                a(f"global_load_dwordx4 v[{28+4*u}:{31+4*u}], v{48+u}, s[28:29] sc1")
            a("s_mov_b32 exec_hi, 0")
            a("global_load_dwordx4 v[44:47], v52, s[28:29] sc1")
            a("s_mov_b32 exec_hi, -1")
        a.poll("hc", ldC, list(range(28, 48)), 26)
        a.stamp(10)
        a("""v_pk_add_f32 v[28:29], v[28:29], v[32:33]
        v_pk_add_f32 v[30:31], v[30:31], v[34:35]
        v_pk_add_f32 v[36:37], v[36:37], v[40:41]
        v_pk_add_f32 v[38:39], v[38:39], v[42:43]
        v_pk_add_f32 v[28:29], v[28:29], v[44:45]
        v_pk_add_f32 v[30:31], v[30:31], v[46:47]
        v_pk_add_f32 v[28:29], v[28:29], v[36:37]
        v_pk_add_f32 v[30:31], v[30:31], v[38:39]""")
        a.red16(28)
        a("""v_cvt_pk_bf16_f32 v28, v28, v28
        v_lshlrev_b32 v28, 16, v28
        v_add_f32 v28, v28, v21
        v_cvt_pk_bf16_f32 v28, v28, v28
        v_lshlrev_b32 v28, 16, v28
        v_add_f32 v28, v28, v27
        v_cvt_pk_bf16_f32 v28, v28, v28
        s_mov_b32 exec_lo, 0x000f000f
        s_mov_b32 exec_hi, 0x000f000f
        global_store_short v19, v28, s[24:25]
        s_mov_b64 exec, -1""")
        a.finish()

        a("L_ctrl:")
        if p["prefetch"]:
            a(f"""s_getpc_b64 s[36:37]
            L_pc:
            s_sub_u32 s36, s36, L_pc-{NAME}_kernel
            s_subb_u32 s37, s37, 0
            v_lshlrev_b32 v1, 7, v0
            v_min_u32 v1, L_codeend-{NAME}_kernel-4, v1
            global_load_dword v254, v1, s[36:37]
            v_add_u32 v1, 8192, v1
            v_min_u32 v1, L_codeend-{NAME}_kernel-4, v1
            global_load_dword v253, v1, s[36:37]""")
        a(f"""
        v_mov_b32 v16, -1
        v_mov_b32 v17, -1
        v_mov_b32 v18, -1
        v_mov_b32 v19, -1
        s_lshl_b32 s35, s34, 10
        v_lshl_add_u32 v20, v0, 4, s35
        s_lshl_b32 s35, s34, 9
        s_add_u32 s35, s35, {OP}
        v_lshl_add_u32 v21, v0, 3, s35
        s_lshl_b32 s35, s32, 7
        s_lshl_b32 s38, s33, 3
        s_add_u32 s35, s35, s38
        s_add_u32 s35, s35, {ML}
        v_mov_b32 v22, s35
        v_lshlrev_b32 v1, 3, v0
        v_lshlrev_b32 v2, 2, v0
        s_waitcnt lgkmcnt(0)
        """)
        if self.diag:
            a("v_writelane_b32 v255, s100, 0")
        a(f"""
        global_store_dwordx4 v20, v[16:19], s[28:29] sc1
        global_store_dwordx2 v21, v[16:17], s[28:29] sc1
        global_store_dwordx2 v22, v[16:17], s[28:29] sc1
        s_mul_i32 s35, s32, 5120
        s_lshl_b32 s38, s33, 9
        s_add_u32 s35, s35, s38
        s_add_u32 s35, s35, {AP}
        v_lshrrev_b32 v3, 5, v0
        v_mul_u32_u24 v3, 2560, v3
        v_and_b32 v23, 31, v0
        v_lshl_add_u32 v3, v23, 4, v3
        v_add_u32 v23, s35, v3
        s_cmp_ge_u32 s33, 5
        s_cbranch_scc1 L_clr_mlp
        global_store_dwordx4 v23, v[16:19], s[28:29] sc1
        s_and_b32 s35, s32, 3
        s_mul_i32 s35, s35, 5
        s_add_u32 s35, s35, s33
        s_lshl_b32 s35, s35, 8
        s_lshl_b32 s38, s30, 13
        s_add_u32 s35, s35, s38
        s_add_u32 s35, s35, {HB}
        v_add_u32 v3, s35, v2
        global_store_dword v3, v16, s[28:29] sc1
        s_branch L_clr_done
        L_clr_mlp:
        s_and_b32 s35, s32, 3
        s_cmp_eq_u32 s35, 3
        s_cbranch_scc1 L_clr_done
        s_mul_i32 s35, s35, 3
        s_add_u32 s35, s35, s33
        s_mul_i32 s38, s30, 9
        s_add_u32 s35, s35, s38
        s_sub_u32 s35, s35, 5
        s_mul_i32 s35, s35, 5120
        s_add_u32 s35, s35, {CP + 2048}
        v_lshl_add_u32 v3, v0, 4, s35""")
        for u in range(5):
            a(f"global_store_dwordx4 v3, v[16:19], s[28:29] offset:{u*1024-2048} sc1")
        a("L_clr_done:")
        a("""global_load_dwordx2 v[24:25], v1, s[4:5]
        global_load_dwordx2 v[26:27], v1, s[4:5] offset:512
        global_load_dword v28, v2, s[4:5] offset:1024
        global_load_dwordx2 v[30:31], v1, s[4:5] offset:1280
        global_load_dwordx2 v[32:33], v1, s[4:5] offset:1792
        global_load_dword v34, v2, s[4:5] offset:2304""")
        WQ = 80
        a(f"""s_mul_i32 s35, s33, {80*8192}
        s_lshl_b32 s38, s32, 8
        s_add_u32 s35, s35, s38
        v_lshrrev_b32 v3, 4, v0
        v_mul_u32_u24 v3, {20*8192}, v3
        v_and_b32 v12, 15, v0
        v_lshl_add_u32 v3, v12, 4, v3
        v_add_u32 v3, s35, v3""")
        for t in range(20):
            if t:
                a("v_add_u32 v3, 8192, v3")
            a(f"global_load_dwordx4 v[{WQ+4*t}:{WQ+4*t+3}], v3, s[10:11] {nt}")
        a.stamp(1)
        a(f"""s_getreg_b32 s43, hwreg(HW_REG_XCC_ID, 0, 4)
        s_or_b32 s43, s43, 0x80
        v_mov_b32 v12, s34
        v_mov_b32 v13, s43
        s_waitcnt vmcnt(26)
        global_store_byte v12, v13, s[26:27] sc1
        s_mul_i32 s43, s43, 0x01010101""")
        a.stamp(2)
        a.selectors()
        a("s_waitcnt vmcnt(21)")
        for b_, (src, X) in enumerate(((24, 36), (30, 48))):
            for i in range(5):
                a(f"v_lshlrev_b32 v{X+2*i}, 16, v{src+i}")
                a(f"v_and_b32 v{X+2*i+1}, 0xffff0000, v{src+i}")
            a.ln(X, src, 60, False)
            a(f"""v_lshlrev_b32 v2, 2, v0
            ds_write_b64 v1, v[{src}:{src+1}] offset:{L_Y + b_*YS}
            ds_write_b64 v1, v[{src+2}:{src+3}] offset:{L_Y + b_*YS + 512}
            ds_write_b32 v2, v{src+4} offset:{L_Y + b_*YS + 1024}""")
        a(f"""s_mul_i32 s35, s33, 160
        v_lshrrev_b32 v2, 4, v0
        v_mul_u32_u24 v2, 40, v2
        v_bfe_u32 v3, v0, 3, 1
        v_mad_u32_u24 v2, v3, {YS//64}, v2
        v_mad_u32_u24 v2, v3, {YS//64}, v2""" if False else f"""s_mul_i32 s35, s33, 160
        v_lshrrev_b32 v2, 4, v0
        v_mul_u32_u24 v2, 40, v2
        v_bfe_u32 v3, v0, 3, 1
        v_mul_u32_u24 v3, {YS}, v3
        v_add3_u32 v2, v2, v3, s35
        s_waitcnt lgkmcnt(0)""")
        for i in range(5):
            a(f"ds_read_b64 v[{36+2*i}:{37+2*i}], v2 offset:{L_Y + 8*i}")
        a("s_waitcnt lgkmcnt(0)")
        a.stamp(3)
        FR = 160
        for t in range(20):
            a.frag(FR + 4 * t, 36 + t // 2, t & 1)
        for t in range(20):
            a(f"s_waitcnt vmcnt({20-t})")
            c = "0" if t == 0 else "v[48:51]"
            a(f"v_mfma_f32_16x16x32_bf16 v[48:51], v[{FR+4*t}:{FR+4*t+3}], v[{WQ+4*t}:{WQ+4*t+3}], {c}")
        a(f"""v_and_b32 v2, 15, v0
        v_lshlrev_b32 v2, 5, v2
        v_and_b32 v3, 16, v0
        v_add_u32 v2, v2, v3
        v_and_b32 v3, 32, v0
        v_lshl_add_u32 v2, v3, 4, v2
        s_lshl_b32 s35, s34, 10
        v_add_u32 v2, s35, v2
        global_store_dwordx4 v2, v[48:51], s[28:29] sc1""")
        a.stamp(4)
        hf = a.lab("hf"); hfd = a.lab("hf_ok")
        a(f"""s_lshl_b32 s35, s32, 3
        s_mov_b32 s42, 0
        {hf}:
        s_load_dwordx2 s[44:45], s[26:27], s35 glc
        s_add_u32 s42, s42, 1
        s_waitcnt lgkmcnt(0)
        s_and_b32 s46, s44, s45
        s_and_b32 s46, s46, 0x80808080
        s_cmp_eq_u32 s46, 0x80808080
        s_cbranch_scc1 {hfd}
        s_cmp_lt_u32 s42, {SPIN}
        s_cbranch_scc1 {hf}
        {hfd}:
        s_cmp_eq_u32 s44, s43
        s_cselect_b32 s47, 1, 0
        s_cmp_eq_u32 s45, s43
        s_cselect_b32 s31, s47, 0""")
        if not p["fast"]:
            a("s_mov_b32 s31, 0")
        a.stamp(5)
        a(f"""s_lshl_b32 s35, s32, 13
        s_lshr_b32 s38, s33, 2
        s_lshl_b32 s38, s38, 9
        s_add_u32 s35, s35, s38
        s_add_u32 s35, s35, {QP + 4096}
        v_and_b32 v2, 31, v0
        v_lshlrev_b32 v2, 4, v2
        v_and_b32 v3, 32, v0
        v_lshl_add_u32 v2, v3, 5, v2
        v_add_u32 v2, s35, v2""")

        def ldQ():
            for u in range(4):
                a(f"global_load_dwordx4 v[{36+4*u}:{39+4*u}], v2, s[28:29] offset:{2048*u-4096} sc1")
        a.poll("qg", ldQ, list(range(36, 52)), 3)
        a(f"""v_pk_add_f32 v[36:37], v[36:37], v[40:41]
        v_pk_add_f32 v[38:39], v[38:39], v[42:43]
        v_pk_add_f32 v[44:45], v[44:45], v[48:49]
        v_pk_add_f32 v[46:47], v[46:47], v[50:51]
        v_pk_add_f32 v[36:37], v[36:37], v[44:45]
        v_pk_add_f32 v[38:39], v[38:39], v[46:47]
        v_and_b32 v2, 31, v0
        v_lshlrev_b32 v2, 3, v2
        v_lshrrev_b32 v3, 5, v0
        v_lshl_add_u32 v2, v3, 2, v2
        v_permlane32_swap_b32 v36, v38
        v_permlane32_swap_b32 v37, v39
        v_pk_add_f32 v[36:37], v[36:37], v[38:39]
        v_cvt_pk_bf16_f32 v36, v36, v37
        ds_write_b32 v2, v36 offset:{L_Q}
        s_waitcnt lgkmcnt(0)""")
        a.stamp(6)
        a("s_barrier")
        gf = a.lab("gf"); gfd = a.lab("gf_ok")
        a(f"""s_mov_b32 s2, s43
        s_mov_b32 s35, 0
        {gf}:
        s_load_dwordx16 s[36:51], s[26:27], 0 glc
        s_load_dwordx16 s[52:67], s[26:27], 64 glc
        s_load_dwordx16 s[68:83], s[26:27], 128 glc
        s_load_dwordx16 s[84:99], s[26:27], 192 glc
        s_add_u32 s35, s35, 1
        s_waitcnt lgkmcnt(0)""")
        for i in range(38, 100, 2):
            a(f"s_and_b64 s[36:37], s[36:37], s[{i}:{i+1}]")
        a(f"""s_and_b32 s36, s36, s37
        s_and_b32 s36, s36, 0x80808080
        s_cmp_eq_u32 s36, 0x80808080
        s_cbranch_scc1 {gfd}
        s_cmp_lt_u32 s35, {SPIN}
        s_cbranch_scc1 {gf}
        {gfd}:
        s_lshl_b32 s35, s30, 5
        s_load_dwordx8 s[36:43], s[26:27], s35 glc
        s_waitcnt lgkmcnt(0)
        s_mov_b32 s35, 1""")
        for i in range(36, 44):
            a(f"s_cmp_eq_u32 s{i}, s2\ns_cselect_b32 s35, s35, 0")
        if not p["fast"]:
            a("s_mov_b32 s35, 0")
        a(f"""v_mov_b32 v2, 0
        v_mov_b32 v3, s35
        ds_write_b32 v2, v3 offset:{L_FL}""")
        a.stamp(7)
        a(f"""s_barrier
        ds_read_b128 v[36:39], v2 offset:{L_ML}
        ds_read_b128 v[40:43], v2 offset:{L_ML+16}
        s_mov_b32 s38, {hx(LOG2E)}
        s_waitcnt lgkmcnt(0)
        v_max3_f32 v44, v36, v38, v40
        v_max_f32 v44, v44, v42""")
        for i in range(4):
            a(f"v_sub_f32 v{36+2*i}, v{36+2*i}, v44")
        for i in range(4):
            a(f"v_mul_f32 v{36+2*i}, s38, v{36+2*i}")
        for i in range(4):
            a(f"v_exp_f32 v{36+2*i}, v{36+2*i}")
        a("""v_mul_f32 v45, v36, v37
        v_fmac_f32 v45, v38, v39
        v_fmac_f32 v45, v40, v41
        v_fmac_f32 v45, v42, v43
        global_store_dwordx2 v22, v[44:45], s[28:29] sc1""")
        a.stamp(8)
        ml = a.lab("ml"); mld = a.lab("ml_ok")
        a(f"""s_lshl_b32 s35, s32, 7
        s_and_b32 s36, s33, 4
        s_lshl_b32 s36, s36, 3
        s_add_u32 s35, s35, s36
        s_add_u32 s35, s35, {ML}
        s_mov_b32 s42, 0
        {ml}:
        s_load_dwordx8 s[44:51], s[28:29], s35 glc
        s_add_u32 s42, s42, 1
        s_waitcnt lgkmcnt(0)
        s_max_u32 s36, s44, s45""")
        for i in range(46, 52):
            a(f"s_max_u32 s36, s36, s{i}")
        a(f"""s_cmp_lg_u32 s36, -1
        s_cbranch_scc1 {mld}
        s_cmp_lt_u32 s42, {SPIN}
        s_cbranch_scc1 {ml}
        {mld}:
        v_mov_b32 v36, s44
        v_max_f32 v36, s46, v36
        v_max_f32 v36, s48, v36
        v_max_f32 v36, s50, v36""")
        for i in range(4):
            a(f"v_sub_f32 v{38+i}, s{44+2*i}, v36")
        a("v_sub_f32 v42, v44, v36")
        for i in range(5):
            a(f"v_mul_f32 v{38+i}, s38, v{38+i}")
        for i in range(5):
            a(f"v_exp_f32 v{38+i}, v{38+i}")
        a("""v_mul_f32 v36, s45, v38
        v_fmac_f32 v36, s47, v39
        v_fmac_f32 v36, s49, v40
        v_fmac_f32 v36, s51, v41
        v_rcp_f32 v36, v36
        v_mul_f32 v46, v42, v36""")
        a.stamp(9)
        a("s_barrier")
        for u in range(4):
            a(f"ds_read2st64_b64 v[{48+4*u}:{51+4*u}], v1 offset0:{L_RED//512 + 2*u} offset1:{L_RED//512 + 2*u + 1}")
        osl = a.lab("op_slow"); osd = a.lab("op_done")
        a(f"""s_waitcnt lgkmcnt(2)
        v_pk_add_f32 v[48:49], v[48:49], v[50:51]
        v_pk_add_f32 v[52:53], v[52:53], v[54:55]
        s_waitcnt lgkmcnt(0)
        v_pk_add_f32 v[56:57], v[56:57], v[58:59]
        v_pk_add_f32 v[60:61], v[60:61], v[62:63]
        v_pk_add_f32 v[48:49], v[48:49], v[52:53]
        v_pk_add_f32 v[56:57], v[56:57], v[60:61]
        v_pk_add_f32 v[48:49], v[48:49], v[56:57]
        v_pk_mul_f32 v[48:49], v[48:49], v[46:47] op_sel_hi:[1,0]
        s_cmp_eq_u32 s31, 0
        s_cbranch_scc1 {osl}
        global_store_dwordx2 v21, v[48:49], s[28:29]
        s_branch {osd}
        {osl}:
        global_store_dwordx2 v21, v[48:49], s[28:29] sc1
        {osd}:""")
        a.stamp(10)
        a(f"""s_cmp_ge_u32 s33, 5
        s_cbranch_scc1 L_mlp
        v_lshlrev_b32 v2, 4, v0
        s_barrier""")
        for u in range(4):
            a(f"ds_read_b128 v[{48+4*u}:{51+4*u}], v2 offset:{L_RED2 + 1024*u}")
        a("""s_waitcnt lgkmcnt(2)
        v_pk_add_f32 v[48:49], v[48:49], v[52:53]
        v_pk_add_f32 v[50:51], v[50:51], v[54:55]
        s_waitcnt lgkmcnt(0)
        v_pk_add_f32 v[56:57], v[56:57], v[60:61]
        v_pk_add_f32 v[58:59], v[58:59], v[62:63]
        v_pk_add_f32 v[48:49], v[48:49], v[56:57]
        v_pk_add_f32 v[50:51], v[50:51], v[58:59]
        global_store_dwordx4 v23, v[48:51], s[28:29] sc1""")
        a.stamp(11)
        a.finish()

        a("L_mlp:")
        go = a.lab("mlp_go")
        a(f"""s_and_b32 s35, s32, 3
        s_cmp_lg_u32 s35, 3
        s_cbranch_scc1 {go}""")
        a.finish()
        W2R = 80
        B1R = 104
        a(f"""{go}:
        s_mul_i32 s35, s35, 3
        s_add_u32 s35, s35, s33
        s_mul_i32 s36, s30, 9
        s_add_u32 s35, s35, s36
        s_sub_u32 s35, s35, 5
        s_mul_i32 s36, s3, {128*3456}
        s_mul_i32 s37, s35, 48
        s_add_u32 s36, s36, s37
        s_mul_i32 s37, s3, 6144
        s_add_u32 s37, s37, {L_W1}
        s_mov_b32 s38, 0x55555556""")
        for q in range(3):
            a(f"""v_add_u32 v2, {64*q}, v0
            v_mul_hi_u32 v3, s38, v2
            v_mul_u32_u24 v12, 3, v3
            v_sub_u32 v2, v2, v12
            v_mul_u32_u24 v3, 3456, v3
            v_lshl_add_u32 v2, v2, 4, v3
            v_add_u32 v{16+q}, s36, v2""")
        for q in range(6):
            if q == 3:
                for z in range(3):
                    a(f"v_add_u32 v{16+z}, {64*3456}, v{16+z}")
            a(f"s_add_u32 m0, s37, {1024*q}")
            a(f"global_load_lds_dwordx4 v{16+q%3}, s[16:17] {nt}")
        a(f"""s_mul_i32 s36, s35, 24
        s_add_u32 s38, s36, 3
        s_mul_i32 s38, s38, 1280
        s_lshl_b32 s39, s3, 8
        s_add_u32 s38, s38, s39
        v_lshrrev_b32 v2, 4, v0
        v_mul_u32_u24 v3, {6*1280}, v2
        v_and_b32 v12, 15, v0
        v_lshl_add_u32 v3, v12, 4, v3
        v_add_u32 v3, s38, v3""")
        for t in range(6):
            a(f"global_load_dwordx4 v[{W2R+4*t}:{W2R+4*t+3}], v3, s[20:21] offset:{(t-3)*1280} {nt}")
        a(f"""v_and_b32 v3, 7, v0
        v_min_u32 v3, 5, v3
        v_mad_u32_u24 v3, v2, 6, v3
        v_add_u32 v12, s36, v3
        v_lshlrev_b32 v12, 1, v12
        global_load_ushort v20, v12, s[18:19]
        v_lshlrev_b32 v3, 3, v3
        v_bfe_u32 v12, v0, 3, 1
        v_lshl_add_u32 v21, v12, 2, v3""")
        a(f"""v_and_b32 v3, 7, v0
        v_lshl_add_u32 v3, v2, 3, v3
        s_lshl_b32 s38, s3, 8
        v_lshl_add_u32 v22, v3, 3, s38
        v_and_b32 v3, 1, v0
        v_mul_u32_u24 v3, {YS}, v3
        v_lshl_add_u32 v3, v2, 4, v3
        v_and_b32 v12, 2, v0
        v_lshl_add_u32 v3, v12, 5, v3
        v_add_u32 v23, s38, v3
        v_bfe_u32 v3, v0, 2, 2
        v_lshl_add_u32 v3, v2, 3, v3
        v_lshl_add_u32 v3, v12, 4, v3
        v_mul_u32_u24 v3, 48, v3
        v_and_b32 v12, 1, v0
        v_lshl_add_u32 v3, v12, 3, v3
        v_add_u32 v24, s37, v3
        s_mul_i32 s38, s35, 5120
        s_lshl_b32 s39, s3, 9
        s_add_u32 s38, s38, s39
        s_add_u32 s38, s38, {CP}
        v_and_b32 v2, 15, v0
        v_lshlrev_b32 v2, 5, v2
        v_and_b32 v3, 16, v0
        v_add_u32 v2, v2, v3
        v_lshrrev_b32 v3, 5, v0
        v_mul_u32_u24 v3, 2560, v3
        v_add3_u32 v25, v2, v3, s38
        s_waitcnt vmcnt(7)""")
        for kk in range(2):
            for cg in range(3):
                for hf_ in range(2):
                    r = B1R + 4 * (3 * kk + cg) + 2 * hf_
                    a(f"ds_read_b64_tr_b16 v[{r}:{r+1}], v24 offset:{(64*kk + 4*hf_)*48 + 16*cg}")
        a("s_waitcnt vmcnt(0) lgkmcnt(0)")
        a("v_lshlrev_b32 v20, 16, v20")
        a.stamp(12)
        noln = a.lab("noln")
        a(f"""s_cmp_ge_u32 s3, 2
        s_cbranch_scc1 {noln}
        s_lshl_b32 s36, s30, 13
        s_mul_i32 s38, s3, 2560
        s_add_u32 s36, s36, s38
        s_add_u32 s36, s36, {HB}
        v_lshl_add_u32 v2, v0, 4, s36
        v_lshl_add_u32 v3, v0, 3, s36
        s_mul_i32 s36, s3, {YS}
        v_lshl_add_u32 v26, v0, 3, s36
        v_lshl_add_u32 v27, v0, 2, s36""")

        def ldH():
            a("global_load_dwordx4 v[28:31], v2, s[28:29] sc1")
            a("global_load_dwordx4 v[32:35], v2, s[28:29] offset:1024 sc1")
            a("global_load_dwordx2 v[36:37], v3, s[28:29] offset:2048 sc1")
        a.poll("hb", ldH, list(range(28, 38)), 12)
        a.stamp(13)
        a.ln(28, 40, 46, True)
        a.ln(28, 40, 46, False)
        a(f"""ds_write_b64 v26, v[40:41] offset:{L_Y}
        ds_write_b64 v26, v[42:43] offset:{L_Y + 512}
        ds_write_b32 v27, v44 offset:{L_Y + 1024}
        s_waitcnt lgkmcnt(0)
        {noln}:
        s_barrier
        ds_read_b128 v[28:31], v23 offset:{L_Y}
        ds_read_b128 v[32:35], v23 offset:{L_Y + 128}""")
        a("s_waitcnt lgkmcnt(1)")
        for cg in range(3):
            a(f"v_mfma_f32_16x16x32_bf16 v[{36+4*cg}:{39+4*cg}], v[28:31], v[{B1R+4*cg}:{B1R+4*cg+3}], 0")
        a("s_waitcnt lgkmcnt(0)")
        for cg in range(3):
            a(f"v_mfma_f32_16x16x32_bf16 v[{36+4*cg}:{39+4*cg}], v[32:35], v[{B1R+12+4*cg}:{B1R+12+4*cg+3}], v[{36+4*cg}:{39+4*cg}]")
        for cg in range(3):
            for b_ in range(2):
                a(f"v_add_f32_dpp v{48+b_}, v{36+4*cg+2+b_}, v{36+4*cg+b_} row_ror:8 row_mask:{hex(1<<cg)} bank_mask:0xf")
        a(f"""s_mov_b32 exec_lo, 0x00ff00ff
        s_mov_b32 exec_hi, 0x000000ff
        ds_write_b64 v22, v[48:49] offset:{L_T1}
        s_mov_b64 exec, -1
        s_waitcnt lgkmcnt(0)
        s_barrier
        ds_read2st64_b32 v[28:29], v21 offset0:{L_T1//256} offset1:{L_T1//256+1}
        ds_read2st64_b32 v[30:31], v21 offset0:{L_T1//256+2} offset1:{L_T1//256+3}
        ds_read_b32 v32, v21 offset:{L_T1 + 1024}
        s_waitcnt lgkmcnt(1)
        v_pk_add_f32 v[28:29], v[28:29], v[30:31]
        v_add_f32 v28, v28, v29
        s_waitcnt lgkmcnt(0)
        v_add_f32 v28, v28, v32
        v_cvt_pk_bf16_f32 v28, v28, v28
        v_lshlrev_b32 v28, 16, v28
        v_add_f32 v28, v28, v20
        v_cvt_pk_bf16_f32 v28, v28, v28
        v_lshlrev_b32 v28, 16, v28
        v_mul_f32 v29, v28, v28
        v_mul_f32 v30, {hx(-2.0*math.sqrt(2.0/math.pi)*LOG2E)}, v28
        v_fmaak_f32 v29, {hx(0.044715)}, v29, 0x3f800000""" if False else f"""s_mov_b32 exec_lo, 0x00ff00ff
        s_mov_b32 exec_hi, 0x000000ff
        ds_write_b64 v22, v[48:49] offset:{L_T1}
        s_mov_b64 exec, -1
        v_mov_b32 v33, 1.0
        s_waitcnt lgkmcnt(0)
        s_barrier
        ds_read2st64_b32 v[28:29], v21 offset0:{L_T1//256} offset1:{L_T1//256+1}
        ds_read2st64_b32 v[30:31], v21 offset0:{L_T1//256+2} offset1:{L_T1//256+3}
        ds_read_b32 v32, v21 offset:{L_T1 + 1024}
        s_waitcnt lgkmcnt(1)
        v_pk_add_f32 v[28:29], v[28:29], v[30:31]
        v_add_f32 v28, v28, v29
        s_waitcnt lgkmcnt(0)
        v_add_f32 v28, v28, v32
        v_cvt_pk_bf16_f32 v28, v28, v28
        v_lshlrev_b32 v28, 16, v28
        v_add_f32 v28, v28, v20
        v_cvt_pk_bf16_f32 v28, v28, v28
        v_lshlrev_b32 v28, 16, v28
        v_mul_f32 v29, v28, v28
        v_mul_f32 v30, {hx(-2.0*math.sqrt(2.0/math.pi)*LOG2E)}, v28
        v_fmamk_f32 v29, v29, {hx(0.044715)}, v33
        v_mul_f32 v29, v29, v30
        v_exp_f32 v29, v29
        v_add_f32 v29, 1.0, v29
        v_rcp_f32 v29, v29
        v_mul_f32 v28, v28, v29
        v_mov_b32_dpp v29, v28 quad_perm:[1,1,3,3] row_mask:0xf bank_mask:0xf
        v_cvt_pk_bf16_f32 v28, v28, v29
        v_mov_b32_dpp v32, v28 quad_perm:[0,0,0,0] row_mask:0xf bank_mask:0xf
        v_mov_b32_dpp v33, v28 quad_perm:[2,2,2,2] row_mask:0xf bank_mask:0xf
        v_mov_b32_dpp v34, v28 quad_perm:[0,0,0,0] row_mask:0xf bank_mask:0xf
        v_mov_b32_dpp v34, v32 row_half_mirror row_mask:0xf bank_mask:0x5
        v_mov_b32_dpp v33, v33 row_half_mirror row_mask:0xf bank_mask:0xa
        v_mov_b32_dpp v32, v32 row_half_mirror row_mask:0xf bank_mask:0xa""")
        order = [4, 5, 2, 3, 0, 1]
        a.frag(48, 32 + order[0] // 2, order[0] & 1)
        for i, t in enumerate(order):
            if i + 1 < 6:
                a.frag(48 + 4 * (i + 1), 32 + order[i + 1] // 2, order[i + 1] & 1)
            c = "0" if i == 0 else "v[44:47]"
            a(f"v_mfma_f32_16x16x32_bf16 v[44:47], v[{48+4*i}:{51+4*i}], v[{W2R+4*t}:{W2R+4*t+3}], {c}")
        a("global_store_dwordx4 v25, v[44:47], s[28:29] sc1")
        a.stamp(14)
        a.finish()
        if self.diag:
            a(f"""L_dump:
            s_mov_b64 exec, -1
            s_lshl_b32 s35, s34, 3
            s_add_u32 s35, s35, s3
            s_lshl_b32 s35, s35, 8
            s_add_u32 s35, s35, {STAMP}
            v_lshl_add_u32 v2, v0, 2, s35
            global_store_dword v2, v255, s[28:29]""")
        a("L_exit:")
        a("s_endpgm")
        a("L_codeend:")

    def write(self, fn):
        self.build()
        body = process(self.L)
        hdr = open("cdna_kernels/" + NAME + ".s.ref").read().split("; Override launch")[0] if False else ""
        H = [f"; fused decode block: one persistent launch, 256 workgroups x 5 waves (generated by gen/gen1.py)",
             f"; @launch grid=(256,1,1) block=(320,1,1) lds={LDS_SIZE}",
             '.amdgcn_target "amdgcn-amd-amdhsa--gfx950"', ".text", f".globl {NAME}_kernel", ".p2align 8",
             f".type {NAME}_kernel,@function", f"{NAME}_kernel:"]
        T = ['.section .rodata,"a"', ".p2align 6", f".amdhsa_kernel {NAME}_kernel",
             "  .amdhsa_next_free_vgpr 256", "  .amdhsa_next_free_sgpr 102", "  .amdhsa_accum_offset 256",
             "  .amdhsa_group_segment_fixed_size 0", "  .amdhsa_kernarg_size 104", "  .amdhsa_user_sgpr_count 2",
             "  .amdhsa_user_sgpr_kernarg_segment_ptr 1", "  .amdhsa_system_sgpr_workgroup_id_x 1",
             "  .amdhsa_float_denorm_mode_32 3", "  .amdhsa_float_denorm_mode_16_64 3", ".end_amdhsa_kernel"]
        lines = [(l if l.endswith(":") else "    " + l) for l in body]
        open(fn, "w").write(hdr + "\n".join(H + lines + T) + "\n")


if __name__ == "__main__":
    out = sys.argv[1] if len(sys.argv) > 1 else "k1.s"
    kw = {}
    diag = False
    for x in sys.argv[2:]:
        if x == "diag":
            diag = True
        else:
            k, v = x.split("=")
            kw[k] = eval(v)
    G(diag=diag, **kw).write(out)
```

```python
import sys, struct, math
from hz import process
from gen1 import G as G1, hx, NAME, LOG2E, SPIN

QP = 0x00000
OP = 0x40000
ML = 0x60000
FL = 0x62000
EP = 0x64000
AP = 0x70000
HB = 0xA0000
CP = 0xB0000
STAMP = 0x8000000
L_Y = 0x0000; YS = 1408
L_Q = 0x0B00; L_ML = 0x0C00; L_FL = 0x0C40
L_RED = 0x1000; L_RED2 = 0x2000; L_T1 = 0x3000
L_W1 = 0x4000
LDS_SIZE = L_W1 + 5 * 8192

class G(G1):
    def __init__(self, diag=False, **kw):
        super().__init__(diag=diag)
        self.p = dict(paceK=8, paceV=0, paceVn=16, split=(3, 3, 2), fast=True, prefetch=True, nt="nt", prio=3, polls=0)
        self.p.update(kw)

    def dlayout(self, dst, t, bstride_shift=None, bstride=None):
        a = self
        a(f"""v_and_b32 v{dst}, 15, v0
        v_lshlrev_b32 v{dst}, 5, v{dst}
        v_and_b32 v{t}, 16, v0
        v_add_u32 v{dst}, v{dst}, v{t}
        v_lshrrev_b32 v{t}, 5, v0
        v_mul_u32_u24 v{t}, {bstride}, v{t}
        v_add_u32 v{dst}, v{dst}, v{t}""")

    def mirror4(self):
        self("""v_mov_b32 v34, v32
        v_mov_b32 v35, v33
        v_mov_b32_dpp v34, v32 row_half_mirror row_mask:0xf bank_mask:0x5
        v_mov_b32_dpp v35, v33 row_half_mirror row_mask:0xf bank_mask:0x5
        v_mov_b32_dpp v32, v32 row_half_mirror row_mask:0xf bank_mask:0xa
        v_mov_b32_dpp v33, v33 row_half_mirror row_mask:0xf bank_mask:0xa""")

    def diag8(self, WR):
        a = self
        order = [4, 5, 6, 7, 0, 1, 2, 3]
        a.frag(48, 32 + order[0] // 2, order[0] & 1)
        for i, t in enumerate(order):
            if i + 1 < 8:
                a.frag(48 + 4 * (i + 1), 32 + order[i + 1] // 2, order[i + 1] & 1)
            c = "0" if i == 0 else "v[44:47]"
            a(f"v_mfma_f32_16x16x32_bf16 v[44:47], v[{48+4*i}:{51+4*i}], v[{WR+4*t}:{WR+4*t+3}], {c}")

    def w1_setup(self):
        self(f"""s_mul_i32 s36, s3, {128*3456}
        s_lshl_b32 s37, s39, 6
        s_add_u32 s36, s36, s37
        s_lshl_b32 s37, s3, 13
        s_add_u32 s37, s37, {L_W1}
        v_lshrrev_b32 v2, 2, v0
        v_mul_u32_u24 v2, 3456, v2
        v_and_b32 v3, 3, v0
        v_lshl_add_u32 v2, v3, 4, v2
        v_add_u32 v14, s36, v2""")

    def w1_load(self, q):
        self(f"""s_add_u32 m0, s37, {1024*q}
        global_load_lds_dwordx4 v14, s[16:17] {self.p['nt']}
        v_add_u32 v14, {16*3456}, v14""")

    def build(self):
        a = self
        p = self.p
        nt = p["nt"]
        a(f"""
        s_cmp_ge_u32 s2, 256
        s_cbranch_scc1 L_exit
        s_load_dwordx16 s[4:19], s[0:1], 0
        s_load_dwordx8 s[20:27], s[0:1], 64
        s_load_dwordx2 s[28:29], s[0:1], 96
        v_lshrrev_b32 v1, 6, v0
        v_and_b32 v0, 63, v0
        v_readfirstlane_b32 s3, v1
        s_and_b32 s30, s2, 7
        s_lshr_b32 s31, s2, 3
        s_lshl_b32 s34, s30, 5
        s_add_u32 s34, s34, s31
        s_lshr_b32 s32, s34, 3
        s_and_b32 s33, s34, 7
        """)
        if self.diag:
            a("v_mov_b32 v255, 0")
            a("s_memrealtime s[100:101]")
        a("""s_sub_u32 s3, s3, 1
        s_cbranch_scc0 L_att""")
        roles = """s_and_b32 s35, s32, 3
        s_mul_i32 s35, s35, 3
        s_add_u32 s35, s35, s33
        s_sub_u32 s35, s35, 5
        s_and_b32 s39, s35, 1
        s_andn2_b32 s35, s35, 1
        s_lshl_b32 s35, s35, 2
        s_add_u32 s35, s35, s30
        s_cmp_lt_u32 s35, 27
        s_cselect_b32 s31, 1, 2
        s_lshl_b32 s35, s35, 1
        s_add_u32 s39, s39, s35
        s_cmp_lt_u32 s33, 5
        s_cselect_b32 s31, 0, s31"""
        if p["prio"]:
            a(f"s_setprio {p['prio']}")
        a("s_mov_b32 s3, 4")
        npre = 0
        if p["prefetch"]:
            a(f"""s_getpc_b64 s[36:37]
            L_pc:
            s_sub_u32 s36, s36, L_pc-{NAME}_kernel
            s_subb_u32 s37, s37, 0
            v_lshlrev_b32 v1, 7, v0
            global_load_dword v254, v1, s[36:37]
            v_add_u32 v1, 8192, v1
            v_min_u32 v1, L_codeend-{NAME}_kernel-4, v1
            global_load_dword v253, v1, s[36:37]""")
        WQ = 80
        a(f"""
        v_lshlrev_b32 v1, 3, v0
        v_lshlrev_b32 v2, 2, v0
        s_mul_i32 s35, s33, {80*8192}
        s_lshl_b32 s38, s32, 8
        s_add_u32 s35, s35, s38
        v_lshrrev_b32 v3, 4, v0
        v_mul_u32_u24 v3, {20*8192}, v3
        v_and_b32 v12, 15, v0
        v_lshl_add_u32 v3, v12, 4, v3
        v_add_u32 v3, s35, v3
        v_mov_b32 v12, {EP}
        v_mov_b32 v16, -1
        v_mov_b32 v17, -1
        v_mov_b32 v18, -1
        v_mov_b32 v19, -1
        s_lshl_b32 s35, s34, 10
        v_lshl_add_u32 v20, v0, 4, s35
        s_lshl_b32 s35, s34, 9
        s_add_u32 s35, s35, {OP}
        v_lshl_add_u32 v21, v0, 3, s35
        s_movk_i32 s38, 0x2000
        s_waitcnt lgkmcnt(0)
        """)
        if self.diag:
            a("v_writelane_b32 v255, s100, 0")
        a.stamp(16)
        a(f"""global_load_dword v15, v12, s[28:29] sc1
        global_store_dwordx4 v20, v[16:19], s[28:29] sc1
        global_store_dwordx2 v21, v[16:17], s[28:29] sc1
        global_load_dwordx2 v[24:25], v1, s[4:5]
        global_load_dwordx2 v[26:27], v1, s[4:5] offset:512
        global_load_dword v28, v2, s[4:5] offset:1024
        global_load_dwordx2 v[30:31], v1, s[4:5] offset:1280
        global_load_dwordx2 v[32:33], v1, s[4:5] offset:1792
        global_load_dword v34, v2, s[4:5] offset:2304""")
        for t in range(20):
            if t:
                a("v_add_u32 v3, s38, v3")
            a(f"global_load_dwordx4 v[{WQ+4*t}:{WQ+4*t+3}], v3, s[10:11] {nt}")
        a("s_branch L_ctrl")
        a(f"""L_att:
        s_lshr_b32 s35, s33, 2
        s_lshl_b32 s35, s35, 5
        s_add_u32 s35, s35, s32
        s_lshl_b32 s35, s35, 4
        s_and_b32 s36, s33, 3
        s_add_u32 s35, s35, s36
        s_add_u32 s35, s35, 12
        s_lshl_b32 s35, s35, 2
        s_add_u32 s35, s35, s3
        s_lshl_b32 s35, s35, 14
        s_add_u32 s35, s35, 4096
        v_bfe_u32 v1, v0, 2, 2
        v_lshlrev_b32 v1, 8, v1
        v_lshrrev_b32 v2, 4, v0
        v_lshl_add_u32 v1, v2, 6, v1
        v_and_b32 v2, 3, v0
        v_lshl_add_u32 v1, v2, 4, v1
        v_add_u32 v1, s35, v1
        v_lshl_add_u32 v14, v0, 4, s35
        s_waitcnt lgkmcnt(0)
        """)
        if self.diag:
            a("v_writelane_b32 v255, s100, 0")
        a.stamp(16)
        KR, VR, DR = 16, 80, 144
        for t in range(16):
            if t == 8:
                a("v_add_u32 v1, 8192, v1")
            if p["paceK"] and t >= p["paceK"]:
                a(f"s_waitcnt vmcnt({p['paceK']-1})")
            a(f"global_load_dwordx4 v[{KR+4*t}:{KR+4*t+3}], v1, s[6:7] offset:{(t%8)*1024-4096} {nt}")
        for t in range(16):
            if t == 8:
                a("v_add_u32 v14, 8192, v14")
            if p["paceV"] and t < p["paceVn"]:
                a(f"s_waitcnt vmcnt({p['paceV']-1})")
            a(f"global_load_dwordx4 v[{VR+4*t}:{VR+4*t+3}], v14, s[8:9] offset:{(t%8)*1024-4096} {nt}")
        a.stamp(1)
        a.selectors()
        a(roles)
        WOR = 208
        setd = a.lab("setd")
        a.w1_setup()
        a(f"""
        s_cmp_lg_u32 s31, 0
        s_cbranch_scc1 {setd}
        s_lshl_b32 s36, s32, 2
        s_add_u32 s36, s36, s3
        s_lshl_b32 s36, s36, 5
        s_add_u32 s36, s36, 3
        s_mul_i32 s36, s36, 1280
        s_lshl_b32 s37, s33, 8
        s_add_u32 s36, s36, s37
        v_lshrrev_b32 v2, 4, v0
        v_mul_u32_u24 v2, 10240, v2
        v_and_b32 v3, 15, v0
        v_lshl_add_u32 v2, v3, 4, v2
        v_add_u32 v14, s36, v2
        {setd}:
        v_add_u32 v15, 5120, v14
        v_lshrrev_b32 v2, 4, v0
        v_and_b32 v3, 3, v0
        v_lshl_add_u32 v2, v2, 2, v3
        v_lshlrev_b32 v2, 4, v2
        s_barrier
        """)
        a.stamp(2)
        a(f"ds_read_b128 v[240:243], v2 offset:{L_Q}")
        tl_done = 0

        def tail_loads(k):
            nonlocal tl_done
            if k == 0:
                return
            sk = a.lab("tl_end"); m1 = a.lab("tl_mlp")
            a(f"s_cmp_eq_u32 s31, 1\ns_cbranch_scc1 {m1}\ns_cmp_eq_u32 s31, 2\ns_cbranch_scc1 {sk}")
            for t in range(tl_done, tl_done + k):
                if t < 7:
                    a(f"global_load_dwordx4 v[{WOR+4*t}:{WOR+4*t+3}], v14, s[12:13] offset:{(t-3)*1280} {nt}")
                else:
                    a(f"global_load_dwordx4 v[{WOR+4*t}:{WOR+4*t+3}], v15, s[12:13] {nt}")
            a(f"s_branch {sk}\n{m1}:")
            for t in range(tl_done, tl_done + k):
                a.w1_load(t)
            a(f"{sk}:")
            tl_done += k
        a("s_waitcnt vmcnt(16)")
        tail_loads(p["split"][0])
        a("s_waitcnt lgkmcnt(0)")
        for t in range(16):
            a(f"v_mfma_f32_16x16x32_bf16 v[{DR+4*t}:{DR+4*t+3}], v[{KR+4*t}:{KR+4*t+3}], v[240:243], 0")
        SR = 16
        for grp in range(4):
            ts = range(4 * grp, 4 * grp + 4)
            for t in ts:
                a(f"v_mov_b32_dpp v{SR+t}, v{DR+4*t} quad_perm:[0,0,0,0] row_mask:0xf bank_mask:0xf")
            for r in (1, 2, 3):
                for t in ts:
                    a(f"v_add_f32_dpp v{SR+t}, v{DR+4*t+r}, v{SR+t} quad_perm:[{r},{r},{r},{r}] row_mask:0xf bank_mask:0xf")
        tail_loads(p["split"][1])
        PK = 32
        a(f"s_mov_b32 s40, {hx(128 ** -0.5)}")
        for rnd in range(2):
            for u in range(8):
                a(f"v_cvt_pk_bf16_f32 v{PK+u}, v{SR+2*u}, v{SR+2*u+1}")
            for u in range(8):
                a(f"v_lshlrev_b32 v{SR+2*u}, 16, v{PK+u}")
                a(f"v_and_b32 v{SR+2*u+1}, 0xffff0000, v{PK+u}")
            if rnd == 0:
                for u in range(8):
                    a(f"v_pk_mul_f32 v[{SR+2*u}:{SR+2*u+1}], v[{SR+2*u}:{SR+2*u+1}], s[40:41] op_sel_hi:[1,0]")
        a(f"v_max3_f32 v40, v{SR}, v{SR+1}, v{SR+2}")
        a(f"v_max3_f32 v41, v{SR+3}, v{SR+4}, v{SR+5}")
        for i in range(6, 14, 4):
            a(f"v_max3_f32 v40, v40, v{SR+i}, v{SR+i+1}")
            a(f"v_max3_f32 v41, v41, v{SR+i+2}, v{SR+i+3}")
        a(f"v_max3_f32 v40, v40, v{SR+14}, v{SR+15}")
        a("""v_max_f32 v40, v40, v41
        v_mov_b32 v41, v40
        v_permlane32_swap_b32 v40, v41
        v_max_f32 v40, v40, v41
        v_mov_b32 v41, v40
        v_permlane16_swap_b32 v40, v41
        v_max_f32 v40, v40, v41""")
        a(f"s_mov_b32 s40, {hx(LOG2E)}")
        for u in range(8):
            a(f"v_pk_add_f32 v[{SR+2*u}:{SR+2*u+1}], v[{SR+2*u}:{SR+2*u+1}], v[40:41] op_sel_hi:[1,0] neg_lo:[0,1] neg_hi:[0,1]")
        for u in range(8):
            a(f"v_pk_mul_f32 v[{SR+2*u}:{SR+2*u+1}], v[{SR+2*u}:{SR+2*u+1}], s[40:41] op_sel_hi:[1,0]")
        for t in range(16):
            a(f"v_exp_f32 v{SR+t}, v{SR+t}")
        a(f"v_pk_add_f32 v[42:43], v[{SR}:{SR+1}], v[{SR+2}:{SR+3}]")
        for u in range(2, 8):
            a(f"v_pk_add_f32 v[42:43], v[42:43], v[{SR+2*u}:{SR+2*u+1}]")
        a(f"""v_add_f32 v42, v42, v43
        v_mov_b32 v43, v42
        v_permlane32_swap_b32 v42, v43
        v_add_f32 v42, v42, v43
        v_mov_b32 v43, v42
        v_permlane16_swap_b32 v42, v43
        v_add_f32 v41, v42, v43
        s_lshl_b32 s36, s3, 3
        v_mov_b32 v2, s36
        ds_write_b64 v2, v[40:41] offset:{L_ML}
        v_mov_b32 v2, 0
        s_waitcnt lgkmcnt(0)
        s_barrier
        ds_read_b128 v[44:47], v2 offset:{L_ML}
        ds_read_b128 v[48:51], v2 offset:{L_ML+16}""")
        a.stamp(3)
        tail_loads(p["split"][2])
        assert tl_done == 8
        a(f"""s_waitcnt lgkmcnt(0)
        v_max3_f32 v44, v44, v46, v48
        v_max_f32 v44, v44, v50
        v_sub_f32 v44, v40, v44
        v_mul_f32 v44, s40, v44
        v_exp_f32 v44, v44
        v_and_b32 v2, 8, v0
        v_cmp_eq_u32 vcc, 8, v2""")
        for u in range(8):
            a(f"v_pk_mul_f32 v[{SR+2*u}:{SR+2*u+1}], v[{SR+2*u}:{SR+2*u+1}], v[44:45] op_sel_hi:[1,0]")
        for u in range(8):
            a(f"v_cvt_pk_bf16_f32 v{PK+u}, v{SR+2*u}, v{SR+2*u+1}")
        for u in range(8):
            a(f"v_lshlrev_b32 v{44+2*(u%4)}, 16, v{PK+u}")
            a(f"v_and_b32 v{45+2*(u%4)}, 0xffff0000, v{PK+u}")
            a(f"v_pk_add_f32 v[{SR+2*u}:{SR+2*u+1}], v[{SR+2*u}:{SR+2*u+1}], v[{44+2*(u%4)}:{45+2*(u%4)}] neg_lo:[0,1] neg_hi:[0,1]")
        for u in range(8):
            a(f"v_cvt_pk_bf16_f32 v{SR+2*u}, v{SR+2*u}, v{SR+2*u+1}")
        for u in range(8):
            a(f"v_cndmask_b32 v{PK+u}, v{PK+u}, v{SR+2*u}, vcc")
        for t in range(16):
            a.frag(DR + 4 * t, PK + t // 2, t & 1)
        a.dlayout(1, 3, bstride=512)
        a("s_lshl_b32 s36, s3, 10\nv_add_u32 v1, s36, v1")
        a(f"""
        s_lshl_b32 s36, s32, 12
        s_lshl_b32 s35, s3, 7
        s_add_u32 s36, s36, s35
        s_add_u32 s36, s36, {OP}
        v_and_b32 v2, 8, v0
        v_lshlrev_b32 v2, 8, v2
        v_and_b32 v3, 3, v0
        v_lshl_add_u32 v2, v3, 9, v2
        v_lshrrev_b32 v3, 4, v0
        v_lshl_add_u32 v2, v3, 5, v2
        v_and_b32 v3, 4, v0
        v_lshl_add_u32 v2, v3, 2, v2
        v_add_u32 v16, s36, v2
        s_and_b32 s38, s32, 3
        s_mul_i32 s38, s38, 5
        s_add_u32 s38, s38, s33
        s_lshl_b32 s38, s38, 2
        s_add_u32 s38, s38, s3
        s_lshl_b32 s35, s38, 4
        v_and_b32 v2, 3, v0
        v_lshrrev_b32 v3, 4, v0
        v_lshl_add_u32 v2, v2, 2, v3
        v_add_u32 v18, s35, v2
        v_lshlrev_b32 v19, 1, v18
        s_cmp_ge_u32 s38, 40
        s_cselect_b32 s35, 1280, 0
        v_subrev_u32 v17, s35, v19
        s_lshl_b32 s35, s38, 6
        v_lshrrev_b32 v2, 2, v0
        v_mul_u32_u24 v2, 5120, v2
        v_and_b32 v3, 3, v0
        v_lshl_add_u32 v2, v3, 4, v2
        v_add_u32 v22, s35, v2
        v_add_u32 v23, {AP}, v22
        v_add_u32 v24, {AP + 16*5120}, v22
        s_lshl_b32 s35, s30, 13
        s_add_u32 s35, s35, {HB}
        v_lshl_add_u32 v25, v18, 2, s35
        """)
        a.stamp(4)
        nowo = a.lab("pv_free"); pvd = a.lab("pv_done")
        a(f"s_cmp_eq_u32 s31, 2\ns_cbranch_scc1 {nowo}")
        for extra, lab in ((8, None), (0, nowo)):
            if lab:
                a(f"{lab}:")
            for t in range(16):
                a(f"s_waitcnt vmcnt({15-t+extra})")
                c = "0" if t == 0 else "v[44:47]"
                a(f"v_mfma_f32_16x16x32_bf16 v[44:47], v[{DR+4*t}:{DR+4*t+3}], v[{VR+4*t}:{VR+4*t+3}], {c}")
            if not lab:
                a(f"s_branch {pvd}")
        a(f"{pvd}:")
        a("s_nop 7")
        a(f"""ds_write_b128 v1, v[44:47] offset:{L_RED}
        s_waitcnt lgkmcnt(0)
        s_barrier""")
        a.stamp(5)
        a("""s_cmp_lg_u32 s31, 0
        s_cbranch_scc1 L_mlp""")
        a("""global_load_ushort v20, v19, s[4:5]
        global_load_ushort v21, v17, s[22:23]""")
        a.poll("og", lambda: a("global_load_dwordx4 v[28:31], v16, s[28:29] sc1"), [28, 29, 30, 31], 26)
        a.stamp(6)
        for d in ("quad_perm:[1,0,3,2]", "quad_perm:[2,3,0,1]"):
            for r in range(4):
                a(f"v_add_f32_dpp v{28+r}, v{28+r}, v{28+r} {d} row_mask:0xf bank_mask:0xf")
        a("""v_cvt_pk_bf16_f32 v32, v28, v29
        v_cvt_pk_bf16_f32 v33, v30, v31""")
        a.mirror4()
        a.diag8(WOR)
        a(f"""v_mov_b32 v2, 0
        ds_write_b128 v1, v[44:47] offset:{L_RED2}
        s_waitcnt lgkmcnt(0)
        s_barrier
        ds_read_b64 v[36:37], v2 offset:{L_FL}
        v_lshlrev_b32 v20, 16, v20
        v_lshlrev_b32 v21, 16, v21""")
        a.stamp(7)

        def ldA():
            a("global_load_dwordx4 v[28:31], v23, s[28:29] sc1")
            a("global_load_dwordx4 v[32:35], v24, s[28:29] sc1")
        a.poll("ha", ldA, list(range(28, 36)), 26, waitcnt="vmcnt(0) lgkmcnt(0)")
        a.stamp(8)
        a("v_readfirstlane_b32 s35, v36")
        a("v_pk_add_f32 v[28:29], v[28:29], v[32:33]\nv_pk_add_f32 v[30:31], v[30:31], v[34:35]")
        a.red16(28)
        slow = a.lab("hb_slow"); hbd = a.lab("hb_done")
        a(f"""v_cvt_pk_bf16_f32 v28, v28, v28
        v_lshlrev_b32 v28, 16, v28
        v_add_f32 v28, v28, v20
        v_cvt_pk_bf16_f32 v28, v28, v28
        v_lshlrev_b32 v27, 16, v28
        s_mov_b32 exec_lo, 0x000f000f
        s_mov_b32 exec_hi, 0x000f000f
        s_cmp_eq_u32 s35, 0
        s_cbranch_scc1 {slow}
        global_store_dword v25, v27, s[28:29]
        s_branch {hbd}
        {slow}:
        global_store_dword v25, v27, s[28:29] sc1
        {hbd}:
        s_mov_b64 exec, -1""")
        a.stamp(9)
        fin = a.lab("fin"); nob = a.lab("nobump")
        a(f"""s_and_b32 s35, s38, 7
        s_cmp_eq_u32 s35, s30
        s_cbranch_scc1 {fin}""")
        a.finish()
        a(f"""{fin}:
        s_cmp_lg_u32 s38, 0
        s_cbranch_scc1 {nob}
        v_mov_b32 v2, {EP}
        global_store_dword v2, v37, s[28:29] sc1
        {nob}:""")
        for u in range(4):
            a(f"v_add_u32 v{48+u}, {CP + 16*5120*u}, v22")
        a("v_mov_b32 v40, 0\nv_mov_b32 v41, 0\nv_mov_b32 v42, 0\nv_mov_b32 v43, 0")

        def ldC():
            for u in range(3):
                a(f"global_load_dwordx4 v[{28+4*u}:{31+4*u}], v{48+u}, s[28:29] sc1")
            a("s_mov_b64 exec, 0xffffff")
            a("global_load_dwordx4 v[40:43], v51, s[28:29] sc1")
            a("s_mov_b64 exec, -1")
        a.poll("hc", ldC, list(range(28, 44)), 26)
        a.stamp(10)
        a("""v_pk_add_f32 v[28:29], v[28:29], v[32:33]
        v_pk_add_f32 v[30:31], v[30:31], v[34:35]
        v_pk_add_f32 v[36:37], v[36:37], v[40:41]
        v_pk_add_f32 v[38:39], v[38:39], v[42:43]
        v_pk_add_f32 v[28:29], v[28:29], v[36:37]
        v_pk_add_f32 v[30:31], v[30:31], v[38:39]""")
        a.red16(28)
        a("""v_cvt_pk_bf16_f32 v28, v28, v28
        v_lshlrev_b32 v28, 16, v28
        v_add_f32 v28, v28, v21
        v_cvt_pk_bf16_f32 v28, v28, v28
        v_lshlrev_b32 v28, 16, v28
        v_add_f32 v28, v28, v27
        v_cvt_pk_bf16_f32 v28, v28, v28
        s_mov_b32 exec_lo, 0x000f000f
        s_mov_b32 exec_hi, 0x000f000f
        global_store_short v19, v28, s[24:25]
        s_mov_b64 exec, -1""")
        a.finish()

        a("L_ctrl:")
        a.stamp(1)
        a(roles)
        a(f"""s_lshl_b32 s35, s32, 7
        s_lshl_b32 s38, s33, 3
        s_add_u32 s35, s35, s38
        s_add_u32 s35, s35, {ML}
        v_mov_b32 v22, s35
        global_store_dwordx2 v22, v[16:17], s[28:29] sc1
        s_mul_i32 s35, s32, 5120
        s_lshl_b32 s38, s33, 9
        s_add_u32 s35, s35, s38
        s_add_u32 s35, s35, {AP}
        v_lshrrev_b32 v3, 5, v0
        v_mul_u32_u24 v3, 2560, v3
        v_and_b32 v23, 31, v0
        v_lshl_add_u32 v3, v23, 4, v3
        v_add_u32 v23, s35, v3
        s_cmp_lg_u32 s31, 0
        s_cbranch_scc1 L_clr_mlp
        global_store_dwordx4 v23, v[16:19], s[28:29] sc1
        s_and_b32 s35, s32, 3
        s_mul_i32 s35, s35, 5
        s_add_u32 s35, s35, s33
        s_lshl_b32 s35, s35, 8
        s_lshl_b32 s38, s30, 13
        s_add_u32 s35, s35, s38
        s_add_u32 s35, s35, {HB}
        v_add_u32 v3, s35, v2
        global_store_dword v3, v16, s[28:29] sc1
        s_branch L_clr_done
        L_clr_mlp:
        s_cmp_lg_u32 s31, 1
        s_cbranch_scc1 L_clr_done
        s_mul_i32 s35, s39, 5120
        s_add_u32 s35, s35, {CP + 2048}
        v_lshl_add_u32 v3, v0, 4, s35""")
        for u in range(5):
            a(f"global_store_dwordx4 v3, v[16:19], s[28:29] offset:{u*1024-2048} sc1")
        a("L_clr_done:")
        a.selectors()
        a("s_waitcnt vmcnt(21)")
        a.stamp(2)
        for b_, (src, X) in enumerate(((24, 36), (30, 48))):
            for i in range(5):
                a(f"v_lshlrev_b32 v{X+2*i}, 16, v{src+i}")
                a(f"v_and_b32 v{X+2*i+1}, 0xffff0000, v{src+i}")
            a.ln(X, src, 60, False)
            a(f"""v_lshlrev_b32 v2, 2, v0
            ds_write_b64 v1, v[{src}:{src+1}] offset:{L_Y + b_*YS}
            ds_write_b64 v1, v[{src+2}:{src+3}] offset:{L_Y + b_*YS + 512}
            ds_write_b32 v2, v{src+4} offset:{L_Y + b_*YS + 1024}""")
        a(f"""s_mul_i32 s35, s33, 160
        v_lshrrev_b32 v2, 4, v0
        v_mul_u32_u24 v2, 40, v2
        v_bfe_u32 v3, v0, 3, 1
        v_mul_u32_u24 v3, {YS}, v3
        v_add3_u32 v2, v2, v3, s35
        s_waitcnt lgkmcnt(0)""")
        for i in range(5):
            a(f"ds_read_b64 v[{36+2*i}:{37+2*i}], v2 offset:{L_Y + 8*i}")
        a(f"""v_readfirstlane_b32 s43, v15
        s_getreg_b32 s44, hwreg(HW_REG_XCC_ID, 0, 3)
        s_add_u32 s43, s43, 8
        s_andn2_b32 s43, s43, 7
        s_or_b32 s44, s44, s43
        s_lshl_b32 s45, s32, 7
        s_add_u32 s45, s45, {FL}
        s_lshl_b32 s35, s33, 2
        s_add_u32 s35, s35, s45
        v_mov_b32 v12, s35
        v_mov_b32 v13, s44
        s_waitcnt lgkmcnt(0)""")
        a.stamp(3)
        FR = 160
        for t in range(20):
            a.frag(FR + 4 * t, 36 + t // 2, t & 1)
        a.dlayout(2, 3, bstride=512)
        a("s_lshl_b32 s35, s34, 10\nv_add_u32 v2, s35, v2")
        a("s_waitcnt vmcnt(0)")
        a("global_store_dword v12, v13, s[28:29] sc1")
        a.stamp(17)
        for t in range(20):
            c = "0" if t == 0 else "v[48:51]"
            a(f"v_mfma_f32_16x16x32_bf16 v[48:51], v[{FR+4*t}:{FR+4*t+3}], v[{WQ+4*t}:{WQ+4*t+3}], {c}")
        a("global_store_dwordx4 v2, v[48:51], s[28:29] sc1")
        a.stamp(4)
        hf = a.lab("hf"); hfd = a.lab("hf_ok")
        a(f"""s_mov_b32 s42, 0
        {hf}:
        s_load_dwordx8 s[48:55], s[28:29], s45 glc
        s_add_u32 s42, s42, 1
        s_waitcnt lgkmcnt(0)
        s_xor_b32 s46, s48, s44""")
        for i in range(49, 56):
            a(f"s_xor_b32 s47, s{i}, s44\ns_or_b32 s46, s46, s47")
        a(f"""s_cmp_lt_u32 s46, 8
        s_cbranch_scc1 {hfd}
        s_cmp_lt_u32 s42, {SPIN}
        s_cbranch_scc1 {hf}
        {hfd}:""")
        if not p["fast"]:
            a("s_mov_b32 s46, 1")
        a.stamp(5)
        a(f"""s_lshl_b32 s35, s32, 13
        s_lshr_b32 s38, s33, 2
        s_lshl_b32 s38, s38, 9
        s_add_u32 s35, s35, s38
        s_add_u32 s35, s35, {QP + 4096}
        v_and_b32 v2, 31, v0
        v_lshlrev_b32 v2, 4, v2
        v_and_b32 v3, 32, v0
        v_lshl_add_u32 v2, v3, 5, v2
        v_add_u32 v2, s35, v2""")

        def ldQ():
            for u in range(4):
                a(f"global_load_dwordx4 v[{36+4*u}:{39+4*u}], v2, s[28:29] offset:{2048*u-4096} sc1")
        a.poll("qg", ldQ, list(range(36, 52)), 3)
        a(f"""v_pk_add_f32 v[36:37], v[36:37], v[40:41]
        v_pk_add_f32 v[38:39], v[38:39], v[42:43]
        v_pk_add_f32 v[44:45], v[44:45], v[48:49]
        v_pk_add_f32 v[46:47], v[46:47], v[50:51]
        v_pk_add_f32 v[36:37], v[36:37], v[44:45]
        v_pk_add_f32 v[38:39], v[38:39], v[46:47]
        v_and_b32 v2, 31, v0
        v_lshlrev_b32 v2, 3, v2
        v_lshrrev_b32 v3, 5, v0
        v_lshl_add_u32 v2, v3, 2, v2
        v_permlane32_swap_b32 v36, v38
        v_permlane32_swap_b32 v37, v39
        v_pk_add_f32 v[36:37], v[36:37], v[38:39]
        v_cvt_pk_bf16_f32 v36, v36, v37
        ds_write_b32 v2, v36 offset:{L_Q}
        s_waitcnt lgkmcnt(0)""")
        a.stamp(6)
        a(f"""s_barrier
        v_lshrrev_b32 v2, 1, v0
        v_lshlrev_b32 v2, 7, v2
        v_and_b32 v3, 1, v0
        v_lshl_add_u32 v2, v3, 4, v2
        v_add_u32 v24, {FL}, v2
        global_load_dwordx4 v[64:67], v24, s[28:29] sc1
        v_mov_b32 v2, 0
        s_mov_b32 s40, {hx(LOG2E)}
        s_barrier
        ds_read_b128 v[36:39], v2 offset:{L_ML}
        ds_read_b128 v[40:43], v2 offset:{L_ML+16}
        s_waitcnt lgkmcnt(0)
        v_max3_f32 v44, v36, v38, v40
        v_max_f32 v44, v44, v42""")
        for i in range(4):
            a(f"v_sub_f32 v{36+2*i}, v{36+2*i}, v44")
        for i in range(4):
            a(f"v_mul_f32 v{36+2*i}, s40, v{36+2*i}")
        for i in range(4):
            a(f"v_exp_f32 v{36+2*i}, v{36+2*i}")
        a("""v_mul_f32 v45, v36, v37
        v_fmac_f32 v45, v38, v39
        v_fmac_f32 v45, v40, v41
        v_fmac_f32 v45, v42, v43
        global_store_dwordx2 v22, v[44:45], s[28:29] sc1""")
        a.stamp(8)
        ml = a.lab("ml"); mld = a.lab("ml_ok")
        a(f"""s_lshl_b32 s35, s32, 7
        s_and_b32 s36, s33, 4
        s_lshl_b32 s36, s36, 3
        s_add_u32 s35, s35, s36
        s_add_u32 s35, s35, {ML}
        s_mov_b32 s42, 0
        {ml}:
        s_load_dwordx8 s[48:55], s[28:29], s35 glc
        s_add_u32 s42, s42, 1
        s_waitcnt lgkmcnt(0)
        s_max_u32 s36, s48, s49""")
        for i in range(50, 56):
            a(f"s_max_u32 s36, s36, s{i}")
        a(f"""s_cmp_lg_u32 s36, -1
        s_cbranch_scc1 {mld}
        s_cmp_lt_u32 s42, {SPIN}
        s_cbranch_scc1 {ml}
        {mld}:
        v_mov_b32 v36, s48
        v_max_f32 v36, s50, v36
        v_max_f32 v36, s52, v36
        v_max_f32 v36, s54, v36""")
        for i in range(4):
            a(f"v_sub_f32 v{38+i}, s{48+2*i}, v36")
        a("v_sub_f32 v42, v44, v36")
        for i in range(5):
            a(f"v_mul_f32 v{38+i}, s40, v{38+i}")
        for i in range(5):
            a(f"v_exp_f32 v{38+i}, v{38+i}")
        a("""v_mul_f32 v36, s49, v38
        v_fmac_f32 v36, s51, v39
        v_fmac_f32 v36, s53, v40
        v_fmac_f32 v36, s55, v41
        v_rcp_f32 v36, v36
        v_mul_f32 v46, v42, v36""")
        a.stamp(9)
        a("s_barrier")
        for u in range(4):
            a(f"ds_read2st64_b64 v[{48+4*u}:{51+4*u}], v1 offset0:{L_RED//512 + 2*u} offset1:{L_RED//512 + 2*u + 1}")
        osl = a.lab("op_slow"); osd = a.lab("op_done")
        a(f"""s_waitcnt lgkmcnt(2)
        v_pk_add_f32 v[48:49], v[48:49], v[50:51]
        v_pk_add_f32 v[52:53], v[52:53], v[54:55]
        s_waitcnt lgkmcnt(0)
        v_pk_add_f32 v[56:57], v[56:57], v[58:59]
        v_pk_add_f32 v[60:61], v[60:61], v[62:63]
        v_pk_add_f32 v[48:49], v[48:49], v[52:53]
        v_pk_add_f32 v[56:57], v[56:57], v[60:61]
        v_pk_add_f32 v[48:49], v[48:49], v[56:57]
        v_pk_mul_f32 v[48:49], v[48:49], v[46:47] op_sel_hi:[1,0]
        s_cmp_lg_u32 s46, 0
        s_cbranch_scc1 {osl}
        global_store_dwordx2 v21, v[48:49], s[28:29]
        s_branch {osd}
        {osl}:
        global_store_dwordx2 v21, v[48:49], s[28:29] sc1
        {osd}:""")
        a.stamp(10)
        gf = a.lab("gf"); gfd = a.lab("gf_ok"); free = a.lab("notfree")
        a(f"""s_cmp_lg_u32 s31, 2
        s_cbranch_scc1 {free}""")
        a.finish()
        a(f"""{free}:
        s_mov_b32 s42, 0
        s_waitcnt vmcnt(2)
        {gf}:
        v_xor_b32 v64, s44, v64
        v_xor_b32 v65, s44, v65
        v_xor_b32 v66, s44, v66
        v_xor_b32 v67, s44, v67
        v_or3_b32 v64, v64, v65, v66
        v_or_b32 v64, v64, v67
        v_cmp_lt_u32 vcc, 7, v64
        s_cbranch_vccz {gfd}
        global_load_dwordx4 v[64:67], v24, s[28:29] sc1
        s_add_u32 s42, s42, 1
        s_cmp_lt_u32 s42, {SPIN}
        s_waitcnt vmcnt(0)
        s_cbranch_scc1 {gf}
        {gfd}:
        v_cmp_eq_u32 vcc, 0, v64
        s_lshl_b32 s35, s30, 3
        s_nop 1
        s_lshr_b64 s[48:49], vcc, s35
        s_and_b32 s48, s48, 0xff
        s_cmp_eq_u32 s48, 0xff
        s_cselect_b32 s35, {1 if p['fast'] else 0}, 0
        v_mov_b32 v2, 0
        v_mov_b32 v36, s35
        v_mov_b32 v37, s43
        ds_write_b64 v2, v[36:37] offset:{L_FL}""")
        a.stamp(7)
        a(f"""s_cmp_eq_u32 s31, 1
        s_cbranch_scc1 L_mlp_ctrl
        v_lshlrev_b32 v2, 4, v0
        s_waitcnt lgkmcnt(0)
        s_barrier""")
        for u in range(4):
            a(f"ds_read_b128 v[{48+4*u}:{51+4*u}], v2 offset:{L_RED2 + 1024*u}")
        a("""s_waitcnt lgkmcnt(2)
        v_pk_add_f32 v[48:49], v[48:49], v[52:53]
        v_pk_add_f32 v[50:51], v[50:51], v[54:55]
        s_waitcnt lgkmcnt(0)
        v_pk_add_f32 v[56:57], v[56:57], v[60:61]
        v_pk_add_f32 v[58:59], v[58:59], v[62:63]
        v_pk_add_f32 v[48:49], v[48:49], v[56:57]
        v_pk_add_f32 v[50:51], v[50:51], v[58:59]
        global_store_dwordx4 v23, v[48:51], s[28:29] sc1""")
        a.stamp(11)
        a.finish()

        a("L_mlp_ctrl:")
        a.w1_setup()
        for q in range(8):
            a.w1_load(q)
        go = a.lab("mlp_go")
        a(f"""L_mlp:
        s_cmp_eq_u32 s31, 1
        s_cbranch_scc1 {go}""")
        a.finish()
        W2R = 80
        B1R = 112
        a(f"""{go}:
        s_lshl_b32 s36, s39, 5
        s_add_u32 s38, s36, 3
        s_mul_i32 s38, s38, 1280
        s_lshl_b32 s35, s3, 8
        s_add_u32 s38, s38, s35
        v_lshrrev_b32 v2, 4, v0
        v_mul_u32_u24 v3, 10240, v2
        v_and_b32 v12, 15, v0
        v_lshl_add_u32 v3, v12, 4, v3
        v_add_u32 v3, s38, v3
        v_add_u32 v13, 5120, v3""")
        for t in range(7):
            a(f"global_load_dwordx4 v[{W2R+4*t}:{W2R+4*t+3}], v3, s[20:21] offset:{(t-3)*1280} {nt}")
        a(f"global_load_dwordx4 v[{W2R+28}:{W2R+31}], v13, s[20:21] {nt}")
        a(f"""v_and_b32 v3, 7, v0
        v_lshl_add_u32 v3, v2, 3, v3
        v_add_u32 v13, s36, v3
        v_lshlrev_b32 v13, 1, v13
        global_load_ushort v20, v13, s[18:19]
        v_lshlrev_b32 v3, 3, v3
        v_bfe_u32 v13, v0, 3, 1
        v_lshl_add_u32 v21, v13, 2, v3
        v_lshl_add_u32 v22, v12, 3, s35
        v_and_b32 v3, 1, v0
        v_mul_u32_u24 v3, {YS}, v3
        v_lshl_add_u32 v3, v2, 4, v3
        v_add_u32 v23, s35, v3
        v_bfe_u32 v3, v0, 2, 2
        v_lshl_add_u32 v3, v2, 3, v3
        v_lshlrev_b32 v3, 6, v3
        v_and_b32 v12, 3, v0
        v_lshl_add_u32 v3, v12, 3, v3
        v_add_u32 v24, s37, v3
        s_mul_i32 s38, s39, 5120
        s_lshl_b32 s35, s3, 9
        s_add_u32 s38, s38, s35
        s_add_u32 s38, s38, {CP}""")
        a.dlayout(25, 3, bstride=2560)
        a(f"""v_add_u32 v25, s38, v25
        s_lshl_b32 s36, s30, 13
        s_mul_i32 s38, s3, 2560
        s_add_u32 s36, s36, s38
        s_add_u32 s36, s36, {HB}
        v_lshl_add_u32 v2, v0, 4, s36
        v_lshl_add_u32 v3, v0, 3, s36
        s_mul_i32 s36, s3, {YS}
        v_lshl_add_u32 v26, v0, 3, s36
        v_lshl_add_u32 v27, v0, 2, s36
        s_waitcnt vmcnt(9)""")
        for ks in range(4):
            for ct in range(2):
                for hf_ in range(2):
                    r = B1R + 4 * (2 * ks + ct) + 2 * hf_
                    a(f"ds_read_b64_tr_b16 v[{r}:{r+1}], v24 offset:{(32*ks + 4*hf_)*64 + 32*ct}")
        a.stamp(15)
        a("s_waitcnt vmcnt(0) lgkmcnt(0)")
        a("v_lshlrev_b32 v20, 16, v20")
        a("s_barrier")
        a.stamp(12)
        noln = a.lab("noln")
        a(f"""s_cmp_ge_u32 s3, 2
        s_cbranch_scc1 {noln}""")

        def ldH():
            a("global_load_dwordx4 v[28:31], v2, s[28:29] sc1")
            a("global_load_dwordx4 v[32:35], v2, s[28:29] offset:1024 sc1")
            a("global_load_dwordx2 v[36:37], v3, s[28:29] offset:2048 sc1")
        a.poll("hb", ldH, list(range(28, 38)), 12)
        a.stamp(13)
        a.ln(28, 40, 46, True)
        a.ln(28, 40, 46, False)
        a(f"""ds_write_b64 v26, v[40:41] offset:{L_Y}
        ds_write_b64 v26, v[42:43] offset:{L_Y + 512}
        ds_write_b32 v27, v44 offset:{L_Y + 1024}
        s_waitcnt lgkmcnt(0)
        {noln}:
        s_barrier""")
        a.stamp(18)
        for ks in range(4):
            a(f"ds_read_b128 v[{28+4*ks}:{31+4*ks}], v23 offset:{L_Y + 64*ks}")
        for ks in range(4):
            a(f"s_waitcnt lgkmcnt({3-ks})")
            for ct in range(2):
                c = "0" if ks == 0 else f"v[{44+4*ct}:{47+4*ct}]"
                r = B1R + 4 * (2 * ks + ct)
                a(f"v_mfma_f32_16x16x32_bf16 v[{44+4*ct}:{47+4*ct}], v[{28+4*ks}:{31+4*ks}], v[{r}:{r+3}], {c}")
        a(f"""s_mov_b64 exec, 0xffff
        v_add_u32 v22, {L_T1}, v22
        ds_write2_b64 v22, v[44:45], v[48:49] offset0:0 offset1:16
        s_mov_b64 exec, -1
        v_mov_b32 v33, 1.0
        s_waitcnt lgkmcnt(0)
        s_barrier
        ds_read2st64_b32 v[28:29], v21 offset0:{L_T1//256} offset1:{L_T1//256+1}
        ds_read2st64_b32 v[30:31], v21 offset0:{L_T1//256+2} offset1:{L_T1//256+3}
        ds_read_b32 v32, v21 offset:{L_T1 + 1024}
        s_waitcnt lgkmcnt(1)
        v_pk_add_f32 v[28:29], v[28:29], v[30:31]
        v_add_f32 v28, v28, v29
        s_waitcnt lgkmcnt(0)
        v_add_f32 v28, v28, v32
        v_cvt_pk_bf16_f32 v28, v28, v28
        v_lshlrev_b32 v28, 16, v28
        v_add_f32 v28, v28, v20
        v_cvt_pk_bf16_f32 v28, v28, v28
        v_lshlrev_b32 v28, 16, v28
        v_mul_f32 v29, v28, v28
        v_mul_f32 v30, {hx(-2.0*math.sqrt(2.0/math.pi)*LOG2E)}, v28
        v_fmamk_f32 v29, v29, {hx(0.044715)}, v33
        v_mul_f32 v29, v29, v30
        v_exp_f32 v29, v29
        v_add_f32 v29, 1.0, v29
        v_rcp_f32 v29, v29
        v_mul_f32 v28, v28, v29
        v_mov_b32_dpp v29, v28 quad_perm:[1,1,3,3] row_mask:0xf bank_mask:0xf
        v_cvt_pk_bf16_f32 v28, v28, v29
        v_mov_b32_dpp v32, v28 quad_perm:[0,0,0,0] row_mask:0xf bank_mask:0xf
        v_mov_b32_dpp v33, v28 quad_perm:[2,2,2,2] row_mask:0xf bank_mask:0xf""")
        a.mirror4()
        a.diag8(W2R)
        a("global_store_dwordx4 v25, v[44:47], s[28:29] sc1")
        a.stamp(14)
        a.finish()
        if self.diag:
            a(f"""L_dump:
            s_mov_b64 exec, -1
            s_lshl_b32 s35, s34, 3
            s_add_u32 s35, s35, s3
            s_lshl_b32 s35, s35, 8
            s_add_u32 s35, s35, {STAMP}
            v_lshl_add_u32 v2, v0, 2, s35
            global_store_dword v2, v255, s[28:29]""")
        a("L_exit:")
        a("s_endpgm")
        a("L_codeend:")

    def write(self, fn):
        import gen1
        gen1.LDS_SIZE = LDS_SIZE
        super().write(fn)

if __name__ == "__main__":
    out = sys.argv[1] if len(sys.argv) > 1 else "k2.s"
    kw = {}
    diag = False
    for x in sys.argv[2:]:
        if x == "diag":
            diag = True
        else:
            k, v = x.split("=")
            kw[k] = eval(v)
    G(diag=diag, **kw).write(out)
```

```python
import sys, struct, math
from hz import process
import gen1
from gen1 import hx, NAME, LOG2E, SPIN
from gen2 import G as G2

OP = 0x40000
ML = 0x60000
EP = 0x64000
F2 = 0x65000
AP = 0x70000
HB = 0xA0000
CP = 0xB0000
QP = 0x100000
STAMP = 0x8000000
L_Y = 0x0000; YS = 1408
L_Q = 0x0B00; L_ML = 0x0C00; L_FL = 0x0C40; L_Z = 0x0C80; L_QF = 0x0C90
L_RED = 0x1000; L_RED2 = 0x2000; L_T1 = 0x3000
L_W1 = 0x4000
LDS_SIZE = L_W1 + 5 * 8192
KR, VR, FRG, TR = 16, 80, 144, 208


class G(G2):
    def __init__(self, diag=False, **kw):
        super().__init__(diag=diag)
        self.p = dict(P=8, P2=9, Ptail=9, fast=True, prefetch=True, nt="nt", prio=3, qdelay=8, adelay=0, cdelay=0,
                      early=True, mlpT="w2", tpos=16, chkend=0)
        self.p.update(kw)

    ROLES = """s_and_b32 s35, s32, 3
        s_mul_i32 s35, s35, 3
        s_add_u32 s35, s35, s33
        s_sub_u32 s35, s35, 5
        s_and_b32 s39, s35, 1
        s_andn2_b32 s35, s35, 1
        s_lshl_b32 s35, s35, 2
        s_add_u32 s35, s35, s30
        s_cmp_lt_u32 s35, 27
        s_cselect_b32 s31, 1, 2
        s_lshl_b32 s35, s35, 1
        s_add_u32 s39, s39, s35
        s_min_u32 s39, s39, 53
        s_cmp_lt_u32 s33, 5
        s_cselect_b32 s31, 0, s31"""

    def w1addr(self, dst):
        self(f"""s_mul_i32 s36, s3, {128*3456}
        s_lshl_b32 s37, s39, 6
        s_add_u32 s36, s36, s37
        v_lshrrev_b32 v2, 2, v0
        v_mul_u32_u24 v2, 3456, v2
        v_and_b32 v3, 3, v0
        v_lshl_add_u32 v2, v3, 4, v2
        v_add_u32 v{dst}, s36, v2""")

    def rowaddr(self, dst):
        self(f"""v_lshrrev_b32 v2, 4, v0
        v_mul_u32_u24 v2, 10240, v2
        v_and_b32 v3, 15, v0
        v_lshl_add_u32 v2, v3, 4, v2
        v_add_u32 v{dst}, s36, v2""")

    def w2addr(self, dst):
        self(f"""s_mul_i32 s36, s39, {32*1280}
        s_lshl_b32 s37, s3, 8
        s_add_u32 s36, s36, s37""")
        self.rowaddr(dst)

    def load8(self, R, addr, base, stride):
        for t in range(8):
            self(f"global_load_dwordx4 v[{R+4*t}:{R+4*t+3}], v{addr}, {base} {self.p['nt']}")
            if t < 7:
                self(f"v_add_u32 v{addr}, {stride}, v{addr}")

    def build(self):
        a = self
        p = self.p
        nt = p["nt"]
        P = p["P"]
        a(f"""
        s_cmp_ge_u32 s2, 256
        s_cbranch_scc1 L_exit
        s_load_dwordx16 s[4:19], s[0:1], 0
        s_load_dwordx8 s[20:27], s[0:1], 64
        s_load_dwordx2 s[28:29], s[0:1], 96
        v_lshrrev_b32 v1, 6, v0
        v_and_b32 v0, 63, v0
        v_readfirstlane_b32 s3, v1
        s_and_b32 s30, s2, 7
        s_lshr_b32 s31, s2, 3
        s_lshl_b32 s34, s30, 5
        s_add_u32 s34, s34, s31
        s_lshr_b32 s32, s34, 3
        s_and_b32 s33, s34, 7
        """)
        if self.diag:
            a("v_mov_b32 v255, 0")
            a("s_memrealtime s[100:101]")
        a("""s_sub_u32 s3, s3, 1
        s_cbranch_scc0 L_att""")
        if p["prio"]:
            a(f"s_setprio {p['prio']}")
        a("s_mov_b32 s3, 4")
        if p["prefetch"]:
            a(f"""s_getpc_b64 s[36:37]
            L_pc:
            s_sub_u32 s36, s36, L_pc-{NAME}_kernel
            s_subb_u32 s37, s37, 0
            v_lshlrev_b32 v1, 7, v0
            global_load_dword v254, v1, s[36:37]
            v_add_u32 v1, 8192, v1
            v_min_u32 v1, L_codeend-{NAME}_kernel-4, v1
            global_load_dword v253, v1, s[36:37]""")
        WQ = 80
        a(f"""
        v_lshlrev_b32 v1, 3, v0
        v_lshlrev_b32 v2, 2, v0
        v_mov_b32 v36, 0
        ds_write_b32 v2, v36 offset:{L_ML}
        s_mul_i32 s35, s33, {80*8192}
        s_lshl_b32 s38, s32, 8
        s_add_u32 s35, s35, s38
        v_lshrrev_b32 v3, 4, v0
        v_mul_u32_u24 v3, {20*8192}, v3
        v_and_b32 v12, 15, v0
        v_lshl_add_u32 v3, v12, 4, v3
        v_add_u32 v3, s35, v3
        v_mov_b32 v12, {EP}
        v_mov_b32 v16, -1
        v_mov_b32 v17, -1
        s_lshl_b32 s35, s34, 9
        s_add_u32 s35, s35, {OP}
        v_lshl_add_u32 v21, v0, 3, s35
        s_lshl_b32 s35, s32, 7
        s_lshl_b32 s38, s33, 3
        s_add_u32 s35, s35, s38
        s_add_u32 s35, s35, {ML}
        v_mov_b32 v22, s35
        s_movk_i32 s38, 0x2000
        s_waitcnt lgkmcnt(0)
        """)
        if self.diag:
            a("v_writelane_b32 v255, s100, 0")
        a(f"""global_load_dwordx2 v[24:25], v1, s[4:5]
        global_load_dwordx2 v[26:27], v1, s[4:5] offset:512
        global_load_dword v28, v2, s[4:5] offset:1024
        global_load_dwordx2 v[30:31], v1, s[4:5] offset:1280
        global_load_dwordx2 v[32:33], v1, s[4:5] offset:1792
        global_load_dword v34, v2, s[4:5] offset:2304
        global_load_dword v15, v12, s[28:29] sc1
        global_store_dwordx2 v21, v[16:17], s[28:29] sc1
        global_store_dwordx2 v22, v[16:17], s[28:29] sc1""")
        for t in range(20):
            if t:
                a("v_add_u32 v3, s38, v3")
            a(f"global_load_dwordx4 v[{WQ+4*t}:{WQ+4*t+3}], v3, s[10:11] {nt}")
            if t == p.get("bar0at", 19):
                a("s_barrier")
        a("s_branch L_ctrl")
        a(f"""L_att:
        s_lshr_b32 s35, s33, 2
        s_lshl_b32 s35, s35, 5
        s_add_u32 s35, s35, s32
        s_lshl_b32 s35, s35, 4
        s_and_b32 s36, s33, 3
        s_add_u32 s35, s35, s36
        s_add_u32 s35, s35, 12
        s_lshl_b32 s35, s35, 2
        s_add_u32 s35, s35, s3
        s_lshl_b32 s35, s35, 14
        s_add_u32 s35, s35, 4096
        v_bfe_u32 v1, v0, 2, 2
        v_lshlrev_b32 v1, 8, v1
        v_lshrrev_b32 v2, 4, v0
        v_lshl_add_u32 v1, v2, 6, v1
        v_and_b32 v2, 3, v0
        v_lshl_add_u32 v1, v2, 4, v1
        v_add_u32 v1, s35, v1
        v_lshl_add_u32 v14, v0, 4, s35
        s_waitcnt lgkmcnt(0)
        """)
        if self.diag:
            a("v_writelane_b32 v255, s100, 0")
        a("s_barrier")
        if self.diag:
            a("s_memrealtime s[98:99]")
        K = [("K", t) for t in range(16)]; V = [("V", t) for t in range(16)]; T = [("T", t) for t in range(8)]
        S = [("S", k) for k in p.get("Sset", range(5))]
        if p["early"]:
            first = K[:P-1] + V[:1]
            rest = T[:1] + S + K[P-1:]
            Vr, Tr = V[1:], T[1:]
        else:
            first = K[:P]
            rest = S + K[P:]
            Vr, Tr = V, T
        nbefore = [v for v in Vr if v[1] < p["tpos"]]
        nafter = [v for v in Vr if v[1] >= p["tpos"]]
        tail = []
        while nafter or Tr:
            if Tr: tail.append(Tr.pop(0))
            if nafter: tail.append(nafter.pop(0))
        order = first + rest + nbefore + tail
        NL = len(order)
        pos = {it: i for i, it in enumerate(order)}
        st = {"issued": 0}

        def emit(it):
            k, t = it
            if k == "K":
                if t == 8:
                    a("v_add_u32 v1, 8192, v1")
                a(f"global_load_dwordx4 v[{KR+4*t}:{KR+4*t+3}], v1, s[6:7] offset:{(t%8)*1024-4096} {nt}")
            elif k == "V":
                if t == 8:
                    a("v_add_u32 v14, 8192, v14")
                a(f"global_load_dwordx4 v[{VR+4*t}:{VR+4*t+3}], v14, s[8:9] offset:{(t%8)*1024-4096} {nt}")
            elif k == "T":
                a(f"global_load_dwordx4 v[{TR+4*t}:{TR+4*t+3}], v15, s[44:45] {nt}")
                if t < 7:
                    a("v_add_u32 v15, s46, v15")
            else:
                other = "s[16:17]" if p["mlpT"] == "w2" else "s[20:21]"
                a(["global_load_ushort v254, v250, s[4:5]",
                   "global_load_ushort v251, v251, s[22:23]",
                   "global_load_ushort v2, v250, s[24:25]",
                   "global_load_ushort v252, v252, s[18:19]",
                   f"global_load_dword v253, v253, {other}"][t])

        def big_between(lo, hi):
            return hi - lo

        def issue(pace=0):
            i = st["issued"]
            if pace and order[i][0] != "S":
                cnt = 0; j = i
                while j > 0 and cnt < pace:
                    j -= 1
                    if order[j][0] != "S":
                        cnt += 1
                if cnt == pace:
                    a(f"s_waitcnt vmcnt({i-1-j})")
                    st["done"] = max(st.get("done", -1), j)
            emit(order[i])
            st["issued"] += 1

        def wait_for(it):
            i = pos[it]
            assert i < st["issued"]
            if st.get("done", -1) < i:
                a(f"s_waitcnt vmcnt({st['issued']-1-i})")
                st["done"] = i
        for _ in first:
            issue()
        a(self.ROLES)
        setd = a.lab("setd")
        if p["mlpT"] == "w2":
            a.w2addr(15)
            a("s_movk_i32 s46, 1280\ns_mov_b64 s[44:45], s[20:21]")
            a(f"s_mul_i32 s36, s3, {128*3456}\nv_mov_b32 v253, s36")
        else:
            a.w1addr(15)
            a(f"s_mov_b32 s46, {16*3456}\ns_mov_b64 s[44:45], s[16:17]")
            a(f"s_mul_i32 s36, s39, {32*1280}\nv_mov_b32 v253, s36")
        a(f"""
        s_cmp_eq_u32 s31, 1
        s_cbranch_scc1 {setd}
        s_mov_b64 s[44:45], s[12:13]
        s_mov_b32 s46, 0
        v_mov_b32 v15, 0
        s_cmp_eq_u32 s31, 2
        s_cbranch_scc1 {setd}
        s_movk_i32 s46, 1280
        s_lshl_b32 s36, s32, 2
        s_add_u32 s36, s36, s3
        s_mul_i32 s36, s36, {32*1280}
        s_lshl_b32 s37, s33, 8
        s_add_u32 s36, s36, s37""")
        a.rowaddr(15)
        a(f"""{setd}:
        s_and_b32 s38, s32, 3
        s_mul_i32 s38, s38, 5
        s_add_u32 s38, s38, s33
        s_lshl_b32 s38, s38, 2
        s_add_u32 s38, s38, s3
        s_min_u32 s38, s38, 79
        s_lshl_b32 s35, s38, 4
        v_and_b32 v2, 3, v0
        v_lshrrev_b32 v3, 4, v0
        v_lshl_add_u32 v2, v2, 2, v3
        v_add_lshl_u32 v250, v2, s35, 1
        s_cmp_ge_u32 s38, 40
        s_cselect_b32 s35, 1280, 0
        v_subrev_u32 v251, s35, v250
        v_and_b32 v2, 7, v0
        v_lshl_add_u32 v2, v3, 3, v2
        s_lshl_b32 s35, s39, 5
        v_add_lshl_u32 v252, v2, s35, 1""")
        a.selectors()
        a("v_and_b32 v2, 8, v0\nv_cmp_eq_u32 vcc, 8, v2")
        for r in range(4):
            a(f"v_cndmask_b32 v{240+r}, v{4+r}, v{8+r}, vcc")
        a(f"""v_lshrrev_b32 v2, 4, v0
        v_and_b32 v3, 3, v0
        v_lshl_add_u32 v2, v2, 2, v3
        v_lshlrev_b32 v2, 4, v2
        v_add_u32 v2, {L_Q}, v2
        v_bfe_u32 v3, v0, 2, 2
        v_mov_b32 v12, {L_Z}""")
        for qd in range(4):
            a(f"v_cmp_eq_u32 vcc, {qd}, v3")
            a(f"v_cndmask_b32 v{244+qd}, v12, v2, vcc")
        a.dlayout(248, 3, bstride=512)
        a(f"""s_lshl_b32 s36, s3, 10
        v_add_u32 v248, s36, v248
        s_lshl_b32 s36, s32, 12
        s_lshl_b32 s35, s3, 7
        s_add_u32 s36, s36, s35
        s_add_u32 s36, s36, {OP}
        v_and_b32 v2, 8, v0
        v_lshlrev_b32 v2, 8, v2
        v_and_b32 v3, 3, v0
        v_lshl_add_u32 v2, v3, 9, v2
        v_lshrrev_b32 v3, 4, v0
        v_lshl_add_u32 v2, v3, 5, v2
        v_and_b32 v3, 4, v0
        v_lshl_add_u32 v2, v3, 2, v2
        v_add_u32 v249, s36, v2
        s_mov_b32 s40, {hx(128 ** -0.5)}
        s_mov_b32 s48, {hx(LOG2E)}
        s_lshl_b32 s36, s3, 3
        v_mov_b32 v12, s36
        v_mov_b32 v13, 0
        s_mov_b32 s47, -1
        """)
        if p["early"]:
            issue()
        while st.get("done", -1) < pos[("K", 15)]:
            issue(P)
        a.stamp(1)
        if self.diag:
            a("v_writelane_b32 v255, s98, 16")
        lastchk = min(NL - 1, pos[("V", 15)] + p["chkend"])
        while st["issued"] <= lastchk:
            sk = a.lab("chk")
            issue(p["P2"])
            a(f"ds_read_b32 v3, v13 offset:{L_QF}")
            a(f"""s_waitcnt lgkmcnt(0)
            v_readfirstlane_b32 s36, v3
            s_and_b32 s36, s36, s47
            s_cbranch_scc0 {sk}
            s_call_b64 s[50:51], L_compute
            {sk}:""")
        lp = a.lab("qw"); sk = a.lab("qw_done"); go = a.lab("qw_go")
        a(f"""s_cmp_eq_u32 s47, 0
        s_cbranch_scc1 {sk}
        s_mov_b32 s42, 0
        {lp}:
        ds_read_b32 v3, v13 offset:{L_QF}
        s_add_u32 s42, s42, 1
        s_waitcnt lgkmcnt(0)
        v_readfirstlane_b32 s36, v3
        s_cmp_lg_u32 s36, 0
        s_cbranch_scc1 {go}
        s_cmp_lt_u32 s42, {SPIN*20}
        s_cbranch_scc1 {lp}
        {go}:
        s_call_b64 s[50:51], L_compute
        {sk}:""")
        a.stamp(19)
        Pt = p["Ptail"]
        for t in range(16):
            wait_for(("V", t))
            while st["issued"] < min(NL, st["done"] + 1 + Pt):
                issue()
            c = "0" if t == 0 else "v[44:47]"
            a(f"v_mfma_f32_16x16x32_bf16 v[44:47], v[{FRG+4*t}:{FRG+4*t+3}], v[{VR+4*t}:{VR+4*t+3}], {c}")
        while st["issued"] < NL:
            issue()
        a(f"""ds_write_b128 v248, v[44:47] offset:{L_RED}
        s_waitcnt lgkmcnt(0)""")
        a.stamp(20)
        a("s_barrier")
        a.stamp(5)
        a("""s_cmp_lg_u32 s31, 0
        s_cbranch_scc1 L_mlp""")
        a(f"""s_lshl_b32 s35, s38, 6
        v_lshrrev_b32 v2, 2, v0
        v_mul_u32_u24 v2, 5120, v2
        v_and_b32 v3, 3, v0
        v_lshl_add_u32 v2, v3, 4, v2
        v_add_u32 v22, s35, v2
        s_lshl_b32 s35, s30, 13
        s_add_u32 s35, s35, {HB}
        v_lshl_add_u32 v25, v250, 1, s35
        v_add_u32 v23, {AP}, v22
        v_add_u32 v24, {AP + 16*5120}, v22
        v_lshlrev_b32 v20, 16, v254
        v_lshlrev_b32 v21, 16, v251""")
        a.poll("og", lambda: a("global_load_dwordx4 v[28:31], v249, s[28:29] sc1"), [28, 29, 30, 31], 26)
        if self.diag:
            a("v_writelane_b32 v255, s42, 29")
        a.stamp(6)
        for d in ("quad_perm:[1,0,3,2]", "quad_perm:[2,3,0,1]"):
            for r in range(4):
                a(f"v_add_f32_dpp v{28+r}, v{28+r}, v{28+r} {d} row_mask:0xf bank_mask:0xf")
        a("""v_cvt_pk_bf16_f32 v32, v28, v29
        v_cvt_pk_bf16_f32 v33, v30, v31""")
        a.mirror4()
        a.diag8(TR)
        a(f"""ds_write_b128 v248, v[44:47] offset:{L_RED2}
        s_waitcnt lgkmcnt(0)
        s_barrier
        ds_read_b64 v[36:37], v13 offset:{L_FL}""")
        a.stamp(7)
        if p["adelay"]:
            a(f"s_sleep {p['adelay']}")

        def ldA():
            a("global_load_dwordx4 v[28:31], v23, s[28:29] sc1")
            a("global_load_dwordx4 v[32:35], v24, s[28:29] sc1")
        a.poll("ha", ldA, list(range(28, 36)), 26, waitcnt="vmcnt(0) lgkmcnt(0)")
        a.stamp(8)
        a("v_readfirstlane_b32 s35, v36")
        a("v_pk_add_f32 v[28:29], v[28:29], v[32:33]\nv_pk_add_f32 v[30:31], v[30:31], v[34:35]")
        a.red16(28)
        slow = a.lab("hb_slow"); hbd = a.lab("hb_done")
        a(f"""v_cvt_pk_bf16_f32 v28, v28, v28
        v_lshlrev_b32 v28, 16, v28
        v_add_f32 v28, v28, v20
        v_cvt_pk_bf16_f32 v28, v28, v28
        v_lshlrev_b32 v27, 16, v28
        s_mov_b32 exec_lo, 0x000f000f
        s_mov_b32 exec_hi, 0x000f000f
        s_cmp_eq_u32 s35, 0
        s_cbranch_scc1 {slow}
        global_store_dword v25, v27, s[28:29]
        s_branch {hbd}
        {slow}:
        global_store_dword v25, v27, s[28:29] sc1
        {hbd}:
        s_mov_b64 exec, -1""")
        a.stamp(9)
        fin = a.lab("fin"); nob = a.lab("nobump")
        a(f"""s_and_b32 s35, s38, 7
        s_cmp_eq_u32 s35, s30
        s_cbranch_scc1 {fin}""")
        a.finish()
        a(f"""{fin}:
        s_cmp_lg_u32 s38, 0
        s_cbranch_scc1 {nob}
        v_mov_b32 v2, {EP}
        global_store_dword v2, v37, s[28:29] sc1
        {nob}:""")
        for u in range(4):
            a(f"v_add_u32 v{48+u}, {CP + 16*5120*u}, v22")
        a("v_mov_b32 v40, 0\nv_mov_b32 v41, 0\nv_mov_b32 v42, 0\nv_mov_b32 v43, 0")
        if p["cdelay"]:
            a(f"s_sleep {p['cdelay']}")

        def ldC():
            for u in range(3):
                a(f"global_load_dwordx4 v[{28+4*u}:{31+4*u}], v{48+u}, s[28:29] sc1")
            a("s_mov_b64 exec, 0xffffff")
            a("global_load_dwordx4 v[40:43], v51, s[28:29] sc1")
            a("s_mov_b64 exec, -1")
        a.poll("hc", ldC, list(range(28, 44)), 26)
        a.stamp(10)
        a("""v_pk_add_f32 v[28:29], v[28:29], v[32:33]
        v_pk_add_f32 v[30:31], v[30:31], v[34:35]
        v_pk_add_f32 v[36:37], v[36:37], v[40:41]
        v_pk_add_f32 v[38:39], v[38:39], v[42:43]
        v_pk_add_f32 v[28:29], v[28:29], v[36:37]
        v_pk_add_f32 v[30:31], v[30:31], v[38:39]""")
        a.red16(28)
        a("""v_cvt_pk_bf16_f32 v28, v28, v28
        v_lshlrev_b32 v28, 16, v28
        v_add_f32 v28, v28, v21
        v_cvt_pk_bf16_f32 v28, v28, v28
        v_lshlrev_b32 v28, 16, v28
        v_add_f32 v28, v28, v27
        v_cvt_pk_bf16_f32 v28, v28, v28
        s_mov_b32 exec_lo, 0x000f000f
        s_mov_b32 exec_hi, 0x000f000f
        global_store_short v250, v28, s[24:25]
        s_mov_b64 exec, -1""")
        a.finish()

        QF = 144; DR = 160; SR = 16
        a("L_compute:")
        a.stamp(2)
        for qd in range(4):
            a(f"ds_read_b128 v[{QF+4*qd}:{QF+4*qd+3}], v{244+qd}")
        a("s_mov_b32 s47, 0")
        for qd in range(4):
            a(f"s_waitcnt lgkmcnt({3-qd})")
            for u in range(4):
                t = 4 * u + qd
                c = "0" if qd == 0 else f"v[{DR+4*u}:{DR+4*u+3}]"
                a(f"v_mfma_f32_16x16x32_bf16 v[{DR+4*u}:{DR+4*u+3}], v[{KR+4*t}:{KR+4*t+3}], v[{QF+4*qd}:{QF+4*qd+3}], {c}")
        for u in range(4):
            a(f"v_mov_b32_dpp v{SR+u}, v{DR+4*u} quad_perm:[0,0,0,0] row_mask:0xf bank_mask:0xf")
        for r in (1, 2, 3):
            for u in range(4):
                a(f"v_add_f32_dpp v{SR+u}, v{DR+4*u+r}, v{SR+u} quad_perm:[{r},{r},{r},{r}] row_mask:0xf bank_mask:0xf")
        for rnd in range(2):
            a("""v_cvt_pk_bf16_f32 v20, v16, v17
            v_cvt_pk_bf16_f32 v21, v18, v19
            v_lshlrev_b32 v16, 16, v20
            v_and_b32 v17, 0xffff0000, v20
            v_lshlrev_b32 v18, 16, v21
            v_and_b32 v19, 0xffff0000, v21""")
            if rnd == 0:
                a("""v_pk_mul_f32 v[16:17], v[16:17], s[40:41] op_sel_hi:[1,0]
                v_pk_mul_f32 v[18:19], v[18:19], s[40:41] op_sel_hi:[1,0]""")
        a(f"""v_max3_f32 v22, v16, v17, v18
        v_max_f32 v22, v22, v19
        v_max_f32_dpp v22, v22, v22 row_ror:4 row_mask:0xf bank_mask:0xf
        v_max_f32_dpp v22, v22, v22 row_ror:8 row_mask:0xf bank_mask:0xf
        v_mov_b32 v23, v22
        v_permlane32_swap_b32 v22, v23
        v_max_f32 v22, v22, v23
        v_mov_b32 v23, v22
        v_permlane16_swap_b32 v22, v23
        v_max_f32 v22, v22, v23
        v_pk_add_f32 v[16:17], v[16:17], v[22:23] op_sel_hi:[1,0] neg_lo:[0,1] neg_hi:[0,1]
        v_pk_add_f32 v[18:19], v[18:19], v[22:23] op_sel_hi:[1,0] neg_lo:[0,1] neg_hi:[0,1]
        v_pk_mul_f32 v[16:17], v[16:17], s[48:49] op_sel_hi:[1,0]
        v_pk_mul_f32 v[18:19], v[18:19], s[48:49] op_sel_hi:[1,0]
        v_exp_f32 v16, v16
        v_exp_f32 v17, v17
        v_exp_f32 v18, v18
        v_exp_f32 v19, v19
        v_pk_add_f32 v[24:25], v[16:17], v[18:19]
        v_add_f32 v24, v24, v25
        v_add_f32_dpp v24, v24, v24 row_ror:4 row_mask:0xf bank_mask:0xf
        v_add_f32_dpp v24, v24, v24 row_ror:8 row_mask:0xf bank_mask:0xf
        v_mov_b32 v25, v24
        v_permlane32_swap_b32 v24, v25
        v_add_f32 v24, v24, v25
        v_mov_b32 v25, v24
        v_permlane16_swap_b32 v24, v25
        v_add_f32 v23, v24, v25
        ds_write_b64 v12, v[22:23] offset:{L_ML}
        s_waitcnt lgkmcnt(0)
        s_barrier
        ds_read_b128 v[24:27], v13 offset:{L_ML}
        ds_read_b128 v[28:31], v13 offset:{L_ML+16}""")
        a.stamp(3)
        a(f"""s_waitcnt lgkmcnt(0)
        v_max3_f32 v24, v24, v26, v28
        v_max_f32 v24, v24, v30
        v_sub_f32 v24, v22, v24
        v_mul_f32 v24, s48, v24
        v_exp_f32 v24, v24
        v_pk_mul_f32 v[16:17], v[16:17], v[24:25] op_sel_hi:[1,0]
        v_pk_mul_f32 v[18:19], v[18:19], v[24:25] op_sel_hi:[1,0]
        v_cvt_pk_bf16_f32 v20, v16, v17
        v_cvt_pk_bf16_f32 v21, v18, v19
        v_lshlrev_b32 v24, 16, v20
        v_and_b32 v25, 0xffff0000, v20
        v_lshlrev_b32 v26, 16, v21
        v_and_b32 v27, 0xffff0000, v21
        v_pk_add_f32 v[16:17], v[16:17], v[24:25] neg_lo:[0,1] neg_hi:[0,1]
        v_pk_add_f32 v[18:19], v[18:19], v[26:27] neg_lo:[0,1] neg_hi:[0,1]""")
        for u in range(4):
            a(f"v_cvt_pk_bf16_f32 v{20+u}, v{24+u}, v{16+u}")
        for t in range(16):
            a(f"v_mov_b32_dpp v{48+t}, v{20+t//4} row_newbcast:{4*(t%4)} row_mask:0xf bank_mask:0xf")
        for t in range(16):
            for r in range(4):
                a(f"v_perm_b32 v{FRG+4*t+r}, v{48+t}, v{48+t}, v{240+r}")
        a.stamp(4)
        a("s_nop 1\ns_setpc_b64 s[50:51]")

        a("L_ctrl:")
        a.stamp(1)
        a.selectors()
        a(f"""s_getreg_b32 s44, hwreg(HW_REG_XCC_ID, 0, 3)
        v_mov_b32 v18, -1
        v_mov_b32 v19, -1
        s_waitcnt vmcnt(23)""")
        a.stamp(2)
        for b_, (src, X) in enumerate(((24, 36), (30, 48))):
            for i in range(5):
                a(f"v_lshlrev_b32 v{X+2*i}, 16, v{src+i}")
                a(f"v_and_b32 v{X+2*i+1}, 0xffff0000, v{src+i}")
            a.ln(X, src, 60, False)
            a(f"""v_lshlrev_b32 v2, 2, v0
            ds_write_b64 v1, v[{src}:{src+1}] offset:{L_Y + b_*YS}
            ds_write_b64 v1, v[{src+2}:{src+3}] offset:{L_Y + b_*YS + 512}
            ds_write_b32 v2, v{src+4} offset:{L_Y + b_*YS + 1024}""")
        a(f"""s_mul_i32 s35, s33, 160
        v_lshrrev_b32 v2, 4, v0
        v_mul_u32_u24 v2, 40, v2
        v_bfe_u32 v3, v0, 3, 1
        v_mul_u32_u24 v3, {YS}, v3
        v_add3_u32 v2, v2, v3, s35
        s_waitcnt lgkmcnt(0)""")
        for i in range(5):
            a(f"ds_read_b64 v[{36+2*i}:{37+2*i}], v2 offset:{L_Y + 8*i}")
        a.dlayout(2, 3, bstride=512)
        a(f"""s_lshl_b32 s35, s34, 11
        s_add_u32 s35, s35, {QP}
        v_lshl_add_u32 v2, v2, 1, s35
        s_waitcnt vmcnt(20)
        v_readfirstlane_b32 s43, v15
        s_add_u32 s43, s43, 8
        s_andn2_b32 s43, s43, 7
        s_or_b32 s44, s44, s43
        v_mov_b32 v13, s44
        v_mov_b32 v53, s44
        v_mov_b32 v55, s44
        v_mov_b32 v57, s44
        v_mov_b32 v59, s44
        s_waitcnt lgkmcnt(0)""")
        a.stamp(3)
        FR = 160
        a.frag(FR, 36, 0)
        for t in range(20):
            if t + 1 < 20:
                a.frag(FR + 4 * (t + 1), 36 + (t + 1) // 2, (t + 1) & 1)
            a(f"s_waitcnt vmcnt({19-t})")
            c = "0" if t == 0 else "v[48:51]"
            a(f"v_mfma_f32_16x16x32_bf16 v[48:51], v[{FR+4*t}:{FR+4*t+3}], v[{WQ+4*t}:{WQ+4*t+3}], {c}")
        a("""v_mov_b32 v52, v48
        v_mov_b32 v54, v49
        v_mov_b32 v56, v50
        v_mov_b32 v58, v51
""")
        if not p.get("noq"):
            a("""global_store_dwordx4 v2, v[52:55], s[28:29] sc1
            global_store_dwordx4 v2, v[56:59], s[28:29] offset:16 sc1""")
        a.stamp(4)
        a(self.ROLES)
        a(f"""s_mul_i32 s35, s32, 5120
        s_lshl_b32 s38, s33, 9
        s_add_u32 s35, s35, s38
        s_add_u32 s35, s35, {AP}
        v_lshrrev_b32 v3, 5, v0
        v_mul_u32_u24 v3, 2560, v3
        v_and_b32 v23, 31, v0
        v_lshl_add_u32 v3, v23, 4, v3
        v_add_u32 v23, s35, v3
        {"s_branch L_clr_done" if p.get("noclr") else ""}
        s_cmp_lg_u32 s31, 0
        s_cbranch_scc1 L_clr_mlp
        global_store_dwordx4 v23, v[16:19], s[28:29] sc1
        s_and_b32 s35, s32, 3
        s_mul_i32 s35, s35, 5
        s_add_u32 s35, s35, s33
        s_lshl_b32 s35, s35, 8
        s_lshl_b32 s38, s30, 13
        s_add_u32 s35, s35, s38
        s_add_u32 s35, s35, {HB}
        v_lshl_add_u32 v3, v0, 2, s35
        global_store_dword v3, v16, s[28:29] sc1
        s_branch L_clr_done
        L_clr_mlp:
        s_cmp_lg_u32 s31, 1
        s_cbranch_scc1 L_clr_done
        s_mul_i32 s35, s39, 5120
        s_add_u32 s35, s35, {CP + 2048}
        v_lshl_add_u32 v3, v0, 4, s35""")
        for u in range(5):
            a(f"global_store_dwordx4 v3, v[16:19], s[28:29] offset:{u*1024-2048} sc1")
        qg = a.lab("qg"); qgd = a.lab("qg_ok")
        a(f"""L_clr_done:
        s_lshl_b32 s35, s32, 14
        s_lshr_b32 s38, s33, 2
        s_lshl_b32 s38, s38, 10
        s_add_u32 s35, s35, s38
        s_add_u32 s35, s35, {QP + 4096}
        v_lshl_add_u32 v2, v0, 4, s35
        v_add_u32 v3, 8192, v2
        s_mov_b32 s42, 0""")
        if p["qdelay"]:
            a(f"s_sleep {p['qdelay']}")
        a.stamp(5)
        if p.get("noq"):
            a(f"v_mov_b32 v36, 0\ns_waitcnt vmcnt(0)\ns_branch {qgd}")
            for u in range(80, 112):
                pass
        a(f"{qg}:")
        for u in range(8):
            a(f"global_load_dwordx4 v[{80+4*u}:{83+4*u}], v{2+u//4}, s[28:29] offset:{2048*(u%4)-4096} sc1")
        a("s_add_u32 s42, s42, 1\ns_waitcnt vmcnt(0)")
        a("v_min_u32 v36, v81, v83\nv_max_u32 v37, v81, v83")
        for u in range(1, 8):
            a(f"v_min3_u32 v36, v36, v{81+4*u}, v{83+4*u}")
            a(f"v_max3_u32 v37, v37, v{81+4*u}, v{83+4*u}")
        a(f"""v_xor_b32 v36, s44, v36
        v_xor_b32 v37, s44, v37
        v_or_b32 v36, v36, v37
        v_cmp_lt_u32 vcc, 7, v36
        s_cbranch_vccz {qgd}
        s_cmp_lt_u32 s42, {SPIN}
        s_cbranch_scc1 {qg}
        {qgd}:""")
        if self.diag:
            a("v_writelane_b32 v255, s42, 30")
        a("""v_add_f32 v80, v80, v84
        v_add_f32 v82, v82, v86
        v_add_f32 v88, v88, v92
        v_add_f32 v90, v90, v94
        v_add_f32 v96, v96, v100
        v_add_f32 v98, v98, v102
        v_add_f32 v104, v104, v108
        v_add_f32 v106, v106, v110
        v_add_f32 v80, v80, v88
        v_add_f32 v82, v82, v90
        v_add_f32 v96, v96, v104
        v_add_f32 v98, v98, v106
        v_add_f32 v80, v80, v96
        v_add_f32 v82, v82, v98
        v_lshlrev_b32 v2, 2, v0
        v_cvt_pk_bf16_f32 v80, v80, v82""")
        a(f"""ds_write_b32 v2, v80 offset:{L_Q}
        v_cmp_ne_u32 vcc, 0, v36
        v_mov_b32 v2, 0
        s_waitcnt lgkmcnt(0)
        ds_write_b32 v2, v16 offset:{L_QF}
        s_cmp_lg_u64 vcc, 0
        s_cselect_b32 s46, 1, {0 if p['fast'] else 1}
        s_lshl_b32 s35, s34, 2
        s_add_u32 s35, s35, {F2}
        v_mov_b32 v12, s35
        global_store_dword v12, v13, s[28:29] sc1""")
        a.stamp(6)
        a(f"""v_lshlrev_b32 v24, 4, v0
        v_add_u32 v24, {F2}, v24
        s_mov_b32 s40, {hx(LOG2E)}
        s_lshl_b32 s35, s32, 7
        s_and_b32 s36, s33, 4
        s_lshl_b32 s36, s36, 3
        s_add_u32 s35, s35, s36
        s_add_u32 s35, s35, {ML}
        s_barrier
        ds_read_b128 v[36:39], v2 offset:{L_ML}
        ds_read_b128 v[40:43], v2 offset:{L_ML+16}
        s_waitcnt lgkmcnt(0)
        v_max3_f32 v44, v36, v38, v40
        v_max_f32 v44, v44, v42""")
        for i in range(4):
            a(f"v_sub_f32 v{36+2*i}, v{36+2*i}, v44")
        for i in range(4):
            a(f"v_mul_f32 v{36+2*i}, s40, v{36+2*i}")
        for i in range(4):
            a(f"v_exp_f32 v{36+2*i}, v{36+2*i}")
        a("""v_mul_f32 v45, v36, v37
        v_fmac_f32 v45, v38, v39
        v_fmac_f32 v45, v40, v41
        v_fmac_f32 v45, v42, v43
        global_store_dwordx2 v22, v[44:45], s[28:29] sc1""")
        a.stamp(8)
        ml = a.lab("ml"); mld = a.lab("ml_ok")
        if p.get("noml"):
            a(f"s_branch {mld}")
        a(f"""s_mov_b32 s42, 0
        {ml}:
        s_load_dwordx8 s[48:55], s[28:29], s35 glc
        s_add_u32 s42, s42, 1
        s_waitcnt lgkmcnt(0)
        s_max_u32 s36, s48, s49""")
        for i in range(50, 56):
            a(f"s_max_u32 s36, s36, s{i}")
        a(f"""s_cmp_lg_u32 s36, -1
        s_cbranch_scc1 {mld}
        s_cmp_lt_u32 s42, {SPIN}
        s_cbranch_scc1 {ml}
        {mld}:
        global_load_dwordx4 v[64:67], v24, s[28:29] sc1
        v_mov_b32 v36, s48
        v_max_f32 v36, s50, v36
        v_max_f32 v36, s52, v36
        v_max_f32 v36, s54, v36""")
        for i in range(4):
            a(f"v_sub_f32 v{38+i}, s{48+2*i}, v36")
        a("v_sub_f32 v42, v44, v36")
        for i in range(5):
            a(f"v_mul_f32 v{38+i}, s40, v{38+i}")
        for i in range(5):
            a(f"v_exp_f32 v{38+i}, v{38+i}")
        a("""v_mul_f32 v36, s49, v38
        v_fmac_f32 v36, s51, v39
        v_fmac_f32 v36, s53, v40
        v_fmac_f32 v36, s55, v41
        v_rcp_f32 v36, v36
        v_mul_f32 v46, v42, v36""")
        a.stamp(9)
        a("s_barrier")
        for u in range(4):
            a(f"ds_read2st64_b64 v[{48+4*u}:{51+4*u}], v1 offset0:{L_RED//512 + 2*u} offset1:{L_RED//512 + 2*u + 1}")
        osl = a.lab("op_slow"); osd = a.lab("op_done")
        a(f"""s_waitcnt lgkmcnt(2)
        v_pk_add_f32 v[48:49], v[48:49], v[50:51]
        v_pk_add_f32 v[52:53], v[52:53], v[54:55]
        s_waitcnt lgkmcnt(0)
        v_pk_add_f32 v[56:57], v[56:57], v[58:59]
        v_pk_add_f32 v[60:61], v[60:61], v[62:63]
        v_pk_add_f32 v[48:49], v[48:49], v[52:53]
        v_pk_add_f32 v[56:57], v[56:57], v[60:61]
        v_pk_add_f32 v[48:49], v[48:49], v[56:57]
        v_pk_mul_f32 v[48:49], v[48:49], v[46:47] op_sel_hi:[1,0]
        s_cmp_lg_u32 s46, 0
        s_cbranch_scc1 {osl}
        global_store_dwordx2 v21, v[48:49], s[28:29]
        s_branch {osd}
        {osl}:
        global_store_dwordx2 v21, v[48:49], s[28:29] sc1
        {osd}:""")
        a.stamp(10)
        gf = a.lab("gf"); gfd = a.lab("gf_ok"); free = a.lab("notfree"); nb = a.lab("nob3b")
        a(f"""s_cmp_lg_u32 s31, 2
        s_cbranch_scc1 {free}""")
        a.finish()
        a(f"""{free}:
        s_cmp_lg_u32 s31, 1
        s_cbranch_scc1 {nb}
        s_barrier
        {nb}:
        s_mov_b32 s42, 0
        s_waitcnt vmcnt(1)
        {gf}:
        v_xor_b32 v64, s44, v64
        v_xor_b32 v65, s44, v65
        v_xor_b32 v66, s44, v66
        v_xor_b32 v67, s44, v67
        v_or3_b32 v64, v64, v65, v66
        v_or_b32 v64, v64, v67
        v_cmp_lt_u32 vcc, 7, v64
        s_cbranch_vccz {gfd}
        global_load_dwordx4 v[64:67], v24, s[28:29] sc1
        s_add_u32 s42, s42, 1
        s_cmp_lt_u32 s42, {SPIN}
        s_waitcnt vmcnt(0)
        s_cbranch_scc1 {gf}
        {gfd}:
        v_cmp_eq_u32 vcc, 0, v64
        s_lshl_b32 s35, s30, 3
        s_nop 1
        s_lshr_b64 s[48:49], vcc, s35
        s_and_b32 s48, s48, 0xff
        s_cmp_eq_u32 s48, 0xff
        s_cselect_b32 s35, {1 if p['fast'] else 0}, 0
        v_mov_b32 v2, 0
        v_mov_b32 v36, s35
        v_mov_b32 v37, s43
        ds_write_b64 v2, v[36:37] offset:{L_FL}""")
        a.stamp(7)
        a(f"""s_cmp_eq_u32 s31, 1
        s_cbranch_scc1 L_mlp_ctrl
        v_lshlrev_b32 v2, 4, v0
        s_waitcnt lgkmcnt(0)
        s_barrier""")
        for u in range(4):
            a(f"ds_read_b128 v[{48+4*u}:{51+4*u}], v2 offset:{L_RED2 + 1024*u}")
        a("""s_waitcnt lgkmcnt(2)
        v_pk_add_f32 v[48:49], v[48:49], v[52:53]
        v_pk_add_f32 v[50:51], v[50:51], v[54:55]
        s_waitcnt lgkmcnt(0)
        v_pk_add_f32 v[56:57], v[56:57], v[60:61]
        v_pk_add_f32 v[58:59], v[58:59], v[62:63]
        v_pk_add_f32 v[48:49], v[48:49], v[56:57]
        v_pk_add_f32 v[50:51], v[50:51], v[58:59]
        global_store_dwordx4 v23, v[48:51], s[28:29] sc1""")
        a.stamp(11)
        a.finish()

        LATE = 80
        B1R = 112
        W1R, W2R = (LATE, TR) if p["mlpT"] == "w2" else (TR, LATE)
        go = a.lab("mlp_go"); cm = a.lab("mlp_common")
        a("L_mlp_ctrl:")
        a(f"""v_lshrrev_b32 v3, 4, v0
        v_and_b32 v2, 7, v0
        v_lshl_add_u32 v2, v3, 3, v2
        s_lshl_b32 s35, s39, 5
        v_add_lshl_u32 v252, v2, s35, 1
        global_load_ushort v252, v252, s[18:19]""")
        if p["mlpT"] == "w2":
            a.w1addr(14); a.w2addr(15)
            a.load8(W1R, 14, "s[16:17]", 16*3456)
            a.load8(W2R, 15, "s[20:21]", 1280)
            a(f"s_mov_b32 s47, 1\ns_branch {cm}")
        else:
            a.w1addr(15)
            a.load8(W1R, 15, "s[16:17]", 16*3456)
            a.w2addr(14)
            a.load8(W2R, 14, "s[20:21]", 1280)
            a(f"s_branch {cm}")
        a(f"""L_mlp:
        s_cmp_eq_u32 s31, 1
        s_cbranch_scc1 {go}""")
        a.finish()
        a(f"{go}:")
        if p["mlpT"] == "w2":
            a.w1addr(14)
            a("s_barrier")
            a.load8(W1R, 14, "s[16:17]", 16*3456)
        else:
            a.w2addr(14)
            a("s_barrier")
            a.load8(W2R, 14, "s[20:21]", 1280)
        a(f"""{cm}:
        s_lshl_b32 s35, s3, 8
        v_lshrrev_b32 v2, 4, v0
        v_and_b32 v12, 15, v0
        v_and_b32 v3, 7, v0
        v_lshl_add_u32 v3, v2, 3, v3
        s_lshl_b32 s37, s3, 13
        s_add_u32 s37, s37, {L_W1}
        v_lshlrev_b32 v3, 3, v3
        v_bfe_u32 v13, v0, 3, 1
        v_lshl_add_u32 v21, v13, 2, v3
        v_lshl_add_u32 v22, v12, 3, s35
        v_add_u32 v22, {L_T1}, v22
        v_and_b32 v3, 1, v0
        v_mul_u32_u24 v3, {YS}, v3
        v_lshl_add_u32 v3, v2, 4, v3
        v_add_u32 v23, s35, v3
        v_bfe_u32 v3, v0, 2, 2
        v_lshl_add_u32 v3, v2, 3, v3
        v_lshlrev_b32 v3, 6, v3
        v_and_b32 v12, 3, v0
        v_lshl_add_u32 v3, v12, 3, v3
        v_add_u32 v24, s37, v3
        v_lshl_add_u32 v19, v0, 4, s37
        s_mul_i32 s38, s39, 5120
        s_lshl_b32 s35, s3, 9
        s_add_u32 s38, s38, s35
        s_add_u32 s38, s38, {CP}""")
        a.dlayout(25, 3, bstride=2560)
        a(f"""v_add_u32 v25, s38, v25
        s_lshl_b32 s36, s30, 13
        s_mul_i32 s38, s3, 2560
        s_add_u32 s36, s36, s38
        s_add_u32 s36, s36, {HB}
        v_lshl_add_u32 v2, v0, 4, s36
        v_lshl_add_u32 v3, v0, 3, s36
        s_mul_i32 s36, s3, {YS}
        v_lshl_add_u32 v26, v0, 3, s36
        v_lshl_add_u32 v27, v0, 2, s36""")
        if p["mlpT"] == "w2":
            w = a.lab("w1w"); w2 = a.lab("w1w2")
            a(f"""s_cmp_eq_u32 s3, 4
            s_cbranch_scc1 {w}
            s_waitcnt vmcnt(0)
            {w}:
            s_waitcnt vmcnt(8)""")
        else:
            a("s_waitcnt vmcnt(8)")
        for t in range(8):
            a(f"ds_write_b128 v19, v[{W1R+4*t}:{W1R+4*t+3}] offset:{1024*t}")
        a("s_waitcnt lgkmcnt(0)")
        for ks in range(4):
            for ct in range(2):
                for hf_ in range(2):
                    r = B1R + 4 * (2 * ks + ct) + 2 * hf_
                    a(f"ds_read_b64_tr_b16 v[{r}:{r+1}], v24 offset:{(32*ks + 4*hf_)*64 + 32*ct}")
        a("v_lshlrev_b32 v20, 16, v252")
        a.stamp(15)
        a("s_waitcnt lgkmcnt(0)")
        a("s_barrier")
        a.stamp(12)
        noln = a.lab("noln")
        a(f"""s_cmp_ge_u32 s3, 2
        s_cbranch_scc1 {noln}""")

        def ldH():
            a("global_load_dwordx4 v[28:31], v2, s[28:29] sc1")
            a("global_load_dwordx4 v[32:35], v2, s[28:29] offset:1024 sc1")
            a("global_load_dwordx2 v[36:37], v3, s[28:29] offset:2048 sc1")
        a.poll("hb", ldH, list(range(28, 38)), 12)
        a.stamp(13)
        a.ln(28, 40, 46, True)
        a.ln(28, 40, 46, False)
        a(f"""ds_write_b64 v26, v[40:41] offset:{L_Y}
        ds_write_b64 v26, v[42:43] offset:{L_Y + 512}
        ds_write_b32 v27, v44 offset:{L_Y + 1024}
        s_waitcnt lgkmcnt(0)
        {noln}:
        s_barrier""")
        a.stamp(18)
        for ks in range(4):
            a(f"ds_read_b128 v[{28+4*ks}:{31+4*ks}], v23 offset:{L_Y + 64*ks}")
        for ks in range(4):
            a(f"s_waitcnt lgkmcnt({3-ks})")
            for ct in range(2):
                c = "0" if ks == 0 else f"v[{44+4*ct}:{47+4*ct}]"
                r = B1R + 4 * (2 * ks + ct)
                a(f"v_mfma_f32_16x16x32_bf16 v[{44+4*ct}:{47+4*ct}], v[{28+4*ks}:{31+4*ks}], v[{r}:{r+3}], {c}")
        a(f"""s_mov_b64 exec, 0xffff
        ds_write2_b64 v22, v[44:45], v[48:49] offset0:0 offset1:16
        s_mov_b64 exec, -1
        v_mov_b32 v33, 1.0
        s_waitcnt lgkmcnt(0)
        s_barrier
        ds_read2st64_b32 v[28:29], v21 offset0:{L_T1//256} offset1:{L_T1//256+1}
        ds_read2st64_b32 v[30:31], v21 offset0:{L_T1//256+2} offset1:{L_T1//256+3}
        ds_read_b32 v32, v21 offset:{L_T1 + 1024}
        s_waitcnt lgkmcnt(1)
        v_pk_add_f32 v[28:29], v[28:29], v[30:31]
        v_add_f32 v28, v28, v29
        s_waitcnt lgkmcnt(0)
        v_add_f32 v28, v28, v32
        v_cvt_pk_bf16_f32 v28, v28, v28
        v_lshlrev_b32 v28, 16, v28
        v_add_f32 v28, v28, v20
        v_cvt_pk_bf16_f32 v28, v28, v28
        v_lshlrev_b32 v28, 16, v28
        v_mul_f32 v29, v28, v28
        v_mul_f32 v30, {hx(-2.0*math.sqrt(2.0/math.pi)*LOG2E)}, v28
        v_fmamk_f32 v29, v29, {hx(0.044715)}, v33
        v_mul_f32 v29, v29, v30
        v_exp_f32 v29, v29
        v_add_f32 v29, 1.0, v29
        v_rcp_f32 v29, v29
        v_mul_f32 v28, v28, v29
        v_mov_b32_dpp v29, v28 quad_perm:[1,1,3,3] row_mask:0xf bank_mask:0xf
        v_cvt_pk_bf16_f32 v28, v28, v29
        v_mov_b32_dpp v32, v28 quad_perm:[0,0,0,0] row_mask:0xf bank_mask:0xf
        v_mov_b32_dpp v33, v28 quad_perm:[2,2,2,2] row_mask:0xf bank_mask:0xf""")
        a.mirror4()
        a("s_waitcnt vmcnt(0)")
        a.diag8(W2R)
        a("global_store_dwordx4 v25, v[44:47], s[28:29] sc1")
        a.stamp(14)
        a.finish()
        if self.diag:
            a(f"""L_dump:
            s_mov_b64 exec, -1
            s_lshl_b32 s35, s34, 3
            s_add_u32 s35, s35, s3
            s_lshl_b32 s35, s35, 8
            s_add_u32 s35, s35, {STAMP}
            v_lshl_add_u32 v2, v0, 2, s35
            global_store_dword v2, v255, s[28:29]""")
        a("L_exit:")
        a("s_endpgm")
        a("L_codeend:")

    def write(self, fn):
        gen1.LDS_SIZE = LDS_SIZE
        gen1.G.write(self, fn)


if __name__ == "__main__":
    out = sys.argv[1] if len(sys.argv) > 1 else "k4.s"
    kw = {}
    diag = False
    for x in sys.argv[2:]:
        if x == "diag":
            diag = True
        else:
            k, v = x.split("=")
            kw[k] = eval(v)
    G(diag=diag, **kw).write(out)
```

```python
import sys, struct, math
from hz import process
import gen1
from gen1 import hx, NAME, LOG2E, SPIN
from gen4 import G as G4

AP = 0x00000
HB = 0x28000
CP = 0x32000
HB2 = 0x76000
EP = 0x80000
F2 = 0x81000
BK = 0x100000
STAMP = 0x8000000
L_Y = 0x0000; YS = 1408
L_Q = 0x0B00; L_ML = 0x0C00; L_FL = 0x0C40; L_Z = 0x0C80; L_QF = 0x0C90
L_RED = 0x1000; L_RED2 = 0x2000; L_T1 = 0x3000
L_W1 = 0x4000
LDS_SIZE = L_W1 + 5 * 8192
KR, VR, FRG, TR = 16, 80, 144, 208


class G(G4):
    def __init__(self, diag=False, **kw):
        super().__init__(diag=diag)
        self.p = dict(P=8, P2=9, Ptail=10, fast=True, prefetch=True, nt="nt", prio=3, qdelay=6, adelay=0, cdelay=0,
                      early=False, mlpT="w2", tpos=16, chkend=0, mpos=5, qslow=3, F=8, Pq=8, warm=0, hslow=100, pre="ldnt")
        self.p.update(kw)

    def pollt(self, name, loads, words, T, waitcnt="vmcnt(0)", pre=None, first_issued=False):
        a = self
        lp = a.lab(name); done = a.lab(name + "_ok"); mid = a.lab(name + "_w")
        a("s_mov_b32 s42, 0")
        if first_issued:
            a(f"s_branch {mid}")
        a(f"{lp}:")
        if pre:
            pre()
        loads()
        a(f"{mid}:")
        a("s_add_u32 s42, s42, 1")
        a(f"s_waitcnt {waitcnt}")
        w = list(words)
        for r in w:
            a(f"v_xor_b32 v{r}, v246, v{r}")
        a(f"v_or_b32 v{T}, v{w[0]}, v{w[1]}")
        for i in range(2, len(w), 2):
            a(f"v_or3_b32 v{T}, v{T}, v{w[i]}, v{w[i+1]}")
        a(f"v_cmp_ne_u32_sdwa vcc, v{T}, v13 src0_sel:BYTE_0 src1_sel:DWORD")
        a(f"s_cbranch_vccz {done}")
        a(f"s_cmp_lt_u32 s42, {SPIN}")
        a(f"s_cbranch_scc1 {lp}")
        a(f"{done}:")

    def tagw(self, regs, tagv):
        for r in regs:
            self(f"v_and_or_b32 v{r}, v{r}, s49, v{tagv}")

    def build(self):
        a = self
        p = self.p
        nt = p["nt"]
        P = p["P"]
        a(f"""
        s_cmp_ge_u32 s2, 256
        s_cbranch_scc1 L_exit
        s_load_dwordx16 s[4:19], s[0:1], 0
        s_load_dwordx8 s[20:27], s[0:1], 64
        s_load_dwordx2 s[28:29], s[0:1], 96
        v_lshrrev_b32 v1, 6, v0
        v_and_b32 v0, 63, v0
        v_readfirstlane_b32 s3, v1
        s_and_b32 s30, s2, 7
        s_lshr_b32 s31, s2, 3
        s_lshl_b32 s34, s30, 5
        s_add_u32 s34, s34, s31
        s_lshr_b32 s32, s34, 3
        s_and_b32 s33, s34, 7
        """)
        if self.diag:
            a("v_mov_b32 v255, 0")
            a("s_memrealtime s[100:101]")
        a("""s_sub_u32 s3, s3, 1
        s_cbranch_scc0 L_att""")
        if p["prio"]:
            a(f"s_setprio {p['prio']}")
        a("s_mov_b32 s3, 4")
        if p["prefetch"]:
            a(f"""s_getpc_b64 s[36:37]
            L_pc:
            s_sub_u32 s36, s36, L_pc-{NAME}_kernel
            s_subb_u32 s37, s37, 0
            v_lshlrev_b32 v1, 7, v0
            global_load_dword v254, v1, s[36:37]
            v_add_u32 v1, 8192, v1
            v_min_u32 v1, L_codeend-{NAME}_kernel-4, v1
            global_load_dword v253, v1, s[36:37]""")
        WQ = 80
        a(f"""
        v_lshlrev_b32 v1, 3, v0
        v_lshlrev_b32 v2, 2, v0
        v_mov_b32 v36, 0
        ds_write_b32 v2, v36 offset:{L_ML}
        s_mul_i32 s35, s33, {80*8192}
        s_lshl_b32 s38, s32, 8
        s_add_u32 s35, s35, s38
        v_lshrrev_b32 v3, 4, v0
        v_mul_u32_u24 v3, {20*8192}, v3
        v_and_b32 v12, 15, v0
        v_lshl_add_u32 v3, v12, 4, v3
        v_add_u32 v3, s35, v3
        v_mov_b32 v12, {EP}
        v_mov_b32 v16, -1
        v_mov_b32 v17, -1
        v_mov_b32 v18, -1
        v_mov_b32 v19, -1
        s_lshl_b32 s35, s34, 11
        v_lshl_add_u32 v20, v0, 4, s35
        s_lshl_b32 s45, s34, 12
        s_add_u32 s45, s45, {BK}
        v_lshl_add_u32 v21, v0, 4, s45
        s_movk_i32 s38, 0x2000
        s_waitcnt lgkmcnt(0)
        """)
        if self.diag:
            a("v_writelane_b32 v255, s100, 0")
        a(f"""global_load_dwordx2 v[24:25], v1, s[4:5]
        global_load_dwordx2 v[26:27], v1, s[4:5] offset:512
        global_load_dword v28, v2, s[4:5] offset:1024
        global_load_dwordx2 v[30:31], v1, s[4:5] offset:1280
        global_load_dwordx2 v[32:33], v1, s[4:5] offset:1792
        global_load_dword v34, v2, s[4:5] offset:2304
        global_load_dword v15, v12, s[28:29] sc1""")
        NB = 0
        if p["pre"] in ("ldnt", "ld"):
            fl = "nt" if p["pre"] == "ldnt" else ""
            for u in range(3):
                a(f"global_load_dwordx4 v[76:79], v21, s[28:29] offset:{1024*u} {fl}")
            NB = 3
        elif p["pre"] == "st":
            for u in range(3):
                a(f"global_store_dwordx4 v21, v[16:19], s[28:29] offset:{1024*u}")
            NB = 3
        for t in range(20):
            if t:
                a("v_add_u32 v3, s38, v3")
            a(f"global_load_dwordx4 v[{WQ+4*t}:{WQ+4*t+3}], v3, s[10:11] {nt}")
        if p["pre"] == "stlate":
            a(f"""global_store_dwordx4 v21, v[16:19], s[28:29]
            global_store_dwordx4 v21, v[16:19], s[28:29] offset:1024
            global_store_dwordx4 v21, v[16:19], s[28:29] offset:2048""")
        if p["warm"]:
            a("""global_load_dwordx4 v[68:71], v20, s[28:29]
            global_load_dwordx4 v[72:75], v20, s[28:29] offset:1024""")
        NY = (3 if p["pre"] == "stlate" else 0) + (2 if p["warm"] else 0)
        a("""s_barrier
        s_branch L_ctrl""")
        a(f"""L_att:
        s_lshr_b32 s35, s33, 2
        s_lshl_b32 s35, s35, 5
        s_add_u32 s35, s35, s32
        s_lshl_b32 s35, s35, 4
        s_and_b32 s36, s33, 3
        s_add_u32 s35, s35, s36
        s_add_u32 s35, s35, 12
        s_lshl_b32 s35, s35, 2
        s_add_u32 s35, s35, s3
        s_lshl_b32 s35, s35, 14
        s_add_u32 s35, s35, 4096
        v_bfe_u32 v1, v0, 2, 2
        v_lshlrev_b32 v1, 8, v1
        v_lshrrev_b32 v2, 4, v0
        v_lshl_add_u32 v1, v2, 6, v1
        v_and_b32 v2, 3, v0
        v_lshl_add_u32 v1, v2, 4, v1
        v_add_u32 v1, s35, v1
        v_lshl_add_u32 v14, v0, 4, s35
        s_waitcnt lgkmcnt(0)
        """)
        if self.diag:
            a("v_writelane_b32 v255, s100, 0")
        a("s_barrier")
        if self.diag:
            a("s_memrealtime s[98:99]")
        K = [("K", t) for t in range(16)]; V = [("V", t) for t in range(16)]; T = [("T", t) for t in range(8)]
        S = [("S", k) for k in p.get("Sset", range(5))]
        if p["early"]:
            first = K[:P-1] + V[:1]
            rest = T[:1] + S + K[P-1:]
            Vr, Tr = V[1:], T[1:]
        else:
            first = K[:p["F"]]
            rest = S + K[p["F"]:]
            Vr, Tr = V, T
        nbefore = [v for v in Vr if v[1] < p["tpos"]]
        nafter = [v for v in Vr if v[1] >= p["tpos"]]
        tail = []
        while nafter or Tr:
            if Tr: tail.append(Tr.pop(0))
            if nafter: tail.append(nafter.pop(0))
        order = first + rest + nbefore + tail
        order.insert(len(order) - p["mpos"], ("S", 5))
        NL = len(order)
        pos = {it: i for i, it in enumerate(order)}
        st = {"issued": 0, "done": -1}

        def emit(it):
            k, t = it
            if k == "K":
                if t == 8:
                    a("v_add_u32 v1, 8192, v1")
                a(f"global_load_dwordx4 v[{KR+4*t}:{KR+4*t+3}], v1, s[6:7] offset:{(t%8)*1024-4096} {nt}")
            elif k == "V":
                if t == 8:
                    a("v_add_u32 v14, 8192, v14")
                a(f"global_load_dwordx4 v[{VR+4*t}:{VR+4*t+3}], v14, s[8:9] offset:{(t%8)*1024-4096} {nt}")
            elif k == "T":
                a(f"global_load_dwordx4 v[{TR+4*t}:{TR+4*t+3}], v15, s[44:45] {nt}")
                if t < 7:
                    a("v_add_u32 v15, s46, v15")
            else:
                other = "s[16:17]" if p["mlpT"] == "w2" else "s[20:21]"
                a(["global_load_ushort v254, v250, s[4:5]",
                   "global_load_ushort v251, v251, s[22:23]",
                   "global_load_ushort v2, v250, s[24:25]",
                   "global_load_ushort v252, v252, s[18:19]",
                   f"global_load_dword v253, v253, {other}",
                   "global_load_dwordx4 v[40:43], v247, s[28:29] sc1"][t])

        def issue(pace=0):
            i = st["issued"]
            if pace and order[i][0] != "S":
                cnt = 0; j = i
                while j > 0 and cnt < pace:
                    j -= 1
                    if order[j][0] != "S":
                        cnt += 1
                if cnt == pace and j > st["done"]:
                    a(f"s_waitcnt vmcnt({i-1-j})")
                    st["done"] = j
            emit(order[i])
            st["issued"] += 1

        def wait_for(it):
            i = pos[it]
            assert i < st["issued"]
            if st["done"] < i:
                a(f"s_waitcnt vmcnt({st['issued']-1-i})")
                st["done"] = i
        for _ in first:
            issue()
        a(self.ROLES)
        setd = a.lab("setd")
        if p["mlpT"] == "w2":
            a.w2addr(15)
            a("s_movk_i32 s46, 1280\ns_mov_b64 s[44:45], s[20:21]")
            a(f"s_mul_i32 s36, s3, {128*3456}\nv_mov_b32 v253, s36")
        else:
            a.w1addr(15)
            a(f"s_mov_b32 s46, {16*3456}\ns_mov_b64 s[44:45], s[16:17]")
            a(f"s_mul_i32 s36, s39, {32*1280}\nv_mov_b32 v253, s36")
        a(f"""
        s_cmp_eq_u32 s31, 1
        s_cbranch_scc1 {setd}
        s_mov_b64 s[44:45], s[12:13]
        s_mov_b32 s46, 0
        v_mov_b32 v15, 0
        s_cmp_eq_u32 s31, 2
        s_cbranch_scc1 {setd}
        s_movk_i32 s46, 1280
        s_lshl_b32 s36, s32, 2
        s_add_u32 s36, s36, s3
        s_mul_i32 s36, s36, {32*1280}
        s_lshl_b32 s37, s33, 8
        s_add_u32 s36, s36, s37""")
        a.rowaddr(15)
        a(f"""{setd}:
        s_and_b32 s38, s32, 3
        s_mul_i32 s38, s38, 5
        s_add_u32 s38, s38, s33
        s_lshl_b32 s38, s38, 2
        s_add_u32 s38, s38, s3
        s_min_u32 s38, s38, 79
        s_lshl_b32 s35, s38, 4
        v_and_b32 v2, 3, v0
        v_lshrrev_b32 v3, 4, v0
        v_lshl_add_u32 v2, v2, 2, v3
        v_add_lshl_u32 v250, v2, s35, 1
        s_cmp_ge_u32 s38, 40
        s_cselect_b32 s35, 1280, 0
        v_subrev_u32 v251, s35, v250
        v_and_b32 v2, 7, v0
        v_lshl_add_u32 v2, v3, 3, v2
        s_lshl_b32 s35, s39, 5
        v_add_lshl_u32 v252, v2, s35, 1""")
        a.selectors()
        a("v_and_b32 v2, 8, v0\nv_cmp_eq_u32 vcc, 8, v2")
        for r in range(4):
            a(f"v_cndmask_b32 v{240+r}, v{4+r}, v{8+r}, vcc")
        a(f"""v_lshrrev_b32 v2, 4, v0
        v_and_b32 v3, 3, v0
        v_lshl_add_u32 v2, v2, 2, v3
        v_lshlrev_b32 v2, 4, v2
        v_add_u32 v2, {L_Q}, v2
        v_bfe_u32 v3, v0, 2, 2
        v_mov_b32 v12, {L_Z}""")
        for qd in range(4):
            a(f"v_cmp_eq_u32 vcc, {qd}, v3")
            a(f"v_cndmask_b32 v{200+qd}, v12, v2, vcc")
        a.dlayout(248, 3, bstride=512)
        a(f"""s_lshl_b32 s36, s3, 10
        v_add_u32 v248, s36, v248
        s_lshl_b32 s36, s32, 15
        s_add_u32 s36, s36, {BK + 2560}
        v_and_b32 v2, 8, v0
        v_lshlrev_b32 v2, 11, v2
        v_and_b32 v3, 3, v0
        v_lshl_add_u32 v2, v3, 12, v2
        v_add_u32 v247, s36, v2
        s_lshl_b32 s35, s3, 7
        s_sub_u32 s35, s35, 512
        v_lshrrev_b32 v3, 4, v0
        v_lshl_add_u32 v2, v3, 5, s35
        v_and_b32 v3, 4, v0
        v_lshl_add_u32 v2, v3, 2, v2
        v_add_u32 v249, v247, v2
        s_mov_b32 s40, {hx(128 ** -0.5)}
        s_mov_b32 s48, {hx(LOG2E)}
        s_mov_b32 s49, 0xffffff00
        s_lshl_b32 s36, s3, 3
        v_mov_b32 v12, s36
        v_mov_b32 v13, 0
        s_mov_b32 s47, 0
        """)
        if p["early"]:
            issue()
        while st["done"] < pos[("K", 15)]:
            issue(p["Pq"] if order[st["issued"]][0] == "K" else P)
        a.stamp(1)
        if self.diag:
            a("v_writelane_b32 v255, s98, 16")
        lastchk = min(NL - 1, pos[("V", 15)] + p["chkend"])
        assert pos[("S", 5)] > lastchk
        firstchk = True
        while True:
            sk = a.lab("chk")
            if not firstchk:
                a(f"s_cmp_lg_u32 s47, 0\ns_cbranch_scc1 {sk}")
            a(f"""ds_read_b64 v[2:3], v13 offset:{L_QF}
            s_waitcnt lgkmcnt(0)
            v_readfirstlane_b32 s47, v3
            s_cmp_eq_u32 s47, 0
            s_cbranch_scc1 {sk}
            s_call_b64 s[50:51], L_compute
            {sk}:""")
            firstchk = False
            issue(p["P2"])
            if st["issued"] > lastchk:
                break
        lp = a.lab("qw"); sk = a.lab("qw_done"); go = a.lab("qw_go")
        a(f"""s_cmp_lg_u32 s47, 0
        s_cbranch_scc1 {sk}
        s_mov_b32 s42, 0
        {lp}:
        ds_read_b64 v[2:3], v13 offset:{L_QF}
        s_add_u32 s42, s42, 1
        s_waitcnt lgkmcnt(0)
        v_readfirstlane_b32 s47, v3
        s_cmp_lg_u32 s47, 0
        s_cbranch_scc1 {go}
        s_cmp_lt_u32 s42, {SPIN*20}
        s_cbranch_scc1 {lp}
        {go}:
        s_call_b64 s[50:51], L_compute
        {sk}:""")
        a.stamp(19)
        Pt = p["Ptail"]

        def topup():
            while st["issued"] < NL:
                infl = sum(1 for j in range(st["done"] + 1, st["issued"]) if order[j][0] != "S")
                if infl >= Pt and order[st["issued"]][0] != "S":
                    break
                issue()
        topup()
        for t in range(16):
            a(f"v_mov_b32_dpp v{48+t%2}, v{20+t//4} row_newbcast:{4*(t%4)} row_mask:0xf bank_mask:0xf")
            for r in range(4):
                a(f"v_perm_b32 v{FRG+4*(t%4)+r}, v{48+t%2}, v{48+t%2}, v{240+r}")
            wait_for(("V", t))
            topup()
            c = "0" if t == 0 else "v[44:47]"
            a(f"v_mfma_f32_16x16x32_bf16 v[44:47], v[{FRG+4*(t%4)}:{FRG+4*(t%4)+3}], v[{VR+4*t}:{VR+4*t+3}], {c}")
        while st["issued"] < NL:
            issue()
        a(f"""ds_write_b128 v248, v[44:47] offset:{L_RED}
        s_waitcnt lgkmcnt(0)""")
        a.stamp(20)
        a("s_barrier")
        a.stamp(5)
        a("""s_cmp_lg_u32 s31, 0
        s_cbranch_scc1 L_mlp""")
        a(f"""global_load_dwordx4 v[28:31], v249, s[28:29] sc1
        s_lshl_b32 s35, s38, 6
        v_lshrrev_b32 v2, 2, v0
        v_mul_u32_u24 v2, 5120, v2
        v_and_b32 v3, 3, v0
        v_lshl_add_u32 v2, v3, 4, v2
        v_add_u32 v22, s35, v2
        s_mul_i32 s35, s30, 5120
        s_add_u32 s35, s35, {HB}
        v_lshl_add_u32 v25, v250, 1, s35
        v_add_u32 v24, {AP + 16*5120}, v22
        v_add_u32 v23, {HB2 - HB}, v25
        v_lshlrev_b32 v20, 16, v254
        v_lshlrev_b32 v21, 16, v251""")
        st["issued"] += 1
        mlp_ = a.lab("ml"); mlok = a.lab("ml_ok"); og = a.lab("og"); ogok = a.lab("og_ok")
        wait_for(("S", 5))
        a(f"""s_mov_b32 s42, 0
        {mlp_}:
        v_xor_b32 v26, s43, v41
        v_xor_b32 v27, s43, v43
        v_or_b32 v26, v26, v27
        v_lshlrev_b32 v26, 3, v26
        v_cmp_ne_u32 vcc, 0, v26
        s_cbranch_vccz {mlok}
        global_load_dwordx4 v[40:43], v247, s[28:29] sc1
        s_add_u32 s42, s42, 1
        s_cmp_lt_u32 s42, {SPIN}
        s_waitcnt vmcnt(0)
        s_cbranch_scc1 {mlp_}
        {mlok}:""")
        if self.diag:
            a("v_writelane_b32 v255, s42, 28")
        a.stamp(21)
        a(f"""v_max_f32_dpp v41, v40, v40 quad_perm:[1,0,3,2] row_mask:0xf bank_mask:0xf
        v_max_f32_dpp v41, v41, v41 quad_perm:[2,3,0,1] row_mask:0xf bank_mask:0xf
        v_sub_f32 v41, v40, v41
        v_mul_f32 v41, s48, v41
        v_exp_f32 v41, v41
        v_mul_f32 v43, v41, v42
        v_add_f32_dpp v43, v43, v43 quad_perm:[1,0,3,2] row_mask:0xf bank_mask:0xf
        v_add_f32_dpp v43, v43, v43 quad_perm:[2,3,0,1] row_mask:0xf bank_mask:0xf
        v_rcp_f32 v43, v43
        v_mul_f32 v42, v41, v43""")
        a.pollt("og", lambda: a("global_load_dwordx4 v[28:31], v249, s[28:29] sc1"), [28, 29, 30, 31], 26, first_issued=True)
        if self.diag:
            a("v_writelane_b32 v255, s42, 29")
        a.stamp(6)
        a("""v_pk_mul_f32 v[28:29], v[28:29], v[42:43] op_sel_hi:[1,0]
        v_pk_mul_f32 v[30:31], v[30:31], v[42:43] op_sel_hi:[1,0]""")
        for d in ("quad_perm:[1,0,3,2]", "quad_perm:[2,3,0,1]"):
            for r in range(4):
                a(f"v_add_f32_dpp v{28+r}, v{28+r}, v{28+r} {d} row_mask:0xf bank_mask:0xf")
        a("""v_cvt_pk_bf16_f32 v32, v28, v29
        v_cvt_pk_bf16_f32 v33, v30, v31""")
        a.mirror4()
        a.diag8(TR)
        a(f"""ds_write_b128 v248, v[44:47] offset:{L_RED2}
        s_waitcnt lgkmcnt(0)
        s_barrier""")
        a.stamp(7)
        if p["adelay"]:
            a(f"s_sleep {p['adelay']}")

        def ldA():
            a("global_load_dwordx4 v[28:31], v22, s[28:29] sc1")
            a("global_load_dwordx4 v[32:35], v24, s[28:29] sc1")
        assert AP == 0
        a.pollt("ha", ldA, list(range(28, 36)), 26)
        a.stamp(8)
        a("v_pk_add_f32 v[28:29], v[28:29], v[32:33]\nv_pk_add_f32 v[30:31], v[30:31], v[34:35]")
        a.red16(28)
        slow = a.lab("hb_slow"); hbd = a.lab("hb_done")
        a(f"""v_cvt_pk_bf16_f32 v28, v28, v28
        v_lshlrev_b32 v28, 16, v28
        v_add_f32 v28, v28, v20
        v_cvt_pk_bf16_f32 v28, v28, v28
        v_lshl_or_b32 v26, v28, 16, v246
        s_mov_b32 exec_lo, 0x000f000f
        s_mov_b32 exec_hi, 0x000f000f
        global_store_dword v25, v26, s[28:29]
        global_store_dword v23, v26, s[28:29] sc1
        s_mov_b64 exec, -1
        v_lshlrev_b32 v19, 16, v28""")
        a.stamp(9)
        fin = a.lab("fin"); nob = a.lab("nobump")
        a(f"""s_and_b32 s35, s38, 7
        s_cmp_eq_u32 s35, s30
        s_cbranch_scc1 {fin}""")
        a.finish()
        a(f"""{fin}:
        s_cmp_lg_u32 s38, 0
        s_cbranch_scc1 {nob}
        v_mov_b32 v2, {EP}
        v_mov_b32 v3, s43
        global_store_dword v2, v3, s[28:29] sc1
        {nob}:""")
        for u in range(4):
            a(f"v_add_u32 v{48+u}, {CP + 16*5120*u}, v22")
        if p["cdelay"]:
            a(f"s_sleep {p['cdelay']}")

        def ldC():
            for u in range(3):
                a(f"global_load_dwordx4 v[{28+4*u}:{31+4*u}], v{48+u}, s[28:29] sc1")
            a("v_mov_b32 v40, v246\nv_mov_b32 v41, v246\nv_mov_b32 v42, v246\nv_mov_b32 v43, v246")
            a("s_mov_b64 exec, 0xffffff")
            a("global_load_dwordx4 v[40:43], v51, s[28:29] sc1")
            a("s_mov_b64 exec, -1")
        a.pollt("hc", ldC, list(range(28, 44)), 26)
        a.stamp(10)
        a("""v_pk_add_f32 v[28:29], v[28:29], v[32:33]
        v_pk_add_f32 v[30:31], v[30:31], v[34:35]
        v_pk_add_f32 v[36:37], v[36:37], v[40:41]
        v_pk_add_f32 v[38:39], v[38:39], v[42:43]
        v_pk_add_f32 v[28:29], v[28:29], v[36:37]
        v_pk_add_f32 v[30:31], v[30:31], v[38:39]""")
        a.red16(28)
        a("""v_cvt_pk_bf16_f32 v28, v28, v28
        v_lshlrev_b32 v28, 16, v28
        v_add_f32 v28, v28, v21
        v_cvt_pk_bf16_f32 v28, v28, v28
        v_lshlrev_b32 v28, 16, v28
        v_add_f32 v28, v28, v19
        v_cvt_pk_bf16_f32 v28, v28, v28
        s_mov_b32 exec_lo, 0x000f000f
        s_mov_b32 exec_hi, 0x000f000f
        global_store_short v250, v28, s[24:25]
        s_mov_b64 exec, -1""")
        a.finish()

        QF = 144; DR = 160; SR = 16
        a("L_compute:")
        a("v_readfirstlane_b32 s43, v2\nv_and_b32 v246, 0xff, v2")
        a.stamp(2)
        for qd in range(4):
            a(f"ds_read_b128 v[{QF+4*qd}:{QF+4*qd+3}], v{200+qd}")
        for qd in range(4):
            a(f"s_waitcnt lgkmcnt({3-qd})")
            for u in range(4):
                t = 4 * u + qd
                c = "0" if qd == 0 else f"v[{DR+4*u}:{DR+4*u+3}]"
                a(f"v_mfma_f32_16x16x32_bf16 v[{DR+4*u}:{DR+4*u+3}], v[{KR+4*t}:{KR+4*t+3}], v[{QF+4*qd}:{QF+4*qd+3}], {c}")
        for u in range(4):
            a(f"v_mov_b32_dpp v{SR+u}, v{DR+4*u} quad_perm:[0,0,0,0] row_mask:0xf bank_mask:0xf")
        for r in (1, 2, 3):
            for u in range(4):
                a(f"v_add_f32_dpp v{SR+u}, v{DR+4*u+r}, v{SR+u} quad_perm:[{r},{r},{r},{r}] row_mask:0xf bank_mask:0xf")
        for rnd in range(2):
            a("""v_cvt_pk_bf16_f32 v20, v16, v17
            v_cvt_pk_bf16_f32 v21, v18, v19
            v_lshlrev_b32 v16, 16, v20
            v_and_b32 v17, 0xffff0000, v20
            v_lshlrev_b32 v18, 16, v21
            v_and_b32 v19, 0xffff0000, v21""")
            if rnd == 0:
                a("""v_pk_mul_f32 v[16:17], v[16:17], s[40:41] op_sel_hi:[1,0]
                v_pk_mul_f32 v[18:19], v[18:19], s[40:41] op_sel_hi:[1,0]""")
        a(f"""v_max3_f32 v28, v16, v17, v18
        v_max_f32 v28, v28, v19
        v_max_f32_dpp v28, v28, v28 row_ror:4 row_mask:0xf bank_mask:0xf
        v_max_f32_dpp v28, v28, v28 row_ror:8 row_mask:0xf bank_mask:0xf
        v_mov_b32 v29, v28
        v_permlane32_swap_b32 v28, v29
        v_max_f32 v28, v28, v29
        v_mov_b32 v29, v28
        v_permlane16_swap_b32 v28, v29
        v_max_f32 v28, v28, v29
        v_pk_add_f32 v[16:17], v[16:17], v[28:29] op_sel_hi:[1,0] neg_lo:[0,1] neg_hi:[0,1]
        v_pk_add_f32 v[18:19], v[18:19], v[28:29] op_sel_hi:[1,0] neg_lo:[0,1] neg_hi:[0,1]
        v_pk_mul_f32 v[16:17], v[16:17], s[48:49] op_sel_hi:[1,0]
        v_pk_mul_f32 v[18:19], v[18:19], s[48:49] op_sel_hi:[1,0]
        v_exp_f32 v16, v16
        v_exp_f32 v17, v17
        v_exp_f32 v18, v18
        v_exp_f32 v19, v19
        v_pk_add_f32 v[30:31], v[16:17], v[18:19]
        v_cvt_pk_bf16_f32 v20, v16, v17
        v_add_f32 v30, v30, v31
        v_cvt_pk_bf16_f32 v21, v18, v19
        v_lshlrev_b32 v24, 16, v20
        v_add_f32_dpp v30, v30, v30 row_ror:4 row_mask:0xf bank_mask:0xf
        v_and_b32 v25, 0xffff0000, v20
        v_lshlrev_b32 v26, 16, v21
        v_add_f32_dpp v30, v30, v30 row_ror:8 row_mask:0xf bank_mask:0xf
        v_and_b32 v27, 0xffff0000, v21
        v_mov_b32 v31, v30
        v_pk_add_f32 v[16:17], v[16:17], v[24:25] neg_lo:[0,1] neg_hi:[0,1]
        v_pk_add_f32 v[18:19], v[18:19], v[26:27] neg_lo:[0,1] neg_hi:[0,1]
        v_permlane32_swap_b32 v30, v31
        v_add_f32 v30, v30, v31
        v_mov_b32 v31, v30
        v_cvt_pk_bf16_f32 v20, v24, v16
        v_cvt_pk_bf16_f32 v21, v25, v17
        v_permlane16_swap_b32 v30, v31
        v_add_f32 v29, v30, v31
        v_cvt_pk_bf16_f32 v22, v26, v18
        v_cvt_pk_bf16_f32 v23, v27, v19
        ds_write_b64 v12, v[28:29] offset:{L_ML}""")
        a.stamp(4)
        a("s_nop 1\ns_setpc_b64 s[50:51]")

        a("L_ctrl:")
        a.stamp(1)
        a.selectors()
        a(f"""s_getreg_b32 s44, hwreg(HW_REG_XCC_ID, 0, 3)
        s_waitcnt vmcnt({21+NY+NB})""")
        a.stamp(2)
        for b_, (src, X) in enumerate(((24, 36), (30, 48))):
            for i in range(5):
                a(f"v_lshlrev_b32 v{X+2*i}, 16, v{src+i}")
                a(f"v_and_b32 v{X+2*i+1}, 0xffff0000, v{src+i}")
            a.ln(X, src, 60, False)
            a(f"""v_lshlrev_b32 v2, 2, v0
            ds_write_b64 v1, v[{src}:{src+1}] offset:{L_Y + b_*YS}
            ds_write_b64 v1, v[{src+2}:{src+3}] offset:{L_Y + b_*YS + 512}
            ds_write_b32 v2, v{src+4} offset:{L_Y + b_*YS + 1024}""")
        a(f"""s_mul_i32 s35, s33, 160
        v_lshrrev_b32 v2, 4, v0
        v_mul_u32_u24 v2, 40, v2
        v_bfe_u32 v3, v0, 3, 1
        v_mul_u32_u24 v3, {YS}, v3
        v_add3_u32 v2, v2, v3, s35
        s_waitcnt lgkmcnt(0)""")
        for i in range(5):
            a(f"ds_read_b64 v[{36+2*i}:{37+2*i}], v2 offset:{L_Y + 8*i}")
        a(f"""s_waitcnt vmcnt({20+NY+NB})
        v_readfirstlane_b32 s43, v15
        s_add_u32 s43, s43, 1
        s_and_b32 s35, s43, 0xff
        s_cmp_eq_u32 s35, 0xff
        s_addc_u32 s43, s43, 0
        s_and_b32 s43, s43, 0x1fffffff
        s_lshl_b32 s44, s44, 29
        s_or_b32 s44, s44, s43
        s_mov_b32 s43, s44
        s_and_b32 s35, s43, 0xff
        v_mov_b32 v246, s35
        s_mov_b32 s49, 0xffffff00
        v_mov_b32 v13, 0
        v_mov_b32 v53, s44
        v_mov_b32 v55, s44
        v_mov_b32 v57, s44
        v_mov_b32 v59, s44
        s_waitcnt lgkmcnt(0)""")
        a.stamp(3)
        FR = 160
        a.frag(FR, 36, 0)
        for t in range(20):
            if t + 1 < 20:
                a.frag(FR + 4 * (t + 1), 36 + (t + 1) // 2, (t + 1) & 1)
            a(f"s_waitcnt vmcnt({19+NY-t})")
            c = "0" if t == 0 else "v[48:51]"
            a(f"v_mfma_f32_16x16x32_bf16 v[48:51], v[{FR+4*t}:{FR+4*t+3}], v[{WQ+4*t}:{WQ+4*t+3}], {c}")
        qfl = "" if p["fast"] else "sc1"
        a(f"""v_mov_b32 v52, v48
        v_mov_b32 v54, v49
        v_mov_b32 v56, v50
        v_mov_b32 v58, v51
        global_store_dwordx4 v21, v[52:55], s[28:29] {qfl}
        global_store_dwordx4 v21, v[56:59], s[28:29] offset:1024 {qfl}""")
        a.stamp(4)
        a(self.ROLES)
        qg = a.lab("qg"); qgd = a.lab("qg_ok"); qns = a.lab("qg_nosc1"); qf = a.lab("qg_fast")
        a(f"""s_mul_i32 s35, s32, 5120
        s_lshl_b32 s38, s33, 9
        s_add_u32 s35, s35, s38
        v_lshrrev_b32 v3, 5, v0
        v_mul_u32_u24 v2, 2560, v3
        v_and_b32 v22, 31, v0
        v_lshl_add_u32 v2, v22, 4, v2
        v_add_u32 v23, s35, v2
        s_lshl_b32 s35, s32, 15
        s_lshr_b32 s38, s33, 2
        s_lshl_b32 s38, s38, 9
        s_add_u32 s35, s35, s38
        s_add_u32 s35, s35, {BK + 4096}
        v_lshlrev_b32 v2, 10, v3
        v_lshl_add_u32 v2, v22, 4, v2
        v_add_u32 v60, s35, v2
        v_add_u32 v61, 8192, v60
        v_add_u32 v62, 8192, v61
        v_add_u32 v63, 8192, v62
        v_and_b32 v2, 15, v0
        v_lshlrev_b32 v2, 4, v2
        v_and_b32 v22, 16, v0
        v_lshrrev_b32 v22, 1, v22
        v_add_u32 v2, v2, v22
        v_lshl_add_u32 v22, v3, 2, v2
        s_mov_b32 s42, 0""")
        if p["qdelay"]:
            a(f"s_sleep {p['qdelay']}")
        a.stamp(5)
        a(f"{qg}:")
        for u in range(8):
            a(f"global_load_dwordx4 v[{80+4*u}:{83+4*u}], v{60+u//2}, s[28:29] offset:{4096*(u%2)-4096} sc1")
        a("s_add_u32 s42, s42, 1\ns_waitcnt vmcnt(0)")
        a("v_xor_b32 v36, s44, v81\nv_xor_b32 v37, s44, v83")
        for u in range(1, 8):
            a(f"v_bitop3_b32 v36, v36, v{81+4*u}, s44 bitop3:0xf6")
            a(f"v_bitop3_b32 v37, v37, v{83+4*u}, s44 bitop3:0xf6")
        a(f"""v_or_b32 v36, v36, v37
        v_lshlrev_b32 v37, 3, v36
        v_cmp_ne_u32 vcc, 0, v37
        s_cbranch_vccz {qgd}
        s_cmp_lg_u32 s42, {p['qslow']}
        s_cbranch_scc1 {qns}
        global_store_dwordx4 v21, v[52:55], s[28:29] sc1
        global_store_dwordx4 v21, v[56:59], s[28:29] offset:1024 sc1
        {qns}:
        s_cmp_lt_u32 s42, {SPIN}
        s_cbranch_scc1 {qg}
        {qgd}:""")
        if self.diag:
            a("v_writelane_b32 v255, s42, 30")
        a("""v_add_f32 v80, v80, v84
        v_add_f32 v82, v82, v86
        v_add_f32 v88, v88, v92
        v_add_f32 v90, v90, v94
        v_add_f32 v96, v96, v100
        v_add_f32 v98, v98, v102
        v_add_f32 v104, v104, v108
        v_add_f32 v106, v106, v110
        v_add_f32 v80, v80, v88
        v_add_f32 v82, v82, v90
        v_add_f32 v96, v96, v104
        v_add_f32 v98, v98, v106
        v_add_f32 v80, v80, v96
        v_add_f32 v82, v82, v98
        v_cvt_pk_bf16_f32 v80, v80, v82""")
        a(f"""ds_write_b32 v22, v80 offset:{L_Q}
        v_cmp_ne_u32 vcc, 0, v36
        v_mov_b32 v2, 0
        v_mov_b32 v14, s44
        s_cmp_lg_u64 vcc, 0
        s_cselect_b32 s46, 1, {0 if p['fast'] else 1}
        s_cselect_b32 s35, 1, {p['hslow'] + 1 if p['fast'] else 1}
        v_mov_b32 v15, s35
        s_waitcnt lgkmcnt(0)
        ds_write_b64 v2, v[14:15] offset:{L_QF}
        s_cbranch_scc0 {qf}
        global_store_dwordx4 v21, v[52:55], s[28:29] sc1
        global_store_dwordx4 v21, v[56:59], s[28:29] offset:1024 sc1
        {qf}:""")
        a.stamp(6)
        mw = a.lab("mw"); mwd = a.lab("mw_ok"); msl = a.lab("ml_slow"); msd = a.lab("ml_done")
        a(f"""s_mov_b32 s40, {hx(LOG2E)}
        v_mov_b32 v20, s45
        v_lshl_add_u32 v21, v0, 3, s45
        s_mov_b32 s42, 0
        {mw}:
        ds_read_b128 v[36:39], v2 offset:{L_ML}
        ds_read_b128 v[40:43], v2 offset:{L_ML+16}
        s_add_u32 s42, s42, 1
        s_waitcnt lgkmcnt(0)
        v_min3_u32 v44, v37, v39, v41
        v_min_u32 v44, v44, v43
        v_cmp_eq_u32 vcc, 0, v44
        s_cbranch_vccz {mwd}
        s_sleep 1
        s_cmp_lt_u32 s42, {SPIN*20}
        s_cbranch_scc1 {mw}
        {mwd}:
        v_max3_f32 v44, v36, v38, v40
        v_max_f32 v44, v44, v42""")
        for i in range(4):
            a(f"v_sub_f32 v{36+2*i}, v{36+2*i}, v44")
        for i in range(4):
            a(f"v_mul_f32 v{36+2*i}, s40, v{36+2*i}")
        for i in range(4):
            a(f"v_exp_f32 v{36+2*i}, v{36+2*i}")
        a(f"""v_mul_f32 v46, v36, v37
        v_mov_b32 v45, s44
        v_fmac_f32 v46, v38, v39
        v_mov_b32 v47, s44
        v_fmac_f32 v46, v40, v41
        v_fmac_f32 v46, v42, v43
        s_cmp_lg_u32 s46, 0
        s_cbranch_scc1 {msl}
        global_store_dwordx4 v20, v[44:47], s[28:29] offset:2560
        s_branch {msd}
        {msl}:
        global_store_dwordx4 v20, v[44:47], s[28:29] offset:2560 sc1
        {msd}:""")
        a.stamp(8)
        a("s_barrier")
        for u in range(4):
            a(f"ds_read2st64_b64 v[{48+4*u}:{51+4*u}], v1 offset0:{L_RED//512 + 2*u} offset1:{L_RED//512 + 2*u + 1}")
        osl = a.lab("op_slow"); osd = a.lab("op_done")
        a(f"""s_waitcnt lgkmcnt(2)
        v_pk_add_f32 v[48:49], v[48:49], v[50:51]
        v_pk_add_f32 v[52:53], v[52:53], v[54:55]
        v_pk_mul_f32 v[48:49], v[48:49], v[36:37] op_sel_hi:[1,0]
        s_waitcnt lgkmcnt(0)
        v_pk_add_f32 v[56:57], v[56:57], v[58:59]
        v_pk_fma_f32 v[48:49], v[52:53], v[38:39], v[48:49] op_sel_hi:[1,0,1]
        v_pk_add_f32 v[60:61], v[60:61], v[62:63]
        v_pk_fma_f32 v[48:49], v[56:57], v[40:41], v[48:49] op_sel_hi:[1,0,1]
        v_pk_fma_f32 v[48:49], v[60:61], v[42:43], v[48:49] op_sel_hi:[1,0,1]
        v_and_or_b32 v48, v48, s49, v246
        v_and_or_b32 v49, v49, s49, v246
        s_cmp_lg_u32 s46, 0
        s_cbranch_scc1 {osl}
        global_store_dwordx2 v21, v[48:49], s[28:29] offset:2048
        s_branch {osd}
        {osl}:
        global_store_dwordx2 v21, v[48:49], s[28:29] offset:2048 sc1
        {osd}:""")
        a.stamp(10)
        gf = a.lab("gf"); gfd = a.lab("gf_ok"); free = a.lab("notfree"); nb = a.lab("nob3b")
        a(f"""s_cmp_lg_u32 s31, 2
        s_cbranch_scc1 {free}""")
        a.finish()
        a(f"""{free}:
        v_lshlrev_b32 v2, 4, v0
        s_barrier
        s_cmp_eq_u32 s31, 1
        s_cbranch_scc1 L_mlp_ctrl""")
        for u in range(4):
            a(f"ds_read_b128 v[{48+4*u}:{51+4*u}], v2 offset:{L_RED2 + 1024*u}")
        a("""s_waitcnt lgkmcnt(2)
        v_pk_add_f32 v[48:49], v[48:49], v[52:53]
        v_pk_add_f32 v[50:51], v[50:51], v[54:55]
        s_waitcnt lgkmcnt(0)
        v_pk_add_f32 v[56:57], v[56:57], v[60:61]
        v_pk_add_f32 v[58:59], v[58:59], v[62:63]
        v_pk_add_f32 v[48:49], v[48:49], v[56:57]
        v_pk_add_f32 v[50:51], v[50:51], v[58:59]""")
        a.tagw([48, 49, 50, 51], 246)
        a("global_store_dwordx4 v23, v[48:51], s[28:29] sc1")
        a.stamp(11)
        a.finish()
        self.mlp()
        if self.diag:
            a(f"""L_dump:
            s_mov_b64 exec, -1
            s_lshl_b32 s35, s34, 3
            s_add_u32 s35, s35, s3
            s_lshl_b32 s35, s35, 8
            s_add_u32 s35, s35, {STAMP}
            v_lshl_add_u32 v2, v0, 2, s35
            global_store_dword v2, v255, s[28:29]""")
        a("L_exit:")
        a("s_endpgm")
        a("L_codeend:")

    def mlp(self):
        a = self
        p = self.p
        LATE = 80
        B1R = 112
        W1R, W2R = (LATE, TR) if p["mlpT"] == "w2" else (TR, LATE)
        go = a.lab("mlp_go"); cm = a.lab("mlp_common")
        a("L_mlp_ctrl:")
        a(f"""v_lshrrev_b32 v3, 4, v0
        v_and_b32 v2, 7, v0
        v_lshl_add_u32 v2, v3, 3, v2
        s_lshl_b32 s35, s39, 5
        v_add_lshl_u32 v252, v2, s35, 1
        global_load_ushort v252, v252, s[18:19]""")
        a.w1addr(14); a.w2addr(15)
        a.load8(W1R, 14, "s[16:17]", 16*3456)
        a.load8(W2R, 15, "s[20:21]", 1280)
        a(f"s_branch {cm}")
        a(f"""L_mlp:
        s_cmp_eq_u32 s31, 1
        s_cbranch_scc1 {go}""")
        a.finish()
        a(f"{go}:")
        if p["mlpT"] == "w2":
            a.w1addr(14)
            a("s_barrier")
            a.load8(W1R, 14, "s[16:17]", 16*3456)
        else:
            a.w2addr(14)
            a("s_barrier")
            a.load8(W2R, 14, "s[20:21]", 1280)
        a(f"""{cm}:
        s_lshl_b32 s35, s3, 8
        v_lshrrev_b32 v2, 4, v0
        v_and_b32 v12, 15, v0
        v_and_b32 v3, 7, v0
        v_lshl_add_u32 v3, v2, 3, v3
        s_lshl_b32 s37, s3, 13
        s_add_u32 s37, s37, {L_W1}
        v_lshlrev_b32 v3, 3, v3
        v_bfe_u32 v18, v0, 3, 1
        v_lshl_add_u32 v21, v18, 2, v3
        v_lshl_add_u32 v22, v12, 3, s35
        v_add_u32 v22, {L_T1}, v22
        v_and_b32 v3, 1, v0
        v_mul_u32_u24 v3, {YS}, v3
        v_lshl_add_u32 v3, v2, 4, v3
        v_add_u32 v23, s35, v3
        v_bfe_u32 v3, v0, 2, 2
        v_lshl_add_u32 v3, v2, 3, v3
        v_lshlrev_b32 v3, 6, v3
        v_and_b32 v12, 3, v0
        v_lshl_add_u32 v3, v12, 3, v3
        v_add_u32 v24, s37, v3
        v_lshl_add_u32 v19, v0, 4, s37
        s_mul_i32 s38, s39, 5120
        s_lshl_b32 s35, s3, 9
        s_add_u32 s38, s38, s35
        s_add_u32 s38, s38, {CP}""")
        a.dlayout(25, 3, bstride=2560)
        a(f"""v_add_u32 v25, s38, v25
        s_lshl_b32 s36, s30, 1
        s_add_u32 s36, s36, s3
        s_mul_i32 s36, s36, 2560
        s_add_u32 s36, s36, {HB}
        v_lshl_add_u32 v2, v0, 4, s36
        v_lshl_add_u32 v3, v0, 3, s36
        s_mul_i32 s36, s3, {YS}
        v_lshl_add_u32 v26, v0, 3, s36
        v_lshl_add_u32 v27, v0, 2, s36""")
        if p["mlpT"] == "w2":
            w = a.lab("w1w")
            a(f"""s_cmp_eq_u32 s3, 4
            s_cbranch_scc1 {w}
            s_waitcnt vmcnt(0)
            {w}:
            s_waitcnt vmcnt(8)""")
        else:
            a("s_waitcnt vmcnt(8)")
        for t in range(8):
            a(f"ds_write_b128 v19, v[{W1R+4*t}:{W1R+4*t+3}] offset:{1024*t}")
        a("s_waitcnt lgkmcnt(0)")
        for ks in range(4):
            for ct in range(2):
                for hf_ in range(2):
                    r = B1R + 4 * (2 * ks + ct) + 2 * hf_
                    a(f"ds_read_b64_tr_b16 v[{r}:{r+1}], v24 offset:{(32*ks + 4*hf_)*64 + 32*ct}")
        a("v_lshlrev_b32 v20, 16, v252")
        a.stamp(15)
        a("s_waitcnt lgkmcnt(0)")
        a.stamp(12)
        noln = a.lab("noln")
        a(f"""s_cmp_ge_u32 s3, 2
        s_cbranch_scc1 {noln}""")

        def ldH():
            a("global_load_dwordx4 v[28:31], v2, s[28:29] sc1")
            a("global_load_dwordx4 v[32:35], v2, s[28:29] offset:1024 sc1")
            a("global_load_dwordx2 v[36:37], v3, s[28:29] offset:2048 sc1")
        def preH():
            sw = a.lab("hb_sw")
            a(f"""s_cmp_lg_u32 s42, s47
            s_cbranch_scc1 {sw}
            v_add_u32 v2, {HB2 - HB}, v2
            v_add_u32 v3, {HB2 - HB}, v3
            {sw}:""")
        a("s_sub_u32 s47, s47, 1")
        a.pollt("hb", ldH, list(range(28, 38)), 16, pre=preH)
        if self.diag:
            a("v_writelane_b32 v255, s42, 27")
        a.stamp(13)
        a.ln(28, 40, 46, True)
        a.ln(28, 40, 46, False)
        a(f"""ds_write_b64 v26, v[40:41] offset:{L_Y}
        ds_write_b64 v26, v[42:43] offset:{L_Y + 512}
        ds_write_b32 v27, v44 offset:{L_Y + 1024}
        s_waitcnt lgkmcnt(0)
        {noln}:
        s_barrier""")
        a.stamp(18)
        for ks in range(4):
            a(f"ds_read_b128 v[{28+4*ks}:{31+4*ks}], v23 offset:{L_Y + 64*ks}")
        for ks in range(4):
            a(f"s_waitcnt lgkmcnt({3-ks})")
            for ct in range(2):
                c = "0" if ks == 0 else f"v[{44+4*ct}:{47+4*ct}]"
                r = B1R + 4 * (2 * ks + ct)
                a(f"v_mfma_f32_16x16x32_bf16 v[{44+4*ct}:{47+4*ct}], v[{28+4*ks}:{31+4*ks}], v[{r}:{r+3}], {c}")
        a(f"""s_mov_b64 exec, 0xffff
        ds_write2_b64 v22, v[44:45], v[48:49] offset0:0 offset1:16
        s_mov_b64 exec, -1
        v_mov_b32 v33, 1.0
        s_waitcnt lgkmcnt(0)
        s_barrier
        ds_read2st64_b32 v[28:29], v21 offset0:{L_T1//256} offset1:{L_T1//256+1}
        ds_read2st64_b32 v[30:31], v21 offset0:{L_T1//256+2} offset1:{L_T1//256+3}
        ds_read_b32 v32, v21 offset:{L_T1 + 1024}
        s_waitcnt lgkmcnt(1)
        v_pk_add_f32 v[28:29], v[28:29], v[30:31]
        v_add_f32 v28, v28, v29
        s_waitcnt lgkmcnt(0)
        v_add_f32 v28, v28, v32
        v_cvt_pk_bf16_f32 v28, v28, v28
        v_lshlrev_b32 v28, 16, v28
        v_add_f32 v28, v28, v20
        v_cvt_pk_bf16_f32 v28, v28, v28
        v_lshlrev_b32 v28, 16, v28
        v_mul_f32 v29, v28, v28
        v_mul_f32 v30, {hx(-2.0*math.sqrt(2.0/math.pi)*LOG2E)}, v28
        v_fmamk_f32 v29, v29, {hx(0.044715)}, v33
        v_mul_f32 v29, v29, v30
        v_exp_f32 v29, v29
        v_add_f32 v29, 1.0, v29
        v_rcp_f32 v29, v29
        v_mul_f32 v28, v28, v29
        v_mov_b32_dpp v29, v28 quad_perm:[1,1,3,3] row_mask:0xf bank_mask:0xf
        v_cvt_pk_bf16_f32 v28, v28, v29
        v_mov_b32_dpp v32, v28 quad_perm:[0,0,0,0] row_mask:0xf bank_mask:0xf
        v_mov_b32_dpp v33, v28 quad_perm:[2,2,2,2] row_mask:0xf bank_mask:0xf""")
        a.mirror4()
        a("s_waitcnt vmcnt(0)")
        a.diag8(W2R)
        a.tagw([44, 45, 46, 47], 246)
        a("global_store_dwordx4 v25, v[44:47], s[28:29] sc1")
        a.stamp(14)
        a.finish()

    def write(self, fn):
        gen1.LDS_SIZE = LDS_SIZE
        gen1.G.write(self, fn)


if __name__ == "__main__":
    out = sys.argv[1] if len(sys.argv) > 1 else "k7.s"
    kw = {}
    diag = False
    for x in sys.argv[2:]:
        if x == "diag":
            diag = True
        else:
            k, v = x.split("=")
            kw[k] = eval(v)
    G(diag=diag, **kw).write(out)
```

```python
import sys, struct, math
from hz import process
import gen1
from gen1 import hx, NAME, LOG2E, SPIN
from gen4 import G as G4

AP = 0x00000
HB = 0x28000
CP = 0x32000
HB2 = 0x76000
EP = 0x80000
F2 = 0x81000
BK = 0x100000
STAMP = 0x8000000
L_Y = 0x0000; YS = 1408
L_Q = 0x0B00; L_ML = 0x0C00; L_FL = 0x0C40; L_Z = 0x0C80; L_QF = 0x0C90
L_RED = 0x1000; L_RED2 = 0x2000; L_T1 = 0x3000
L_W1 = 0x4000
LDS_SIZE = L_W1 + 5 * 8192
KR, VR, FRG, TR = 16, 80, 144, 208


class G(G4):
    def __init__(self, diag=False, **kw):
        super().__init__(diag=diag)
        self.p = dict(P=8, P2=9, Ptail=10, fast=True, prefetch=True, nt="nt", prio=3, qdelay=6, adelay=0, cdelay=0,
                      early=False, mlpT="w2", tpos=16, chkend=0, mpos=5, qslow=3, F=8, Pq=8, warm=0, hslow=100, pre="ldnt")
        self.p.update(kw)

    def pollt(self, name, loads, words, T, waitcnt="vmcnt(0)", pre=None, first_issued=False):
        a = self
        lp = a.lab(name); done = a.lab(name + "_ok"); mid = a.lab(name + "_w")
        a("s_mov_b32 s42, 0")
        if first_issued:
            a(f"s_branch {mid}")
        a(f"{lp}:")
        if pre:
            pre()
        loads()
        a(f"{mid}:")
        a("s_add_u32 s42, s42, 1")
        a(f"s_waitcnt {waitcnt}")
        w = list(words)
        for r in w:
            a(f"v_xor_b32 v{r}, v246, v{r}")
        a(f"v_or_b32 v{T}, v{w[0]}, v{w[1]}")
        for i in range(2, len(w), 2):
            a(f"v_or3_b32 v{T}, v{T}, v{w[i]}, v{w[i+1]}")
        a(f"v_cmp_ne_u32_sdwa vcc, v{T}, v13 src0_sel:BYTE_0 src1_sel:DWORD")
        a(f"s_cbranch_vccz {done}")
        a(f"s_cmp_lt_u32 s42, {SPIN}")
        a(f"s_cbranch_scc1 {lp}")
        a(f"{done}:")

    def tagw(self, regs, tagv):
        for r in regs:
            self(f"v_and_or_b32 v{r}, v{r}, s49, v{tagv}")

    def build(self):
        a = self
        p = self.p
        nt = p["nt"]
        P = p["P"]
        a(f"""
        s_cmp_ge_u32 s2, 256
        s_cbranch_scc1 L_exit
        s_load_dwordx16 s[4:19], s[0:1], 0
        s_load_dwordx8 s[20:27], s[0:1], 64
        s_load_dwordx2 s[28:29], s[0:1], 96
        v_lshrrev_b32 v1, 6, v0
        v_and_b32 v0, 63, v0
        v_readfirstlane_b32 s3, v1
        s_and_b32 s30, s2, 7
        s_lshr_b32 s31, s2, 3
        s_lshl_b32 s34, s30, 5
        s_add_u32 s34, s34, s31
        s_lshr_b32 s32, s34, 3
        s_and_b32 s33, s34, 7
        """)
        if self.diag:
            a("v_mov_b32 v255, 0")
            a("s_memrealtime s[100:101]")
        a("""s_sub_u32 s3, s3, 1
        s_cbranch_scc0 L_att""")
        if p["prio"]:
            a(f"s_setprio {p['prio']}")
        a("s_mov_b32 s3, 4")
        if p["prefetch"]:
            a(f"""s_getpc_b64 s[36:37]
            L_pc:
            s_sub_u32 s36, s36, L_pc-{NAME}_kernel
            s_subb_u32 s37, s37, 0
            v_lshlrev_b32 v1, 7, v0
            global_load_dword v254, v1, s[36:37]
            v_add_u32 v1, 8192, v1
            v_min_u32 v1, L_codeend-{NAME}_kernel-4, v1
            global_load_dword v253, v1, s[36:37]""")
        WQ = 80
        a(f"""
        v_lshlrev_b32 v1, 3, v0
        v_lshlrev_b32 v2, 2, v0
        v_mov_b32 v36, 0
        ds_write_b32 v2, v36 offset:{L_ML}
        s_mul_i32 s35, s33, {80*8192}
        s_lshl_b32 s38, s32, 8
        s_add_u32 s35, s35, s38
        v_lshrrev_b32 v3, 4, v0
        v_mul_u32_u24 v3, {20*8192}, v3
        v_and_b32 v12, 15, v0
        v_lshl_add_u32 v3, v12, 4, v3
        v_add_u32 v3, s35, v3
        v_mov_b32 v12, {EP}
        v_mov_b32 v16, -1
        v_mov_b32 v17, -1
        v_mov_b32 v18, -1
        v_mov_b32 v19, -1
        s_lshl_b32 s35, s34, 11
        v_lshl_add_u32 v20, v0, 4, s35
        s_lshl_b32 s45, s34, 12
        s_add_u32 s45, s45, {BK}
        v_lshl_add_u32 v21, v0, 4, s45
        s_movk_i32 s38, 0x2000
        s_waitcnt lgkmcnt(0)
        """)
        if self.diag:
            a("v_writelane_b32 v255, s100, 0")
        a(f"""global_load_dwordx2 v[24:25], v1, s[4:5]
        global_load_dwordx2 v[26:27], v1, s[4:5] offset:512
        global_load_dword v28, v2, s[4:5] offset:1024
        global_load_dwordx2 v[30:31], v1, s[4:5] offset:1280
        global_load_dwordx2 v[32:33], v1, s[4:5] offset:1792
        global_load_dword v34, v2, s[4:5] offset:2304
        global_load_dword v15, v12, s[28:29] sc1""")
        NB = 0
        if p["pre"] in ("ldnt", "ld"):
            fl = "nt" if p["pre"] == "ldnt" else ""
            for u in range(3):
                a(f"global_load_dwordx4 v[76:79], v21, s[28:29] offset:{1024*u} {fl}")
            NB = 3
        elif p["pre"] == "st":
            for u in range(3):
                a(f"global_store_dwordx4 v21, v[16:19], s[28:29] offset:{1024*u}")
            NB = 3
        for t in range(20):
            if t:
                a("v_add_u32 v3, s38, v3")
            a(f"global_load_dwordx4 v[{WQ+4*t}:{WQ+4*t+3}], v3, s[10:11] {nt}")
        if p["pre"] == "stlate":
            a(f"""global_store_dwordx4 v21, v[16:19], s[28:29]
            global_store_dwordx4 v21, v[16:19], s[28:29] offset:1024
            global_store_dwordx4 v21, v[16:19], s[28:29] offset:2048""")
        if p["warm"]:
            a("""global_load_dwordx4 v[68:71], v20, s[28:29]
            global_load_dwordx4 v[72:75], v20, s[28:29] offset:1024""")
        NY = (3 if p["pre"] == "stlate" else 0) + (2 if p["warm"] else 0)
        a("""s_barrier
        s_branch L_ctrl""")
        a(f"""L_att:
        s_lshr_b32 s35, s33, 2
        s_lshl_b32 s35, s35, 5
        s_add_u32 s35, s35, s32
        s_lshl_b32 s35, s35, 4
        s_and_b32 s36, s33, 3
        s_add_u32 s35, s35, s36
        s_add_u32 s35, s35, 12
        s_lshl_b32 s35, s35, 2
        s_add_u32 s35, s35, s3
        s_lshl_b32 s35, s35, 14
        s_add_u32 s35, s35, 4096
        v_bfe_u32 v1, v0, 2, 2
        v_lshlrev_b32 v1, 8, v1
        v_lshrrev_b32 v2, 4, v0
        v_lshl_add_u32 v1, v2, 6, v1
        v_and_b32 v2, 3, v0
        v_lshl_add_u32 v1, v2, 4, v1
        v_add_u32 v1, s35, v1
        v_lshl_add_u32 v14, v0, 4, s35
        s_waitcnt lgkmcnt(0)
        """)
        if self.diag:
            a("v_writelane_b32 v255, s100, 0")
        a("s_barrier")
        if self.diag:
            a("s_memrealtime s[98:99]")
        K = [("K", t) for t in range(16)]; V = [("V", t) for t in range(16)]; T = [("T", t) for t in range(8)]
        S = [("S", k) for k in p.get("Sset", range(5))]
        if p["early"]:
            first = K[:P-1] + V[:1]
            rest = T[:1] + S + K[P-1:]
            Vr, Tr = V[1:], T[1:]
        else:
            first = K[:p["F"]]
            rest = S + K[p["F"]:]
            Vr, Tr = V, T
        nbefore = [v for v in Vr if v[1] < p["tpos"]]
        nafter = [v for v in Vr if v[1] >= p["tpos"]]
        tail = []
        while nafter or Tr:
            if Tr: tail.append(Tr.pop(0))
            if nafter: tail.append(nafter.pop(0))
        order = first + rest + nbefore + tail
        order.insert(len(order) - p["mpos"], ("S", 5))
        NL = len(order)
        pos = {it: i for i, it in enumerate(order)}
        st = {"issued": 0, "done": -1}

        def emit(it):
            k, t = it
            if k == "K":
                if t == 8:
                    a("v_add_u32 v1, 8192, v1")
                a(f"global_load_dwordx4 v[{KR+4*t}:{KR+4*t+3}], v1, s[6:7] offset:{(t%8)*1024-4096} {nt}")
            elif k == "V":
                if t == 8:
                    a("v_add_u32 v14, 8192, v14")
                a(f"global_load_dwordx4 v[{VR+4*t}:{VR+4*t+3}], v14, s[8:9] offset:{(t%8)*1024-4096} {nt}")
            elif k == "T":
                a(f"global_load_dwordx4 v[{TR+4*t}:{TR+4*t+3}], v15, s[44:45] {nt}")
                if t < 7:
                    a("v_add_u32 v15, s46, v15")
            else:
                other = "s[16:17]" if p["mlpT"] == "w2" else "s[20:21]"
                a(["global_load_ushort v254, v250, s[4:5]",
                   "global_load_ushort v251, v251, s[22:23]",
                   "global_load_ushort v2, v250, s[24:25]",
                   "global_load_ushort v252, v252, s[18:19]",
                   f"global_load_dword v253, v253, {other}",
                   "global_load_dwordx4 v[40:43], v247, s[28:29] sc1"][t])

        def issue(pace=0):
            i = st["issued"]
            if pace and order[i][0] != "S":
                cnt = 0; j = i
                while j > 0 and cnt < pace:
                    j -= 1
                    if order[j][0] != "S":
                        cnt += 1
                if cnt == pace and j > st["done"]:
                    a(f"s_waitcnt vmcnt({i-1-j})")
                    st["done"] = j
            emit(order[i])
            st["issued"] += 1

        def wait_for(it):
            i = pos[it]
            assert i < st["issued"]
            if st["done"] < i:
                a(f"s_waitcnt vmcnt({st['issued']-1-i})")
                st["done"] = i
        for _ in first:
            issue()
        a(self.ROLES)
        setd = a.lab("setd")
        if p["mlpT"] == "w2":
            a.w2addr(15)
            a("s_movk_i32 s46, 1280\ns_mov_b64 s[44:45], s[20:21]")
            a(f"s_mul_i32 s36, s3, {128*3456}\nv_mov_b32 v253, s36")
        else:
            a.w1addr(15)
            a(f"s_mov_b32 s46, {16*3456}\ns_mov_b64 s[44:45], s[16:17]")
            a(f"s_mul_i32 s36, s39, {32*1280}\nv_mov_b32 v253, s36")
        a(f"""
        s_cmp_eq_u32 s31, 1
        s_cbranch_scc1 {setd}
        s_mov_b64 s[44:45], s[12:13]
        s_mov_b32 s46, 0
        v_mov_b32 v15, 0
        s_cmp_eq_u32 s31, 2
        s_cbranch_scc1 {setd}
        s_movk_i32 s46, 1280
        s_lshl_b32 s36, s32, 2
        s_add_u32 s36, s36, s3
        s_mul_i32 s36, s36, {32*1280}
        s_lshl_b32 s37, s33, 8
        s_add_u32 s36, s36, s37""")
        a.rowaddr(15)
        a(f"""{setd}:
        s_and_b32 s38, s32, 3
        s_mul_i32 s38, s38, 5
        s_add_u32 s38, s38, s33
        s_lshl_b32 s38, s38, 2
        s_add_u32 s38, s38, s3
        s_min_u32 s38, s38, 79
        s_lshl_b32 s35, s38, 4
        v_and_b32 v2, 3, v0
        v_lshrrev_b32 v3, 4, v0
        v_lshl_add_u32 v2, v2, 2, v3
        v_add_lshl_u32 v250, v2, s35, 1
        s_cmp_ge_u32 s38, 40
        s_cselect_b32 s35, 1280, 0
        v_subrev_u32 v251, s35, v250
        v_and_b32 v2, 7, v0
        v_lshl_add_u32 v2, v3, 3, v2
        s_lshl_b32 s35, s39, 5
        v_add_lshl_u32 v252, v2, s35, 1""")
        a.selectors()
        a("v_and_b32 v2, 8, v0\nv_cmp_eq_u32 vcc, 8, v2")
        for r in range(4):
            a(f"v_cndmask_b32 v{240+r}, v{4+r}, v{8+r}, vcc")
        a(f"""v_lshrrev_b32 v2, 4, v0
        v_and_b32 v3, 3, v0
        v_lshl_add_u32 v2, v2, 2, v3
        v_lshlrev_b32 v2, 4, v2
        v_add_u32 v2, {L_Q}, v2
        v_bfe_u32 v3, v0, 2, 2
        v_mov_b32 v12, {L_Z}""")
        for qd in range(4):
            a(f"v_cmp_eq_u32 vcc, {qd}, v3")
            a(f"v_cndmask_b32 v{200+qd}, v12, v2, vcc")
        a.dlayout(248, 3, bstride=512)
        a(f"""s_lshl_b32 s36, s3, 10
        v_add_u32 v248, s36, v248
        s_lshl_b32 s36, s32, 15
        s_add_u32 s36, s36, {BK + 2560}
        v_and_b32 v2, 8, v0
        v_lshlrev_b32 v2, 11, v2
        v_and_b32 v3, 3, v0
        v_lshl_add_u32 v2, v3, 12, v2
        v_add_u32 v247, s36, v2
        s_lshl_b32 s35, s3, 7
        s_sub_u32 s35, s35, 512
        v_lshrrev_b32 v3, 4, v0
        v_lshl_add_u32 v2, v3, 5, s35
        v_and_b32 v3, 4, v0
        v_lshl_add_u32 v2, v3, 2, v2
        v_add_u32 v249, v247, v2
        s_mov_b32 s40, {hx(128 ** -0.5)}
        s_mov_b32 s48, {hx(LOG2E)}
        s_mov_b32 s49, 0xffffff00
        s_lshl_b32 s36, s3, 3
        v_mov_b32 v12, s36
        v_mov_b32 v13, 0
        s_mov_b32 s47, 0
        """)
        if p["early"]:
            issue()
        while st["done"] < pos[("K", 15)]:
            issue(p["Pq"] if order[st["issued"]][0] == "K" else P)
        a.stamp(1)
        if self.diag:
            a("v_writelane_b32 v255, s98, 16")
        lastchk = min(NL - 1, pos[("V", 15)] + p["chkend"])
        assert pos[("S", 5)] > lastchk
        firstchk = True
        while True:
            sk = a.lab("chk")
            if not firstchk:
                a(f"s_cmp_lg_u32 s47, 0\ns_cbranch_scc1 {sk}")
            a(f"""ds_read_b64 v[2:3], v13 offset:{L_QF}
            s_waitcnt lgkmcnt(0)
            v_readfirstlane_b32 s47, v3
            s_cmp_eq_u32 s47, 0
            s_cbranch_scc1 {sk}
            s_call_b64 s[50:51], L_compute
            {sk}:""")
            firstchk = False
            issue(p["P2"])
            if st["issued"] > lastchk:
                break
        lp = a.lab("qw"); sk = a.lab("qw_done"); go = a.lab("qw_go")
        a(f"""s_cmp_lg_u32 s47, 0
        s_cbranch_scc1 {sk}
        s_mov_b32 s42, 0
        {lp}:
        ds_read_b64 v[2:3], v13 offset:{L_QF}
        s_add_u32 s42, s42, 1
        s_waitcnt lgkmcnt(0)
        v_readfirstlane_b32 s47, v3
        s_cmp_lg_u32 s47, 0
        s_cbranch_scc1 {go}
        s_cmp_lt_u32 s42, {SPIN*20}
        s_cbranch_scc1 {lp}
        {go}:
        s_call_b64 s[50:51], L_compute
        {sk}:""")
        a.stamp(19)
        Pt = p["Ptail"]

        def topup():
            while st["issued"] < NL:
                infl = sum(1 for j in range(st["done"] + 1, st["issued"]) if order[j][0] != "S")
                if infl >= Pt and order[st["issued"]][0] != "S":
                    break
                issue()
        topup()
        for t in range(16):
            a(f"v_mov_b32_dpp v{48+t%2}, v{20+t//4} row_newbcast:{4*(t%4)} row_mask:0xf bank_mask:0xf")
            for r in range(4):
                a(f"v_perm_b32 v{FRG+4*(t%4)+r}, v{48+t%2}, v{48+t%2}, v{240+r}")
            wait_for(("V", t))
            topup()
            c = "0" if t == 0 else "v[44:47]"
            a(f"v_mfma_f32_16x16x32_bf16 v[44:47], v[{FRG+4*(t%4)}:{FRG+4*(t%4)+3}], v[{VR+4*t}:{VR+4*t+3}], {c}")
        while st["issued"] < NL:
            issue()
        a(f"""ds_write_b128 v248, v[44:47] offset:{L_RED}
        s_waitcnt lgkmcnt(0)""")
        a.stamp(20)
        a("s_barrier")
        a.stamp(5)
        a("""s_cmp_lg_u32 s31, 0
        s_cbranch_scc1 L_mlp""")
        a(f"""global_load_dwordx4 v[28:31], v249, s[28:29] sc1
        s_lshl_b32 s35, s38, 6
        v_lshrrev_b32 v2, 2, v0
        v_mul_u32_u24 v2, 5120, v2
        v_and_b32 v3, 3, v0
        v_lshl_add_u32 v2, v3, 4, v2
        v_add_u32 v22, s35, v2
        s_mul_i32 s35, s30, 5120
        s_add_u32 s35, s35, {HB}
        v_lshl_add_u32 v25, v250, 1, s35
        v_add_u32 v24, {AP + 16*5120}, v22
        v_add_u32 v23, {HB2 - HB}, v25
        v_lshlrev_b32 v20, 16, v254
        v_lshlrev_b32 v21, 16, v251""")
        st["issued"] += 1
        mlp_ = a.lab("ml"); mlok = a.lab("ml_ok"); og = a.lab("og"); ogok = a.lab("og_ok")
        wait_for(("S", 5))
        a(f"""s_mov_b32 s42, 0
        {mlp_}:
        v_xor_b32 v26, s43, v41
        v_xor_b32 v27, s43, v43
        v_or_b32 v26, v26, v27
        v_lshlrev_b32 v26, 3, v26
        v_cmp_ne_u32 vcc, 0, v26
        s_cbranch_vccz {mlok}
        global_load_dwordx4 v[40:43], v247, s[28:29] sc1
        s_add_u32 s42, s42, 1
        s_cmp_lt_u32 s42, {SPIN}
        s_waitcnt vmcnt(0)
        s_cbranch_scc1 {mlp_}
        {mlok}:""")
        if self.diag:
            a("v_writelane_b32 v255, s42, 28")
        a.stamp(21)
        a(f"""v_max_f32_dpp v41, v40, v40 quad_perm:[1,0,3,2] row_mask:0xf bank_mask:0xf
        v_max_f32_dpp v41, v41, v41 quad_perm:[2,3,0,1] row_mask:0xf bank_mask:0xf
        v_sub_f32 v41, v40, v41
        v_mul_f32 v41, s48, v41
        v_exp_f32 v41, v41
        v_mul_f32 v43, v41, v42
        v_add_f32_dpp v43, v43, v43 quad_perm:[1,0,3,2] row_mask:0xf bank_mask:0xf
        v_add_f32_dpp v43, v43, v43 quad_perm:[2,3,0,1] row_mask:0xf bank_mask:0xf
        v_rcp_f32 v43, v43
        v_mul_f32 v42, v41, v43""")
        a.pollt("og", lambda: a("global_load_dwordx4 v[28:31], v249, s[28:29] sc1"), [28, 29, 30, 31], 26, first_issued=True)
        if self.diag:
            a("v_writelane_b32 v255, s42, 29")
        a.stamp(6)
        a("""v_pk_mul_f32 v[28:29], v[28:29], v[42:43] op_sel_hi:[1,0]
        v_pk_mul_f32 v[30:31], v[30:31], v[42:43] op_sel_hi:[1,0]""")
        for d in ("quad_perm:[1,0,3,2]", "quad_perm:[2,3,0,1]"):
            for r in range(4):
                a(f"v_add_f32_dpp v{28+r}, v{28+r}, v{28+r} {d} row_mask:0xf bank_mask:0xf")
        a("""v_cvt_pk_bf16_f32 v32, v28, v29
        v_cvt_pk_bf16_f32 v33, v30, v31""")
        a.mirror4()
        a.diag8(TR)
        a(f"""ds_write_b128 v248, v[44:47] offset:{L_RED2}
        s_waitcnt lgkmcnt(0)
        s_barrier""")
        a.stamp(7)
        if p["adelay"]:
            a(f"s_sleep {p['adelay']}")

        def ldA():
            a("global_load_dwordx4 v[28:31], v22, s[28:29] sc1")
            a("global_load_dwordx4 v[32:35], v24, s[28:29] sc1")
        assert AP == 0
        a.pollt("ha", ldA, list(range(28, 36)), 26)
        a.stamp(8)
        a("v_pk_add_f32 v[28:29], v[28:29], v[32:33]\nv_pk_add_f32 v[30:31], v[30:31], v[34:35]")
        a.red16(28)
        slow = a.lab("hb_slow"); hbd = a.lab("hb_done")
        a(f"""v_cvt_pk_bf16_f32 v28, v28, v28
        v_lshlrev_b32 v28, 16, v28
        v_add_f32 v28, v28, v20
        v_cvt_pk_bf16_f32 v28, v28, v28
        v_lshl_or_b32 v26, v28, 16, v246
        s_mov_b32 exec_lo, 0x000f000f
        s_mov_b32 exec_hi, 0x000f000f
        global_store_dword v25, v26, s[28:29]
        global_store_dword v23, v26, s[28:29] sc1
        s_mov_b64 exec, -1
        v_lshlrev_b32 v19, 16, v28""")
        a.stamp(9)
        fin = a.lab("fin"); nob = a.lab("nobump")
        a(f"""s_and_b32 s35, s38, 7
        s_cmp_eq_u32 s35, s30
        s_cbranch_scc1 {fin}""")
        a.finish()
        a(f"""{fin}:
        s_cmp_lg_u32 s38, 0
        s_cbranch_scc1 {nob}
        v_mov_b32 v2, {EP}
        v_mov_b32 v3, s43
        global_store_dword v2, v3, s[28:29] sc1
        {nob}:""")
        for u in range(4):
            a(f"v_add_u32 v{48+u}, {CP + 16*5120*u}, v22")
        if p["cdelay"]:
            a(f"s_sleep {p['cdelay']}")

        def ldC():
            for u in range(3):
                a(f"global_load_dwordx4 v[{28+4*u}:{31+4*u}], v{48+u}, s[28:29] sc1")
            a("v_mov_b32 v40, v246\nv_mov_b32 v41, v246\nv_mov_b32 v42, v246\nv_mov_b32 v43, v246")
            a("s_mov_b64 exec, 0xffffff")
            a("global_load_dwordx4 v[40:43], v51, s[28:29] sc1")
            a("s_mov_b64 exec, -1")
        a.pollt("hc", ldC, list(range(28, 44)), 26)
        a.stamp(10)
        a("""v_pk_add_f32 v[28:29], v[28:29], v[32:33]
        v_pk_add_f32 v[30:31], v[30:31], v[34:35]
        v_pk_add_f32 v[36:37], v[36:37], v[40:41]
        v_pk_add_f32 v[38:39], v[38:39], v[42:43]
        v_pk_add_f32 v[28:29], v[28:29], v[36:37]
        v_pk_add_f32 v[30:31], v[30:31], v[38:39]""")
        a.red16(28)
        a("""v_cvt_pk_bf16_f32 v28, v28, v28
        v_lshlrev_b32 v28, 16, v28
        v_add_f32 v28, v28, v21
        v_cvt_pk_bf16_f32 v28, v28, v28
        v_lshlrev_b32 v28, 16, v28
        v_add_f32 v28, v28, v19
        v_cvt_pk_bf16_f32 v28, v28, v28
        s_mov_b32 exec_lo, 0x000f000f
        s_mov_b32 exec_hi, 0x000f000f
        global_store_short v250, v28, s[24:25]
        s_mov_b64 exec, -1""")
        a.finish()

        QF = 144; DR = 160; SR = 16
        a("L_compute:")
        a("v_readfirstlane_b32 s43, v2\nv_and_b32 v246, 0xff, v2")
        a.stamp(2)
        for qd in range(4):
            a(f"ds_read_b128 v[{QF+4*qd}:{QF+4*qd+3}], v{200+qd}")
        for qd in range(4):
            a(f"s_waitcnt lgkmcnt({3-qd})")
            for u in range(4):
                t = 4 * u + qd
                c = "0" if qd == 0 else f"v[{DR+4*u}:{DR+4*u+3}]"
                a(f"v_mfma_f32_16x16x32_bf16 v[{DR+4*u}:{DR+4*u+3}], v[{KR+4*t}:{KR+4*t+3}], v[{QF+4*qd}:{QF+4*qd+3}], {c}")
        for u in range(4):
            a(f"v_mov_b32_dpp v{SR+u}, v{DR+4*u} quad_perm:[0,0,0,0] row_mask:0xf bank_mask:0xf")
        for r in (1, 2, 3):
            for u in range(4):
                a(f"v_add_f32_dpp v{SR+u}, v{DR+4*u+r}, v{SR+u} quad_perm:[{r},{r},{r},{r}] row_mask:0xf bank_mask:0xf")
        for rnd in range(2):
            a("""v_cvt_pk_bf16_f32 v20, v16, v17
            v_cvt_pk_bf16_f32 v21, v18, v19
            v_lshlrev_b32 v16, 16, v20
            v_and_b32 v17, 0xffff0000, v20
            v_lshlrev_b32 v18, 16, v21
            v_and_b32 v19, 0xffff0000, v21""")
            if rnd == 0:
                a("""v_pk_mul_f32 v[16:17], v[16:17], s[40:41] op_sel_hi:[1,0]
                v_pk_mul_f32 v[18:19], v[18:19], s[40:41] op_sel_hi:[1,0]""")
        a(f"""v_max3_f32 v28, v16, v17, v18
        v_max_f32 v28, v28, v19
        v_max_f32_dpp v28, v28, v28 row_ror:4 row_mask:0xf bank_mask:0xf
        v_max_f32_dpp v28, v28, v28 row_ror:8 row_mask:0xf bank_mask:0xf
        v_mov_b32 v29, v28
        v_permlane32_swap_b32 v28, v29
        v_max_f32 v28, v28, v29
        v_mov_b32 v29, v28
        v_permlane16_swap_b32 v28, v29
        v_max_f32 v28, v28, v29
        v_pk_add_f32 v[16:17], v[16:17], v[28:29] op_sel_hi:[1,0] neg_lo:[0,1] neg_hi:[0,1]
        v_pk_add_f32 v[18:19], v[18:19], v[28:29] op_sel_hi:[1,0] neg_lo:[0,1] neg_hi:[0,1]
        v_pk_mul_f32 v[16:17], v[16:17], s[48:49] op_sel_hi:[1,0]
        v_pk_mul_f32 v[18:19], v[18:19], s[48:49] op_sel_hi:[1,0]
        v_exp_f32 v16, v16
        v_exp_f32 v17, v17
        v_exp_f32 v18, v18
        v_exp_f32 v19, v19
        v_pk_add_f32 v[30:31], v[16:17], v[18:19]
        v_cvt_pk_bf16_f32 v20, v16, v17
        v_add_f32 v30, v30, v31
        v_cvt_pk_bf16_f32 v21, v18, v19
        v_lshlrev_b32 v24, 16, v20
        v_add_f32_dpp v30, v30, v30 row_ror:4 row_mask:0xf bank_mask:0xf
        v_and_b32 v25, 0xffff0000, v20
        v_lshlrev_b32 v26, 16, v21
        v_add_f32_dpp v30, v30, v30 row_ror:8 row_mask:0xf bank_mask:0xf
        v_and_b32 v27, 0xffff0000, v21
        v_mov_b32 v31, v30
        v_pk_add_f32 v[16:17], v[16:17], v[24:25] neg_lo:[0,1] neg_hi:[0,1]
        v_pk_add_f32 v[18:19], v[18:19], v[26:27] neg_lo:[0,1] neg_hi:[0,1]
        v_permlane32_swap_b32 v30, v31
        v_add_f32 v30, v30, v31
        v_mov_b32 v31, v30
        v_cvt_pk_bf16_f32 v20, v24, v16
        v_cvt_pk_bf16_f32 v21, v25, v17
        v_permlane16_swap_b32 v30, v31
        v_add_f32 v29, v30, v31
        v_cvt_pk_bf16_f32 v22, v26, v18
        v_cvt_pk_bf16_f32 v23, v27, v19
        ds_write_b64 v12, v[28:29] offset:{L_ML}""")
        a.stamp(4)
        a("s_nop 1\ns_setpc_b64 s[50:51]")

        a("L_ctrl:")
        a.stamp(1)
        a.selectors()
        a(f"""s_getreg_b32 s44, hwreg(HW_REG_XCC_ID, 0, 3)
        s_waitcnt vmcnt({21+NY+NB})""")
        a.stamp(2)
        for b_, (src, X) in enumerate(((24, 36), (30, 48))):
            for i in range(5):
                a(f"v_lshlrev_b32 v{X+2*i}, 16, v{src+i}")
                a(f"v_and_b32 v{X+2*i+1}, 0xffff0000, v{src+i}")
            a.ln(X, src, 60, False)
            a(f"""v_lshlrev_b32 v2, 2, v0
            ds_write_b64 v1, v[{src}:{src+1}] offset:{L_Y + b_*YS}
            ds_write_b64 v1, v[{src+2}:{src+3}] offset:{L_Y + b_*YS + 512}
            ds_write_b32 v2, v{src+4} offset:{L_Y + b_*YS + 1024}""")
        a(f"""s_mul_i32 s35, s33, 160
        v_lshrrev_b32 v2, 4, v0
        v_mul_u32_u24 v2, 40, v2
        v_bfe_u32 v3, v0, 3, 1
        v_mul_u32_u24 v3, {YS}, v3
        v_add3_u32 v2, v2, v3, s35
        s_waitcnt lgkmcnt(0)""")
        for i in range(5):
            a(f"ds_read_b64 v[{36+2*i}:{37+2*i}], v2 offset:{L_Y + 8*i}")
        a(f"""s_waitcnt vmcnt({20+NY+NB})
        v_readfirstlane_b32 s43, v15
        s_add_u32 s43, s43, 1
        s_and_b32 s35, s43, 0xff
        s_cmp_eq_u32 s35, 0xff
        s_addc_u32 s43, s43, 0
        s_and_b32 s43, s43, 0x1fffffff
        s_lshl_b32 s44, s44, 29
        s_or_b32 s44, s44, s43
        s_mov_b32 s43, s44
        s_and_b32 s35, s43, 0xff
        v_mov_b32 v246, s35
        s_mov_b32 s49, 0xffffff00
        v_mov_b32 v13, 0
        v_mov_b32 v53, s44
        v_mov_b32 v55, s44
        v_mov_b32 v57, s44
        v_mov_b32 v59, s44
        s_waitcnt lgkmcnt(0)""")
        a.stamp(3)
        FR = 160
        a.frag(FR, 36, 0)
        for t in range(20):
            if t + 1 < 20:
                a.frag(FR + 4 * (t + 1), 36 + (t + 1) // 2, (t + 1) & 1)
            a(f"s_waitcnt vmcnt({19+NY-t})")
            c = "0" if t == 0 else "v[48:51]"
            a(f"v_mfma_f32_16x16x32_bf16 v[48:51], v[{FR+4*t}:{FR+4*t+3}], v[{WQ+4*t}:{WQ+4*t+3}], {c}")
        qfl = "" if p["fast"] else "sc1"
        a(f"""v_mov_b32 v52, v48
        v_mov_b32 v54, v49
        v_mov_b32 v56, v50
        v_mov_b32 v58, v51
        global_store_dwordx4 v21, v[52:55], s[28:29] {qfl}
        global_store_dwordx4 v21, v[56:59], s[28:29] offset:1024 {qfl}""")
        a.stamp(4)
        a(self.ROLES)
        qg = a.lab("qg"); qgd = a.lab("qg_ok"); qns = a.lab("qg_nosc1"); qf = a.lab("qg_fast")
        a(f"""s_mul_i32 s35, s32, 5120
        s_lshl_b32 s38, s33, 9
        s_add_u32 s35, s35, s38
        v_lshrrev_b32 v3, 5, v0
        v_mul_u32_u24 v2, 2560, v3
        v_and_b32 v22, 31, v0
        v_lshl_add_u32 v2, v22, 4, v2
        v_add_u32 v23, s35, v2
        s_lshl_b32 s35, s32, 15
        s_lshr_b32 s38, s33, 2
        s_lshl_b32 s38, s38, 9
        s_add_u32 s35, s35, s38
        s_add_u32 s35, s35, {BK + 4096}
        v_lshlrev_b32 v2, 10, v3
        v_lshl_add_u32 v2, v22, 4, v2
        v_add_u32 v60, s35, v2
        v_add_u32 v61, 8192, v60
        v_add_u32 v62, 8192, v61
        v_add_u32 v63, 8192, v62
        v_and_b32 v2, 15, v0
        v_lshlrev_b32 v2, 4, v2
        v_and_b32 v22, 16, v0
        v_lshrrev_b32 v22, 1, v22
        v_add_u32 v2, v2, v22
        v_lshl_add_u32 v22, v3, 2, v2
        s_mov_b32 s42, 0""")
        if p["qdelay"]:
            a(f"s_sleep {p['qdelay']}")
        a.stamp(5)
        a(f"{qg}:")
        for u in range(8):
            a(f"global_load_dwordx4 v[{80+4*u}:{83+4*u}], v{60+u//2}, s[28:29] offset:{4096*(u%2)-4096} sc1")
        a("s_add_u32 s42, s42, 1\ns_waitcnt vmcnt(0)")
        a("v_xor_b32 v36, s44, v81\nv_xor_b32 v37, s44, v83")
        for u in range(1, 8):
            a(f"v_bitop3_b32 v36, v36, v{81+4*u}, s44 bitop3:0xf6")
            a(f"v_bitop3_b32 v37, v37, v{83+4*u}, s44 bitop3:0xf6")
        a(f"""v_or_b32 v36, v36, v37
        v_lshlrev_b32 v37, 3, v36
        v_cmp_ne_u32 vcc, 0, v37
        s_cbranch_vccz {qgd}
        s_cmp_lg_u32 s42, {p['qslow']}
        s_cbranch_scc1 {qns}
        global_store_dwordx4 v21, v[52:55], s[28:29] sc1
        global_store_dwordx4 v21, v[56:59], s[28:29] offset:1024 sc1
        {qns}:
        s_cmp_lt_u32 s42, {SPIN}
        s_cbranch_scc1 {qg}
        {qgd}:""")
        if self.diag:
            a("v_writelane_b32 v255, s42, 30")
        a("""v_add_f32 v80, v80, v84
        v_add_f32 v82, v82, v86
        v_add_f32 v88, v88, v92
        v_add_f32 v90, v90, v94
        v_add_f32 v96, v96, v100
        v_add_f32 v98, v98, v102
        v_add_f32 v104, v104, v108
        v_add_f32 v106, v106, v110
        v_add_f32 v80, v80, v88
        v_add_f32 v82, v82, v90
        v_add_f32 v96, v96, v104
        v_add_f32 v98, v98, v106
        v_add_f32 v80, v80, v96
        v_add_f32 v82, v82, v98
        v_cvt_pk_bf16_f32 v80, v80, v82""")
        a(f"""ds_write_b32 v22, v80 offset:{L_Q}
        v_cmp_ne_u32 vcc, 0, v36
        v_mov_b32 v2, 0
        v_mov_b32 v14, s44
        s_cmp_lg_u64 vcc, 0
        s_cselect_b32 s46, 1, {0 if p['fast'] else 1}
        s_cselect_b32 s35, 1, {p['hslow'] + 1 if p['fast'] else 1}
        v_mov_b32 v15, s35
        s_waitcnt lgkmcnt(0)
        ds_write_b64 v2, v[14:15] offset:{L_QF}
        s_cbranch_scc0 {qf}
        global_store_dwordx4 v21, v[52:55], s[28:29] sc1
        global_store_dwordx4 v21, v[56:59], s[28:29] offset:1024 sc1
        {qf}:""")
        a.stamp(6)
        mw = a.lab("mw"); mwd = a.lab("mw_ok"); msl = a.lab("ml_slow"); msd = a.lab("ml_done")
        a(f"""s_mov_b32 s40, {hx(LOG2E)}
        v_mov_b32 v20, s45
        v_lshl_add_u32 v21, v0, 3, s45
        s_mov_b32 s42, 0
        {mw}:
        ds_read_b128 v[36:39], v2 offset:{L_ML}
        ds_read_b128 v[40:43], v2 offset:{L_ML+16}
        s_add_u32 s42, s42, 1
        s_waitcnt lgkmcnt(0)
        v_min3_u32 v44, v37, v39, v41
        v_min_u32 v44, v44, v43
        v_cmp_eq_u32 vcc, 0, v44
        s_cbranch_vccz {mwd}
        s_sleep 1
        s_cmp_lt_u32 s42, {SPIN*20}
        s_cbranch_scc1 {mw}
        {mwd}:
        v_max3_f32 v44, v36, v38, v40
        v_max_f32 v44, v44, v42""")
        for i in range(4):
            a(f"v_sub_f32 v{36+2*i}, v{36+2*i}, v44")
        for i in range(4):
            a(f"v_mul_f32 v{36+2*i}, s40, v{36+2*i}")
        for i in range(4):
            a(f"v_exp_f32 v{36+2*i}, v{36+2*i}")
        a(f"""v_mul_f32 v46, v36, v37
        v_mov_b32 v45, s44
        v_fmac_f32 v46, v38, v39
        v_mov_b32 v47, s44
        v_fmac_f32 v46, v40, v41
        v_fmac_f32 v46, v42, v43
        s_cmp_lg_u32 s46, 0
        s_cbranch_scc1 {msl}
        global_store_dwordx4 v20, v[44:47], s[28:29] offset:2560
        s_branch {msd}
        {msl}:
        global_store_dwordx4 v20, v[44:47], s[28:29] offset:2560 sc1
        {msd}:""")
        a.stamp(8)
        a("s_barrier")
        for u in range(4):
            a(f"ds_read2st64_b64 v[{48+4*u}:{51+4*u}], v1 offset0:{L_RED//512 + 2*u} offset1:{L_RED//512 + 2*u + 1}")
        osl = a.lab("op_slow"); osd = a.lab("op_done")
        a(f"""s_waitcnt lgkmcnt(2)
        v_pk_add_f32 v[48:49], v[48:49], v[50:51]
        v_pk_add_f32 v[52:53], v[52:53], v[54:55]
        v_pk_mul_f32 v[48:49], v[48:49], v[36:37] op_sel_hi:[1,0]
        s_waitcnt lgkmcnt(0)
        v_pk_add_f32 v[56:57], v[56:57], v[58:59]
        v_pk_fma_f32 v[48:49], v[52:53], v[38:39], v[48:49] op_sel_hi:[1,0,1]
        v_pk_add_f32 v[60:61], v[60:61], v[62:63]
        v_pk_fma_f32 v[48:49], v[56:57], v[40:41], v[48:49] op_sel_hi:[1,0,1]
        v_pk_fma_f32 v[48:49], v[60:61], v[42:43], v[48:49] op_sel_hi:[1,0,1]
        v_and_or_b32 v48, v48, s49, v246
        v_and_or_b32 v49, v49, s49, v246
        s_cmp_lg_u32 s46, 0
        s_cbranch_scc1 {osl}
        global_store_dwordx2 v21, v[48:49], s[28:29] offset:2048
        s_branch {osd}
        {osl}:
        global_store_dwordx2 v21, v[48:49], s[28:29] offset:2048 sc1
        {osd}:""")
        a.stamp(10)
        if p.get("dirty"):
            a(f"""s_lshl_b32 s35, s34, 14
            s_add_u32 s35, s35, 0x400000
            v_lshl_add_u32 v3, v0, 4, s35""")
            for u in range(p["dirty"]):
                a(f"global_store_dwordx4 v3, v[16:19], s[28:29]\nv_add_u32 v3, 1024, v3")
        gf = a.lab("gf"); gfd = a.lab("gf_ok"); free = a.lab("notfree"); nb = a.lab("nob3b")
        a(f"""s_cmp_lg_u32 s31, 2
        s_cbranch_scc1 {free}""")
        a.finish()
        a(f"""{free}:
        v_lshlrev_b32 v2, 4, v0
        s_barrier
        s_cmp_eq_u32 s31, 1
        s_cbranch_scc1 L_mlp_ctrl""")
        for u in range(4):
            a(f"ds_read_b128 v[{48+4*u}:{51+4*u}], v2 offset:{L_RED2 + 1024*u}")
        a("""s_waitcnt lgkmcnt(2)
        v_pk_add_f32 v[48:49], v[48:49], v[52:53]
        v_pk_add_f32 v[50:51], v[50:51], v[54:55]
        s_waitcnt lgkmcnt(0)
        v_pk_add_f32 v[56:57], v[56:57], v[60:61]
        v_pk_add_f32 v[58:59], v[58:59], v[62:63]
        v_pk_add_f32 v[48:49], v[48:49], v[56:57]
        v_pk_add_f32 v[50:51], v[50:51], v[58:59]""")
        a.tagw([48, 49, 50, 51], 246)
        a("global_store_dwordx4 v23, v[48:51], s[28:29] sc1")
        a.stamp(11)
        a.finish()
        self.mlp()
        if self.diag:
            a(f"""L_dump:
            s_mov_b64 exec, -1
            s_lshl_b32 s35, s34, 3
            s_add_u32 s35, s35, s3
            s_lshl_b32 s35, s35, 8
            s_add_u32 s35, s35, {STAMP}
            v_lshl_add_u32 v2, v0, 2, s35
            global_store_dword v2, v255, s[28:29]""")
        a("L_exit:")
        a("s_endpgm")
        a("L_codeend:")

    def mlp(self):
        a = self
        p = self.p
        LATE = 80
        B1R = 112
        W1R, W2R = (LATE, TR) if p["mlpT"] == "w2" else (TR, LATE)
        go = a.lab("mlp_go"); cm = a.lab("mlp_common")
        a("L_mlp_ctrl:")
        a(f"""v_lshrrev_b32 v3, 4, v0
        v_and_b32 v2, 7, v0
        v_lshl_add_u32 v2, v3, 3, v2
        s_lshl_b32 s35, s39, 5
        v_add_lshl_u32 v252, v2, s35, 1
        global_load_ushort v252, v252, s[18:19]""")
        a.w1addr(14); a.w2addr(15)
        a.load8(W1R, 14, "s[16:17]", 16*3456)
        a.load8(W2R, 15, "s[20:21]", 1280)
        a(f"s_branch {cm}")
        a(f"""L_mlp:
        s_cmp_eq_u32 s31, 1
        s_cbranch_scc1 {go}""")
        a.finish()
        a(f"{go}:")
        if p["mlpT"] == "w2":
            a.w1addr(14)
            a("s_barrier")
            a.load8(W1R, 14, "s[16:17]", 16*3456)
        else:
            a.w2addr(14)
            a("s_barrier")
            a.load8(W2R, 14, "s[20:21]", 1280)
        a(f"""{cm}:
        s_lshl_b32 s35, s3, 8
        v_lshrrev_b32 v2, 4, v0
        v_and_b32 v12, 15, v0
        v_and_b32 v3, 7, v0
        v_lshl_add_u32 v3, v2, 3, v3
        s_lshl_b32 s37, s3, 13
        s_add_u32 s37, s37, {L_W1}
        v_lshlrev_b32 v3, 3, v3
        v_bfe_u32 v18, v0, 3, 1
        v_lshl_add_u32 v21, v18, 2, v3
        v_lshl_add_u32 v22, v12, 3, s35
        v_add_u32 v22, {L_T1}, v22
        v_and_b32 v3, 1, v0
        v_mul_u32_u24 v3, {YS}, v3
        v_lshl_add_u32 v3, v2, 4, v3
        v_add_u32 v23, s35, v3
        v_bfe_u32 v3, v0, 2, 2
        v_lshl_add_u32 v3, v2, 3, v3
        v_lshlrev_b32 v3, 6, v3
        v_and_b32 v12, 3, v0
        v_lshl_add_u32 v3, v12, 3, v3
        v_add_u32 v24, s37, v3
        v_lshl_add_u32 v19, v0, 4, s37
        s_mul_i32 s38, s39, 5120
        s_lshl_b32 s35, s3, 9
        s_add_u32 s38, s38, s35
        s_add_u32 s38, s38, {CP}""")
        a.dlayout(25, 3, bstride=2560)
        a(f"""v_add_u32 v25, s38, v25
        s_lshl_b32 s36, s30, 1
        s_add_u32 s36, s36, s3
        s_mul_i32 s36, s36, 2560
        s_add_u32 s36, s36, {HB}
        v_lshl_add_u32 v2, v0, 4, s36
        v_lshl_add_u32 v3, v0, 3, s36
        s_mul_i32 s36, s3, {YS}
        v_lshl_add_u32 v26, v0, 3, s36
        v_lshl_add_u32 v27, v0, 2, s36""")
        if p["mlpT"] == "w2":
            w = a.lab("w1w")
            a(f"""s_cmp_eq_u32 s3, 4
            s_cbranch_scc1 {w}
            s_waitcnt vmcnt(0)
            {w}:
            s_waitcnt vmcnt(8)""")
        else:
            a("s_waitcnt vmcnt(8)")
        for t in range(8):
            a(f"ds_write_b128 v19, v[{W1R+4*t}:{W1R+4*t+3}] offset:{1024*t}")
        a("s_waitcnt lgkmcnt(0)")
        for ks in range(4):
            for ct in range(2):
                for hf_ in range(2):
                    r = B1R + 4 * (2 * ks + ct) + 2 * hf_
                    a(f"ds_read_b64_tr_b16 v[{r}:{r+1}], v24 offset:{(32*ks + 4*hf_)*64 + 32*ct}")
        a("v_lshlrev_b32 v20, 16, v252")
        a.stamp(15)
        a("s_waitcnt lgkmcnt(0)")
        a.stamp(12)
        noln = a.lab("noln")
        a(f"""s_cmp_ge_u32 s3, 2
        s_cbranch_scc1 {noln}""")

        def ldH():
            a("global_load_dwordx4 v[28:31], v2, s[28:29] sc1")
            a("global_load_dwordx4 v[32:35], v2, s[28:29] offset:1024 sc1")
            a("global_load_dwordx2 v[36:37], v3, s[28:29] offset:2048 sc1")
        def preH():
            sw = a.lab("hb_sw")
            a(f"""s_cmp_lg_u32 s42, s47
            s_cbranch_scc1 {sw}
            v_add_u32 v2, {HB2 - HB}, v2
            v_add_u32 v3, {HB2 - HB}, v3
            {sw}:""")
        a("s_sub_u32 s47, s47, 1")
        a.pollt("hb", ldH, list(range(28, 38)), 16, pre=preH)
        if self.diag:
            a("v_writelane_b32 v255, s42, 27")
        a.stamp(13)
        a.ln(28, 40, 46, True)
        a.ln(28, 40, 46, False)
        a(f"""ds_write_b64 v26, v[40:41] offset:{L_Y}
        ds_write_b64 v26, v[42:43] offset:{L_Y + 512}
        ds_write_b32 v27, v44 offset:{L_Y + 1024}
        s_waitcnt lgkmcnt(0)
        {noln}:
        s_barrier""")
        a.stamp(18)
        for ks in range(4):
            a(f"ds_read_b128 v[{28+4*ks}:{31+4*ks}], v23 offset:{L_Y + 64*ks}")
        for ks in range(4):
            a(f"s_waitcnt lgkmcnt({3-ks})")
            for ct in range(2):
                c = "0" if ks == 0 else f"v[{44+4*ct}:{47+4*ct}]"
                r = B1R + 4 * (2 * ks + ct)
                a(f"v_mfma_f32_16x16x32_bf16 v[{44+4*ct}:{47+4*ct}], v[{28+4*ks}:{31+4*ks}], v[{r}:{r+3}], {c}")
        a(f"""s_mov_b64 exec, 0xffff
        ds_write2_b64 v22, v[44:45], v[48:49] offset0:0 offset1:16
        s_mov_b64 exec, -1
        v_mov_b32 v33, 1.0
        s_waitcnt lgkmcnt(0)
        s_barrier
        ds_read2st64_b32 v[28:29], v21 offset0:{L_T1//256} offset1:{L_T1//256+1}
        ds_read2st64_b32 v[30:31], v21 offset0:{L_T1//256+2} offset1:{L_T1//256+3}
        ds_read_b32 v32, v21 offset:{L_T1 + 1024}
        s_waitcnt lgkmcnt(1)
        v_pk_add_f32 v[28:29], v[28:29], v[30:31]
        v_add_f32 v28, v28, v29
        s_waitcnt lgkmcnt(0)
        v_add_f32 v28, v28, v32
        v_cvt_pk_bf16_f32 v28, v28, v28
        v_lshlrev_b32 v28, 16, v28
        v_add_f32 v28, v28, v20
        v_cvt_pk_bf16_f32 v28, v28, v28
        v_lshlrev_b32 v28, 16, v28
        v_mul_f32 v29, v28, v28
        v_mul_f32 v30, {hx(-2.0*math.sqrt(2.0/math.pi)*LOG2E)}, v28
        v_fmamk_f32 v29, v29, {hx(0.044715)}, v33
        v_mul_f32 v29, v29, v30
        v_exp_f32 v29, v29
        v_add_f32 v29, 1.0, v29
        v_rcp_f32 v29, v29
        v_mul_f32 v28, v28, v29
        v_mov_b32_dpp v29, v28 quad_perm:[1,1,3,3] row_mask:0xf bank_mask:0xf
        v_cvt_pk_bf16_f32 v28, v28, v29
        v_mov_b32_dpp v32, v28 quad_perm:[0,0,0,0] row_mask:0xf bank_mask:0xf
        v_mov_b32_dpp v33, v28 quad_perm:[2,2,2,2] row_mask:0xf bank_mask:0xf""")
        a.mirror4()
        a("s_waitcnt vmcnt(0)")
        a.diag8(W2R)
        a.tagw([44, 45, 46, 47], 246)
        a("global_store_dwordx4 v25, v[44:47], s[28:29] sc1")
        a.stamp(14)
        a.finish()

    def write(self, fn):
        gen1.LDS_SIZE = self.p.get("lds", LDS_SIZE)
        gen1.G.write(self, fn)


if __name__ == "__main__":
    out = sys.argv[1] if len(sys.argv) > 1 else "k7.s"
    kw = {}
    diag = False
    for x in sys.argv[2:]:
        if x == "diag":
            diag = True
        else:
            k, v = x.split("=")
            kw[k] = eval(v)
    G(diag=diag, **kw).write(out)
```

```python
import sys, struct, math
from hz import process
import gen1
from gen1 import hx, NAME, LOG2E, SPIN
from gen4 import G as G4

AP = 0x00000
HB = 0x28000
CP = 0x32000
HB2 = 0x76000
EP = 0x80000
F2 = 0x81000
BK = 0x100000
STAMP = 0x8000000
L_Y = 0x0000; YS = 1408
L_Q = 0x0B00; L_ML = 0x0C00; L_FL = 0x0C40; L_Z = 0x0C80; L_QF = 0x0C90
L_RED = 0x1000; L_RED2 = 0x2000; L_T1 = 0x3000
L_W1 = 0x4000
LDS_SIZE = L_W1 + 5 * 8192
KR, VR, FRG, TR = 16, 80, 144, 208


class G(G4):
    def __init__(self, diag=False, **kw):
        super().__init__(diag=diag)
        self.p = dict(P=8, P2=9, Ptail=10, fast=True, prefetch=True, nt="nt", prio=3, qdelay=6, adelay=0, cdelay=0,
                      early=False, mlpT="w2", tpos=16, chkend=0, mpos=5, qslow=3, F=8, Pq=8, warm=0, hslow=100, pre="ldnt")
        self.p.update(kw)

    def pollt(self, name, loads, words, T, waitcnt="vmcnt(0)", pre=None, first_issued=False):
        a = self
        lp = a.lab(name); done = a.lab(name + "_ok"); mid = a.lab(name + "_w")
        a("s_mov_b32 s42, 0")
        if first_issued:
            a(f"s_branch {mid}")
        a(f"{lp}:")
        if pre:
            pre()
        loads()
        a(f"{mid}:")
        a("s_add_u32 s42, s42, 1")
        a(f"s_waitcnt {waitcnt}")
        w = list(words)
        for r in w:
            a(f"v_xor_b32 v{r}, v246, v{r}")
        a(f"v_or_b32 v{T}, v{w[0]}, v{w[1]}")
        for i in range(2, len(w), 2):
            a(f"v_or3_b32 v{T}, v{T}, v{w[i]}, v{w[i+1]}")
        a(f"v_cmp_ne_u32_sdwa vcc, v{T}, v13 src0_sel:BYTE_0 src1_sel:DWORD")
        a(f"s_cbranch_vccz {done}")
        a(f"s_cmp_lt_u32 s42, {SPIN}")
        a(f"s_cbranch_scc1 {lp}")
        a(f"{done}:")

    def tagw(self, regs, tagv):
        for r in regs:
            self(f"v_and_or_b32 v{r}, v{r}, s49, v{tagv}")

    def build(self):
        a = self
        p = self.p
        nt = p["nt"]
        P = p["P"]
        a(f"""
        s_cmp_ge_u32 s2, 256
        s_cbranch_scc1 L_exit
        s_load_dwordx16 s[4:19], s[0:1], 0
        s_load_dwordx8 s[20:27], s[0:1], 64
        s_load_dwordx2 s[28:29], s[0:1], 96
        v_lshrrev_b32 v1, 6, v0
        v_and_b32 v0, 63, v0
        v_readfirstlane_b32 s3, v1
        s_and_b32 s30, s2, 7
        s_lshr_b32 s31, s2, 3
        s_lshl_b32 s34, s30, 5
        s_add_u32 s34, s34, s31
        s_lshr_b32 s32, s34, 3
        s_and_b32 s33, s34, 7
        """)
        if self.diag:
            a("v_mov_b32 v255, 0")
            a("s_memrealtime s[100:101]")
        a("""s_sub_u32 s3, s3, 1
        s_cbranch_scc0 L_att""")
        if p["prio"]:
            a(f"s_setprio {p['prio']}")
        a("s_mov_b32 s3, 4")
        if p.get("hold"):
            a("s_memrealtime s[96:97]")
        if p["prefetch"]:
            a(f"""s_getpc_b64 s[36:37]
            L_pc:
            s_sub_u32 s36, s36, L_pc-{NAME}_kernel
            s_subb_u32 s37, s37, 0
            v_lshlrev_b32 v1, 7, v0
            global_load_dword v254, v1, s[36:37]
            v_add_u32 v1, 8192, v1
            v_min_u32 v1, L_codeend-{NAME}_kernel-4, v1
            global_load_dword v253, v1, s[36:37]""")
        WQ = 80
        a(f"""
        v_lshlrev_b32 v1, 3, v0
        v_lshlrev_b32 v2, 2, v0
        v_mov_b32 v36, 0
        ds_write_b32 v2, v36 offset:{L_ML}
        s_mul_i32 s35, s33, {80*8192}
        s_lshl_b32 s38, s32, 8
        s_add_u32 s35, s35, s38
        v_lshrrev_b32 v3, 4, v0
        v_mul_u32_u24 v3, {20*8192}, v3
        v_and_b32 v12, 15, v0
        v_lshl_add_u32 v3, v12, 4, v3
        v_add_u32 v3, s35, v3
        v_mov_b32 v12, {EP}
        v_mov_b32 v16, -1
        v_mov_b32 v17, -1
        v_mov_b32 v18, -1
        v_mov_b32 v19, -1
        s_lshl_b32 s35, s34, 11
        v_lshl_add_u32 v20, v0, 4, s35
        s_lshl_b32 s45, s34, 12
        s_add_u32 s45, s45, {BK}
        v_lshl_add_u32 v21, v0, 4, s45
        s_movk_i32 s38, 0x2000
        s_waitcnt lgkmcnt(0)
        """)
        if self.diag:
            a("v_writelane_b32 v255, s100, 0")
        a(f"""global_load_dwordx2 v[24:25], v1, s[4:5]
        global_load_dwordx2 v[26:27], v1, s[4:5] offset:512
        global_load_dword v28, v2, s[4:5] offset:1024
        global_load_dwordx2 v[30:31], v1, s[4:5] offset:1280
        global_load_dwordx2 v[32:33], v1, s[4:5] offset:1792
        global_load_dword v34, v2, s[4:5] offset:2304
        global_load_dword v15, v12, s[28:29] sc1""")
        NB = 0
        if p["pre"] in ("ldnt", "ld"):
            fl = "nt" if p["pre"] == "ldnt" else ""
            for u in range(3):
                a(f"global_load_dwordx4 v[76:79], v21, s[28:29] offset:{1024*u} {fl}")
            NB = 3
        elif p["pre"] == "st":
            for u in range(3):
                a(f"global_store_dwordx4 v21, v[16:19], s[28:29] offset:{1024*u}")
            NB = 3
        for t in range(20):
            if t:
                a("v_add_u32 v3, s38, v3")
            a(f"global_load_dwordx4 v[{WQ+4*t}:{WQ+4*t+3}], v3, s[10:11] {nt}")
        if p["pre"] == "stlate":
            a(f"""global_store_dwordx4 v21, v[16:19], s[28:29]
            global_store_dwordx4 v21, v[16:19], s[28:29] offset:1024
            global_store_dwordx4 v21, v[16:19], s[28:29] offset:2048""")
        if p["warm"]:
            a("""global_load_dwordx4 v[68:71], v20, s[28:29]
            global_load_dwordx4 v[72:75], v20, s[28:29] offset:1024""")
        NY = (3 if p["pre"] == "stlate" else 0) + (2 if p["warm"] else 0)
        a("""s_barrier
        s_branch L_ctrl""")
        a(f"""L_att:
        s_lshr_b32 s35, s33, 2
        s_lshl_b32 s35, s35, 5
        s_add_u32 s35, s35, s32
        s_lshl_b32 s35, s35, 4
        s_and_b32 s36, s33, 3
        s_add_u32 s35, s35, s36
        s_add_u32 s35, s35, 12
        s_lshl_b32 s35, s35, 2
        s_add_u32 s35, s35, s3
        s_lshl_b32 s35, s35, 14
        s_add_u32 s35, s35, 4096
        v_bfe_u32 v1, v0, 2, 2
        v_lshlrev_b32 v1, 8, v1
        v_lshrrev_b32 v2, 4, v0
        v_lshl_add_u32 v1, v2, 6, v1
        v_and_b32 v2, 3, v0
        v_lshl_add_u32 v1, v2, 4, v1
        v_add_u32 v1, s35, v1
        v_lshl_add_u32 v14, v0, 4, s35
        s_waitcnt lgkmcnt(0)
        """)
        if self.diag:
            a("v_writelane_b32 v255, s100, 0")
        a("s_barrier")
        if self.diag:
            a("s_memrealtime s[98:99]")
        K = [("K", t) for t in range(16)]; V = [("V", t) for t in range(16)]; T = [("T", t) for t in range(8)]
        S = [("S", k) for k in p.get("Sset", range(5))]
        if p["early"]:
            first = K[:P-1] + V[:1]
            rest = T[:1] + S + K[P-1:]
            Vr, Tr = V[1:], T[1:]
        else:
            first = K[:p["F"]]
            rest = S + K[p["F"]:]
            Vr, Tr = V, T
        nbefore = [v for v in Vr if v[1] < p["tpos"]]
        nafter = [v for v in Vr if v[1] >= p["tpos"]]
        tail = []
        while nafter or Tr:
            if Tr: tail.append(Tr.pop(0))
            if nafter: tail.append(nafter.pop(0))
        order = first + rest + nbefore + tail
        order.insert(len(order) - p["mpos"], ("S", 5))
        NL = len(order)
        pos = {it: i for i, it in enumerate(order)}
        st = {"issued": 0, "done": -1}

        def emit(it):
            k, t = it
            if k == "K":
                if t == 8:
                    a("v_add_u32 v1, 8192, v1")
                a(f"global_load_dwordx4 v[{KR+4*t}:{KR+4*t+3}], v1, s[6:7] offset:{(t%8)*1024-4096} {nt}")
            elif k == "V":
                if t == 8:
                    a("v_add_u32 v14, 8192, v14")
                a(f"global_load_dwordx4 v[{VR+4*t}:{VR+4*t+3}], v14, s[8:9] offset:{(t%8)*1024-4096} {nt}")
            elif k == "T":
                a(f"global_load_dwordx4 v[{TR+4*t}:{TR+4*t+3}], v15, s[44:45] {nt}")
                if t < 7:
                    a("v_add_u32 v15, s46, v15")
            else:
                other = "s[16:17]" if p["mlpT"] == "w2" else "s[20:21]"
                a(["global_load_ushort v254, v250, s[4:5]",
                   "global_load_ushort v251, v251, s[22:23]",
                   "global_load_ushort v2, v250, s[24:25]",
                   "global_load_ushort v252, v252, s[18:19]",
                   f"global_load_dword v253, v253, {other}",
                   "global_load_dwordx4 v[40:43], v247, s[28:29] sc1"][t])

        def issue(pace=0):
            i = st["issued"]
            if pace and order[i][0] != "S":
                cnt = 0; j = i
                while j > 0 and cnt < pace:
                    j -= 1
                    if order[j][0] != "S":
                        cnt += 1
                if cnt == pace and j > st["done"]:
                    a(f"s_waitcnt vmcnt({i-1-j})")
                    st["done"] = j
            emit(order[i])
            st["issued"] += 1

        def wait_for(it):
            i = pos[it]
            assert i < st["issued"]
            if st["done"] < i:
                a(f"s_waitcnt vmcnt({st['issued']-1-i})")
                st["done"] = i
        for _ in first:
            issue()
        a(self.ROLES)
        setd = a.lab("setd")
        if p["mlpT"] == "w2":
            a.w2addr(15)
            a("s_movk_i32 s46, 1280\ns_mov_b64 s[44:45], s[20:21]")
            a(f"s_mul_i32 s36, s3, {128*3456}\nv_mov_b32 v253, s36")
        else:
            a.w1addr(15)
            a(f"s_mov_b32 s46, {16*3456}\ns_mov_b64 s[44:45], s[16:17]")
            a(f"s_mul_i32 s36, s39, {32*1280}\nv_mov_b32 v253, s36")
        a(f"""
        s_cmp_eq_u32 s31, 1
        s_cbranch_scc1 {setd}
        s_mov_b64 s[44:45], s[12:13]
        s_mov_b32 s46, 0
        v_mov_b32 v15, 0
        s_cmp_eq_u32 s31, 2
        s_cbranch_scc1 {setd}
        s_movk_i32 s46, 1280
        s_lshl_b32 s36, s32, 2
        s_add_u32 s36, s36, s3
        s_mul_i32 s36, s36, {32*1280}
        s_lshl_b32 s37, s33, 8
        s_add_u32 s36, s36, s37""")
        a.rowaddr(15)
        a(f"""{setd}:
        s_and_b32 s38, s32, 3
        s_mul_i32 s38, s38, 5
        s_add_u32 s38, s38, s33
        s_lshl_b32 s38, s38, 2
        s_add_u32 s38, s38, s3
        s_min_u32 s38, s38, 79
        s_lshl_b32 s35, s38, 4
        v_and_b32 v2, 3, v0
        v_lshrrev_b32 v3, 4, v0
        v_lshl_add_u32 v2, v2, 2, v3
        v_add_lshl_u32 v250, v2, s35, 1
        s_cmp_ge_u32 s38, 40
        s_cselect_b32 s35, 1280, 0
        v_subrev_u32 v251, s35, v250
        v_and_b32 v2, 7, v0
        v_lshl_add_u32 v2, v3, 3, v2
        s_lshl_b32 s35, s39, 5
        v_add_lshl_u32 v252, v2, s35, 1""")
        a.selectors()
        a("v_and_b32 v2, 8, v0\nv_cmp_eq_u32 vcc, 8, v2")
        for r in range(4):
            a(f"v_cndmask_b32 v{240+r}, v{4+r}, v{8+r}, vcc")
        a(f"""v_lshrrev_b32 v2, 4, v0
        v_and_b32 v3, 3, v0
        v_lshl_add_u32 v2, v2, 2, v3
        v_lshlrev_b32 v2, 4, v2
        v_add_u32 v2, {L_Q}, v2
        v_bfe_u32 v3, v0, 2, 2
        v_mov_b32 v12, {L_Z}""")
        for qd in range(4):
            a(f"v_cmp_eq_u32 vcc, {qd}, v3")
            a(f"v_cndmask_b32 v{200+qd}, v12, v2, vcc")
        a.dlayout(248, 3, bstride=512)
        a(f"""s_lshl_b32 s36, s3, 10
        v_add_u32 v248, s36, v248
        s_lshl_b32 s36, s32, 15
        s_add_u32 s36, s36, {BK + 2560}
        v_and_b32 v2, 8, v0
        v_lshlrev_b32 v2, 11, v2
        v_and_b32 v3, 3, v0
        v_lshl_add_u32 v2, v3, 12, v2
        v_add_u32 v247, s36, v2
        s_lshl_b32 s35, s3, 7
        s_sub_u32 s35, s35, 512
        v_lshrrev_b32 v3, 4, v0
        v_lshl_add_u32 v2, v3, 5, s35
        v_and_b32 v3, 4, v0
        v_lshl_add_u32 v2, v3, 2, v2
        v_add_u32 v249, v247, v2
        s_mov_b32 s40, {hx(128 ** -0.5)}
        s_mov_b32 s48, {hx(LOG2E)}
        s_mov_b32 s49, 0xffffff00
        s_lshl_b32 s36, s3, 3
        v_mov_b32 v12, s36
        v_mov_b32 v13, 0
        s_mov_b32 s47, 0
        """)
        if p["early"]:
            issue()
        while st["done"] < pos[("K", 15)]:
            issue(p["Pq"] if order[st["issued"]][0] == "K" else P)
        a.stamp(1)
        if self.diag:
            a("v_writelane_b32 v255, s98, 16")
        lastchk = min(NL - 1, pos[("V", 15)] + p["chkend"])
        assert pos[("S", 5)] > lastchk
        firstchk = True
        while True:
            sk = a.lab("chk")
            if not firstchk:
                a(f"s_cmp_lg_u32 s47, 0\ns_cbranch_scc1 {sk}")
            a(f"""ds_read_b64 v[2:3], v13 offset:{L_QF}
            s_waitcnt lgkmcnt(0)
            v_readfirstlane_b32 s47, v3
            s_cmp_eq_u32 s47, 0
            s_cbranch_scc1 {sk}
            s_call_b64 s[50:51], L_compute
            {sk}:""")
            firstchk = False
            issue(p["P2"])
            if st["issued"] > lastchk:
                break
        lp = a.lab("qw"); sk = a.lab("qw_done"); go = a.lab("qw_go")
        a(f"""s_cmp_lg_u32 s47, 0
        s_cbranch_scc1 {sk}
        s_mov_b32 s42, 0
        {lp}:
        ds_read_b64 v[2:3], v13 offset:{L_QF}
        s_add_u32 s42, s42, 1
        s_waitcnt lgkmcnt(0)
        v_readfirstlane_b32 s47, v3
        s_cmp_lg_u32 s47, 0
        s_cbranch_scc1 {go}
        s_cmp_lt_u32 s42, {SPIN*20}
        s_cbranch_scc1 {lp}
        {go}:
        s_call_b64 s[50:51], L_compute
        {sk}:""")
        a.stamp(19)
        Pt = p["Ptail"]

        def topup():
            while st["issued"] < NL:
                infl = sum(1 for j in range(st["done"] + 1, st["issued"]) if order[j][0] != "S")
                if infl >= Pt and order[st["issued"]][0] != "S":
                    break
                issue()
        topup()
        for t in range(16):
            a(f"v_mov_b32_dpp v{48+t%2}, v{20+t//4} row_newbcast:{4*(t%4)} row_mask:0xf bank_mask:0xf")
            for r in range(4):
                a(f"v_perm_b32 v{FRG+4*(t%4)+r}, v{48+t%2}, v{48+t%2}, v{240+r}")
            wait_for(("V", t))
            topup()
            c = "0" if t == 0 else "v[44:47]"
            a(f"v_mfma_f32_16x16x32_bf16 v[44:47], v[{FRG+4*(t%4)}:{FRG+4*(t%4)+3}], v[{VR+4*t}:{VR+4*t+3}], {c}")
        while st["issued"] < NL:
            issue()
        a(f"""ds_write_b128 v248, v[44:47] offset:{L_RED}
        s_waitcnt lgkmcnt(0)""")
        a.stamp(20)
        a("s_barrier")
        a.stamp(5)
        a("""s_cmp_lg_u32 s31, 0
        s_cbranch_scc1 L_mlp""")
        a(f"""global_load_dwordx4 v[28:31], v249, s[28:29] sc1
        s_lshl_b32 s35, s38, 6
        v_lshrrev_b32 v2, 2, v0
        v_mul_u32_u24 v2, 5120, v2
        v_and_b32 v3, 3, v0
        v_lshl_add_u32 v2, v3, 4, v2
        v_add_u32 v22, s35, v2
        s_mul_i32 s35, s30, 5120
        s_add_u32 s35, s35, {HB}
        v_lshl_add_u32 v25, v250, 1, s35
        v_add_u32 v24, {AP + 16*5120}, v22
        v_add_u32 v23, {HB2 - HB}, v25
        v_lshlrev_b32 v20, 16, v254
        v_lshlrev_b32 v21, 16, v251""")
        st["issued"] += 1
        mlp_ = a.lab("ml"); mlok = a.lab("ml_ok"); og = a.lab("og"); ogok = a.lab("og_ok")
        wait_for(("S", 5))
        a(f"""s_mov_b32 s42, 0
        {mlp_}:
        v_xor_b32 v26, s43, v41
        v_xor_b32 v27, s43, v43
        v_or_b32 v26, v26, v27
        v_lshlrev_b32 v26, 3, v26
        v_cmp_ne_u32 vcc, 0, v26
        s_cbranch_vccz {mlok}
        global_load_dwordx4 v[40:43], v247, s[28:29] sc1
        s_add_u32 s42, s42, 1
        s_cmp_lt_u32 s42, {SPIN}
        s_waitcnt vmcnt(0)
        s_cbranch_scc1 {mlp_}
        {mlok}:""")
        if self.diag:
            a("v_writelane_b32 v255, s42, 28")
        a.stamp(21)
        a(f"""v_max_f32_dpp v41, v40, v40 quad_perm:[1,0,3,2] row_mask:0xf bank_mask:0xf
        v_max_f32_dpp v41, v41, v41 quad_perm:[2,3,0,1] row_mask:0xf bank_mask:0xf
        v_sub_f32 v41, v40, v41
        v_mul_f32 v41, s48, v41
        v_exp_f32 v41, v41
        v_mul_f32 v43, v41, v42
        v_add_f32_dpp v43, v43, v43 quad_perm:[1,0,3,2] row_mask:0xf bank_mask:0xf
        v_add_f32_dpp v43, v43, v43 quad_perm:[2,3,0,1] row_mask:0xf bank_mask:0xf
        v_rcp_f32 v43, v43
        v_mul_f32 v42, v41, v43""")
        a.pollt("og", lambda: a("global_load_dwordx4 v[28:31], v249, s[28:29] sc1"), [28, 29, 30, 31], 26, first_issued=True)
        if self.diag:
            a("v_writelane_b32 v255, s42, 29")
        a.stamp(6)
        a("""v_pk_mul_f32 v[28:29], v[28:29], v[42:43] op_sel_hi:[1,0]
        v_pk_mul_f32 v[30:31], v[30:31], v[42:43] op_sel_hi:[1,0]""")
        for d in ("quad_perm:[1,0,3,2]", "quad_perm:[2,3,0,1]"):
            for r in range(4):
                a(f"v_add_f32_dpp v{28+r}, v{28+r}, v{28+r} {d} row_mask:0xf bank_mask:0xf")
        a("""v_cvt_pk_bf16_f32 v32, v28, v29
        v_cvt_pk_bf16_f32 v33, v30, v31""")
        a.mirror4()
        a.diag8(TR)
        a(f"""ds_write_b128 v248, v[44:47] offset:{L_RED2}
        s_waitcnt lgkmcnt(0)
        s_barrier""")
        a.stamp(7)
        if p["adelay"]:
            a(f"s_sleep {p['adelay']}")

        def ldA():
            a("global_load_dwordx4 v[28:31], v22, s[28:29] sc1")
            a("global_load_dwordx4 v[32:35], v24, s[28:29] sc1")
        assert AP == 0
        a.pollt("ha", ldA, list(range(28, 36)), 26)
        a.stamp(8)
        a("v_pk_add_f32 v[28:29], v[28:29], v[32:33]\nv_pk_add_f32 v[30:31], v[30:31], v[34:35]")
        a.red16(28)
        slow = a.lab("hb_slow"); hbd = a.lab("hb_done")
        a(f"""v_cvt_pk_bf16_f32 v28, v28, v28
        v_lshlrev_b32 v28, 16, v28
        v_add_f32 v28, v28, v20
        v_cvt_pk_bf16_f32 v28, v28, v28
        v_lshl_or_b32 v26, v28, 16, v246
        s_mov_b32 exec_lo, 0x000f000f
        s_mov_b32 exec_hi, 0x000f000f
        global_store_dword v25, v26, s[28:29]
        global_store_dword v23, v26, s[28:29] sc1
        s_mov_b64 exec, -1
        v_lshlrev_b32 v19, 16, v28""")
        a.stamp(9)
        fin = a.lab("fin"); nob = a.lab("nobump")
        a(f"""s_and_b32 s35, s38, 7
        s_cmp_eq_u32 s35, s30
        s_cbranch_scc1 {fin}""")
        a.finish()
        a(f"""{fin}:
        s_cmp_lg_u32 s38, 0
        s_cbranch_scc1 {nob}
        v_mov_b32 v2, {EP}
        v_mov_b32 v3, s43
        global_store_dword v2, v3, s[28:29] sc1
        {nob}:""")
        for u in range(4):
            a(f"v_add_u32 v{48+u}, {CP + 16*5120*u}, v22")
        if p["cdelay"]:
            a(f"s_sleep {p['cdelay']}")

        def ldC():
            for u in range(3):
                a(f"global_load_dwordx4 v[{28+4*u}:{31+4*u}], v{48+u}, s[28:29] sc1")
            a("v_mov_b32 v40, v246\nv_mov_b32 v41, v246\nv_mov_b32 v42, v246\nv_mov_b32 v43, v246")
            a("s_mov_b64 exec, 0xffffff")
            a("global_load_dwordx4 v[40:43], v51, s[28:29] sc1")
            a("s_mov_b64 exec, -1")
        a.pollt("hc", ldC, list(range(28, 44)), 26)
        a.stamp(10)
        a("""v_pk_add_f32 v[28:29], v[28:29], v[32:33]
        v_pk_add_f32 v[30:31], v[30:31], v[34:35]
        v_pk_add_f32 v[36:37], v[36:37], v[40:41]
        v_pk_add_f32 v[38:39], v[38:39], v[42:43]
        v_pk_add_f32 v[28:29], v[28:29], v[36:37]
        v_pk_add_f32 v[30:31], v[30:31], v[38:39]""")
        a.red16(28)
        a("""v_cvt_pk_bf16_f32 v28, v28, v28
        v_lshlrev_b32 v28, 16, v28
        v_add_f32 v28, v28, v21
        v_cvt_pk_bf16_f32 v28, v28, v28
        v_lshlrev_b32 v28, 16, v28
        v_add_f32 v28, v28, v19
        v_cvt_pk_bf16_f32 v28, v28, v28
        s_mov_b32 exec_lo, 0x000f000f
        s_mov_b32 exec_hi, 0x000f000f
        global_store_short v250, v28, s[24:25]
        s_mov_b64 exec, -1""")
        a.finish()

        QF = 144; DR = 160; SR = 16
        a("L_compute:")
        a("v_readfirstlane_b32 s43, v2\nv_and_b32 v246, 0xff, v2")
        a.stamp(2)
        for qd in range(4):
            a(f"ds_read_b128 v[{QF+4*qd}:{QF+4*qd+3}], v{200+qd}")
        for qd in range(4):
            a(f"s_waitcnt lgkmcnt({3-qd})")
            for u in range(4):
                t = 4 * u + qd
                c = "0" if qd == 0 else f"v[{DR+4*u}:{DR+4*u+3}]"
                a(f"v_mfma_f32_16x16x32_bf16 v[{DR+4*u}:{DR+4*u+3}], v[{KR+4*t}:{KR+4*t+3}], v[{QF+4*qd}:{QF+4*qd+3}], {c}")
        for u in range(4):
            a(f"v_mov_b32_dpp v{SR+u}, v{DR+4*u} quad_perm:[0,0,0,0] row_mask:0xf bank_mask:0xf")
        for r in (1, 2, 3):
            for u in range(4):
                a(f"v_add_f32_dpp v{SR+u}, v{DR+4*u+r}, v{SR+u} quad_perm:[{r},{r},{r},{r}] row_mask:0xf bank_mask:0xf")
        for rnd in range(2):
            a("""v_cvt_pk_bf16_f32 v20, v16, v17
            v_cvt_pk_bf16_f32 v21, v18, v19
            v_lshlrev_b32 v16, 16, v20
            v_and_b32 v17, 0xffff0000, v20
            v_lshlrev_b32 v18, 16, v21
            v_and_b32 v19, 0xffff0000, v21""")
            if rnd == 0:
                a("""v_pk_mul_f32 v[16:17], v[16:17], s[40:41] op_sel_hi:[1,0]
                v_pk_mul_f32 v[18:19], v[18:19], s[40:41] op_sel_hi:[1,0]""")
        a(f"""v_max3_f32 v28, v16, v17, v18
        v_max_f32 v28, v28, v19
        v_max_f32_dpp v28, v28, v28 row_ror:4 row_mask:0xf bank_mask:0xf
        v_max_f32_dpp v28, v28, v28 row_ror:8 row_mask:0xf bank_mask:0xf
        v_mov_b32 v29, v28
        v_permlane32_swap_b32 v28, v29
        v_max_f32 v28, v28, v29
        v_mov_b32 v29, v28
        v_permlane16_swap_b32 v28, v29
        v_max_f32 v28, v28, v29
        v_pk_add_f32 v[16:17], v[16:17], v[28:29] op_sel_hi:[1,0] neg_lo:[0,1] neg_hi:[0,1]
        v_pk_add_f32 v[18:19], v[18:19], v[28:29] op_sel_hi:[1,0] neg_lo:[0,1] neg_hi:[0,1]
        v_pk_mul_f32 v[16:17], v[16:17], s[48:49] op_sel_hi:[1,0]
        v_pk_mul_f32 v[18:19], v[18:19], s[48:49] op_sel_hi:[1,0]
        v_exp_f32 v16, v16
        v_exp_f32 v17, v17
        v_exp_f32 v18, v18
        v_exp_f32 v19, v19
        v_pk_add_f32 v[30:31], v[16:17], v[18:19]
        v_cvt_pk_bf16_f32 v20, v16, v17
        v_add_f32 v30, v30, v31
        v_cvt_pk_bf16_f32 v21, v18, v19
        v_lshlrev_b32 v24, 16, v20
        v_add_f32_dpp v30, v30, v30 row_ror:4 row_mask:0xf bank_mask:0xf
        v_and_b32 v25, 0xffff0000, v20
        v_lshlrev_b32 v26, 16, v21
        v_add_f32_dpp v30, v30, v30 row_ror:8 row_mask:0xf bank_mask:0xf
        v_and_b32 v27, 0xffff0000, v21
        v_mov_b32 v31, v30
        v_pk_add_f32 v[16:17], v[16:17], v[24:25] neg_lo:[0,1] neg_hi:[0,1]
        v_pk_add_f32 v[18:19], v[18:19], v[26:27] neg_lo:[0,1] neg_hi:[0,1]
        v_permlane32_swap_b32 v30, v31
        v_add_f32 v30, v30, v31
        v_mov_b32 v31, v30
        v_cvt_pk_bf16_f32 v20, v24, v16
        v_cvt_pk_bf16_f32 v21, v25, v17
        v_permlane16_swap_b32 v30, v31
        v_add_f32 v29, v30, v31
        v_cvt_pk_bf16_f32 v22, v26, v18
        v_cvt_pk_bf16_f32 v23, v27, v19
        ds_write_b64 v12, v[28:29] offset:{L_ML}""")
        a.stamp(4)
        a("s_nop 1\ns_setpc_b64 s[50:51]")

        a("L_ctrl:")
        a.stamp(1)
        a.selectors()
        a(f"""s_getreg_b32 s44, hwreg(HW_REG_XCC_ID, 0, 3)
        s_waitcnt vmcnt({21+NY+NB})""")
        a.stamp(2)
        for b_, (src, X) in enumerate(((24, 36), (30, 48))):
            for i in range(5):
                a(f"v_lshlrev_b32 v{X+2*i}, 16, v{src+i}")
                a(f"v_and_b32 v{X+2*i+1}, 0xffff0000, v{src+i}")
            a.ln(X, src, 60, False)
            a(f"""v_lshlrev_b32 v2, 2, v0
            ds_write_b64 v1, v[{src}:{src+1}] offset:{L_Y + b_*YS}
            ds_write_b64 v1, v[{src+2}:{src+3}] offset:{L_Y + b_*YS + 512}
            ds_write_b32 v2, v{src+4} offset:{L_Y + b_*YS + 1024}""")
        a(f"""s_mul_i32 s35, s33, 160
        v_lshrrev_b32 v2, 4, v0
        v_mul_u32_u24 v2, 40, v2
        v_bfe_u32 v3, v0, 3, 1
        v_mul_u32_u24 v3, {YS}, v3
        v_add3_u32 v2, v2, v3, s35
        s_waitcnt lgkmcnt(0)""")
        for i in range(5):
            a(f"ds_read_b64 v[{36+2*i}:{37+2*i}], v2 offset:{L_Y + 8*i}")
        a(f"""s_waitcnt vmcnt({20+NY+NB})
        v_readfirstlane_b32 s43, v15
        s_add_u32 s43, s43, 1
        s_and_b32 s35, s43, 0xff
        s_cmp_eq_u32 s35, 0xff
        s_addc_u32 s43, s43, 0
        s_and_b32 s43, s43, 0x1fffffff
        s_lshl_b32 s44, s44, 29
        s_or_b32 s44, s44, s43
        s_mov_b32 s43, s44
        s_and_b32 s35, s43, 0xff
        v_mov_b32 v246, s35
        s_mov_b32 s49, 0xffffff00
        v_mov_b32 v13, 0
        v_mov_b32 v53, s44
        v_mov_b32 v55, s44
        v_mov_b32 v57, s44
        v_mov_b32 v59, s44
        s_waitcnt lgkmcnt(0)""")
        a.stamp(3)
        FR = 160
        a.frag(FR, 36, 0)
        for t in range(20):
            if t + 1 < 20:
                a.frag(FR + 4 * (t + 1), 36 + (t + 1) // 2, (t + 1) & 1)
            a(f"s_waitcnt vmcnt({19+NY-t})")
            c = "0" if t == 0 else "v[48:51]"
            a(f"v_mfma_f32_16x16x32_bf16 v[48:51], v[{FR+4*t}:{FR+4*t+3}], v[{WQ+4*t}:{WQ+4*t+3}], {c}")
        qfl = "" if p["fast"] else "sc1"
        a(f"""v_mov_b32 v52, v48
        v_mov_b32 v54, v49
        v_mov_b32 v56, v50
        v_mov_b32 v58, v51
        global_store_dwordx4 v21, v[52:55], s[28:29] {qfl}
        global_store_dwordx4 v21, v[56:59], s[28:29] offset:1024 {qfl}""")
        a.stamp(4)
        a(self.ROLES)
        qg = a.lab("qg"); qgd = a.lab("qg_ok"); qns = a.lab("qg_nosc1"); qf = a.lab("qg_fast")
        a(f"""s_mul_i32 s35, s32, 5120
        s_lshl_b32 s38, s33, 9
        s_add_u32 s35, s35, s38
        v_lshrrev_b32 v3, 5, v0
        v_mul_u32_u24 v2, 2560, v3
        v_and_b32 v22, 31, v0
        v_lshl_add_u32 v2, v22, 4, v2
        v_add_u32 v23, s35, v2
        s_lshl_b32 s35, s32, 15
        s_lshr_b32 s38, s33, 2
        s_lshl_b32 s38, s38, 9
        s_add_u32 s35, s35, s38
        s_add_u32 s35, s35, {BK + 4096}
        v_lshlrev_b32 v2, 10, v3
        v_lshl_add_u32 v2, v22, 4, v2
        v_add_u32 v60, s35, v2
        v_add_u32 v61, 8192, v60
        v_add_u32 v62, 8192, v61
        v_add_u32 v63, 8192, v62
        v_and_b32 v2, 15, v0
        v_lshlrev_b32 v2, 4, v2
        v_and_b32 v22, 16, v0
        v_lshrrev_b32 v22, 1, v22
        v_add_u32 v2, v2, v22
        v_lshl_add_u32 v22, v3, 2, v2
        s_mov_b32 s42, 0""")
        if p["qdelay"]:
            a(f"s_sleep {p['qdelay']}")
        a.stamp(5)
        a(f"{qg}:")
        for u in range(8):
            a(f"global_load_dwordx4 v[{80+4*u}:{83+4*u}], v{60+u//2}, s[28:29] offset:{4096*(u%2)-4096} sc1")
        a("s_add_u32 s42, s42, 1\ns_waitcnt vmcnt(0)")
        a("v_xor_b32 v36, s44, v81\nv_xor_b32 v37, s44, v83")
        for u in range(1, 8):
            a(f"v_bitop3_b32 v36, v36, v{81+4*u}, s44 bitop3:0xf6")
            a(f"v_bitop3_b32 v37, v37, v{83+4*u}, s44 bitop3:0xf6")
        a(f"""v_or_b32 v36, v36, v37
        v_lshlrev_b32 v37, 3, v36
        v_cmp_ne_u32 vcc, 0, v37
        s_cbranch_vccz {qgd}
        s_cmp_lg_u32 s42, {p['qslow']}
        s_cbranch_scc1 {qns}
        global_store_dwordx4 v21, v[52:55], s[28:29] sc1
        global_store_dwordx4 v21, v[56:59], s[28:29] offset:1024 sc1
        {qns}:
        s_cmp_lt_u32 s42, {SPIN}
        s_cbranch_scc1 {qg}
        {qgd}:""")
        if self.diag:
            a("v_writelane_b32 v255, s42, 30")
        a("""v_add_f32 v80, v80, v84
        v_add_f32 v82, v82, v86
        v_add_f32 v88, v88, v92
        v_add_f32 v90, v90, v94
        v_add_f32 v96, v96, v100
        v_add_f32 v98, v98, v102
        v_add_f32 v104, v104, v108
        v_add_f32 v106, v106, v110
        v_add_f32 v80, v80, v88
        v_add_f32 v82, v82, v90
        v_add_f32 v96, v96, v104
        v_add_f32 v98, v98, v106
        v_add_f32 v80, v80, v96
        v_add_f32 v82, v82, v98
        v_cvt_pk_bf16_f32 v80, v80, v82""")
        a(f"""ds_write_b32 v22, v80 offset:{L_Q}
        v_cmp_ne_u32 vcc, 0, v36
        v_mov_b32 v2, 0
        v_mov_b32 v14, s44
        s_cmp_lg_u64 vcc, 0
        s_cselect_b32 s46, 1, {0 if p['fast'] else 1}
        s_cselect_b32 s35, 1, {p['hslow'] + 1 if p['fast'] else 1}
        v_mov_b32 v15, s35
        s_waitcnt lgkmcnt(0)
        ds_write_b64 v2, v[14:15] offset:{L_QF}
        s_cbranch_scc0 {qf}
        global_store_dwordx4 v21, v[52:55], s[28:29] sc1
        global_store_dwordx4 v21, v[56:59], s[28:29] offset:1024 sc1
        {qf}:""")
        a.stamp(6)
        mw = a.lab("mw"); mwd = a.lab("mw_ok"); msl = a.lab("ml_slow"); msd = a.lab("ml_done")
        a(f"""s_mov_b32 s40, {hx(LOG2E)}
        v_mov_b32 v20, s45
        v_lshl_add_u32 v21, v0, 3, s45
        s_mov_b32 s42, 0
        {mw}:
        ds_read_b128 v[36:39], v2 offset:{L_ML}
        ds_read_b128 v[40:43], v2 offset:{L_ML+16}
        s_add_u32 s42, s42, 1
        s_waitcnt lgkmcnt(0)
        v_min3_u32 v44, v37, v39, v41
        v_min_u32 v44, v44, v43
        v_cmp_eq_u32 vcc, 0, v44
        s_cbranch_vccz {mwd}
        s_sleep 1
        s_cmp_lt_u32 s42, {SPIN*20}
        s_cbranch_scc1 {mw}
        {mwd}:
        v_max3_f32 v44, v36, v38, v40
        v_max_f32 v44, v44, v42""")
        for i in range(4):
            a(f"v_sub_f32 v{36+2*i}, v{36+2*i}, v44")
        for i in range(4):
            a(f"v_mul_f32 v{36+2*i}, s40, v{36+2*i}")
        for i in range(4):
            a(f"v_exp_f32 v{36+2*i}, v{36+2*i}")
        a(f"""v_mul_f32 v46, v36, v37
        v_mov_b32 v45, s44
        v_fmac_f32 v46, v38, v39
        v_mov_b32 v47, s44
        v_fmac_f32 v46, v40, v41
        v_fmac_f32 v46, v42, v43
        s_cmp_lg_u32 s46, 0
        s_cbranch_scc1 {msl}
        global_store_dwordx4 v20, v[44:47], s[28:29] offset:2560
        s_branch {msd}
        {msl}:
        global_store_dwordx4 v20, v[44:47], s[28:29] offset:2560 sc1
        {msd}:""")
        a.stamp(8)
        a("s_barrier")
        for u in range(4):
            a(f"ds_read2st64_b64 v[{48+4*u}:{51+4*u}], v1 offset0:{L_RED//512 + 2*u} offset1:{L_RED//512 + 2*u + 1}")
        osl = a.lab("op_slow"); osd = a.lab("op_done")
        a(f"""s_waitcnt lgkmcnt(2)
        v_pk_add_f32 v[48:49], v[48:49], v[50:51]
        v_pk_add_f32 v[52:53], v[52:53], v[54:55]
        v_pk_mul_f32 v[48:49], v[48:49], v[36:37] op_sel_hi:[1,0]
        s_waitcnt lgkmcnt(0)
        v_pk_add_f32 v[56:57], v[56:57], v[58:59]
        v_pk_fma_f32 v[48:49], v[52:53], v[38:39], v[48:49] op_sel_hi:[1,0,1]
        v_pk_add_f32 v[60:61], v[60:61], v[62:63]
        v_pk_fma_f32 v[48:49], v[56:57], v[40:41], v[48:49] op_sel_hi:[1,0,1]
        v_pk_fma_f32 v[48:49], v[60:61], v[42:43], v[48:49] op_sel_hi:[1,0,1]
        v_and_or_b32 v48, v48, s49, v246
        v_and_or_b32 v49, v49, s49, v246
        s_cmp_lg_u32 s46, 0
        s_cbranch_scc1 {osl}
        global_store_dwordx2 v21, v[48:49], s[28:29] offset:2048
        s_branch {osd}
        {osl}:
        global_store_dwordx2 v21, v[48:49], s[28:29] offset:2048 sc1
        {osd}:""")
        a.stamp(10)
        if p.get("dirty"):
            a(f"""s_lshl_b32 s35, s34, 14
            s_add_u32 s35, s35, 0x400000
            v_lshl_add_u32 v3, v0, 4, s35""")
            for u in range(p["dirty"]):
                a(f"global_store_dwordx4 v3, v[16:19], s[28:29]\nv_add_u32 v3, 1024, v3")
        gf = a.lab("gf"); gfd = a.lab("gf_ok"); free = a.lab("notfree"); nb = a.lab("nob3b")
        a(f"""s_cmp_lg_u32 s31, 2
        s_cbranch_scc1 {free}""")
        if p.get("hold"):
            hl = a.lab("hold")
            if p.get("holdx") is not None:
                a(f"s_cmp_lg_u32 s30, {p['holdx']}\ns_cbranch_scc1 L_exit")
            a(f"""{hl}:
            s_memrealtime s[94:95]
            s_waitcnt lgkmcnt(0)
            s_sub_u32 s94, s94, s96
            s_cmp_lt_u32 s94, {p['hold']}
            s_cbranch_scc1 {hl}""")
        a.finish()
        a(f"""{free}:
        v_lshlrev_b32 v2, 4, v0
        s_barrier
        s_cmp_eq_u32 s31, 1
        s_cbranch_scc1 L_mlp_ctrl""")
        for u in range(4):
            a(f"ds_read_b128 v[{48+4*u}:{51+4*u}], v2 offset:{L_RED2 + 1024*u}")
        a("""s_waitcnt lgkmcnt(2)
        v_pk_add_f32 v[48:49], v[48:49], v[52:53]
        v_pk_add_f32 v[50:51], v[50:51], v[54:55]
        s_waitcnt lgkmcnt(0)
        v_pk_add_f32 v[56:57], v[56:57], v[60:61]
        v_pk_add_f32 v[58:59], v[58:59], v[62:63]
        v_pk_add_f32 v[48:49], v[48:49], v[56:57]
        v_pk_add_f32 v[50:51], v[50:51], v[58:59]""")
        a.tagw([48, 49, 50, 51], 246)
        a("global_store_dwordx4 v23, v[48:51], s[28:29] sc1")
        a.stamp(11)
        a.finish()
        self.mlp()
        if self.diag:
            a(f"""L_dump:
            s_mov_b64 exec, -1
            s_lshl_b32 s35, s34, 3
            s_add_u32 s35, s35, s3
            s_lshl_b32 s35, s35, 8
            s_add_u32 s35, s35, {STAMP}
            v_lshl_add_u32 v2, v0, 2, s35
            global_store_dword v2, v255, s[28:29]""")
        a("L_exit:")
        a("s_endpgm")
        a("L_codeend:")

    def mlp(self):
        a = self
        p = self.p
        LATE = 80
        B1R = 112
        W1R, W2R = (LATE, TR) if p["mlpT"] == "w2" else (TR, LATE)
        go = a.lab("mlp_go"); cm = a.lab("mlp_common")
        a("L_mlp_ctrl:")
        a(f"""v_lshrrev_b32 v3, 4, v0
        v_and_b32 v2, 7, v0
        v_lshl_add_u32 v2, v3, 3, v2
        s_lshl_b32 s35, s39, 5
        v_add_lshl_u32 v252, v2, s35, 1
        global_load_ushort v252, v252, s[18:19]""")
        a.w1addr(14); a.w2addr(15)
        a.load8(W1R, 14, "s[16:17]", 16*3456)
        a.load8(W2R, 15, "s[20:21]", 1280)
        a(f"s_branch {cm}")
        a(f"""L_mlp:
        s_cmp_eq_u32 s31, 1
        s_cbranch_scc1 {go}""")
        a.finish()
        a(f"{go}:")
        if p["mlpT"] == "w2":
            a.w1addr(14)
            a("s_barrier")
            a.load8(W1R, 14, "s[16:17]", 16*3456)
        else:
            a.w2addr(14)
            a("s_barrier")
            a.load8(W2R, 14, "s[20:21]", 1280)
        a(f"""{cm}:
        s_lshl_b32 s35, s3, 8
        v_lshrrev_b32 v2, 4, v0
        v_and_b32 v12, 15, v0
        v_and_b32 v3, 7, v0
        v_lshl_add_u32 v3, v2, 3, v3
        s_lshl_b32 s37, s3, 13
        s_add_u32 s37, s37, {L_W1}
        v_lshlrev_b32 v3, 3, v3
        v_bfe_u32 v18, v0, 3, 1
        v_lshl_add_u32 v21, v18, 2, v3
        v_lshl_add_u32 v22, v12, 3, s35
        v_add_u32 v22, {L_T1}, v22
        v_and_b32 v3, 1, v0
        v_mul_u32_u24 v3, {YS}, v3
        v_lshl_add_u32 v3, v2, 4, v3
        v_add_u32 v23, s35, v3
        v_bfe_u32 v3, v0, 2, 2
        v_lshl_add_u32 v3, v2, 3, v3
        v_lshlrev_b32 v3, 6, v3
        v_and_b32 v12, 3, v0
        v_lshl_add_u32 v3, v12, 3, v3
        v_add_u32 v24, s37, v3
        v_lshl_add_u32 v19, v0, 4, s37
        s_mul_i32 s38, s39, 5120
        s_lshl_b32 s35, s3, 9
        s_add_u32 s38, s38, s35
        s_add_u32 s38, s38, {CP}""")
        a.dlayout(25, 3, bstride=2560)
        a(f"""v_add_u32 v25, s38, v25
        s_lshl_b32 s36, s30, 1
        s_add_u32 s36, s36, s3
        s_mul_i32 s36, s36, 2560
        s_add_u32 s36, s36, {HB}
        v_lshl_add_u32 v2, v0, 4, s36
        v_lshl_add_u32 v3, v0, 3, s36
        s_mul_i32 s36, s3, {YS}
        v_lshl_add_u32 v26, v0, 3, s36
        v_lshl_add_u32 v27, v0, 2, s36""")
        if p["mlpT"] == "w2":
            w = a.lab("w1w")
            a(f"""s_cmp_eq_u32 s3, 4
            s_cbranch_scc1 {w}
            s_waitcnt vmcnt(0)
            {w}:
            s_waitcnt vmcnt(8)""")
        else:
            a("s_waitcnt vmcnt(8)")
        for t in range(8):
            a(f"ds_write_b128 v19, v[{W1R+4*t}:{W1R+4*t+3}] offset:{1024*t}")
        a("s_waitcnt lgkmcnt(0)")
        for ks in range(4):
            for ct in range(2):
                for hf_ in range(2):
                    r = B1R + 4 * (2 * ks + ct) + 2 * hf_
                    a(f"ds_read_b64_tr_b16 v[{r}:{r+1}], v24 offset:{(32*ks + 4*hf_)*64 + 32*ct}")
        a("v_lshlrev_b32 v20, 16, v252")
        a.stamp(15)
        a("s_waitcnt lgkmcnt(0)")
        a.stamp(12)
        noln = a.lab("noln")
        a(f"""s_cmp_ge_u32 s3, 2
        s_cbranch_scc1 {noln}""")

        def ldH():
            a("global_load_dwordx4 v[28:31], v2, s[28:29] sc1")
            a("global_load_dwordx4 v[32:35], v2, s[28:29] offset:1024 sc1")
            a("global_load_dwordx2 v[36:37], v3, s[28:29] offset:2048 sc1")
        def preH():
            sw = a.lab("hb_sw")
            a(f"""s_cmp_lg_u32 s42, s47
            s_cbranch_scc1 {sw}
            v_add_u32 v2, {HB2 - HB}, v2
            v_add_u32 v3, {HB2 - HB}, v3
            {sw}:""")
        a("s_sub_u32 s47, s47, 1")
        a.pollt("hb", ldH, list(range(28, 38)), 16, pre=preH)
        if self.diag:
            a("v_writelane_b32 v255, s42, 27")
        a.stamp(13)
        a.ln(28, 40, 46, True)
        a.ln(28, 40, 46, False)
        a(f"""ds_write_b64 v26, v[40:41] offset:{L_Y}
        ds_write_b64 v26, v[42:43] offset:{L_Y + 512}
        ds_write_b32 v27, v44 offset:{L_Y + 1024}
        s_waitcnt lgkmcnt(0)
        {noln}:
        s_barrier""")
        a.stamp(18)
        for ks in range(4):
            a(f"ds_read_b128 v[{28+4*ks}:{31+4*ks}], v23 offset:{L_Y + 64*ks}")
        for ks in range(4):
            a(f"s_waitcnt lgkmcnt({3-ks})")
            for ct in range(2):
                c = "0" if ks == 0 else f"v[{44+4*ct}:{47+4*ct}]"
                r = B1R + 4 * (2 * ks + ct)
                a(f"v_mfma_f32_16x16x32_bf16 v[{44+4*ct}:{47+4*ct}], v[{28+4*ks}:{31+4*ks}], v[{r}:{r+3}], {c}")
        a(f"""s_mov_b64 exec, 0xffff
        ds_write2_b64 v22, v[44:45], v[48:49] offset0:0 offset1:16
        s_mov_b64 exec, -1
        v_mov_b32 v33, 1.0
        s_waitcnt lgkmcnt(0)
        s_barrier
        ds_read2st64_b32 v[28:29], v21 offset0:{L_T1//256} offset1:{L_T1//256+1}
        ds_read2st64_b32 v[30:31], v21 offset0:{L_T1//256+2} offset1:{L_T1//256+3}
        ds_read_b32 v32, v21 offset:{L_T1 + 1024}
        s_waitcnt lgkmcnt(1)
        v_pk_add_f32 v[28:29], v[28:29], v[30:31]
        v_add_f32 v28, v28, v29
        s_waitcnt lgkmcnt(0)
        v_add_f32 v28, v28, v32
        v_cvt_pk_bf16_f32 v28, v28, v28
        v_lshlrev_b32 v28, 16, v28
        v_add_f32 v28, v28, v20
        v_cvt_pk_bf16_f32 v28, v28, v28
        v_lshlrev_b32 v28, 16, v28
        v_mul_f32 v29, v28, v28
        v_mul_f32 v30, {hx(-2.0*math.sqrt(2.0/math.pi)*LOG2E)}, v28
        v_fmamk_f32 v29, v29, {hx(0.044715)}, v33
        v_mul_f32 v29, v29, v30
        v_exp_f32 v29, v29
        v_add_f32 v29, 1.0, v29
        v_rcp_f32 v29, v29
        v_mul_f32 v28, v28, v29
        v_mov_b32_dpp v29, v28 quad_perm:[1,1,3,3] row_mask:0xf bank_mask:0xf
        v_cvt_pk_bf16_f32 v28, v28, v29
        v_mov_b32_dpp v32, v28 quad_perm:[0,0,0,0] row_mask:0xf bank_mask:0xf
        v_mov_b32_dpp v33, v28 quad_perm:[2,2,2,2] row_mask:0xf bank_mask:0xf""")
        a.mirror4()
        a("s_waitcnt vmcnt(0)")
        a.diag8(W2R)
        a.tagw([44, 45, 46, 47], 246)
        a("global_store_dwordx4 v25, v[44:47], s[28:29] sc1")
        a.stamp(14)
        a.finish()

    def write(self, fn):
        gen1.LDS_SIZE = self.p.get("lds", LDS_SIZE)
        gen1.G.write(self, fn)


if __name__ == "__main__":
    out = sys.argv[1] if len(sys.argv) > 1 else "k7.s"
    kw = {}
    diag = False
    for x in sys.argv[2:]:
        if x == "diag":
            diag = True
        else:
            k, v = x.split("=")
            kw[k] = eval(v)
    G(diag=diag, **kw).write(out)
```

```python
import sys, struct, math
from hz import process
import gen1
from gen1 import hx, NAME, LOG2E, SPIN
from gen4 import G as G4

AP = 0x00000
HB = 0x28000
CP = 0x32000
HB2 = 0x76000
EP = 0x80000
LF = 0x81000
BK = 0x100000
STAMP = 0x8000000
L_Y = 0x0000; YS = 1408
L_Q = 0x0B00; L_ML = 0x0C00; L_FL = 0x0C40; L_Z = 0x0C80; L_QF = 0x0C90
L_RED = 0x1000; L_RED2 = 0x2000; L_T1 = 0x3000
L_W1 = 0x4000
LDS_SIZE = L_W1 + 5 * 8192
KR, VR, FRG, TR = 16, 80, 144, 208


class G(G4):
    def __init__(self, diag=False, **kw):
        super().__init__(diag=diag)
        self.p = dict(P=8, P2=9, Ptail=10, fast=True, prefetch=True, nt="nt", prio=3, qdelay=6, adelay=0, cdelay=0,
                      early=False, mlpT="w2", tpos=16, chkend=0, mpos=5, qslow=3, F=8, Pq=8, warm=0, hslow=100, pre="ldnt", qack=False, aack=True, ctrig=True, cslow=60, lfpos=2, ilv=True)
        self.p.update(kw)

    def pollt(self, name, loads, words, T, waitcnt="vmcnt(0)", pre=None, first_issued=False):
        a = self
        lp = a.lab(name); done = a.lab(name + "_ok"); mid = a.lab(name + "_w")
        a("s_mov_b32 s42, 0")
        if first_issued:
            a(f"s_branch {mid}")
        a(f"{lp}:")
        if pre:
            pre()
        loads()
        a(f"{mid}:")
        a("s_add_u32 s42, s42, 1")
        a(f"s_waitcnt {waitcnt}")
        w = list(words)
        for r in w:
            a(f"v_xor_b32 v{r}, v246, v{r}")
        a(f"v_or_b32 v{T}, v{w[0]}, v{w[1]}")
        for i in range(2, len(w), 2):
            a(f"v_or3_b32 v{T}, v{T}, v{w[i]}, v{w[i+1]}")
        a(f"v_cmp_ne_u32_sdwa vcc, v{T}, v13 src0_sel:BYTE_0 src1_sel:DWORD")
        a(f"s_cbranch_vccz {done}")
        a(f"s_cmp_lt_u32 s42, {SPIN}")
        a(f"s_cbranch_scc1 {lp}")
        a(f"{done}:")

    def stamp(self, idx):
        h = self.p.get("holdat")
        if h is not None and not self.diag:
            if (self.sect, idx) == tuple(h[:2]):
                self("s_memrealtime s[96:97]\ns_waitcnt lgkmcnt(0)\ns_mov_b32 s95, 1")
            return
        super().stamp(idx)

    def finish(self):
        h = self.p.get("holdat")
        if h is not None and not self.diag:
            self("s_branch L_hold")
            return
        super().finish()

    def rnd(self, d, srcop):
        self(f"v_cvt_pk_bf16_f32 v{d}, 0, {srcop}")

    def ln(self, X, P, T, unpack):
        a = self
        pr = lambda r: f"v[{r}:{r+1}]"
        a(f"v_pk_add_f32 {pr(T)}, {pr(X)}, {pr(X+2)}")
        a(f"v_pk_mul_f32 {pr(T+2)}, {pr(X)}, {pr(X)}")
        for i in (4, 6, 8):
            a(f"v_pk_add_f32 {pr(T)}, {pr(T)}, {pr(X+i)}")
            a(f"v_pk_fma_f32 {pr(T+2)}, {pr(X+i-2)}, {pr(X+i-2)}, {pr(T+2)}")
        a(f"v_pk_fma_f32 {pr(T+2)}, {pr(X+8)}, {pr(X+8)}, {pr(T+2)}")
        a(f"v_add_f32 v{T}, v{T}, v{T+1}")
        a(f"v_add_f32 v{T+2}, v{T+2}, v{T+3}")
        a(f"v_permlane32_swap_b32 v{T}, v{T+2}")
        a(f"v_add_f32 v{T}, v{T}, v{T+2}")
        for d in ("quad_perm:[1,0,3,2]", "quad_perm:[2,3,0,1]", "row_half_mirror", "row_mirror"):
            a(f"v_add_f32_dpp v{T}, v{T}, v{T} {d} row_mask:0xf bank_mask:0xf")
        a(f"v_add_f32_dpp v{T}, v{T}, v{T} row_bcast:15 row_mask:0xa bank_mask:0xf")
        a(f"v_mul_f32 v{T}, {hx(1.0/640.0)}, v{T}")
        a(f"v_readlane_b32 s41, v{T}, 63")
        a(f"v_readlane_b32 s40, v{T}, 31")
        a(f"v_mov_b32 v{T+2}, s41")
        a.rnd(T, "s40")
        a(f"v_fma_f32 v{T+2}, -s40, s40, v{T+2}")
        sub = lambda i: a(f"v_pk_add_f32 {pr(X+i)}, {pr(X+i)}, {pr(T)} op_sel_hi:[1,0] neg_lo:[0,1] neg_hi:[0,1]")
        sub(0)
        a(f"v_max_f32 v{T+2}, 0, v{T+2}")
        sub(2)
        a.rnd(T+2, f"v{T+2}")
        sub(4)
        a(f"v_add_f32 v{T+2}, {hx(1e-5)}, v{T+2}")
        sub(6)
        a.rnd(T+2, f"v{T+2}")
        sub(8)
        a(f"v_sqrt_f32 v{T+2}, v{T+2}")
        a.rnd(X, f"v{X}"); a.rnd(X+1, f"v{X+1}")
        a.rnd(T+2, f"v{T+2}")
        a.rnd(X+2, f"v{X+2}")
        a(f"v_rcp_f32 v{T+2}, v{T+2}")
        for i in range(3, 10):
            a.rnd(X+i, f"v{X+i}")
        for i in range(5):
            a(f"v_pk_mul_f32 {pr(X+2*i)}, {pr(X+2*i)}, {pr(T+2)} op_sel_hi:[1,0]")
        if unpack:
            for i in range(10):
                a.rnd(X+i, f"v{X+i}")
        else:
            for i in range(5):
                a(f"v_cvt_pk_bf16_f32 v{P+i}, v{X+2*i}, v{X+2*i+1}")

    def transp(self, R, B, pp):
        for T in range(8):
            self(f"v_perm_b32 v{B+4*T+pp}, v{R+4*(2*pp+1)+T//2}, v{R+4*(2*pp)+T//2}, s{52+(T&1)}")

    def nat8(self, B):
        for r in range(4):
            self(f"v_mfma_f32_16x16x32_bf16 v[{44+4*r}:{47+4*r}], v[64:67], v[{B+4*r}:{B+4*r+3}], 0")
        for r in range(4):
            self(f"v_mfma_f32_16x16x32_bf16 v[{44+4*r}:{47+4*r}], v[68:71], v[{B+16+4*r}:{B+16+4*r+3}], v[{44+4*r}:{47+4*r}]")

    def zeroA(self):
        self("s_mov_b32 s52, 0x05040100\ns_mov_b32 s53, 0x07060302")
        for r in range(64, 72):
            self(f"v_mov_b32 v{r}, 0")

    def tagw(self, regs, tagv):
        for r in regs:
            self(f"v_and_or_b32 v{r}, v{r}, s49, v{tagv}")

    def build(self):
        a = self
        p = self.p
        nt = p["nt"]
        P = p["P"]
        a(f"""
        s_cmp_ge_u32 s2, 256
        s_cbranch_scc1 L_exit
        s_load_dwordx16 s[4:19], s[0:1], 0
        s_load_dwordx8 s[20:27], s[0:1], 64
        s_load_dwordx2 s[28:29], s[0:1], 96
        v_lshrrev_b32 v1, 6, v0
        v_and_b32 v0, 63, v0
        v_readfirstlane_b32 s3, v1
        s_and_b32 s30, s2, 7
        s_lshr_b32 s31, s2, 3
        s_lshl_b32 s34, s30, 5
        s_add_u32 s34, s34, s31
        s_lshr_b32 s32, s34, 3
        s_and_b32 s33, s34, 7
        """)
        if self.diag:
            a("v_mov_b32 v255, 0")
            a("s_memrealtime s[100:101]")
        self.sect = "a"
        if p.get("holdat") is not None:
            a("s_mov_b32 s95, 0")
        a("""s_sub_u32 s3, s3, 1
        s_cbranch_scc0 L_att""")
        if p["prio"]:
            a(f"s_setprio {p['prio']}")
        a("s_mov_b32 s3, 4")
        if p.get("hold"):
            a("s_memrealtime s[96:97]")
        if p["prefetch"]:
            a(f"""s_getpc_b64 s[36:37]
            L_pc:
            s_sub_u32 s36, s36, L_pc-{NAME}_kernel
            s_subb_u32 s37, s37, 0
            v_lshlrev_b32 v1, 7, v0
            global_load_dword v254, v1, s[36:37]
            v_add_u32 v1, 8192, v1
            v_min_u32 v1, L_codeend-{NAME}_kernel-4, v1
            global_load_dword v253, v1, s[36:37]""")
        WQ = 80
        a(f"""
        v_lshlrev_b32 v1, 3, v0
        v_lshlrev_b32 v2, 2, v0
        v_mov_b32 v36, 0
        ds_write_b32 v2, v36 offset:{L_ML}
        s_mul_i32 s35, s33, {80*8192}
        s_lshl_b32 s38, s32, 8
        s_add_u32 s35, s35, s38
        v_lshrrev_b32 v3, 4, v0
        v_mul_u32_u24 v3, {20*8192}, v3
        v_and_b32 v12, 15, v0
        v_lshl_add_u32 v3, v12, 4, v3
        v_add_u32 v3, s35, v3
        v_mov_b32 v12, {EP}
        v_mov_b32 v16, -1
        v_mov_b32 v17, -1
        v_mov_b32 v18, -1
        v_mov_b32 v19, -1
        s_lshl_b32 s35, s34, 11
        v_lshl_add_u32 v20, v0, 4, s35
        s_lshl_b32 s45, s34, 12
        s_add_u32 s45, s45, {BK}
        v_lshl_add_u32 v21, v0, 4, s45
        s_movk_i32 s38, 0x2000
        s_waitcnt lgkmcnt(0)
        """)
        if self.diag:
            a("v_writelane_b32 v255, s100, 0")
        a(f"""global_load_dwordx2 v[24:25], v1, s[4:5]
        global_load_dwordx2 v[26:27], v1, s[4:5] offset:512
        global_load_dword v28, v2, s[4:5] offset:1024
        global_load_dwordx2 v[30:31], v1, s[4:5] offset:1280
        global_load_dwordx2 v[32:33], v1, s[4:5] offset:1792
        global_load_dword v34, v2, s[4:5] offset:2304
        global_load_dword v15, v12, s[28:29] sc1""")
        NB = 0
        if p["pre"] in ("ldnt", "ld"):
            fl = "nt" if p["pre"] == "ldnt" else ""
            for u in range(3):
                a(f"global_load_dwordx4 v[76:79], v21, s[28:29] offset:{1024*u} {fl}")
            NB = 3
        elif p["pre"] == "st":
            for u in range(3):
                a(f"global_store_dwordx4 v21, v[16:19], s[28:29] offset:{1024*u}")
            NB = 3
        for t in range(20):
            if t:
                a("v_add_u32 v3, s38, v3")
            a(f"global_load_dwordx4 v[{WQ+4*t}:{WQ+4*t+3}], v{1 if p.get('nowq') else 3}, s[10:11] {nt}")
        if p["pre"] == "stlate":
            a(f"""global_store_dwordx4 v21, v[16:19], s[28:29]
            global_store_dwordx4 v21, v[16:19], s[28:29] offset:1024
            global_store_dwordx4 v21, v[16:19], s[28:29] offset:2048""")
        if p["warm"]:
            a("""global_load_dwordx4 v[68:71], v20, s[28:29]
            global_load_dwordx4 v[72:75], v20, s[28:29] offset:1024""")
        NY = (3 if p["pre"] == "stlate" else 0) + (2 if p["warm"] else 0)
        a("""s_barrier
        s_branch L_ctrl""")
        a(f"""L_att:
        s_lshr_b32 s35, s33, 2
        s_lshl_b32 s35, s35, 5
        s_add_u32 s35, s35, s32
        s_lshl_b32 s35, s35, 4
        s_and_b32 s36, s33, 3
        s_add_u32 s35, s35, s36
        s_add_u32 s35, s35, 12
        s_lshl_b32 s35, s35, {3 if p["ilv"] else 2}
        s_add_u32 s35, s35, s3
        s_lshl_b32 s35, s35, {13 if p["ilv"] else 14}
        s_add_u32 s35, s35, 4096
        v_bfe_u32 v1, v0, 2, 2
        v_lshlrev_b32 v1, 8, v1
        v_lshrrev_b32 v2, 4, v0
        v_lshl_add_u32 v1, v2, 6, v1
        v_and_b32 v2, 3, v0
        v_lshl_add_u32 v1, v2, 4, v1
        v_add_u32 v1, s35, v1
        v_lshl_add_u32 v14, v0, 4, s35
        s_waitcnt lgkmcnt(0)
        """)
        if self.diag:
            a("v_writelane_b32 v255, s100, 0")
        a("s_barrier")
        if self.diag:
            a("s_memrealtime s[98:99]")
        K = [("K", t) for t in range(16)]; V = [("V", t) for t in range(16)]; T = [("T", t) for t in range(8)]
        S = [("S", k) for k in p.get("Sset", range(5))]
        if p["early"]:
            first = K[:P-1] + V[:1]
            rest = T[:1] + S + K[P-1:]
            Vr, Tr = V[1:], T[1:]
        else:
            first = K[:p["F"]]
            rest = S + K[p["F"]:]
            Vr, Tr = V, T
        nbefore = [v for v in Vr if v[1] < p["tpos"]]
        nafter = [v for v in Vr if v[1] >= p["tpos"]]
        tail = []
        while nafter or Tr:
            if Tr: tail.append(Tr.pop(0))
            if nafter: tail.append(nafter.pop(0))
        order = first + rest + nbefore + tail
        order.insert(len(order) - p["mpos"], ("S", 5))
        NL = len(order)
        pos = {it: i for i, it in enumerate(order)}
        st = {"issued": 0, "done": -1}

        def emit(it):
            k, t = it
            if k == "K":
                if t == 8:
                    a(f"v_add_u32 v1, {32768 if p['ilv'] else 8192}, v1")
                a(f"global_load_dwordx4 v[{KR+4*t}:{KR+4*t+3}], v1, s[6:7] offset:{(t%8)*1024-4096} {nt}")
            elif k == "V":
                if t == 8:
                    a(f"v_add_u32 v14, {32768 if p['ilv'] else 8192}, v14")
                a(f"global_load_dwordx4 v[{VR+4*t}:{VR+4*t+3}], v14, s[8:9] offset:{(t%8)*1024-4096} {nt}")
            elif k == "T":
                a(f"global_load_dwordx4 v[{TR+4*t}:{TR+4*t+3}], v15, s[44:45] {nt}")
                if t < 7:
                    a("v_add_u32 v15, s46, v15")
            else:
                other = "s[20:21]" if p["mlpT"] == "w1" else "s[16:17]"
                a(["global_load_ushort v254, v250, s[4:5]",
                   "global_load_ushort v251, v251, s[22:23]",
                   "global_load_ushort v2, v250, s[24:25]",
                   "global_load_ushort v252, v252, s[18:19]",
                   f"global_load_dword v253, v253, {other}",
                   "global_load_dwordx4 v[40:43], v247, s[28:29] sc1"][t])

        def issue(pace=0):
            i = st["issued"]
            if pace and order[i][0] != "S":
                cnt = 0; j = i
                while j > 0 and cnt < pace:
                    j -= 1
                    if order[j][0] != "S":
                        cnt += 1
                if cnt == pace and j > st["done"]:
                    a(f"s_waitcnt vmcnt({i-1-j})")
                    st["done"] = j
            emit(order[i])
            st["issued"] += 1

        def wait_for(it):
            i = pos[it]
            assert i < st["issued"]
            if st["done"] < i:
                a(f"s_waitcnt vmcnt({st['issued']-1-i})")
                st["done"] = i
        for _ in first:
            issue()
        a(self.ROLES)
        setd = a.lab("setd")
        if p["mlpT"] == "none":
            a(f"s_mul_i32 s36, s39, {32*1280}\nv_mov_b32 v15, s36")
            a("s_mov_b32 s46, 0\ns_mov_b64 s[44:45], s[20:21]")
            a(f"s_mul_i32 s36, s3, {128*3456}\nv_mov_b32 v253, s36")
        elif p["mlpT"] == "w2":
            a.w2addr(15)
            a("s_movk_i32 s46, 1280\ns_mov_b64 s[44:45], s[20:21]")
            a(f"s_mul_i32 s36, s3, {128*3456}\nv_mov_b32 v253, s36")
        else:
            a.w1addr(15)
            a(f"s_mov_b32 s46, {16*3456}\ns_mov_b64 s[44:45], s[16:17]")
            a(f"s_mul_i32 s36, s39, {32*1280}\nv_mov_b32 v253, s36")
        a(f"""
        s_cmp_eq_u32 s31, 1
        s_cbranch_scc1 {setd}
        s_mov_b64 s[44:45], s[12:13]
        s_mov_b32 s46, 0
        v_mov_b32 v15, 0
        s_cmp_eq_u32 s31, 2
        s_cbranch_scc1 {setd}
        s_movk_i32 s46, 1280
        s_lshl_b32 s36, s32, 2
        s_add_u32 s36, s36, s3
        s_mul_i32 s36, s36, {32*1280}
        s_lshl_b32 s37, s33, 8
        s_add_u32 s36, s36, s37""")
        a.rowaddr(15)
        a(f"""{setd}:
        s_and_b32 s38, s32, 3
        s_mul_i32 s38, s38, 5
        s_add_u32 s38, s38, s33
        s_lshl_b32 s38, s38, 2
        s_add_u32 s38, s38, s3
        s_min_u32 s38, s38, 79
        s_lshl_b32 s35, s38, 4
        v_and_b32 v2, 3, v0
        v_lshrrev_b32 v3, 4, v0
        v_lshl_add_u32 v2, v2, 2, v3
        v_add_lshl_u32 v250, v2, s35, 1
        s_cmp_ge_u32 s38, 40
        s_cselect_b32 s35, 1280, 0
        v_subrev_u32 v251, s35, v250
        v_and_b32 v2, 7, v0
        v_lshl_add_u32 v2, v3, 3, v2
        s_lshl_b32 s35, s39, 5
        v_add_lshl_u32 v252, v2, s35, 1""")
        a.selectors()
        a("v_and_b32 v2, 8, v0\nv_cmp_eq_u32 vcc, 8, v2")
        for r in range(4):
            a(f"v_cndmask_b32 v{240+r}, v{4+r}, v{8+r}, vcc")
        a(f"""v_lshrrev_b32 v2, 4, v0
        v_and_b32 v3, 3, v0
        v_lshl_add_u32 v2, v2, 2, v3
        v_lshlrev_b32 v2, 4, v2
        v_add_u32 v2, {L_Q}, v2
        v_bfe_u32 v3, v0, 2, 2
        v_mov_b32 v12, {L_Z}""")
        for qd in range(4):
            a(f"v_cmp_eq_u32 vcc, {qd}, v3")
            a(f"v_cndmask_b32 v{200+qd}, v12, v2, vcc")
        a.dlayout(248, 3, bstride=512)
        a(f"""s_lshl_b32 s36, s3, 10
        v_add_u32 v248, s36, v248
        s_lshl_b32 s36, s32, 15
        s_add_u32 s36, s36, {BK + 2560}
        v_and_b32 v2, 8, v0
        v_lshlrev_b32 v2, 11, v2
        v_and_b32 v3, 3, v0
        v_lshl_add_u32 v2, v3, 12, v2
        v_add_u32 v247, s36, v2
        s_lshl_b32 s35, s3, 7
        s_sub_u32 s35, s35, 512
        v_lshrrev_b32 v3, 4, v0
        v_lshl_add_u32 v2, v3, 5, s35
        v_and_b32 v3, 4, v0
        v_lshl_add_u32 v2, v3, 2, v2
        v_add_u32 v249, v247, v2
        s_mov_b32 s40, {hx(128 ** -0.5)}
        s_mov_b32 s48, {hx(LOG2E)}
        s_mov_b32 s49, 0xffffff00
        s_lshl_b32 s36, s3, 3
        v_mov_b32 v12, s36
        v_mov_b32 v13, 0
        s_mov_b32 s47, 0
        """)
        if p["early"]:
            issue()
        marks = {0: 23, 7: 24}
        while st["done"] < pos[("K", 15)]:
            issue(p["Pq"] if order[st["issued"]][0] == "K" else P)
            for kk in list(marks):
                if st["done"] >= pos[("K", kk)]:
                    a.stamp(marks.pop(kk))
        a.stamp(1)
        if self.diag:
            a("v_writelane_b32 v255, s98, 16")
        lastchk = min(NL - 1, pos[("V", 15)] + p["chkend"])
        assert pos[("S", 5)] > lastchk
        firstchk = True
        while True:
            sk = a.lab("chk")
            if not firstchk:
                a(f"s_cmp_lg_u32 s47, 0\ns_cbranch_scc1 {sk}")
            a(f"""ds_read_b64 v[2:3], v13 offset:{L_QF}
            s_waitcnt lgkmcnt(0)
            v_readfirstlane_b32 s47, v3
            s_cmp_eq_u32 s47, 0
            s_cbranch_scc1 {sk}
            s_call_b64 s[50:51], L_compute
            {sk}:""")
            firstchk = False
            issue(p["P2"])
            if st["issued"] > lastchk:
                break
        lp = a.lab("qw"); sk = a.lab("qw_done"); go = a.lab("qw_go")
        a(f"""s_cmp_lg_u32 s47, 0
        s_cbranch_scc1 {sk}
        s_mov_b32 s42, 0
        {lp}:
        ds_read_b64 v[2:3], v13 offset:{L_QF}
        s_add_u32 s42, s42, 1
        s_waitcnt lgkmcnt(0)
        v_readfirstlane_b32 s47, v3
        s_cmp_lg_u32 s47, 0
        s_cbranch_scc1 {go}
        s_cmp_lt_u32 s42, {SPIN*20}
        s_cbranch_scc1 {lp}
        {go}:
        s_call_b64 s[50:51], L_compute
        {sk}:""")
        a.stamp(19)
        Pt = p["Ptail"]

        def topup():
            while st["issued"] < NL:
                infl = sum(1 for j in range(st["done"] + 1, st["issued"]) if order[j][0] != "S")
                if infl >= Pt and order[st["issued"]][0] != "S":
                    break
                issue()
        topup()
        for t in range(16):
            a(f"v_mov_b32_dpp v{48+t%2}, v{20+t//4} row_newbcast:{4*(t%4)} row_mask:0xf bank_mask:0xf")
            for r in range(4):
                a(f"v_perm_b32 v{FRG+4*(t%4)+r}, v{48+t%2}, v{48+t%2}, v{240+r}")
            wait_for(("V", t))
            topup()
            c = "0" if t == 0 else "v[44:47]"
            a(f"v_mfma_f32_16x16x32_bf16 v[44:47], v[{FRG+4*(t%4)}:{FRG+4*(t%4)+3}], v[{VR+4*t}:{VR+4*t+3}], {c}")
        while st["issued"] < NL:
            issue()
        a(f"""ds_write_b128 v248, v[44:47] offset:{L_RED}
        s_waitcnt lgkmcnt(0)""")
        a.stamp(20)
        a("s_barrier")
        a.stamp(5)
        a("""s_cmp_lg_u32 s31, 0
        s_cbranch_scc1 L_mlp""")
        a(f"""global_load_dwordx4 v[28:31], v249, s[28:29] sc1
        s_lshl_b32 s35, s38, 6
        v_lshrrev_b32 v2, 2, v0
        v_mul_u32_u24 v2, 5120, v2
        v_and_b32 v3, 3, v0
        v_lshl_add_u32 v2, v3, 4, v2
        v_add_u32 v22, s35, v2
        s_mul_i32 s35, s30, 5120
        s_add_u32 s35, s35, {HB}
        v_lshl_add_u32 v25, v250, 1, s35
        v_add_u32 v24, {AP + 16*5120}, v22
        v_add_u32 v23, {HB2 - HB}, v25
        v_lshlrev_b32 v20, 16, v254
        v_lshlrev_b32 v21, 16, v251""")
        st["issued"] += 1
        mlp_ = a.lab("ml"); mlok = a.lab("ml_ok"); og = a.lab("og"); ogok = a.lab("og_ok")
        a.zeroA()
        BT = 80
        tdone = 0
        while tdone < 4 and pos[("T", 2*tdone+1)] < pos[("S", 5)]:
            wait_for(("T", 2*tdone+1)); a.transp(TR, BT, tdone); tdone += 1
        wait_for(("S", 5))
        a(f"""s_mov_b32 s42, 0
        {mlp_}:
        v_xor_b32 v26, s43, v41
        v_xor_b32 v27, s43, v43
        v_or_b32 v26, v26, v27
        v_lshlrev_b32 v26, 3, v26
        v_cmp_ne_u32 vcc, 0, v26
        s_cbranch_vccz {mlok}
        global_load_dwordx4 v[40:43], v247, s[28:29] sc1
        s_add_u32 s42, s42, 1
        s_cmp_lt_u32 s42, {SPIN}
        s_waitcnt vmcnt(0)
        s_cbranch_scc1 {mlp_}
        {mlok}:""")
        if self.diag:
            a("v_writelane_b32 v255, s42, 28")
        a.stamp(21)
        a(f"""v_max_f32_dpp v41, v40, v40 quad_perm:[1,0,3,2] row_mask:0xf bank_mask:0xf
        v_max_f32_dpp v41, v41, v41 quad_perm:[2,3,0,1] row_mask:0xf bank_mask:0xf
        v_sub_f32 v41, v40, v41
        v_mul_f32 v41, s48, v41
        v_exp_f32 v41, v41
        v_mul_f32 v43, v41, v42
        v_add_f32_dpp v43, v43, v43 quad_perm:[1,0,3,2] row_mask:0xf bank_mask:0xf
        v_add_f32_dpp v43, v43, v43 quad_perm:[2,3,0,1] row_mask:0xf bank_mask:0xf
        v_rcp_f32 v43, v43
        v_mul_f32 v42, v41, v43""")
        while tdone < 4:
            wait_for(("T", 2*tdone+1)); a.transp(TR, BT, tdone); tdone += 1
        a.pollt("og", lambda: a("global_load_dwordx4 v[28:31], v249, s[28:29] sc1"), [28, 29, 30, 31], 26, first_issued=True)
        if self.diag:
            a("v_writelane_b32 v255, s42, 29")
        a.stamp(6)
        a("""v_pk_mul_f32 v[28:29], v[28:29], v[42:43] op_sel_hi:[1,0]
        v_pk_mul_f32 v[30:31], v[30:31], v[42:43] op_sel_hi:[1,0]""")
        for d in ("quad_perm:[1,0,3,2]", "quad_perm:[2,3,0,1]"):
            for r in range(4):
                a(f"v_add_f32_dpp v{28+r}, v{28+r}, v{28+r} {d} row_mask:0xf bank_mask:0xf")
        a("""v_cvt_pk_bf16_f32 v32, v28, v29
        v_cvt_pk_bf16_f32 v33, v30, v31""")
        a("""v_mov_b32_dpp v64, v32 quad_perm:[0,1,2,3] row_mask:0xf bank_mask:0x5
        v_mov_b32_dpp v66, v32 row_half_mirror row_mask:0xf bank_mask:0x5
        v_mov_b32_dpp v65, v33 quad_perm:[0,1,2,3] row_mask:0xf bank_mask:0x5
        v_mov_b32_dpp v67, v33 row_half_mirror row_mask:0xf bank_mask:0x5
        v_mov_b32_dpp v68, v32 row_half_mirror row_mask:0xf bank_mask:0xa
        v_mov_b32_dpp v69, v33 row_half_mirror row_mask:0xf bank_mask:0xa
        v_mov_b32_dpp v70, v32 quad_perm:[0,1,2,3] row_mask:0xf bank_mask:0xa
        v_mov_b32_dpp v71, v33 quad_perm:[0,1,2,3] row_mask:0xf bank_mask:0xa""")
        a.nat8(BT)
        a(f"""v_mov_b32 v45, v48
        v_mov_b32 v46, v52
        v_mov_b32 v47, v56
        ds_write_b128 v248, v[44:47] offset:{L_RED2}
        s_waitcnt lgkmcnt(0)
        s_barrier""")
        if p["aack"]:
            a("s_barrier")
        a.stamp(7)
        if p["adelay"]:
            a(f"s_sleep {p['adelay']}")

        def ldA():
            a("global_load_dwordx4 v[28:31], v22, s[28:29] sc1")
            a("global_load_dwordx4 v[32:35], v24, s[28:29] sc1")
        assert AP == 0
        a.pollt("ha", ldA, list(range(28, 36)), 26)
        a.stamp(8)
        a("v_pk_add_f32 v[28:29], v[28:29], v[32:33]\nv_pk_add_f32 v[30:31], v[30:31], v[34:35]")
        a.red16(28)
        slow = a.lab("hb_slow"); hbd = a.lab("hb_done")
        a(f"""v_cvt_pk_bf16_f32 v28, 0, v28
        s_mov_b32 exec_lo, 0x000f000f
        v_add_f32 v28, v28, v20
        s_mov_b32 exec_hi, 0x000f000f
        v_cvt_pk_bf16_f32 v19, 0, v28
        v_or_b32 v26, v19, v246
        global_store_dword v25, v26, s[28:29]
        global_store_dword v23, v26, s[28:29] sc1
        s_mov_b64 exec, -1""")
        a.stamp(9)
        fin = a.lab("fin"); nob = a.lab("nobump")
        a(f"""s_bfe_u32 s35, s38, 0x30001
        s_cmp_eq_u32 s35, s30
        s_cbranch_scc1 {fin}""")
        a.finish()
        a(f"""{fin}:
        s_cmp_lg_u32 s38, 0
        s_cbranch_scc1 {nob}
        v_mov_b32 v2, {EP}
        v_mov_b32 v3, s43
        global_store_dword v2, v3, s[28:29] sc1
        {nob}:""")
        for u in range(4):
            a(f"v_add_u32 v{48+u}, {CP + 16*5120*u}, v22")
        if p["cdelay"]:
            a(f"s_sleep {p['cdelay']}")
        if p["ctrig"]:
            ct = a.lab("ct"); ctd = a.lab("ct_ok")
            a(f"""s_cmp_lt_u32 s30, 3
            s_cselect_b32 s35, 39, 29
            v_min_u32 v2, s35, v0
            s_lshl_b32 s35, s30, 8
            s_add_u32 s35, s35, {LF}
            v_lshl_add_u32 v2, v2, 2, s35
            s_min_u32 s42, s47, {p['cslow']}
            {ct}:
            s_sub_u32 s42, s42, 1
            s_cmp_eq_u32 s42, 0
            s_cbranch_scc1 {ctd}
            global_load_dword v3, v2, s[28:29] sc1
            s_waitcnt vmcnt(0)
            v_cmp_ne_u32 vcc, s43, v3
            s_cbranch_vccnz {ct}
            {ctd}:""")
            a.stamp(22)

        def ldC():
            for u in range(3):
                a(f"global_load_dwordx4 v[{28+4*u}:{31+4*u}], v{48+u}, s[28:29] sc1")
            a("v_mov_b32 v40, v246\nv_mov_b32 v41, v246\nv_mov_b32 v42, v246\nv_mov_b32 v43, v246")
            a("s_mov_b64 exec, 0xffffff")
            a("global_load_dwordx4 v[40:43], v51, s[28:29] sc1")
            a("s_mov_b64 exec, -1")
        a.pollt("hc", ldC, list(range(28, 44)), 26)
        a.stamp(10)
        a("""v_pk_add_f32 v[28:29], v[28:29], v[32:33]
        v_pk_add_f32 v[30:31], v[30:31], v[34:35]
        v_pk_add_f32 v[36:37], v[36:37], v[40:41]
        v_pk_add_f32 v[38:39], v[38:39], v[42:43]
        v_pk_add_f32 v[28:29], v[28:29], v[36:37]
        v_pk_add_f32 v[30:31], v[30:31], v[38:39]""")
        a.red16(28)
        a("""v_cvt_pk_bf16_f32 v28, 0, v28
        s_mov_b32 exec_lo, 0x000f000f
        v_add_f32 v28, v28, v21
        s_mov_b32 exec_hi, 0x000f000f
        v_cvt_pk_bf16_f32 v28, 0, v28
        v_add_f32 v28, v28, v19
        v_cvt_pk_bf16_f32 v28, v28, v28
        global_store_short v250, v28, s[24:25]
        s_mov_b64 exec, -1""")
        a.finish()

        QF = 144; DR = 160; SR = 16
        a("L_compute:")
        a("v_readfirstlane_b32 s43, v2\nv_and_b32 v246, 0xff, v2")
        a.stamp(2)
        for qd in range(4):
            a(f"ds_read_b128 v[{QF+4*qd}:{QF+4*qd+3}], v{200+qd}")
        for qd in range(4):
            a(f"s_waitcnt lgkmcnt({3-qd})")
            for u in range(4):
                t = 4 * u + qd
                c = "0" if qd == 0 else f"v[{DR+4*u}:{DR+4*u+3}]"
                a(f"v_mfma_f32_16x16x32_bf16 v[{DR+4*u}:{DR+4*u+3}], v[{KR+4*t}:{KR+4*t+3}], v[{QF+4*qd}:{QF+4*qd+3}], {c}")
        for u in range(4):
            a(f"v_mov_b32_dpp v{SR+u}, v{DR+4*u} quad_perm:[0,0,0,0] row_mask:0xf bank_mask:0xf")
        for r in (1, 2, 3):
            for u in range(4):
                a(f"v_add_f32_dpp v{SR+u}, v{DR+4*u+r}, v{SR+u} quad_perm:[{r},{r},{r},{r}] row_mask:0xf bank_mask:0xf")
        for rnd in range(2):
            for r in range(16, 20):
                a.rnd(r, f"v{r}")
            if rnd == 0:
                a("""v_pk_mul_f32 v[16:17], v[16:17], s[40:41] op_sel_hi:[1,0]
                v_pk_mul_f32 v[18:19], v[18:19], s[40:41] op_sel_hi:[1,0]""")
        a(f"""v_max3_f32 v28, v16, v17, v18
        v_max_f32 v28, v28, v19
        v_max_f32_dpp v28, v28, v28 row_ror:4 row_mask:0xf bank_mask:0xf
        v_max_f32_dpp v28, v28, v28 row_ror:8 row_mask:0xf bank_mask:0xf
        v_mov_b32 v29, v28
        v_permlane32_swap_b32 v28, v29
        v_max_f32 v28, v28, v29
        v_mov_b32 v29, v28
        v_permlane16_swap_b32 v28, v29
        v_max_f32 v28, v28, v29
        v_pk_add_f32 v[16:17], v[16:17], v[28:29] op_sel_hi:[1,0] neg_lo:[0,1] neg_hi:[0,1]
        v_pk_add_f32 v[18:19], v[18:19], v[28:29] op_sel_hi:[1,0] neg_lo:[0,1] neg_hi:[0,1]
        v_pk_mul_f32 v[16:17], v[16:17], s[48:49] op_sel_hi:[1,0]
        v_pk_mul_f32 v[18:19], v[18:19], s[48:49] op_sel_hi:[1,0]
        v_exp_f32 v16, v16
        v_exp_f32 v17, v17
        v_exp_f32 v18, v18
        v_exp_f32 v19, v19
        v_pk_add_f32 v[30:31], v[16:17], v[18:19]
        v_add_f32 v30, v30, v31
        v_cvt_pk_bf16_f32 v24, 0, v16
        v_cvt_pk_bf16_f32 v25, 0, v17
        v_add_f32_dpp v30, v30, v30 row_ror:4 row_mask:0xf bank_mask:0xf
        v_cvt_pk_bf16_f32 v26, 0, v18
        v_cvt_pk_bf16_f32 v27, 0, v19
        v_add_f32_dpp v30, v30, v30 row_ror:8 row_mask:0xf bank_mask:0xf
        v_mov_b32 v31, v30
        v_pk_add_f32 v[16:17], v[16:17], v[24:25] neg_lo:[0,1] neg_hi:[0,1]
        v_pk_add_f32 v[18:19], v[18:19], v[26:27] neg_lo:[0,1] neg_hi:[0,1]
        v_permlane32_swap_b32 v30, v31
        v_add_f32 v30, v30, v31
        v_mov_b32 v31, v30
        v_cvt_pk_bf16_f32 v20, v24, v16
        v_cvt_pk_bf16_f32 v21, v25, v17
        v_permlane16_swap_b32 v30, v31
        v_add_f32 v29, v30, v31
        v_cvt_pk_bf16_f32 v22, v26, v18
        v_cvt_pk_bf16_f32 v23, v27, v19
        ds_write_b64 v12, v[28:29] offset:{L_ML}""")
        a.stamp(4)
        a("s_nop 1\ns_setpc_b64 s[50:51]")

        self.sect = "c"
        a("L_ctrl:")
        a.stamp(1)
        a.selectors()
        a(f"""s_getreg_b32 s44, hwreg(HW_REG_XCC_ID, 0, 3)
        s_waitcnt vmcnt({21+NY+NB})""")
        a.stamp(2)
        for b_, (src, X) in enumerate(((24, 36), (30, 48))):
            for i in range(5):
                a(f"v_lshlrev_b32 v{X+2*i}, 16, v{src+i}")
                a(f"v_and_b32 v{X+2*i+1}, 0xffff0000, v{src+i}")
            a.ln(X, src, 60, False)
            a(f"""v_lshlrev_b32 v2, 2, v0
            ds_write_b64 v1, v[{src}:{src+1}] offset:{L_Y + b_*YS}
            ds_write_b64 v1, v[{src+2}:{src+3}] offset:{L_Y + b_*YS + 512}
            ds_write_b32 v2, v{src+4} offset:{L_Y + b_*YS + 1024}""")
        a(f"""s_mul_i32 s35, s33, 160
        v_lshrrev_b32 v2, 4, v0
        v_mul_u32_u24 v2, 40, v2
        v_bfe_u32 v3, v0, 3, 1
        v_mul_u32_u24 v3, {YS}, v3
        v_add3_u32 v2, v2, v3, s35
        s_waitcnt lgkmcnt(0)""")
        for i in range(5):
            a(f"ds_read_b64 v[{36+2*i}:{37+2*i}], v2 offset:{L_Y + 8*i}")
        a(f"""s_waitcnt vmcnt({20+NY+NB})
        v_readfirstlane_b32 s43, v15
        s_add_u32 s43, s43, 1
        s_and_b32 s35, s43, 0xff
        s_cmp_eq_u32 s35, 0xff
        s_addc_u32 s43, s43, 0
        s_and_b32 s43, s43, 0x1fffffff
        s_lshl_b32 s44, s44, 29
        s_or_b32 s44, s44, s43
        s_mov_b32 s43, s44
        s_and_b32 s35, s43, 0xff
        v_mov_b32 v246, s35
        s_mov_b32 s49, 0xffffff00
        v_mov_b32 v13, 0
        v_mov_b32 v53, s44
        v_mov_b32 v55, s44
        v_mov_b32 v57, s44
        v_mov_b32 v59, s44
        s_waitcnt lgkmcnt(0)""")
        a.stamp(3)
        FR = 160
        a.frag(FR, 36, 0)
        for t in range(20):
            if t + 1 < 20:
                a.frag(FR + 4 * (t + 1), 36 + (t + 1) // 2, (t + 1) & 1)
            a(f"s_waitcnt vmcnt({19+NY-t})")
            c = "0" if t == 0 else "v[48:51]"
            a(f"v_mfma_f32_16x16x32_bf16 v[48:51], v[{FR+4*t}:{FR+4*t+3}], v[{WQ+4*t}:{WQ+4*t+3}], {c}")
        qfl = "" if p["fast"] else "sc1"
        a(f"""v_mov_b32 v52, v48
        v_mov_b32 v54, v49
        v_mov_b32 v56, v50
        v_mov_b32 v58, v51
        global_store_dwordx4 v21, v[52:55], s[28:29] {qfl}
        global_store_dwordx4 v21, v[56:59], s[28:29] offset:1024 {qfl}""")
        a.stamp(4)
        a(self.ROLES)
        qg = a.lab("qg"); qgd = a.lab("qg_ok"); qns = a.lab("qg_nosc1"); qf = a.lab("qg_fast")
        a(f"""s_mul_i32 s35, s32, 5120
        s_lshl_b32 s38, s33, 9
        s_add_u32 s35, s35, s38
        v_lshrrev_b32 v3, 5, v0
        v_mul_u32_u24 v2, 2560, v3
        v_and_b32 v22, 31, v0
        v_lshl_add_u32 v2, v22, 4, v2
        v_add_u32 v23, s35, v2
        s_lshl_b32 s35, s32, 15
        s_lshr_b32 s38, s33, 2
        s_lshl_b32 s38, s38, 9
        s_add_u32 s35, s35, s38
        s_add_u32 s35, s35, {BK + 4096}
        v_lshlrev_b32 v2, 10, v3
        v_lshl_add_u32 v2, v22, 4, v2
        v_add_u32 v60, s35, v2
        v_add_u32 v61, 8192, v60
        v_add_u32 v62, 8192, v61
        v_add_u32 v63, 8192, v62
        v_and_b32 v2, 15, v0
        v_lshlrev_b32 v2, 4, v2
        v_and_b32 v22, 16, v0
        v_lshrrev_b32 v22, 1, v22
        v_add_u32 v2, v2, v22
        v_lshl_add_u32 v22, v3, 2, v2
        s_mov_b32 s42, 0""")
        if p["qack"]:
            a("s_waitcnt vmcnt(0)")
        elif p["qdelay"]:
            a(f"s_sleep {p['qdelay']}")
        a.stamp(5)
        a(f"{qg}:")
        for u in range(8):
            a(f"global_load_dwordx4 v[{80+4*u}:{83+4*u}], v{60+u//2}, s[28:29] offset:{4096*(u%2)-4096} sc1")
        a("s_add_u32 s42, s42, 1\ns_waitcnt vmcnt(0)")
        a("v_xor_b32 v36, s44, v81\nv_xor_b32 v37, s44, v83")
        for u in range(1, 8):
            a(f"v_bitop3_b32 v36, v36, v{81+4*u}, s44 bitop3:0xf6")
            a(f"v_bitop3_b32 v37, v37, v{83+4*u}, s44 bitop3:0xf6")
        a(f"""v_or_b32 v36, v36, v37
        v_lshlrev_b32 v37, 3, v36
        v_cmp_ne_u32 vcc, 0, v37
        s_cbranch_vccz {qgd}
        s_cmp_lg_u32 s42, {p['qslow']}
        s_cbranch_scc1 {qns}
        global_store_dwordx4 v21, v[52:55], s[28:29] sc1
        global_store_dwordx4 v21, v[56:59], s[28:29] offset:1024 sc1
        {qns}:
        s_cmp_lt_u32 s42, {SPIN}
        s_cbranch_scc1 {qg}
        {qgd}:""")
        if self.diag:
            a("v_writelane_b32 v255, s42, 30")
        a("""v_add_f32 v80, v80, v84
        v_add_f32 v82, v82, v86
        v_add_f32 v88, v88, v92
        v_add_f32 v90, v90, v94
        v_add_f32 v96, v96, v100
        v_add_f32 v98, v98, v102
        v_add_f32 v104, v104, v108
        v_add_f32 v106, v106, v110
        v_add_f32 v80, v80, v88
        v_add_f32 v82, v82, v90
        v_add_f32 v96, v96, v104
        v_add_f32 v98, v98, v106
        v_add_f32 v80, v80, v96
        v_add_f32 v82, v82, v98
        v_cvt_pk_bf16_f32 v80, v80, v82""")
        a(f"""ds_write_b32 v22, v80 offset:{L_Q}
        v_cmp_ne_u32 vcc, 0, v36
        v_mov_b32 v2, 0
        v_mov_b32 v14, s44
        s_cmp_lg_u64 vcc, 0
        s_cselect_b32 s46, 1, {0 if p['fast'] else 1}
        s_cselect_b32 s35, 1, {p['hslow'] + 1 if p['fast'] else 1}
        v_mov_b32 v15, s35
        s_waitcnt lgkmcnt(0)
        ds_write_b64 v2, v[14:15] offset:{L_QF}
        s_cbranch_scc0 {qf}
        global_store_dwordx4 v21, v[52:55], s[28:29] sc1
        global_store_dwordx4 v21, v[56:59], s[28:29] offset:1024 sc1
        {qf}:""")
        a.stamp(6)
        mw = a.lab("mw"); mwd = a.lab("mw_ok"); msl = a.lab("ml_slow"); msd = a.lab("ml_done")
        a(f"""s_mov_b32 s40, {hx(LOG2E)}
        v_mov_b32 v20, s45
        v_lshl_add_u32 v21, v0, 3, s45
        s_mov_b32 s42, 0
        {mw}:
        ds_read_b128 v[36:39], v2 offset:{L_ML}
        ds_read_b128 v[40:43], v2 offset:{L_ML+16}
        s_add_u32 s42, s42, 1
        s_waitcnt lgkmcnt(0)
        v_min3_u32 v44, v37, v39, v41
        v_min_u32 v44, v44, v43
        v_cmp_eq_u32 vcc, 0, v44
        s_cbranch_vccz {mwd}
        s_sleep 1
        s_cmp_lt_u32 s42, {SPIN*20}
        s_cbranch_scc1 {mw}
        {mwd}:
        v_max3_f32 v44, v36, v38, v40
        v_max_f32 v44, v44, v42""")
        for i in range(4):
            a(f"v_sub_f32 v{36+2*i}, v{36+2*i}, v44")
        for i in range(4):
            a(f"v_mul_f32 v{36+2*i}, s40, v{36+2*i}")
        for i in range(4):
            a(f"v_exp_f32 v{36+2*i}, v{36+2*i}")
        a(f"""v_mul_f32 v46, v36, v37
        v_mov_b32 v45, s44
        v_fmac_f32 v46, v38, v39
        v_mov_b32 v47, s44
        v_fmac_f32 v46, v40, v41
        v_fmac_f32 v46, v42, v43
        s_cmp_lg_u32 s46, 0
        s_cbranch_scc1 {msl}
        global_store_dwordx4 v20, v[44:47], s[28:29] offset:2560
        s_branch {msd}
        {msl}:
        global_store_dwordx4 v20, v[44:47], s[28:29] offset:2560 sc1
        {msd}:""")
        a.stamp(8)
        a("s_barrier")
        for u in range(4):
            a(f"ds_read2st64_b64 v[{48+4*u}:{51+4*u}], v1 offset0:{L_RED//512 + 2*u} offset1:{L_RED//512 + 2*u + 1}")
        osl = a.lab("op_slow"); osd = a.lab("op_done")
        a(f"""s_waitcnt lgkmcnt(2)
        v_pk_add_f32 v[48:49], v[48:49], v[50:51]
        v_pk_add_f32 v[52:53], v[52:53], v[54:55]
        v_pk_mul_f32 v[48:49], v[48:49], v[36:37] op_sel_hi:[1,0]
        s_waitcnt lgkmcnt(0)
        v_pk_add_f32 v[56:57], v[56:57], v[58:59]
        v_pk_fma_f32 v[48:49], v[52:53], v[38:39], v[48:49] op_sel_hi:[1,0,1]
        v_pk_add_f32 v[60:61], v[60:61], v[62:63]
        v_pk_fma_f32 v[48:49], v[56:57], v[40:41], v[48:49] op_sel_hi:[1,0,1]
        v_pk_fma_f32 v[48:49], v[60:61], v[42:43], v[48:49] op_sel_hi:[1,0,1]
        v_and_or_b32 v48, v48, s49, v246
        v_and_or_b32 v49, v49, s49, v246
        s_cmp_lg_u32 s46, 0
        s_cbranch_scc1 {osl}
        global_store_dwordx2 v21, v[48:49], s[28:29] offset:2048
        s_branch {osd}
        {osl}:
        global_store_dwordx2 v21, v[48:49], s[28:29] offset:2048 sc1
        {osd}:""")
        a.stamp(10)
        if p.get("dirty"):
            a(f"""s_lshl_b32 s35, s34, 14
            s_add_u32 s35, s35, 0x400000
            v_lshl_add_u32 v3, v0, 4, s35""")
            for u in range(p["dirty"]):
                a(f"global_store_dwordx4 v3, v[16:19], s[28:29]\nv_add_u32 v3, 1024, v3")
        gf = a.lab("gf"); gfd = a.lab("gf_ok"); free = a.lab("notfree"); nb = a.lab("nob3b")
        a(f"""s_cmp_lg_u32 s31, 2
        s_cbranch_scc1 {free}""")
        if p.get("hold"):
            hl = a.lab("hold")
            if p.get("holdx") is not None:
                a(f"s_cmp_lg_u32 s30, {p['holdx']}\ns_cbranch_scc1 L_exit")
            a(f"""{hl}:
            s_memrealtime s[94:95]
            s_waitcnt lgkmcnt(0)
            s_sub_u32 s94, s94, s96
            s_cmp_lt_u32 s94, {p['hold']}
            s_cbranch_scc1 {hl}""")
        a.finish()
        a(f"""{free}:
        v_lshlrev_b32 v2, 4, v0
        s_barrier
        s_cmp_eq_u32 s31, 1
        s_cbranch_scc1 L_mlp_ctrl""")
        for u in range(4):
            a(f"ds_read_b128 v[{48+4*u}:{51+4*u}], v2 offset:{L_RED2 + 1024*u}")
        a("""s_waitcnt lgkmcnt(2)
        v_pk_add_f32 v[48:49], v[48:49], v[52:53]
        v_pk_add_f32 v[50:51], v[50:51], v[54:55]
        s_waitcnt lgkmcnt(0)
        v_pk_add_f32 v[56:57], v[56:57], v[60:61]
        v_pk_add_f32 v[58:59], v[58:59], v[62:63]
        v_pk_add_f32 v[48:49], v[48:49], v[56:57]
        v_pk_add_f32 v[50:51], v[50:51], v[58:59]""")
        a.tagw([48, 49, 50, 51], 246)
        a("global_store_dwordx4 v23, v[48:51], s[28:29] sc1")
        a.stamp(11)
        if p["aack"]:
            a("s_waitcnt vmcnt(0)\ns_barrier")
        a.finish()
        self.mlp()
        if self.diag:
            a(f"""L_dump:
            s_mov_b64 exec, -1
            s_lshl_b32 s35, s34, 3
            s_add_u32 s35, s35, s3
            s_lshl_b32 s35, s35, 8
            s_add_u32 s35, s35, {STAMP}
            v_lshl_add_u32 v2, v0, 2, s35
            global_store_dword v2, v255, s[28:29]""")
        if p.get("holdat") is not None and not self.diag:
            h = p["holdat"]
            a("L_hold:\ns_cmp_eq_u32 s95, 0\ns_cbranch_scc1 L_exit")
            if len(h) > 2:
                a(f"s_cmp_lg_u32 s30, {h[2]}\ns_cbranch_scc1 L_exit")
            a("""L_hold2:
            s_memrealtime s[92:93]
            s_waitcnt lgkmcnt(0)
            s_sub_u32 s92, s92, s96
            s_cmp_lt_u32 s92, 2000
            s_cbranch_scc1 L_hold2""")
        a("L_exit:")
        a("s_endpgm")
        a("L_codeend:")

    def mlp(self):
        a = self
        p = self.p
        LATE = 80
        B1R = 112
        W1R, W2R = (TR, LATE) if p["mlpT"] == "w1" else (LATE, TR)
        go = a.lab("mlp_go"); cm = a.lab("mlp_common")
        self.sect = "m"
        a("L_mlp_ctrl:")
        a(f"""v_lshrrev_b32 v3, 4, v0
        v_and_b32 v2, 7, v0
        v_lshl_add_u32 v2, v3, 3, v2
        s_lshl_b32 s35, s39, 5
        v_add_lshl_u32 v252, v2, s35, 1
        global_load_ushort v252, v252, s[18:19]""")
        a.w1addr(14); a.w2addr(15)
        a.load8(W1R, 14, "s[16:17]", 16*3456)
        a.load8(W2R, 15, "s[20:21]", 1280)
        a(f"s_branch {cm}")
        a(f"""L_mlp:
        s_cmp_eq_u32 s31, 1
        s_cbranch_scc1 {go}""")
        a.finish()
        a(f"{go}:")
        if p["mlpT"] == "none":
            a.w1addr(14); a.w2addr(15)
            a("s_barrier")
            a.load8(W1R, 14, "s[16:17]", 16*3456)
            a.load8(W2R, 15, "s[20:21]", 1280)
        elif p["mlpT"] == "w2":
            a.w1addr(14)
            a("s_barrier")
            a.load8(W1R, 14, "s[16:17]", 16*3456)
        else:
            a.w2addr(14)
            a("s_barrier")
            a.load8(W2R, 14, "s[20:21]", 1280)
        a(f"""{cm}:
        s_lshl_b32 s35, s3, 8
        v_lshrrev_b32 v2, 4, v0
        v_and_b32 v12, 15, v0
        v_and_b32 v3, 7, v0
        v_lshl_add_u32 v3, v2, 3, v3
        s_lshl_b32 s37, s3, 13
        s_add_u32 s37, s37, {L_W1}
        v_lshlrev_b32 v3, 3, v3
        v_bfe_u32 v18, v0, 3, 1
        v_lshl_add_u32 v21, v18, 2, v3
        v_lshl_add_u32 v22, v12, 3, s35
        v_add_u32 v22, {L_T1}, v22
        v_and_b32 v3, 1, v0
        v_mul_u32_u24 v3, {YS}, v3
        v_lshl_add_u32 v3, v2, 4, v3
        v_add_u32 v23, s35, v3
        v_bfe_u32 v3, v0, 2, 2
        v_lshl_add_u32 v3, v2, 3, v3
        v_lshlrev_b32 v3, 6, v3
        v_and_b32 v12, 3, v0
        v_lshl_add_u32 v3, v12, 3, v3
        v_add_u32 v24, s37, v3
        v_lshl_add_u32 v19, v0, 4, s37
        s_mul_i32 s38, s39, 5120
        s_lshl_b32 s35, s3, 9
        s_add_u32 s38, s38, s35
        s_add_u32 s38, s38, {CP}""")
        a.dlayout(25, 3, bstride=2560)
        a(f"""v_add_u32 v25, s38, v25
        s_lshl_b32 s36, s30, 1
        s_add_u32 s36, s36, s3
        s_mul_i32 s36, s36, 2560
        s_add_u32 s36, s36, {HB}
        v_lshl_add_u32 v2, v0, 4, s36
        v_lshl_add_u32 v3, v0, 3, s36
        s_mul_i32 s36, s3, {YS}
        v_lshl_add_u32 v26, v0, 3, s36
        v_lshl_add_u32 v27, v0, 2, s36""")
        if p["mlpT"] == "w2":
            w = a.lab("w1w")
            a(f"""s_cmp_eq_u32 s3, 4
            s_cbranch_scc1 {w}
            s_waitcnt vmcnt(0)
            {w}:
            s_waitcnt vmcnt(8)""")
        else:
            a("s_waitcnt vmcnt(8)")
        for t in range(8):
            a(f"ds_write_b128 v19, v[{W1R+4*t}:{W1R+4*t+3}] offset:{1024*t}")
        a("s_waitcnt lgkmcnt(0)")
        for ks in range(4):
            for ct in range(2):
                for hf_ in range(2):
                    r = B1R + 4 * (2 * ks + ct) + 2 * hf_
                    a(f"ds_read_b64_tr_b16 v[{r}:{r+1}], v24 offset:{(32*ks + 4*hf_)*64 + 32*ct}")
        a("v_lshlrev_b32 v20, 16, v252")
        a.stamp(15)
        a.zeroA()
        B2R = 144
        a(f"""s_lshr_b32 s35, s39, 4
        s_lshl_b32 s35, s35, 1
        s_and_b32 s36, s39, 1
        s_add_u32 s35, s35, s36
        s_mul_i32 s35, s35, 5
        s_add_u32 s35, s35, s3
        s_lshl_b32 s35, s35, 2
        s_lshl_b32 s36, s30, 8
        s_add_u32 s35, s35, s36
        s_add_u32 s35, s35, {LF}
        v_mov_b32 v18, s35
        v_mov_b32 v19, s43
        s_waitcnt vmcnt(0)""")
        for pp in range(4):
            a.transp(W2R, B2R, pp)
        a("s_waitcnt lgkmcnt(0)")
        a.stamp(12)
        noln = a.lab("noln")
        a(f"""s_cmp_ge_u32 s3, 2
        s_cbranch_scc1 {noln}""")

        def ldH():
            a("global_load_dwordx4 v[28:31], v2, s[28:29] sc1")
            a("global_load_dwordx4 v[32:35], v2, s[28:29] offset:1024 sc1")
            a("global_load_dwordx2 v[36:37], v3, s[28:29] offset:2048 sc1")
        def preH():
            sw = a.lab("hb_sw")
            a(f"""s_cmp_lg_u32 s42, s47
            s_cbranch_scc1 {sw}
            v_add_u32 v2, {HB2 - HB}, v2
            v_add_u32 v3, {HB2 - HB}, v3
            {sw}:""")
        a("s_sub_u32 s47, s47, 1")
        a.pollt("hb", ldH, list(range(28, 38)), 16, pre=preH)
        if self.diag:
            a("v_writelane_b32 v255, s42, 27")
        a.stamp(13)
        a.ln(28, 40, 46, True)
        a.ln(28, 40, 46, False)
        a(f"""ds_write_b64 v26, v[40:41] offset:{L_Y}
        ds_write_b64 v26, v[42:43] offset:{L_Y + 512}
        ds_write_b32 v27, v44 offset:{L_Y + 1024}
        s_waitcnt lgkmcnt(0)
        {noln}:
        s_barrier""")
        a.stamp(18)
        for ks in range(4):
            a(f"ds_read_b128 v[{28+4*ks}:{31+4*ks}], v23 offset:{L_Y + 64*ks}")
        for ks in range(4):
            a(f"s_waitcnt lgkmcnt({3-ks})")
            for ct in range(2):
                c = "0" if ks == 0 else f"v[{44+4*ct}:{47+4*ct}]"
                r = B1R + 4 * (2 * ks + ct)
                a(f"v_mfma_f32_16x16x32_bf16 v[{44+4*ct}:{47+4*ct}], v[{28+4*ks}:{31+4*ks}], v[{r}:{r+3}], {c}")
        a(f"""s_mov_b64 exec, 0xffff
        ds_write2_b64 v22, v[44:45], v[48:49] offset0:0 offset1:16
        s_mov_b64 exec, -1
        v_mov_b32 v33, 1.0
        s_waitcnt lgkmcnt(0)
        s_barrier
        ds_read2st64_b32 v[28:29], v21 offset0:{L_T1//256} offset1:{L_T1//256+1}
        ds_read2st64_b32 v[30:31], v21 offset0:{L_T1//256+2} offset1:{L_T1//256+3}
        ds_read_b32 v32, v21 offset:{L_T1 + 1024}
        {"global_store_dword v18, v19, s[28:29]" if p["ctrig"] and p["lfpos"] == 0 else ""}
        s_waitcnt lgkmcnt(1)
        v_pk_add_f32 v[28:29], v[28:29], v[30:31]
        v_add_f32 v28, v28, v29
        s_waitcnt lgkmcnt(0)
        v_add_f32 v28, v28, v32
        v_cvt_pk_bf16_f32 v28, 0, v28
        v_add_f32 v28, v28, v20
        v_cvt_pk_bf16_f32 v28, 0, v28
        v_mul_f32 v29, v28, v28
        v_mul_f32 v30, {hx(-2.0*math.sqrt(2.0/math.pi)*LOG2E)}, v28
        v_fmamk_f32 v29, v29, {hx(0.044715)}, v33
        v_mul_f32 v29, v29, v30
        v_exp_f32 v29, v29
        v_add_f32 v29, 1.0, v29
        v_rcp_f32 v29, v29
        v_mul_f32 v28, v28, v29
        v_mov_b32_dpp v29, v28 quad_perm:[1,1,3,3] row_mask:0xf bank_mask:0xf
        v_cvt_pk_bf16_f32 v28, v28, v29
        v_mov_b32_dpp v70, v28 quad_perm:[0,0,0,0] row_mask:0xf bank_mask:0xa
        v_mov_b32_dpp v71, v28 quad_perm:[2,2,2,2] row_mask:0xf bank_mask:0xa
        v_mov_b32_dpp v64, v28 quad_perm:[0,0,0,0] row_mask:0xf bank_mask:0x5
        v_mov_b32_dpp v65, v28 quad_perm:[2,2,2,2] row_mask:0xf bank_mask:0x5
        v_mov_b32_dpp v66, v70 row_half_mirror row_mask:0xf bank_mask:0x5
        v_mov_b32_dpp v67, v71 row_half_mirror row_mask:0xf bank_mask:0x5
        v_mov_b32_dpp v68, v64 row_half_mirror row_mask:0xf bank_mask:0xa
        v_mov_b32_dpp v69, v65 row_half_mirror row_mask:0xf bank_mask:0xa""")
        if p["ctrig"] and p["lfpos"] == 1:
            a("global_store_dword v18, v19, s[28:29]")
        a.nat8(B2R)
        for r in range(4):
            a(f"v_and_or_b32 v{28+r}, v{44+4*r}, s49, v246")
        a("global_store_dwordx4 v25, v[28:31], s[28:29] sc1")
        if p["ctrig"] and p["lfpos"] == 2:
            a("global_store_dword v18, v19, s[28:29]")
        a.stamp(14)
        a.finish()

    def write(self, fn):
        gen1.LDS_SIZE = self.p.get("lds", LDS_SIZE)
        gen1.G.write(self, fn)


if __name__ == "__main__":
    out = sys.argv[1] if len(sys.argv) > 1 else "k8.s"
    kw = {}
    diag = False
    for x in sys.argv[2:]:
        if x == "diag":
            diag = True
        else:
            k, v = x.split("=")
            kw[k] = eval(v)
    G(diag=diag, **kw).write(out)
```

```python
import sys, struct, math
from hz import process
import gen1
from gen1 import hx, NAME, LOG2E, SPIN
from gen4 import G as G4

AP = 0x00000
HB = 0x28000
CP = 0x32000
HB2 = 0x76000
EP = 0x80000
LF = 0x81000
BK = 0x100000
STAMP = 0x8000000
L_Y = 0x0000; YS = 1408
L_Q = 0x0B00; L_ML = 0x0C00; L_FL = 0x0C40; L_Z = 0x0C80; L_QF = 0x0C90
L_RED = 0x1000; L_RED2 = 0x2000; L_T1 = 0x3000
L_W1 = 0x4000
LDS_SIZE = L_W1 + 5 * 8192
KR, VR, FRG, TR = 16, 80, 144, 208


class G(G4):
    def __init__(self, diag=False, **kw):
        super().__init__(diag=diag)
        self.p = dict(P=8, P2=9, Ptail=10, fast=True, prefetch=True, nt="nt", prio=3, qdelay=20, adelay=0, cdelay=0,
                      early=False, mlpT="w2", tpos=16, chkend=0, mpos=5, qslow=3, F=8, Pq=8, warm=0, hslow=100, pre="ldnt", qack=False, aack=True, ctrig=True, cslow=60, lfpos=2, ilv=True, tsl=None, w1rot=True, ramp=False, bar0=True)
        self.p.update(kw)

    def pollt(self, name, loads, words, T, waitcnt="vmcnt(0)", pre=None, first_issued=False):
        a = self
        lp = a.lab(name); done = a.lab(name + "_ok"); mid = a.lab(name + "_w")
        a("s_mov_b32 s42, 0")
        if first_issued:
            a(f"s_branch {mid}")
        a(f"{lp}:")
        if pre:
            pre()
        loads()
        a(f"{mid}:")
        a("s_add_u32 s42, s42, 1")
        a(f"s_waitcnt {waitcnt}")
        w = list(words)
        for r in w:
            a(f"v_xor_b32 v{r}, v246, v{r}")
        a(f"v_or_b32 v{T}, v{w[0]}, v{w[1]}")
        for i in range(2, len(w), 2):
            a(f"v_or3_b32 v{T}, v{T}, v{w[i]}, v{w[i+1]}")
        a(f"v_cmp_ne_u32_sdwa vcc, v{T}, v13 src0_sel:BYTE_0 src1_sel:DWORD")
        a(f"s_cbranch_vccz {done}")
        a(f"s_cmp_lt_u32 s42, {SPIN}")
        a(f"s_cbranch_scc1 {lp}")
        a(f"{done}:")

    def stamp(self, idx):
        h = self.p.get("holdat")
        if h is not None and not self.diag:
            if (self.sect, idx) == tuple(h[:2]):
                self("s_memrealtime s[96:97]\ns_waitcnt lgkmcnt(0)\ns_mov_b32 s95, 1")
            return
        super().stamp(idx)

    def finish(self):
        h = self.p.get("holdat")
        if h is not None and not self.diag:
            self("s_branch L_hold")
            return
        super().finish()

    def rnd(self, d, srcop):
        self(f"v_cvt_pk_bf16_f32 v{d}, 0, {srcop}")

    def ln(self, X, P, T, unpack):
        a = self
        pr = lambda r: f"v[{r}:{r+1}]"
        a(f"v_pk_add_f32 {pr(T)}, {pr(X)}, {pr(X+2)}")
        a(f"v_pk_mul_f32 {pr(T+2)}, {pr(X)}, {pr(X)}")
        for i in (4, 6, 8):
            a(f"v_pk_add_f32 {pr(T)}, {pr(T)}, {pr(X+i)}")
            a(f"v_pk_fma_f32 {pr(T+2)}, {pr(X+i-2)}, {pr(X+i-2)}, {pr(T+2)}")
        a(f"v_pk_fma_f32 {pr(T+2)}, {pr(X+8)}, {pr(X+8)}, {pr(T+2)}")
        a(f"v_add_f32 v{T}, v{T}, v{T+1}")
        a(f"v_add_f32 v{T+2}, v{T+2}, v{T+3}")
        a(f"v_permlane32_swap_b32 v{T}, v{T+2}")
        a(f"v_add_f32 v{T}, v{T}, v{T+2}")
        for d in ("quad_perm:[1,0,3,2]", "quad_perm:[2,3,0,1]", "row_half_mirror", "row_mirror"):
            a(f"v_add_f32_dpp v{T}, v{T}, v{T} {d} row_mask:0xf bank_mask:0xf")
        a(f"v_add_f32_dpp v{T}, v{T}, v{T} row_bcast:15 row_mask:0xa bank_mask:0xf")
        a(f"v_mul_f32 v{T}, {hx(1.0/640.0)}, v{T}")
        a(f"v_readlane_b32 s41, v{T}, 63")
        a(f"v_readlane_b32 s40, v{T}, 31")
        a(f"v_mov_b32 v{T+2}, s41")
        a.rnd(T, "s40")
        a(f"v_fma_f32 v{T+2}, -s40, s40, v{T+2}")
        sub = lambda i: a(f"v_pk_add_f32 {pr(X+i)}, {pr(X+i)}, {pr(T)} op_sel_hi:[1,0] neg_lo:[0,1] neg_hi:[0,1]")
        sub(0)
        a(f"v_max_f32 v{T+2}, 0, v{T+2}")
        sub(2)
        a.rnd(T+2, f"v{T+2}")
        sub(4)
        a(f"v_add_f32 v{T+2}, {hx(1e-5)}, v{T+2}")
        sub(6)
        a.rnd(T+2, f"v{T+2}")
        sub(8)
        a(f"v_sqrt_f32 v{T+2}, v{T+2}")
        a.rnd(X, f"v{X}"); a.rnd(X+1, f"v{X+1}")
        a.rnd(T+2, f"v{T+2}")
        a.rnd(X+2, f"v{X+2}")
        a(f"v_rcp_f32 v{T+2}, v{T+2}")
        for i in range(3, 10):
            a.rnd(X+i, f"v{X+i}")
        for i in range(5):
            a(f"v_pk_mul_f32 {pr(X+2*i)}, {pr(X+2*i)}, {pr(T+2)} op_sel_hi:[1,0]")
        if unpack:
            for i in range(10):
                a.rnd(X+i, f"v{X+i}")
        else:
            for i in range(5):
                a(f"v_cvt_pk_bf16_f32 v{P+i}, v{X+2*i}, v{X+2*i+1}")

    def transp(self, R, B, pp):
        for T in range(8):
            self(f"v_perm_b32 v{B+4*T+pp}, v{R+4*(2*pp+1)+T//2}, v{R+4*(2*pp)+T//2}, s{52+(T&1)}")

    def nat8(self, B):
        for r in range(4):
            self(f"v_mfma_f32_16x16x32_bf16 v[{44+4*r}:{47+4*r}], v[64:67], v[{B+4*r}:{B+4*r+3}], 0")
        for r in range(4):
            self(f"v_mfma_f32_16x16x32_bf16 v[{44+4*r}:{47+4*r}], v[68:71], v[{B+16+4*r}:{B+16+4*r+3}], v[{44+4*r}:{47+4*r}]")

    def zeroA(self):
        self("s_mov_b32 s52, 0x05040100\ns_mov_b32 s53, 0x07060302")
        for r in range(64, 72):
            self(f"v_mov_b32 v{r}, 0")

    def loadw1(self, R, addr):
        a = self
        st_ = 16*3456
        if not self.p["w1rot"]:
            a.load8(R, addr, "s[16:17]", st_)
            return
        l1 = a.lab("w1odd"); l2 = a.lab("w1end")
        a(f"s_bitcmp1_b32 s39, 0\ns_cbranch_scc1 {l1}")
        for t in range(8):
            a(f"global_load_dwordx4 v[{R+4*t}:{R+4*t+3}], v{addr}, s[16:17]")
            a(f"v_add_u32 v{addr}, {st_}, v{addr}")
        a(f"s_branch {l2}\n{l1}:\nv_add_u32 v{addr}, {7*st_}, v{addr}")
        for t in range(7, -1, -1):
            a(f"global_load_dwordx4 v[{R+4*t}:{R+4*t+3}], v{addr}, s[16:17]")
            a(f"v_subrev_u32 v{addr}, {st_}, v{addr}")
        a(f"{l2}:")

    def tagw(self, regs, tagv):
        for r in regs:
            self(f"v_and_or_b32 v{r}, v{r}, s49, v{tagv}")

    def build(self):
        a = self
        p = self.p
        nt = p["nt"]
        P = p["P"]
        a(f"""
        s_cmp_ge_u32 s2, 256
        s_cbranch_scc1 L_exit
        s_load_dwordx16 s[4:19], s[0:1], 0
        s_load_dwordx8 s[20:27], s[0:1], 64
        s_load_dwordx2 s[28:29], s[0:1], 96
        v_lshrrev_b32 v1, 6, v0
        v_and_b32 v0, 63, v0
        v_readfirstlane_b32 s3, v1
        s_and_b32 s30, s2, 7
        s_lshr_b32 s31, s2, 3
        s_lshl_b32 s34, s30, 5
        s_add_u32 s34, s34, s31
        s_lshr_b32 s32, s34, 3
        s_and_b32 s33, s34, 7
        """)
        if self.diag:
            a("v_mov_b32 v255, 0")
            a("s_memrealtime s[100:101]")
        self.sect = "a"
        if p.get("holdat") is not None:
            a("s_mov_b32 s95, 0")
        a("""s_sub_u32 s3, s3, 1
        s_cbranch_scc0 L_att""")
        if p["prio"]:
            a(f"s_setprio {p['prio']}")
        a("s_mov_b32 s3, 4")
        if p.get("hold"):
            a("s_memrealtime s[96:97]")
        if p["prefetch"]:
            a(f"""s_getpc_b64 s[36:37]
            L_pc:
            s_sub_u32 s36, s36, L_pc-{NAME}_kernel
            s_subb_u32 s37, s37, 0
            v_lshlrev_b32 v1, 7, v0
            global_load_dword v254, v1, s[36:37]
            v_add_u32 v1, 8192, v1
            v_min_u32 v1, L_codeend-{NAME}_kernel-4, v1
            global_load_dword v253, v1, s[36:37]""")
        WQ = 80
        a(f"""
        v_lshlrev_b32 v1, 3, v0
        v_lshlrev_b32 v2, 2, v0
        v_mov_b32 v36, 0
        ds_write_b32 v2, v36 offset:{L_ML}
        s_mul_i32 s35, s33, {80*8192}
        s_lshl_b32 s38, s32, 8
        s_add_u32 s35, s35, s38
        v_lshrrev_b32 v3, 4, v0
        v_mul_u32_u24 v3, {20*8192}, v3
        v_and_b32 v12, 15, v0
        v_lshl_add_u32 v3, v12, 4, v3
        v_add_u32 v3, s35, v3
        v_mov_b32 v12, {EP}
        v_mov_b32 v16, -1
        v_mov_b32 v17, -1
        v_mov_b32 v18, -1
        v_mov_b32 v19, -1
        s_lshl_b32 s35, s34, 11
        v_lshl_add_u32 v20, v0, 4, s35
        s_lshl_b32 s45, s34, 12
        s_add_u32 s45, s45, {BK}
        v_lshl_add_u32 v21, v0, 4, s45
        s_movk_i32 s38, 0x2000
        s_waitcnt lgkmcnt(0)
        """)
        if self.diag:
            a("v_writelane_b32 v255, s100, 0")
        a(f"""global_load_dwordx2 v[24:25], v1, s[4:5]
        global_load_dwordx2 v[26:27], v1, s[4:5] offset:512
        global_load_dword v28, v2, s[4:5] offset:1024
        global_load_dwordx2 v[30:31], v1, s[4:5] offset:1280
        global_load_dwordx2 v[32:33], v1, s[4:5] offset:1792
        global_load_dword v34, v2, s[4:5] offset:2304
        global_load_dword v15, v12, s[28:29] sc1""")
        NB = 0
        if p["pre"] in ("ldnt", "ld"):
            fl = "nt" if p["pre"] == "ldnt" else ""
            for u in range(3):
                a(f"global_load_dwordx4 v[76:79], v21, s[28:29] offset:{1024*u} {fl}")
            NB = 3
        elif p["pre"] == "st":
            for u in range(3):
                a(f"global_store_dwordx4 v21, v[16:19], s[28:29] offset:{1024*u}")
            NB = 3
        for t in range(20):
            if t:
                a("v_add_u32 v3, s38, v3")
            a(f"global_load_dwordx4 v[{WQ+4*t}:{WQ+4*t+3}], v{1 if p.get('nowq') else 3}, s[10:11] {nt}")
        if p["pre"] == "stlate":
            a(f"""global_store_dwordx4 v21, v[16:19], s[28:29]
            global_store_dwordx4 v21, v[16:19], s[28:29] offset:1024
            global_store_dwordx4 v21, v[16:19], s[28:29] offset:2048""")
        if p["warm"]:
            a("""global_load_dwordx4 v[68:71], v20, s[28:29]
            global_load_dwordx4 v[72:75], v20, s[28:29] offset:1024""")
        NY = (3 if p["pre"] == "stlate" else 0) + (2 if p["warm"] else 0)
        a("""s_barrier
        s_branch L_ctrl""")
        a(f"""L_att:
        s_lshr_b32 s35, s33, 2
        s_lshl_b32 s35, s35, 5
        s_add_u32 s35, s35, s32
        s_lshl_b32 s35, s35, 4
        s_and_b32 s36, s33, 3
        s_add_u32 s35, s35, s36
        s_add_u32 s35, s35, 12
        s_lshl_b32 s35, s35, {3 if p["ilv"] else 2}
        s_add_u32 s35, s35, s3
        s_lshl_b32 s35, s35, {13 if p["ilv"] else 14}
        s_add_u32 s35, s35, 4096
        v_bfe_u32 v1, v0, 2, 2
        v_lshlrev_b32 v1, 8, v1
        v_lshrrev_b32 v2, 4, v0
        v_lshl_add_u32 v1, v2, 6, v1
        v_and_b32 v2, 3, v0
        v_lshl_add_u32 v1, v2, 4, v1
        v_add_u32 v1, s35, v1
        v_lshl_add_u32 v14, v0, 4, s35
        s_waitcnt lgkmcnt(0)
        """)
        if self.diag:
            a("v_writelane_b32 v255, s100, 0")
        a("s_barrier")
        if self.diag:
            a("s_memrealtime s[98:99]")
        K = [("K", t) for t in range(16)]; V = [("V", t) for t in range(16)]; T = [("T", t) for t in range(8)]
        S = [("S", k) for k in p.get("Sset", range(5))]
        if p["early"]:
            first = K[:P-1] + V[:1]
            rest = T[:1] + S + K[P-1:]
            Vr, Tr = V[1:], T[1:]
        else:
            first = K[:p["F"]]
            rest = S + K[p["F"]:]
            Vr, Tr = V, T
        nbefore = [v for v in Vr if v[1] < p["tpos"]]
        nafter = [v for v in Vr if v[1] >= p["tpos"]]
        tail = []
        while nafter or Tr:
            if Tr: tail.append(Tr.pop(0))
            if nafter: tail.append(nafter.pop(0))
        order = first + rest + nbefore + tail
        if p["tsl"] is not None:
            kv = K + V
            order = kv[:p["F"]] + S
            tk = 0
            for i in range(p["F"], 33):
                while tk < 8 and p["tsl"][tk] <= i:
                    order.append(("T", tk)); tk += 1
                if i < 32:
                    order.append(kv[i])
            assert tk == 8
        order.insert(len(order) - p["mpos"], ("S", 5))
        NL = len(order)
        pos = {it: i for i, it in enumerate(order)}
        st = {"issued": 0, "done": -1}

        def emit(it):
            k, t = it
            if k == "K":
                if t == 8:
                    a(f"v_add_u32 v1, {32768 if p['ilv'] else 8192}, v1")
                a(f"global_load_dwordx4 v[{KR+4*t}:{KR+4*t+3}], v1, s[6:7] offset:{(t%8)*1024-4096} {nt}")
            elif k == "V":
                if t == 8:
                    a(f"v_add_u32 v14, {32768 if p['ilv'] else 8192}, v14")
                a(f"global_load_dwordx4 v[{VR+4*t}:{VR+4*t+3}], v14, s[8:9] offset:{(t%8)*1024-4096} {nt}")
            elif k == "T":
                a(f"global_load_dwordx4 v[{TR+4*t}:{TR+4*t+3}], v15, s[44:45] {nt}")
                if t < 7:
                    a("v_add_u32 v15, s46, v15")
            else:
                other = "s[20:21]" if p["mlpT"] == "w1" else "s[16:17]"
                a(["global_load_ushort v254, v250, s[4:5]",
                   "global_load_ushort v251, v251, s[22:23]",
                   "global_load_ushort v2, v250, s[24:25]",
                   "global_load_ushort v252, v252, s[18:19]",
                   f"global_load_dword v253, v253, {other}",
                   "global_load_dwordx4 v[40:43], v247, s[28:29] sc1"][t])

        def issue(pace=0):
            i = st["issued"]
            if pace and order[i][0] != "S":
                cnt = 0; j = i
                while j > 0 and cnt < pace:
                    j -= 1
                    if order[j][0] != "S":
                        cnt += 1
                if cnt == pace and j > st["done"]:
                    a(f"s_waitcnt vmcnt({i-1-j})")
                    st["done"] = j
            emit(order[i])
            st["issued"] += 1

        def wait_for(it):
            i = pos[it]
            assert i < st["issued"]
            if st["done"] < i:
                a(f"s_waitcnt vmcnt({st['issued']-1-i})")
                st["done"] = i
        for _ in first:
            issue()
        a(self.ROLES)
        setd = a.lab("setd")
        if p["mlpT"] == "none":
            a(f"s_mul_i32 s36, s39, {32*1280}\nv_mov_b32 v15, s36")
            a("s_mov_b32 s46, 0\ns_mov_b64 s[44:45], s[20:21]")
            a(f"s_mul_i32 s36, s3, {128*3456}\nv_mov_b32 v253, s36")
        elif p["mlpT"] == "w2":
            a.w2addr(15)
            a("s_movk_i32 s46, 1280\ns_mov_b64 s[44:45], s[20:21]")
            a(f"s_mul_i32 s36, s3, {128*3456}\nv_mov_b32 v253, s36")
        else:
            a.w1addr(15)
            a(f"s_mov_b32 s46, {16*3456}\ns_mov_b64 s[44:45], s[16:17]")
            a(f"s_mul_i32 s36, s39, {32*1280}\nv_mov_b32 v253, s36")
        a(f"""
        s_cmp_eq_u32 s31, 1
        s_cbranch_scc1 {setd}
        s_mov_b64 s[44:45], s[12:13]
        s_mov_b32 s46, 0
        v_mov_b32 v15, 0
        s_cmp_eq_u32 s31, 2
        s_cbranch_scc1 {setd}
        s_movk_i32 s46, 1280
        s_lshl_b32 s36, s32, 2
        s_add_u32 s36, s36, s3
        s_mul_i32 s36, s36, {32*1280}
        s_lshl_b32 s37, s33, 8
        s_add_u32 s36, s36, s37""")
        a.rowaddr(15)
        a(f"""{setd}:
        s_and_b32 s38, s32, 3
        s_mul_i32 s38, s38, 5
        s_add_u32 s38, s38, s33
        s_lshl_b32 s38, s38, 2
        s_add_u32 s38, s38, s3
        s_min_u32 s38, s38, 79
        s_lshl_b32 s35, s38, 4
        v_and_b32 v2, 3, v0
        v_lshrrev_b32 v3, 4, v0
        v_lshl_add_u32 v2, v2, 2, v3
        v_add_lshl_u32 v250, v2, s35, 1
        s_cmp_ge_u32 s38, 40
        s_cselect_b32 s35, 1280, 0
        v_subrev_u32 v251, s35, v250
        v_and_b32 v2, 7, v0
        v_lshl_add_u32 v2, v3, 3, v2
        s_lshl_b32 s35, s39, 5
        v_add_lshl_u32 v252, v2, s35, 1""")
        a.selectors()
        a("v_and_b32 v2, 8, v0\nv_cmp_eq_u32 vcc, 8, v2")
        for r in range(4):
            a(f"v_cndmask_b32 v{240+r}, v{4+r}, v{8+r}, vcc")
        a(f"""v_lshrrev_b32 v2, 4, v0
        v_and_b32 v3, 3, v0
        v_lshl_add_u32 v2, v2, 2, v3
        v_lshlrev_b32 v2, 4, v2
        v_add_u32 v2, {L_Q}, v2
        v_bfe_u32 v3, v0, 2, 2
        v_mov_b32 v12, {L_Z}""")
        for qd in range(4):
            a(f"v_cmp_eq_u32 vcc, {qd}, v3")
            a(f"v_cndmask_b32 v{200+qd}, v12, v2, vcc")
        a.dlayout(248, 3, bstride=512)
        a(f"""s_lshl_b32 s36, s3, 10
        v_add_u32 v248, s36, v248
        s_lshl_b32 s36, s32, 15
        s_add_u32 s36, s36, {BK + 2560}
        v_and_b32 v2, 8, v0
        v_lshlrev_b32 v2, 11, v2
        v_and_b32 v3, 3, v0
        v_lshl_add_u32 v2, v3, 12, v2
        v_add_u32 v247, s36, v2
        s_lshl_b32 s35, s3, 7
        s_sub_u32 s35, s35, 512
        v_lshrrev_b32 v3, 4, v0
        v_lshl_add_u32 v2, v3, 5, s35
        v_and_b32 v3, 4, v0
        v_lshl_add_u32 v2, v3, 2, v2
        v_add_u32 v249, v247, v2
        s_mov_b32 s40, {hx(128 ** -0.5)}
        s_mov_b32 s48, {hx(LOG2E)}
        s_mov_b32 s49, 0xffffff00
        s_lshl_b32 s36, s3, 3
        v_mov_b32 v12, s36
        v_mov_b32 v13, 0
        s_mov_b32 s47, 0
        """)
        if p["early"]:
            issue()
        marks = {0: 23, 7: 24}
        win = p["F"]
        tog = 0
        while st["done"] < pos[("K", 15)]:
            tgt = p["Pq"] if order[st["issued"]][0] == "K" else P
            if p["ramp"] and order[st["issued"]][0] != "S":
                if tog and win < tgt:
                    win += 1
                tog ^= 1
                tgt = min(tgt, win)
            issue(tgt)
            for kk in list(marks):
                if st["done"] >= pos[("K", kk)]:
                    a.stamp(marks.pop(kk))
        a.stamp(1)
        if self.diag:
            a("v_writelane_b32 v255, s98, 16")
        lastchk = min(NL - 1, pos[("V", 15)] + p["chkend"])
        assert pos[("S", 5)] > lastchk
        firstchk = True
        while True:
            sk = a.lab("chk")
            if not firstchk:
                a(f"s_cmp_lg_u32 s47, 0\ns_cbranch_scc1 {sk}")
            a(f"""ds_read_b64 v[2:3], v13 offset:{L_QF}
            s_waitcnt lgkmcnt(0)
            v_readfirstlane_b32 s47, v3
            s_cmp_eq_u32 s47, 0
            s_cbranch_scc1 {sk}
            s_call_b64 s[50:51], L_compute
            {sk}:""")
            firstchk = False
            issue(p["P2"])
            if st["issued"] > lastchk:
                break
        lp = a.lab("qw"); sk = a.lab("qw_done"); go = a.lab("qw_go")
        a(f"""s_cmp_lg_u32 s47, 0
        s_cbranch_scc1 {sk}
        s_mov_b32 s42, 0
        {lp}:
        ds_read_b64 v[2:3], v13 offset:{L_QF}
        s_add_u32 s42, s42, 1
        s_waitcnt lgkmcnt(0)
        v_readfirstlane_b32 s47, v3
        s_cmp_lg_u32 s47, 0
        s_cbranch_scc1 {go}
        s_cmp_lt_u32 s42, {SPIN*20}
        s_cbranch_scc1 {lp}
        {go}:
        s_call_b64 s[50:51], L_compute
        {sk}:""")
        a.stamp(19)
        Pt = p["Ptail"]

        def topup():
            while st["issued"] < NL:
                infl = sum(1 for j in range(st["done"] + 1, st["issued"]) if order[j][0] != "S")
                if infl >= Pt and order[st["issued"]][0] != "S":
                    break
                issue()
        topup()
        for t in range(16):
            a(f"v_mov_b32_dpp v{48+t%2}, v{20+t//4} row_newbcast:{4*(t%4)} row_mask:0xf bank_mask:0xf")
            for r in range(4):
                a(f"v_perm_b32 v{FRG+4*(t%4)+r}, v{48+t%2}, v{48+t%2}, v{240+r}")
            wait_for(("V", t))
            topup()
            c = "0" if t == 0 else "v[44:47]"
            a(f"v_mfma_f32_16x16x32_bf16 v[44:47], v[{FRG+4*(t%4)}:{FRG+4*(t%4)+3}], v[{VR+4*t}:{VR+4*t+3}], {c}")
        while st["issued"] < NL:
            issue()
        a(f"""ds_write_b128 v248, v[44:47] offset:{L_RED}
        s_waitcnt lgkmcnt(0)""")
        a.stamp(20)
        a("s_barrier")
        a.stamp(5)
        a("""s_cmp_lg_u32 s31, 0
        s_cbranch_scc1 L_mlp""")
        a(f"""global_load_dwordx4 v[28:31], v249, s[28:29] sc1
        s_lshl_b32 s35, s38, 6
        v_lshrrev_b32 v2, 2, v0
        v_mul_u32_u24 v2, 5120, v2
        v_and_b32 v3, 3, v0
        v_lshl_add_u32 v2, v3, 4, v2
        v_add_u32 v22, s35, v2
        s_mul_i32 s35, s30, 5120
        s_add_u32 s35, s35, {HB}
        v_lshl_add_u32 v25, v250, 1, s35
        v_add_u32 v24, {AP + 16*5120}, v22
        v_add_u32 v23, {HB2 - HB}, v25
        v_lshlrev_b32 v20, 16, v254
        v_lshlrev_b32 v21, 16, v251""")
        st["issued"] += 1
        mlp_ = a.lab("ml"); mlok = a.lab("ml_ok"); og = a.lab("og"); ogok = a.lab("og_ok")
        a.zeroA()
        BT = 80
        tdone = 0
        while tdone < 4 and pos[("T", 2*tdone+1)] < pos[("S", 5)]:
            wait_for(("T", 2*tdone+1)); a.transp(TR, BT, tdone); tdone += 1
        wait_for(("S", 5))
        a(f"""s_mov_b32 s42, 0
        {mlp_}:
        v_xor_b32 v26, s43, v41
        v_xor_b32 v27, s43, v43
        v_or_b32 v26, v26, v27
        v_lshlrev_b32 v26, 3, v26
        v_cmp_ne_u32 vcc, 0, v26
        s_cbranch_vccz {mlok}
        global_load_dwordx4 v[40:43], v247, s[28:29] sc1
        s_add_u32 s42, s42, 1
        s_cmp_lt_u32 s42, {SPIN}
        s_waitcnt vmcnt(0)
        s_cbranch_scc1 {mlp_}
        {mlok}:""")
        if self.diag:
            a("v_writelane_b32 v255, s42, 28")
        a.stamp(21)
        a(f"""v_max_f32_dpp v41, v40, v40 quad_perm:[1,0,3,2] row_mask:0xf bank_mask:0xf
        v_max_f32_dpp v41, v41, v41 quad_perm:[2,3,0,1] row_mask:0xf bank_mask:0xf
        v_sub_f32 v41, v40, v41
        v_mul_f32 v41, s48, v41
        v_exp_f32 v41, v41
        v_mul_f32 v43, v41, v42
        v_add_f32_dpp v43, v43, v43 quad_perm:[1,0,3,2] row_mask:0xf bank_mask:0xf
        v_add_f32_dpp v43, v43, v43 quad_perm:[2,3,0,1] row_mask:0xf bank_mask:0xf
        v_rcp_f32 v43, v43
        v_mul_f32 v42, v41, v43""")
        while tdone < 4:
            wait_for(("T", 2*tdone+1)); a.transp(TR, BT, tdone); tdone += 1
        a.pollt("og", lambda: a("global_load_dwordx4 v[28:31], v249, s[28:29] sc1"), [28, 29, 30, 31], 26, first_issued=True)
        if self.diag:
            a("v_writelane_b32 v255, s42, 29")
        a.stamp(6)
        a("""v_pk_mul_f32 v[28:29], v[28:29], v[42:43] op_sel_hi:[1,0]
        v_pk_mul_f32 v[30:31], v[30:31], v[42:43] op_sel_hi:[1,0]""")
        for d in ("quad_perm:[1,0,3,2]", "quad_perm:[2,3,0,1]"):
            for r in range(4):
                a(f"v_add_f32_dpp v{28+r}, v{28+r}, v{28+r} {d} row_mask:0xf bank_mask:0xf")
        a("""v_cvt_pk_bf16_f32 v32, v28, v29
        v_cvt_pk_bf16_f32 v33, v30, v31""")
        a("""v_mov_b32_dpp v64, v32 quad_perm:[0,1,2,3] row_mask:0xf bank_mask:0x5
        v_mov_b32_dpp v66, v32 row_half_mirror row_mask:0xf bank_mask:0x5
        v_mov_b32_dpp v65, v33 quad_perm:[0,1,2,3] row_mask:0xf bank_mask:0x5
        v_mov_b32_dpp v67, v33 row_half_mirror row_mask:0xf bank_mask:0x5
        v_mov_b32_dpp v68, v32 row_half_mirror row_mask:0xf bank_mask:0xa
        v_mov_b32_dpp v69, v33 row_half_mirror row_mask:0xf bank_mask:0xa
        v_mov_b32_dpp v70, v32 quad_perm:[0,1,2,3] row_mask:0xf bank_mask:0xa
        v_mov_b32_dpp v71, v33 quad_perm:[0,1,2,3] row_mask:0xf bank_mask:0xa""")
        a.nat8(BT)
        a(f"""v_mov_b32 v45, v48
        v_mov_b32 v46, v52
        v_mov_b32 v47, v56
        ds_write_b128 v248, v[44:47] offset:{L_RED2}
        s_waitcnt lgkmcnt(0)
        s_barrier""")
        if p["aack"]:
            a("s_barrier")
        a.stamp(7)
        if p["adelay"]:
            a(f"s_sleep {p['adelay']}")

        def ldA():
            a("global_load_dwordx4 v[28:31], v22, s[28:29] sc1")
            a("global_load_dwordx4 v[32:35], v24, s[28:29] sc1")
        assert AP == 0
        a.pollt("ha", ldA, list(range(28, 36)), 26)
        a.stamp(8)
        a("v_pk_add_f32 v[28:29], v[28:29], v[32:33]\nv_pk_add_f32 v[30:31], v[30:31], v[34:35]")
        a.red16(28)
        slow = a.lab("hb_slow"); hbd = a.lab("hb_done")
        a(f"""v_cvt_pk_bf16_f32 v28, 0, v28
        s_mov_b32 exec_lo, 0x000f000f
        v_add_f32 v28, v28, v20
        s_mov_b32 exec_hi, 0x000f000f
        v_cvt_pk_bf16_f32 v19, 0, v28
        v_or_b32 v26, v19, v246
        global_store_dword v25, v26, s[28:29]
        global_store_dword v23, v26, s[28:29] sc1
        s_mov_b64 exec, -1""")
        a.stamp(9)
        fin = a.lab("fin"); nob = a.lab("nobump")
        a(f"""s_bfe_u32 s35, s38, 0x30001
        s_cmp_eq_u32 s35, s30
        s_cbranch_scc1 {fin}""")
        a.finish()
        a(f"""{fin}:
        s_cmp_lg_u32 s38, 0
        s_cbranch_scc1 {nob}
        v_mov_b32 v2, {EP}
        v_mov_b32 v3, s43
        global_store_dword v2, v3, s[28:29] sc1
        {nob}:""")
        for u in range(4):
            a(f"v_add_u32 v{48+u}, {CP + 16*5120*u}, v22")
        if p["cdelay"]:
            a(f"s_sleep {p['cdelay']}")
        if p["ctrig"]:
            ct = a.lab("ct"); ctd = a.lab("ct_ok")
            a(f"""s_cmp_lt_u32 s30, 3
            s_cselect_b32 s35, 39, 29
            v_min_u32 v2, s35, v0
            s_lshl_b32 s35, s30, 8
            s_add_u32 s35, s35, {LF}
            v_lshl_add_u32 v2, v2, 2, s35
            s_min_u32 s42, s47, {p['cslow']}
            {ct}:
            s_sub_u32 s42, s42, 1
            s_cmp_eq_u32 s42, 0
            s_cbranch_scc1 {ctd}
            global_load_dword v3, v2, s[28:29] sc1
            s_waitcnt vmcnt(0)
            v_cmp_ne_u32 vcc, s43, v3
            s_cbranch_vccnz {ct}
            {ctd}:""")
            a.stamp(22)

        def ldC():
            for u in range(3):
                a(f"global_load_dwordx4 v[{28+4*u}:{31+4*u}], v{48+u}, s[28:29] sc1")
            a("v_mov_b32 v40, v246\nv_mov_b32 v41, v246\nv_mov_b32 v42, v246\nv_mov_b32 v43, v246")
            a("s_mov_b64 exec, 0xffffff")
            a("global_load_dwordx4 v[40:43], v51, s[28:29] sc1")
            a("s_mov_b64 exec, -1")
        a.pollt("hc", ldC, list(range(28, 44)), 26)
        a.stamp(10)
        a("""v_pk_add_f32 v[28:29], v[28:29], v[32:33]
        v_pk_add_f32 v[30:31], v[30:31], v[34:35]
        v_pk_add_f32 v[36:37], v[36:37], v[40:41]
        v_pk_add_f32 v[38:39], v[38:39], v[42:43]
        v_pk_add_f32 v[28:29], v[28:29], v[36:37]
        v_pk_add_f32 v[30:31], v[30:31], v[38:39]""")
        a.red16(28)
        a("""v_cvt_pk_bf16_f32 v28, 0, v28
        s_mov_b32 exec_lo, 0x000f000f
        v_add_f32 v28, v28, v21
        s_mov_b32 exec_hi, 0x000f000f
        v_cvt_pk_bf16_f32 v28, 0, v28
        v_add_f32 v28, v28, v19
        v_cvt_pk_bf16_f32 v28, v28, v28
        global_store_short v250, v28, s[24:25]
        s_mov_b64 exec, -1""")
        a.finish()

        QF = 144; DR = 160; SR = 16
        a("L_compute:")
        a("v_readfirstlane_b32 s43, v2\nv_and_b32 v246, 0xff, v2")
        a.stamp(2)
        for qd in range(4):
            a(f"ds_read_b128 v[{QF+4*qd}:{QF+4*qd+3}], v{200+qd}")
        for qd in range(4):
            a(f"s_waitcnt lgkmcnt({3-qd})")
            for u in range(4):
                t = 4 * u + qd
                c = "0" if qd == 0 else f"v[{DR+4*u}:{DR+4*u+3}]"
                a(f"v_mfma_f32_16x16x32_bf16 v[{DR+4*u}:{DR+4*u+3}], v[{KR+4*t}:{KR+4*t+3}], v[{QF+4*qd}:{QF+4*qd+3}], {c}")
        for u in range(4):
            a(f"v_mov_b32_dpp v{SR+u}, v{DR+4*u} quad_perm:[0,0,0,0] row_mask:0xf bank_mask:0xf")
        for r in (1, 2, 3):
            for u in range(4):
                a(f"v_add_f32_dpp v{SR+u}, v{DR+4*u+r}, v{SR+u} quad_perm:[{r},{r},{r},{r}] row_mask:0xf bank_mask:0xf")
        for rnd in range(2):
            for r in range(16, 20):
                a.rnd(r, f"v{r}")
            if rnd == 0:
                a("""v_pk_mul_f32 v[16:17], v[16:17], s[40:41] op_sel_hi:[1,0]
                v_pk_mul_f32 v[18:19], v[18:19], s[40:41] op_sel_hi:[1,0]""")
        a(f"""v_max3_f32 v28, v16, v17, v18
        v_max_f32 v28, v28, v19
        v_max_f32_dpp v28, v28, v28 row_ror:4 row_mask:0xf bank_mask:0xf
        v_max_f32_dpp v28, v28, v28 row_ror:8 row_mask:0xf bank_mask:0xf
        v_mov_b32 v29, v28
        v_permlane32_swap_b32 v28, v29
        v_max_f32 v28, v28, v29
        v_mov_b32 v29, v28
        v_permlane16_swap_b32 v28, v29
        v_max_f32 v28, v28, v29
        v_pk_add_f32 v[16:17], v[16:17], v[28:29] op_sel_hi:[1,0] neg_lo:[0,1] neg_hi:[0,1]
        v_pk_add_f32 v[18:19], v[18:19], v[28:29] op_sel_hi:[1,0] neg_lo:[0,1] neg_hi:[0,1]
        v_pk_mul_f32 v[16:17], v[16:17], s[48:49] op_sel_hi:[1,0]
        v_pk_mul_f32 v[18:19], v[18:19], s[48:49] op_sel_hi:[1,0]
        v_exp_f32 v16, v16
        v_exp_f32 v17, v17
        v_exp_f32 v18, v18
        v_exp_f32 v19, v19
        v_pk_add_f32 v[30:31], v[16:17], v[18:19]
        v_add_f32 v30, v30, v31
        v_cvt_pk_bf16_f32 v24, 0, v16
        v_cvt_pk_bf16_f32 v25, 0, v17
        v_add_f32_dpp v30, v30, v30 row_ror:4 row_mask:0xf bank_mask:0xf
        v_cvt_pk_bf16_f32 v26, 0, v18
        v_cvt_pk_bf16_f32 v27, 0, v19
        v_add_f32_dpp v30, v30, v30 row_ror:8 row_mask:0xf bank_mask:0xf
        v_mov_b32 v31, v30
        v_pk_add_f32 v[16:17], v[16:17], v[24:25] neg_lo:[0,1] neg_hi:[0,1]
        v_pk_add_f32 v[18:19], v[18:19], v[26:27] neg_lo:[0,1] neg_hi:[0,1]
        v_permlane32_swap_b32 v30, v31
        v_add_f32 v30, v30, v31
        v_mov_b32 v31, v30
        v_cvt_pk_bf16_f32 v20, v24, v16
        v_cvt_pk_bf16_f32 v21, v25, v17
        v_permlane16_swap_b32 v30, v31
        v_add_f32 v29, v30, v31
        v_cvt_pk_bf16_f32 v22, v26, v18
        v_cvt_pk_bf16_f32 v23, v27, v19
        ds_write_b64 v12, v[28:29] offset:{L_ML}""")
        a.stamp(4)
        a("s_nop 1\ns_setpc_b64 s[50:51]")

        self.sect = "c"
        a("L_ctrl:")
        a.stamp(1)
        a.selectors()
        a(f"""s_getreg_b32 s44, hwreg(HW_REG_XCC_ID, 0, 3)
        s_waitcnt vmcnt({21+NY+NB})""")
        a.stamp(2)
        for b_, (src, X) in enumerate(((24, 36), (30, 48))):
            for i in range(5):
                a(f"v_lshlrev_b32 v{X+2*i}, 16, v{src+i}")
                a(f"v_and_b32 v{X+2*i+1}, 0xffff0000, v{src+i}")
            a.ln(X, src, 60, False)
            a(f"""v_lshlrev_b32 v2, 2, v0
            ds_write_b64 v1, v[{src}:{src+1}] offset:{L_Y + b_*YS}
            ds_write_b64 v1, v[{src+2}:{src+3}] offset:{L_Y + b_*YS + 512}
            ds_write_b32 v2, v{src+4} offset:{L_Y + b_*YS + 1024}""")
        a(f"""s_mul_i32 s35, s33, 160
        v_lshrrev_b32 v2, 4, v0
        v_mul_u32_u24 v2, 40, v2
        v_bfe_u32 v3, v0, 3, 1
        v_mul_u32_u24 v3, {YS}, v3
        v_add3_u32 v2, v2, v3, s35
        s_waitcnt lgkmcnt(0)""")
        for i in range(5):
            a(f"ds_read_b64 v[{36+2*i}:{37+2*i}], v2 offset:{L_Y + 8*i}")
        a(f"""s_waitcnt vmcnt({20+NY+NB})
        v_readfirstlane_b32 s43, v15
        s_add_u32 s43, s43, 1
        s_and_b32 s35, s43, 0xff
        s_cmp_eq_u32 s35, 0xff
        s_addc_u32 s43, s43, 0
        s_and_b32 s43, s43, 0x1fffffff
        s_lshl_b32 s44, s44, 29
        s_or_b32 s44, s44, s43
        s_mov_b32 s43, s44
        s_and_b32 s35, s43, 0xff
        v_mov_b32 v246, s35
        s_mov_b32 s49, 0xffffff00
        v_mov_b32 v13, 0
        v_mov_b32 v53, s44
        v_mov_b32 v55, s44
        v_mov_b32 v57, s44
        v_mov_b32 v59, s44
        s_waitcnt lgkmcnt(0)""")
        a.stamp(3)
        FR = 160
        a.frag(FR, 36, 0)
        for t in range(20):
            if t + 1 < 20:
                a.frag(FR + 4 * (t + 1), 36 + (t + 1) // 2, (t + 1) & 1)
            a(f"s_waitcnt vmcnt({19+NY-t})")
            c = "0" if t == 0 else "v[48:51]"
            a(f"v_mfma_f32_16x16x32_bf16 v[48:51], v[{FR+4*t}:{FR+4*t+3}], v[{WQ+4*t}:{WQ+4*t+3}], {c}")
        qfl = "" if p["fast"] else "sc1"
        a(f"""v_mov_b32 v52, v48
        v_mov_b32 v54, v49
        v_mov_b32 v56, v50
        v_mov_b32 v58, v51
        global_store_dwordx4 v21, v[52:55], s[28:29] {qfl}
        global_store_dwordx4 v21, v[56:59], s[28:29] offset:1024 {qfl}""")
        a.stamp(4)
        a(self.ROLES)
        qg = a.lab("qg"); qgd = a.lab("qg_ok"); qns = a.lab("qg_nosc1"); qf = a.lab("qg_fast")
        a(f"""s_mul_i32 s35, s32, 5120
        s_lshl_b32 s38, s33, 9
        s_add_u32 s35, s35, s38
        v_lshrrev_b32 v3, 5, v0
        v_mul_u32_u24 v2, 2560, v3
        v_and_b32 v22, 31, v0
        v_lshl_add_u32 v2, v22, 4, v2
        v_add_u32 v23, s35, v2
        s_lshl_b32 s35, s32, 15
        s_lshr_b32 s38, s33, 2
        s_lshl_b32 s38, s38, 9
        s_add_u32 s35, s35, s38
        s_add_u32 s35, s35, {BK + 4096}
        v_lshlrev_b32 v2, 10, v3
        v_lshl_add_u32 v2, v22, 4, v2
        v_add_u32 v60, s35, v2
        v_add_u32 v61, 8192, v60
        v_add_u32 v62, 8192, v61
        v_add_u32 v63, 8192, v62
        v_and_b32 v2, 15, v0
        v_lshlrev_b32 v2, 4, v2
        v_and_b32 v22, 16, v0
        v_lshrrev_b32 v22, 1, v22
        v_add_u32 v2, v2, v22
        v_lshl_add_u32 v22, v3, 2, v2
        s_mov_b32 s42, 0""")
        if p["qack"]:
            a("s_waitcnt vmcnt(0)")
        elif p["qdelay"]:
            a(f"s_sleep {p['qdelay']}")
        a.stamp(5)
        a(f"{qg}:")
        for u in range(8):
            a(f"global_load_dwordx4 v[{80+4*u}:{83+4*u}], v{60+u//2}, s[28:29] offset:{4096*(u%2)-4096} sc1")
        a("s_add_u32 s42, s42, 1\ns_waitcnt vmcnt(0)")
        a("v_xor_b32 v36, s44, v81\nv_xor_b32 v37, s44, v83")
        for u in range(1, 8):
            a(f"v_bitop3_b32 v36, v36, v{81+4*u}, s44 bitop3:0xf6")
            a(f"v_bitop3_b32 v37, v37, v{83+4*u}, s44 bitop3:0xf6")
        a(f"""v_or_b32 v36, v36, v37
        v_lshlrev_b32 v37, 3, v36
        v_cmp_ne_u32 vcc, 0, v37
        s_cbranch_vccz {qgd}
        s_cmp_lg_u32 s42, {p['qslow']}
        s_cbranch_scc1 {qns}
        global_store_dwordx4 v21, v[52:55], s[28:29] sc1
        global_store_dwordx4 v21, v[56:59], s[28:29] offset:1024 sc1
        {qns}:
        s_cmp_lt_u32 s42, {SPIN}
        s_cbranch_scc1 {qg}
        {qgd}:""")
        if self.diag:
            a("v_writelane_b32 v255, s42, 30")
        a("""v_add_f32 v80, v80, v84
        v_add_f32 v82, v82, v86
        v_add_f32 v88, v88, v92
        v_add_f32 v90, v90, v94
        v_add_f32 v96, v96, v100
        v_add_f32 v98, v98, v102
        v_add_f32 v104, v104, v108
        v_add_f32 v106, v106, v110
        v_add_f32 v80, v80, v88
        v_add_f32 v82, v82, v90
        v_add_f32 v96, v96, v104
        v_add_f32 v98, v98, v106
        v_add_f32 v80, v80, v96
        v_add_f32 v82, v82, v98
        v_cvt_pk_bf16_f32 v80, v80, v82""")
        a(f"""ds_write_b32 v22, v80 offset:{L_Q}
        v_cmp_ne_u32 vcc, 0, v36
        v_mov_b32 v2, 0
        v_mov_b32 v14, s44
        s_cmp_lg_u64 vcc, 0
        s_cselect_b32 s46, 1, {0 if p['fast'] else 1}
        s_cselect_b32 s35, 1, {p['hslow'] + 1 if p['fast'] else 1}
        v_mov_b32 v15, s35
        s_waitcnt lgkmcnt(0)
        ds_write_b64 v2, v[14:15] offset:{L_QF}
        s_cbranch_scc0 {qf}
        global_store_dwordx4 v21, v[52:55], s[28:29] sc1
        global_store_dwordx4 v21, v[56:59], s[28:29] offset:1024 sc1
        {qf}:""")
        a.stamp(6)
        mw = a.lab("mw"); mwd = a.lab("mw_ok"); msl = a.lab("ml_slow"); msd = a.lab("ml_done")
        a(f"""s_mov_b32 s40, {hx(LOG2E)}
        v_mov_b32 v20, s45
        v_lshl_add_u32 v21, v0, 3, s45
        s_mov_b32 s42, 0
        {mw}:
        ds_read_b128 v[36:39], v2 offset:{L_ML}
        ds_read_b128 v[40:43], v2 offset:{L_ML+16}
        s_add_u32 s42, s42, 1
        s_waitcnt lgkmcnt(0)
        v_min3_u32 v44, v37, v39, v41
        v_min_u32 v44, v44, v43
        v_cmp_eq_u32 vcc, 0, v44
        s_cbranch_vccz {mwd}
        s_sleep 1
        s_cmp_lt_u32 s42, {SPIN*20}
        s_cbranch_scc1 {mw}
        {mwd}:
        v_max3_f32 v44, v36, v38, v40
        v_max_f32 v44, v44, v42""")
        for i in range(4):
            a(f"v_sub_f32 v{36+2*i}, v{36+2*i}, v44")
        for i in range(4):
            a(f"v_mul_f32 v{36+2*i}, s40, v{36+2*i}")
        for i in range(4):
            a(f"v_exp_f32 v{36+2*i}, v{36+2*i}")
        a(f"""v_mul_f32 v46, v36, v37
        v_mov_b32 v45, s44
        v_fmac_f32 v46, v38, v39
        v_mov_b32 v47, s44
        v_fmac_f32 v46, v40, v41
        v_fmac_f32 v46, v42, v43
        s_cmp_lg_u32 s46, 0
        s_cbranch_scc1 {msl}
        global_store_dwordx4 v20, v[44:47], s[28:29] offset:2560
        s_branch {msd}
        {msl}:
        global_store_dwordx4 v20, v[44:47], s[28:29] offset:2560 sc1
        {msd}:""")
        a.stamp(8)
        a("s_barrier")
        for u in range(4):
            a(f"ds_read2st64_b64 v[{48+4*u}:{51+4*u}], v1 offset0:{L_RED//512 + 2*u} offset1:{L_RED//512 + 2*u + 1}")
        osl = a.lab("op_slow"); osd = a.lab("op_done")
        a(f"""s_waitcnt lgkmcnt(2)
        v_pk_add_f32 v[48:49], v[48:49], v[50:51]
        v_pk_add_f32 v[52:53], v[52:53], v[54:55]
        v_pk_mul_f32 v[48:49], v[48:49], v[36:37] op_sel_hi:[1,0]
        s_waitcnt lgkmcnt(0)
        v_pk_add_f32 v[56:57], v[56:57], v[58:59]
        v_pk_fma_f32 v[48:49], v[52:53], v[38:39], v[48:49] op_sel_hi:[1,0,1]
        v_pk_add_f32 v[60:61], v[60:61], v[62:63]
        v_pk_fma_f32 v[48:49], v[56:57], v[40:41], v[48:49] op_sel_hi:[1,0,1]
        v_pk_fma_f32 v[48:49], v[60:61], v[42:43], v[48:49] op_sel_hi:[1,0,1]
        v_and_or_b32 v48, v48, s49, v246
        v_and_or_b32 v49, v49, s49, v246
        s_cmp_lg_u32 s46, 0
        s_cbranch_scc1 {osl}
        global_store_dwordx2 v21, v[48:49], s[28:29] offset:2048
        s_branch {osd}
        {osl}:
        global_store_dwordx2 v21, v[48:49], s[28:29] offset:2048 sc1
        {osd}:""")
        a.stamp(10)
        if p.get("dirty"):
            a(f"""s_lshl_b32 s35, s34, 14
            s_add_u32 s35, s35, 0x400000
            v_lshl_add_u32 v3, v0, 4, s35""")
            for u in range(p["dirty"]):
                a(f"global_store_dwordx4 v3, v[16:19], s[28:29]\nv_add_u32 v3, 1024, v3")
        gf = a.lab("gf"); gfd = a.lab("gf_ok"); free = a.lab("notfree"); nb = a.lab("nob3b")
        a(f"""s_cmp_lg_u32 s31, 2
        s_cbranch_scc1 {free}""")
        if p.get("hold"):
            hl = a.lab("hold")
            if p.get("holdx") is not None:
                a(f"s_cmp_lg_u32 s30, {p['holdx']}\ns_cbranch_scc1 L_exit")
            a(f"""{hl}:
            s_memrealtime s[94:95]
            s_waitcnt lgkmcnt(0)
            s_sub_u32 s94, s94, s96
            s_cmp_lt_u32 s94, {p['hold']}
            s_cbranch_scc1 {hl}""")
        a.finish()
        a(f"""{free}:
        v_lshlrev_b32 v2, 4, v0
        s_barrier
        s_cmp_eq_u32 s31, 1
        s_cbranch_scc1 L_mlp_ctrl""")
        for u in range(4):
            a(f"ds_read_b128 v[{48+4*u}:{51+4*u}], v2 offset:{L_RED2 + 1024*u}")
        a("""s_waitcnt lgkmcnt(2)
        v_pk_add_f32 v[48:49], v[48:49], v[52:53]
        v_pk_add_f32 v[50:51], v[50:51], v[54:55]
        s_waitcnt lgkmcnt(0)
        v_pk_add_f32 v[56:57], v[56:57], v[60:61]
        v_pk_add_f32 v[58:59], v[58:59], v[62:63]
        v_pk_add_f32 v[48:49], v[48:49], v[56:57]
        v_pk_add_f32 v[50:51], v[50:51], v[58:59]""")
        a.tagw([48, 49, 50, 51], 246)
        a("global_store_dwordx4 v23, v[48:51], s[28:29] sc1")
        a.stamp(11)
        if p["aack"]:
            a("s_waitcnt vmcnt(0)\ns_barrier")
        a.finish()
        self.mlp()
        if self.diag:
            a(f"""L_dump:
            s_mov_b64 exec, -1
            s_lshl_b32 s35, s34, 3
            s_add_u32 s35, s35, s3
            s_lshl_b32 s35, s35, 8
            s_add_u32 s35, s35, {STAMP}
            v_lshl_add_u32 v2, v0, 2, s35
            global_store_dword v2, v255, s[28:29]""")
        if p.get("holdat") is not None and not self.diag:
            h = p["holdat"]
            a("L_hold:\ns_cmp_eq_u32 s95, 0\ns_cbranch_scc1 L_exit")
            if len(h) > 2:
                a(f"s_cmp_lg_u32 s30, {h[2]}\ns_cbranch_scc1 L_exit")
            a("""L_hold2:
            s_memrealtime s[92:93]
            s_waitcnt lgkmcnt(0)
            s_sub_u32 s92, s92, s96
            s_cmp_lt_u32 s92, 2000
            s_cbranch_scc1 L_hold2""")
        a("L_exit:")
        a("s_endpgm")
        a("L_codeend:")

    def mlp(self):
        a = self
        p = self.p
        LATE = 80
        B1R = 112
        W1R, W2R = (TR, LATE) if p["mlpT"] == "w1" else (LATE, TR)
        go = a.lab("mlp_go"); cm = a.lab("mlp_common")
        self.sect = "m"
        a("L_mlp_ctrl:")
        a(f"""v_lshrrev_b32 v3, 4, v0
        v_and_b32 v2, 7, v0
        v_lshl_add_u32 v2, v3, 3, v2
        s_lshl_b32 s35, s39, 5
        v_add_lshl_u32 v252, v2, s35, 1
        global_load_ushort v252, v252, s[18:19]""")
        a.w1addr(14); a.w2addr(15)
        a.loadw1(W1R, 14)
        a.load8(W2R, 15, "s[20:21]", 1280)
        a(f"s_branch {cm}")
        a(f"""L_mlp:
        s_cmp_eq_u32 s31, 1
        s_cbranch_scc1 {go}""")
        a.finish()
        a(f"{go}:")
        if p["mlpT"] == "none":
            a.w1addr(14); a.w2addr(15)
            a("s_barrier")
            a.loadw1(W1R, 14)
            a.load8(W2R, 15, "s[20:21]", 1280)
        elif p["mlpT"] == "w2":
            a.w1addr(14)
            a("s_barrier")
            a.loadw1(W1R, 14)
        else:
            a.w2addr(14)
            a("s_barrier")
            a.load8(W2R, 14, "s[20:21]", 1280)
        a(f"""{cm}:
        s_lshl_b32 s35, s3, 8
        v_lshrrev_b32 v2, 4, v0
        v_and_b32 v12, 15, v0
        v_and_b32 v3, 7, v0
        v_lshl_add_u32 v3, v2, 3, v3
        s_lshl_b32 s37, s3, 13
        s_add_u32 s37, s37, {L_W1}
        v_lshlrev_b32 v3, 3, v3
        v_bfe_u32 v18, v0, 3, 1
        v_lshl_add_u32 v21, v18, 2, v3
        v_lshl_add_u32 v22, v12, 3, s35
        v_add_u32 v22, {L_T1}, v22
        v_and_b32 v3, 1, v0
        v_mul_u32_u24 v3, {YS}, v3
        v_lshl_add_u32 v3, v2, 4, v3
        v_add_u32 v23, s35, v3
        v_bfe_u32 v3, v0, 2, 2
        v_lshl_add_u32 v3, v2, 3, v3
        v_lshlrev_b32 v3, 6, v3
        v_and_b32 v12, 3, v0
        v_lshl_add_u32 v3, v12, 3, v3
        v_add_u32 v24, s37, v3
        v_lshl_add_u32 v19, v0, 4, s37
        s_mul_i32 s38, s39, 5120
        s_lshl_b32 s35, s3, 9
        s_add_u32 s38, s38, s35
        s_add_u32 s38, s38, {CP}""")
        a.dlayout(25, 3, bstride=2560)
        a(f"""v_add_u32 v25, s38, v25
        s_lshl_b32 s36, s30, 1
        s_add_u32 s36, s36, s3
        s_mul_i32 s36, s36, 2560
        s_add_u32 s36, s36, {HB}
        v_lshl_add_u32 v2, v0, 4, s36
        v_lshl_add_u32 v3, v0, 3, s36
        s_mul_i32 s36, s3, {YS}
        v_lshl_add_u32 v26, v0, 3, s36
        v_lshl_add_u32 v27, v0, 2, s36""")
        if p["mlpT"] == "w2":
            w = a.lab("w1w")
            a(f"""s_cmp_eq_u32 s3, 4
            s_cbranch_scc1 {w}
            s_waitcnt vmcnt(0)
            {w}:
            s_waitcnt vmcnt(8)""")
        else:
            a("s_waitcnt vmcnt(8)")
        for t in range(8):
            a(f"ds_write_b128 v19, v[{W1R+4*t}:{W1R+4*t+3}] offset:{1024*t}")
        a("s_waitcnt lgkmcnt(0)")
        for ks in range(4):
            for ct in range(2):
                for hf_ in range(2):
                    r = B1R + 4 * (2 * ks + ct) + 2 * hf_
                    a(f"ds_read_b64_tr_b16 v[{r}:{r+1}], v24 offset:{(32*ks + 4*hf_)*64 + 32*ct}")
        a("v_lshlrev_b32 v20, 16, v252")
        a.stamp(15)
        a.zeroA()
        B2R = 144
        a(f"""s_lshr_b32 s35, s39, 4
        s_lshl_b32 s35, s35, 1
        s_and_b32 s36, s39, 1
        s_add_u32 s35, s35, s36
        s_mul_i32 s35, s35, 5
        s_add_u32 s35, s35, s3
        s_lshl_b32 s35, s35, 2
        s_lshl_b32 s36, s30, 8
        s_add_u32 s35, s35, s36
        s_add_u32 s35, s35, {LF}
        v_mov_b32 v18, s35
        v_mov_b32 v19, s43
        s_waitcnt vmcnt(0)""")
        for pp in range(4):
            a.transp(W2R, B2R, pp)
        a("s_waitcnt lgkmcnt(0)")
        a.stamp(12)
        noln = a.lab("noln")
        a(f"""s_cmp_ge_u32 s3, 2
        s_cbranch_scc1 {noln}""")

        def ldH():
            a("global_load_dwordx4 v[28:31], v2, s[28:29] sc1")
            a("global_load_dwordx4 v[32:35], v2, s[28:29] offset:1024 sc1")
            a("global_load_dwordx2 v[36:37], v3, s[28:29] offset:2048 sc1")
        def preH():
            sw = a.lab("hb_sw")
            a(f"""s_cmp_lg_u32 s42, s47
            s_cbranch_scc1 {sw}
            v_add_u32 v2, {HB2 - HB}, v2
            v_add_u32 v3, {HB2 - HB}, v3
            {sw}:""")
        a("s_sub_u32 s47, s47, 1")
        a.pollt("hb", ldH, list(range(28, 38)), 16, pre=preH)
        if self.diag:
            a("v_writelane_b32 v255, s42, 27")
        a.stamp(13)
        a.ln(28, 40, 46, True)
        a.ln(28, 40, 46, False)
        a(f"""ds_write_b64 v26, v[40:41] offset:{L_Y}
        ds_write_b64 v26, v[42:43] offset:{L_Y + 512}
        ds_write_b32 v27, v44 offset:{L_Y + 1024}
        s_waitcnt lgkmcnt(0)
        {noln}:
        s_barrier""")
        a.stamp(18)
        for ks in range(4):
            a(f"ds_read_b128 v[{28+4*ks}:{31+4*ks}], v23 offset:{L_Y + 64*ks}")
        for ks in range(4):
            a(f"s_waitcnt lgkmcnt({3-ks})")
            for ct in range(2):
                c = "0" if ks == 0 else f"v[{44+4*ct}:{47+4*ct}]"
                r = B1R + 4 * (2 * ks + ct)
                a(f"v_mfma_f32_16x16x32_bf16 v[{44+4*ct}:{47+4*ct}], v[{28+4*ks}:{31+4*ks}], v[{r}:{r+3}], {c}")
        a(f"""s_mov_b64 exec, 0xffff
        ds_write2_b64 v22, v[44:45], v[48:49] offset0:0 offset1:16
        s_mov_b64 exec, -1
        v_mov_b32 v33, 1.0
        s_waitcnt lgkmcnt(0)
        s_barrier
        ds_read2st64_b32 v[28:29], v21 offset0:{L_T1//256} offset1:{L_T1//256+1}
        ds_read2st64_b32 v[30:31], v21 offset0:{L_T1//256+2} offset1:{L_T1//256+3}
        ds_read_b32 v32, v21 offset:{L_T1 + 1024}
        {"global_store_dword v18, v19, s[28:29]" if p["ctrig"] and p["lfpos"] == 0 else ""}
        s_waitcnt lgkmcnt(1)
        v_pk_add_f32 v[28:29], v[28:29], v[30:31]
        v_add_f32 v28, v28, v29
        s_waitcnt lgkmcnt(0)
        v_add_f32 v28, v28, v32
        v_cvt_pk_bf16_f32 v28, 0, v28
        v_add_f32 v28, v28, v20
        v_cvt_pk_bf16_f32 v28, 0, v28
        v_mul_f32 v29, v28, v28
        v_mul_f32 v30, {hx(-2.0*math.sqrt(2.0/math.pi)*LOG2E)}, v28
        v_fmamk_f32 v29, v29, {hx(0.044715)}, v33
        v_mul_f32 v29, v29, v30
        v_exp_f32 v29, v29
        v_add_f32 v29, 1.0, v29
        v_rcp_f32 v29, v29
        v_mul_f32 v28, v28, v29
        v_mov_b32_dpp v29, v28 quad_perm:[1,1,3,3] row_mask:0xf bank_mask:0xf
        v_cvt_pk_bf16_f32 v28, v28, v29
        v_mov_b32_dpp v70, v28 quad_perm:[0,0,0,0] row_mask:0xf bank_mask:0xa
        v_mov_b32_dpp v71, v28 quad_perm:[2,2,2,2] row_mask:0xf bank_mask:0xa
        v_mov_b32_dpp v64, v28 quad_perm:[0,0,0,0] row_mask:0xf bank_mask:0x5
        v_mov_b32_dpp v65, v28 quad_perm:[2,2,2,2] row_mask:0xf bank_mask:0x5
        v_mov_b32_dpp v66, v70 row_half_mirror row_mask:0xf bank_mask:0x5
        v_mov_b32_dpp v67, v71 row_half_mirror row_mask:0xf bank_mask:0x5
        v_mov_b32_dpp v68, v64 row_half_mirror row_mask:0xf bank_mask:0xa
        v_mov_b32_dpp v69, v65 row_half_mirror row_mask:0xf bank_mask:0xa""")
        if p["ctrig"] and p["lfpos"] == 1:
            a("global_store_dword v18, v19, s[28:29]")
        a.nat8(B2R)
        for r in range(4):
            a(f"v_and_or_b32 v{28+r}, v{44+4*r}, s49, v246")
        a("global_store_dwordx4 v25, v[28:31], s[28:29] sc1")
        if p["ctrig"] and p["lfpos"] == 2:
            a("global_store_dword v18, v19, s[28:29]")
        a.stamp(14)
        a.finish()

    def write(self, fn):
        gen1.LDS_SIZE = self.p.get("lds", LDS_SIZE)
        gen1.G.write(self, fn)


if __name__ == "__main__":
    out = sys.argv[1] if len(sys.argv) > 1 else "k9.s"
    kw = {}
    diag = False
    for x in sys.argv[2:]:
        if x == "diag":
            diag = True
        else:
            k, v = x.split("=")
            kw[k] = eval(v)
    G(diag=diag, **kw).write(out)
```

```python
import sys, struct, math
from hz import process

NAME = "sequential_preLN__sliding_block_cached__mixer_channel_mlp__decode"


def hx(x):
    return "0x%08x" % struct.unpack("<I", struct.pack("<f", x))[0]


AP = 0x00000
HB = 0x28000
CP = 0x32000
HB2 = 0x76000
EP = 0x80000
LF = 0x81000
AF = 0x82000
BK = 0x100000
STAMP = 0x8000000
L_Y = 0x0000; YS = 1408
L_Q = 0x0B00; L_ML = 0x0C00; L_Z = 0x0C80; L_QF = 0x0C90; L_QT = 0x0CC0
L_RED = 0x1000; L_RED2 = 0x2000; L_T1 = 0x3000
L_W1 = 0x4000
LDS_SIZE = L_W1 + 40960
KR, VR, FRG, TR = 16, 80, 144, 208
LOG2E = 1.4426950408889634
SPIN = 400000
DPPF = "row_mask:0xf bank_mask:0xf"


class G:
    def __init__(self, diag=False, **kw):
        self.L = []
        self.diag = diag
        self.n = 0
        self.sect = "a"
        self.p = dict(F=9, Pw=9, Pw2=10, Pn=8, Pn2=9, tsl=(8, 13, 18, 23, 28, 32, 32, 32), mat=32, chk=31,
                      qtrig=3, qslow=3, hslow=100, cslow=60, lfpos=2, fast=True, nt="nt", w1fl="", warm=True,
                      mlpT=0, b3b=True, atrig=0, n1=20, oppre=1)
        self.p.update(kw)

    def __call__(self, s):
        for ln in s.split("\n"):
            ln = ln.strip()
            if ln:
                self.L.append(ln)

    def lab(self, p):
        self.n += 1
        return f"L_{p}_{self.n}"

    def stamp(self, idx):
        p = self.p
        h = p.get("holdat")
        if h is not None and not self.diag:
            if (self.sect, idx) == tuple(h[:2]):
                self("s_memrealtime s[96:97]\ns_waitcnt lgkmcnt(0)\ns_mov_b32 s95, 1")
            return
        if not self.diag or (p.get("lite") and idx != 31):
            return
        if p.get("only") is not None and idx != 31 and (self.sect + str(idx)) not in p["only"].split(","):
            return
        self(f"s_memrealtime s[100:101]\ns_waitcnt lgkmcnt(0)\nv_writelane_b32 v255, s100, {idx}")

    def note(self, idx):
        if self.diag:
            self(f"v_writelane_b32 v255, s42, {idx}")

    def finish(self):
        if self.diag:
            self.stamp(31)
            self("s_branch L_dump")
        elif self.p.get("holdat") is not None:
            self("s_branch L_hold")
        else:
            self("s_endpgm")

    def rnd(self, d, src):
        self(f"v_cvt_pk_bf16_f32 v{d}, 0, {src}")

    def ln(self, X, P, T, keep):
        a = self
        pr = lambda r: f"v[{r}:{r+1}]"
        a(f"v_pk_add_f32 {pr(T)}, {pr(X)}, {pr(X+2)}")
        a(f"v_pk_mul_f32 {pr(T+2)}, {pr(X)}, {pr(X)}")
        for i in (4, 6, 8):
            a(f"v_pk_add_f32 {pr(T)}, {pr(T)}, {pr(X+i)}")
            a(f"v_pk_fma_f32 {pr(T+2)}, {pr(X+i-2)}, {pr(X+i-2)}, {pr(T+2)}")
        a(f"v_pk_fma_f32 {pr(T+2)}, {pr(X+8)}, {pr(X+8)}, {pr(T+2)}")
        a(f"v_add_f32 v{T}, v{T}, v{T+1}")
        a(f"v_add_f32 v{T+2}, v{T+2}, v{T+3}")
        a(f"v_permlane32_swap_b32 v{T}, v{T+2}")
        a(f"v_add_f32 v{T}, v{T}, v{T+2}")
        for d in ("quad_perm:[1,0,3,2]", "quad_perm:[2,3,0,1]", "row_half_mirror", "row_mirror"):
            a(f"v_add_f32_dpp v{T}, v{T}, v{T} {d} {DPPF}")
        a(f"v_add_f32_dpp v{T}, v{T}, v{T} row_bcast:15 row_mask:0xa bank_mask:0xf")
        a(f"v_mul_f32 v{T}, {hx(1.0/640.0)}, v{T}")
        a(f"v_readlane_b32 s41, v{T}, 63")
        a(f"v_readlane_b32 s40, v{T}, 31")
        a(f"v_mov_b32 v{T+2}, s41")
        a.rnd(T, "s40")
        a(f"v_fma_f32 v{T+2}, -s40, s40, v{T+2}")
        sub = lambda i: a(f"v_pk_add_f32 {pr(X+i)}, {pr(X+i)}, {pr(T)} op_sel_hi:[1,0] neg_lo:[0,1] neg_hi:[0,1]")
        sub(0)
        a(f"v_max_f32 v{T+2}, 0, v{T+2}")
        sub(2)
        a.rnd(T+2, f"v{T+2}")
        sub(4)
        a(f"v_add_f32 v{T+2}, {hx(1e-5)}, v{T+2}")
        sub(6)
        a.rnd(T+2, f"v{T+2}")
        sub(8)
        a(f"v_sqrt_f32 v{T+2}, v{T+2}")
        a.rnd(X, f"v{X}"); a.rnd(X+1, f"v{X+1}")
        a.rnd(T+2, f"v{T+2}")
        a.rnd(X+2, f"v{X+2}")
        a(f"v_rcp_f32 v{T+2}, v{T+2}")
        for i in range(3, 10):
            a.rnd(X+i, f"v{X+i}")
        for i in range(5):
            a(f"v_pk_mul_f32 {pr(X+2*i)}, {pr(X+2*i)}, {pr(T+2)} op_sel_hi:[1,0]")
        if keep:
            for i in range(10):
                a.rnd(X+i, f"v{X+i}")
        else:
            for i in range(5):
                a(f"v_cvt_pk_bf16_f32 v{P+i}, v{X+2*i}, v{X+2*i+1}")

    def selectors(self):
        a = self
        a("""v_and_b32 v2, 1, v0
        v_cmp_eq_u32 vcc, 1, v2
        v_mov_b32 v2, 0x0c0c0100
        v_mov_b32 v3, 0x01000c0c
        v_cndmask_b32 v12, v2, v3, vcc
        v_mov_b32 v2, 0x0c0c0302
        v_mov_b32 v3, 0x03020c0c
        v_cndmask_b32 v13, v2, v3, vcc
        v_bfe_u32 v2, v0, 1, 2
        v_mov_b32 v3, 0x0c0c0c0c""")
        for r in range(4):
            a(f"v_cmp_eq_u32 vcc, {r}, v2")
            a(f"v_cndmask_b32 v{4+r}, v3, v12, vcc")
            a(f"v_cndmask_b32 v{8+r}, v3, v13, vcc")

    def dlayout(self, dst, t, bstride):
        self(f"""v_and_b32 v{dst}, 15, v0
        v_lshlrev_b32 v{dst}, 5, v{dst}
        v_and_b32 v{t}, 16, v0
        v_add_u32 v{dst}, v{dst}, v{t}
        v_lshrrev_b32 v{t}, 5, v0
        v_mul_u32_u24 v{t}, {bstride}, v{t}
        v_add_u32 v{dst}, v{dst}, v{t}""")

    def rowaddr(self, dst):
        self(f"""v_lshrrev_b32 v2, 4, v0
        v_mul_u32_u24 v2, 10240, v2
        v_and_b32 v3, 15, v0
        v_lshl_add_u32 v2, v3, 4, v2
        v_add_u32 v{dst}, s36, v2""")

    ROLES = """s_and_b32 s35, s32, 3
        s_mul_i32 s35, s35, 3
        s_add_u32 s35, s35, s33
        s_sub_u32 s35, s35, 5
        s_and_b32 s39, s35, 1
        s_andn2_b32 s35, s35, 1
        s_lshl_b32 s35, s35, 2
        s_add_u32 s35, s35, s30
        s_cmp_lt_u32 s35, 27
        s_cselect_b32 s31, 1, 2
        s_lshl_b32 s35, s35, 1
        s_add_u32 s39, s39, s35
        s_min_u32 s39, s39, 53
        s_cmp_lt_u32 s33, 5
        s_cselect_b32 s31, 0, s31"""

    def pollt(self, name, loads, words, T, pre=None, first_issued=False):
        a = self
        lp = a.lab(name); done = a.lab(name + "_ok"); mid = a.lab(name + "_w")
        a("s_mov_b32 s42, 0")
        if first_issued:
            a(f"s_branch {mid}")
        a(f"{lp}:")
        if pre:
            pre()
        loads()
        a(f"{mid}:")
        a("s_add_u32 s42, s42, 1")
        a("s_waitcnt vmcnt(0)")
        w = list(words)
        for r in w:
            a(f"v_xor_b32 v{r}, v246, v{r}")
        a(f"v_or_b32 v{T}, v{w[0]}, v{w[1]}")
        for i in range(2, len(w), 2):
            a(f"v_or3_b32 v{T}, v{T}, v{w[i]}, v{w[i+1]}")
        a(f"v_cmp_ne_u32_sdwa vcc, v{T}, v13 src0_sel:BYTE_0 src1_sel:DWORD")
        a(f"s_cbranch_vccz {done}")
        a(f"s_cmp_lt_u32 s42, {SPIN}")
        a(f"s_cbranch_scc1 {lp}")
        a(f"{done}:")

    def red16(self, A):
        self(f"""v_permlane32_swap_b32 v{A}, v{A+2}
        v_permlane32_swap_b32 v{A+1}, v{A+3}
        v_pk_add_f32 v[{A}:{A+1}], v[{A}:{A+1}], v[{A+2}:{A+3}]
        v_permlane16_swap_b32 v{A}, v{A+1}
        v_add_f32 v{A}, v{A}, v{A+1}
        v_add_f32_dpp v{A}, v{A}, v{A} row_ror:4 {DPPF}
        v_add_f32_dpp v{A}, v{A}, v{A} row_ror:8 {DPPF}""")

    def transp(self, R, B, pp):
        for T in range(8):
            self(f"v_perm_b32 v{B+4*T+pp}, v{R+4*(2*pp+1)+T//2}, v{R+4*(2*pp)+T//2}, s{52+(T&1)}")

    def nat8(self, B):
        for r in range(4):
            self(f"v_mfma_f32_16x16x32_bf16 v[{44+4*r}:{47+4*r}], v[64:67], v[{B+4*r}:{B+4*r+3}], 0")
        for r in range(4):
            self(f"v_mfma_f32_16x16x32_bf16 v[{44+4*r}:{47+4*r}], v[68:71], v[{B+16+4*r}:{B+16+4*r+3}], v[{44+4*r}:{47+4*r}]")

    def zeroA(self):
        self("s_mov_b32 s52, 0x05040100\ns_mov_b32 s53, 0x07060302")
        for r in range(64, 72, 2):
            self(f"v_mov_b64 v[{r}:{r+1}], 0")

    def stream(self, withT, extra):
        a = self
        p = self.p
        nt = p["nt"]
        F = p["F"]
        P1, P2 = (p["Pw"], p["Pw2"]) if withT == 8 else (p["Pn"], p["Pn2"])
        kv = [("K", t) for t in range(16)] + [("V", t) for t in range(16)]
        order = kv[:F]
        tsl = list(p["tsl"]) if withT == 8 else [32] * withT
        tk = 0
        for i in range(F, 33):
            for pos_, it in extra:
                if pos_ == i:
                    order.append(it)
            while tk < len(tsl) and tsl[tk] <= i:
                order.append(("T", tk)); tk += 1
            if i < 32:
                order.append(kv[i])
        NL = len(order)
        pos = {it: i for i, it in enumerate(order)}
        st = {"issued": F, "done": -1}
        big = lambda j: order[j][0] != "S"

        def emit(it):
            k, t = it
            if k == "K":
                if t == 8:
                    a("v_add_u32 v1, 32768, v1")
                a(f"global_load_dwordx4 v[{KR+4*t}:{KR+4*t+3}], v1, s[6:7] offset:{(t%8)*1024-4096} {nt}")
            elif k == "V":
                if t == 8:
                    a("v_add_u32 v14, 32768, v14")
                a(f"global_load_dwordx4 v[{VR+4*t}:{VR+4*t+3}], v14, s[8:9] offset:{(t%8)*1024-4096} {nt}")
            elif k == "T":
                base = "s[12:13]" if withT == 8 else "s[20:21]"
                if t == 7:
                    a("v_add_u32 v15, 5120, v15")
                a(f"global_load_dwordx4 v[{TR+4*t}:{TR+4*t+3}], v15, {base} offset:{(t-3)*1280 if t < 7 else 0} {nt}")
            else:
                a(t)
        self.emit = emit

        def issue(pace=0):
            i = st["issued"]
            if pace and big(i):
                cnt = 0; j = i
                while j > 0 and cnt < pace:
                    j -= 1
                    cnt += big(j)
                if cnt == pace and j > st["done"]:
                    a(f"s_waitcnt vmcnt({i-1-j})")
                    st["done"] = j
            emit(order[i])
            st["issued"] += 1

        def wait_for(it):
            i = pos[it]
            assert i < st["issued"]
            if st["done"] < i:
                a(f"s_waitcnt vmcnt({st['issued']-1-i})")
                st["done"] = i
        trig = False
        while st["done"] < pos[("K", 15)]:
            issue(P1)
            if not trig and st["done"] >= pos[("K", p["qtrig"])]:
                a(f"ds_write_b32 v12, v247 offset:{L_QT}")
                trig = True
        a.stamp(1)
        lastchk = pos[kv[p["chk"]]]
        first = True
        while st["issued"] <= lastchk:
            sk = a.lab("chk")
            if not first:
                a(f"s_cmp_lg_u32 s47, 0\ns_cbranch_scc1 {sk}")
            a(f"""ds_read_b64 v[2:3], v13 offset:{L_QF}
            s_waitcnt lgkmcnt(0)
            v_readfirstlane_b32 s47, v3
            s_cmp_eq_u32 s47, 0
            s_cbranch_scc1 {sk}
            s_call_b64 s[50:51], L_compute
            {sk}:""")
            first = False
            issue(P2)
        lp = a.lab("qw"); sk = a.lab("qw_done"); go = a.lab("qw_go")
        a(f"""s_cmp_lg_u32 s47, 0
        s_cbranch_scc1 {sk}
        s_mov_b32 s42, 0
        {lp}:
        ds_read_b64 v[2:3], v13 offset:{L_QF}
        s_add_u32 s42, s42, 1
        s_waitcnt lgkmcnt(0)
        v_readfirstlane_b32 s47, v3
        s_cmp_lg_u32 s47, 0
        s_cbranch_scc1 {go}
        s_cmp_lt_u32 s42, {SPIN*20}
        s_cbranch_scc1 {lp}
        {go}:
        s_call_b64 s[50:51], L_compute
        {sk}:""")
        a.stamp(19)

        def topup():
            while st["issued"] < NL:
                infl = sum(big(j) for j in range(st["done"] + 1, st["issued"]))
                if infl >= P2 and big(st["issued"]):
                    break
                issue()
        topup()
        for t in range(16):
            a(f"v_mov_b32_dpp v{48+t%2}, v{20+t//4} row_newbcast:{4*(t%4)} {DPPF}")
            for r in range(4):
                a(f"v_perm_b32 v{FRG+4*(t%4)+r}, v{48+t%2}, v{48+t%2}, v{240+r}")
            while st["issued"] <= pos[("V", t)]:
                issue(P2)
            wait_for(("V", t))
            topup()
            c = "0" if t == 0 else "v[44:47]"
            a(f"v_mfma_f32_16x16x32_bf16 v[44:47], v[{FRG+4*(t%4)}:{FRG+4*(t%4)+3}], v[{VR+4*t}:{VR+4*t+3}], {c}")
        while st["issued"] < NL:
            issue()
        a(f"ds_write_b128 v248, v[44:47] offset:{L_RED}\ns_waitcnt lgkmcnt(0)")
        a.stamp(20)
        a("s_barrier")
        a.stamp(5)
        return st, pos, wait_for, lastchk

    def build(self):
        a = self
        p = self.p
        nt = p["nt"]
        a(f"""
        s_cmp_ge_u32 s2, 256
        s_cbranch_scc1 L_exit
        s_load_dwordx16 s[4:19], s[0:1], 0
        s_load_dwordx8 s[20:27], s[0:1], 64
        s_load_dwordx2 s[28:29], s[0:1], 96
        v_lshrrev_b32 v1, 6, v0
        v_and_b32 v0, 63, v0
        v_readfirstlane_b32 s3, v1
        s_and_b32 s30, s2, 7
        s_lshr_b32 s31, s2, 3
        s_lshl_b32 s34, s30, 5
        s_add_u32 s34, s34, s31
        s_lshr_b32 s32, s34, 3
        s_and_b32 s33, s34, 7
        """)
        if self.diag:
            a("v_mov_b32 v255, 0\ns_memrealtime s[100:101]")
        if p.get("holdat") is not None:
            a("s_mov_b32 s95, 0")
        a("""s_sub_u32 s3, s3, 1
        s_cbranch_scc0 L_att""")
        WQ = 80
        a(f"""s_setprio 3
        s_mov_b32 s3, 4
        s_getpc_b64 s[36:37]
        L_pc:
        s_sub_u32 s36, s36, L_pc-{NAME}_kernel
        s_subb_u32 s37, s37, 0
        s_lshl_b32 s35, s33, 11
        v_and_b32 v12, 15, v0
        v_lshl_add_u32 v1, v12, 7, s35
        v_min_u32 v1, L_codeend-{NAME}_kernel-4, v1
        global_load_dword v254, v1, s[36:37]
        v_lshlrev_b32 v1, 3, v0
        v_lshlrev_b32 v2, 2, v0
        v_mov_b32 v36, 0
        ds_write_b32 v2, v36 offset:{L_ML}
        s_mul_i32 s35, s33, {80*8192}
        s_lshl_b32 s38, s32, 8
        s_add_u32 s35, s35, s38
        v_lshrrev_b32 v3, 4, v0
        v_mul_u32_u24 v3, {20*8192}, v3
        v_lshl_add_u32 v3, v12, 4, v3
        v_add_u32 v3, s35, v3
        s_lshl_b32 s45, s34, 12
        s_add_u32 s45, s45, {BK}
        {"v_min_u32 v12, 20, v0" if p["oppre"] == 0 else ""}
        v_lshl_add_u32 v20, v12, 7, s45
        v_mov_b32 v12, {EP}
        s_movk_i32 s38, 0x2000
        s_waitcnt lgkmcnt(0)
        """)
        if self.diag:
            a("v_writelane_b32 v255, s100, 0")
        a(f"""global_load_dwordx2 v[24:25], v1, s[4:5]
        global_load_dwordx2 v[26:27], v1, s[4:5] offset:512
        global_load_dword v28, v2, s[4:5] offset:1024
        global_load_dwordx2 v[30:31], v1, s[4:5] offset:1280
        global_load_dwordx2 v[32:33], v1, s[4:5] offset:1792
        global_load_dword v34, v2, s[4:5] offset:2304
        global_load_dword v15, v12, s[28:29] sc1
        global_load_dword v253, v20, s[28:29] nt""")
        for t in range(20):
            if t:
                a("v_add_u32 v3, s38, v3")
            a(f"global_load_dwordx4 v[{WQ+4*t}:{WQ+4*t+3}], v3, s[10:11] {nt}")
        a("s_barrier\ns_branch L_ctrl")
        a(f"""L_att:
        s_lshr_b32 s35, s33, 2
        s_lshl_b32 s35, s35, 5
        s_add_u32 s35, s35, s32
        s_lshl_b32 s35, s35, 4
        s_and_b32 s36, s33, 3
        s_add_u32 s35, s35, s36
        s_add_u32 s35, s35, 12
        s_lshl_b32 s35, s35, 3
        s_add_u32 s35, s35, s3
        s_lshl_b32 s35, s35, 13
        s_add_u32 s35, s35, 4096
        v_bfe_u32 v1, v0, 2, 2
        v_lshlrev_b32 v1, 8, v1
        v_lshrrev_b32 v2, 4, v0
        v_lshl_add_u32 v1, v2, 6, v1
        v_and_b32 v2, 3, v0
        v_lshl_add_u32 v1, v2, 4, v1
        v_add_u32 v1, s35, v1
        v_lshl_add_u32 v14, v0, 4, s35
        s_waitcnt lgkmcnt(0)
        """)
        if self.diag:
            a("v_writelane_b32 v255, s100, 0")
        a("s_barrier")
        for t in range(p["F"]):
            if t == 8:
                a("v_add_u32 v1, 32768, v1")
            a(f"global_load_dwordx4 v[{KR+4*t}:{KR+4*t+3}], v1, s[6:7] offset:{(t%8)*1024-4096} {nt}")
        a.stamp(16)
        a.selectors()
        a("v_and_b32 v2, 8, v0\nv_cmp_eq_u32 vcc, 8, v2")
        for r in range(4):
            a(f"v_cndmask_b32 v{240+r}, v{4+r}, v{8+r}, vcc")
        a(f"""v_lshrrev_b32 v2, 4, v0
        v_and_b32 v3, 3, v0
        v_lshl_add_u32 v2, v2, 2, v3
        v_lshlrev_b32 v2, 4, v2
        v_add_u32 v2, {L_Q}, v2
        v_bfe_u32 v3, v0, 2, 2
        v_mov_b32 v12, {L_Z}""")
        for qd in range(4):
            a(f"v_cmp_eq_u32 vcc, {qd}, v3")
            a(f"v_cndmask_b32 v{200+qd}, v12, v2, vcc")
        a.dlayout(248, 3, 512)
        a(f"""s_lshl_b32 s36, s3, 10
        v_add_u32 v248, s36, v248
        s_lshl_b32 s36, s32, 15
        s_add_u32 s36, s36, {BK + 2560}
        v_and_b32 v2, 8, v0
        v_lshlrev_b32 v2, 11, v2
        v_and_b32 v3, 3, v0
        v_lshl_add_u32 v2, v3, 12, v2
        v_add_u32 v247, s36, v2
        s_mov_b32 s40, {hx(128 ** -0.5)}
        s_mov_b32 s48, {hx(LOG2E)}
        s_mov_b32 s49, 0xffffff00
        s_lshl_b32 s36, s3, 3
        v_mov_b32 v12, s36
        v_mov_b32 v13, 0
        s_mov_b32 s47, 0
        s_cmp_ge_u32 s33, 5
        s_cbranch_scc1 L_att_n""")
        self.att_wo()
        self.att_other()
        self.compute()
        self.ctrl()
        if self.diag:
            a(f"""L_dump:
            s_mov_b64 exec, -1
            s_lshl_b32 s35, s34, 3
            s_add_u32 s35, s35, s3
            s_lshl_b32 s35, s35, 8
            s_add_u32 s35, s35, {STAMP}
            v_lshl_add_u32 v2, v0, 2, s35
            global_store_dword v2, v255, s[28:29]""")
        elif p.get("holdat") is not None:
            h = p["holdat"]
            a("L_hold:\ns_cmp_eq_u32 s95, 0\ns_cbranch_scc1 L_exit")
            a("""L_hold2:
            s_memrealtime s[92:93]
            s_waitcnt lgkmcnt(0)
            s_sub_u32 s92, s92, s96
            s_cmp_lt_u32 s92, 2000
            s_cbranch_scc1 L_hold2""")
        a("L_exit:\ns_endpgm\nL_codeend:")

    def att_wo(self):
        a = self
        p = self.p
        a(f"""s_lshl_b32 s36, s32, 2
        s_add_u32 s36, s36, s3
        s_mul_i32 s36, s36, {32*1280}
        s_lshl_b32 s37, s33, 8
        s_add_u32 s36, s36, s37
        s_add_u32 s36, s36, {3*1280}""")
        a.rowaddr(15)
        a(f"""s_lshl_b32 s35, s3, 7
        s_sub_u32 s35, s35, 512
        v_lshrrev_b32 v3, 4, v0
        v_lshl_add_u32 v2, v3, 5, s35
        v_and_b32 v3, 4, v0
        v_lshl_add_u32 v2, v3, 2, v2
        v_add_u32 v249, v247, v2
        s_and_b32 s38, s32, 3
        s_mul_i32 s38, s38, 5
        s_add_u32 s38, s38, s33
        s_lshl_b32 s38, s38, 2
        s_add_u32 s38, s38, s3
        s_lshl_b32 s35, s38, 4
        v_and_b32 v2, 3, v0
        v_lshrrev_b32 v3, 4, v0
        v_lshl_add_u32 v2, v2, 2, v3
        v_add_lshl_u32 v250, v2, s35, 1
        s_lshl_b32 s35, s38, 6
        v_lshrrev_b32 v2, 2, v0
        v_mul_u32_u24 v2, 5120, v2
        v_and_b32 v3, 3, v0
        v_lshl_add_u32 v2, v3, 4, v2
        v_add_u32 v251, s35, v2
        s_mul_i32 s35, s30, 5120
        s_add_u32 s35, s35, {HB}
        v_lshl_add_u32 v252, v250, 1, s35
        v_add_u32 v253, {AP + 16*5120}, v251
        v_add_u32 v254, {HB2 - HB}, v252""")
        M1 = ("S", "global_load_dwordx4 v[40:43], v247, s[28:29] sc1")
        st, pos, wait_for, lastchk = self.stream(8, [(p["mat"], M1)])
        assert pos[M1] > lastchk
        factor = f"""v_max_f32_dpp v41, v40, v40 quad_perm:[1,0,3,2] {DPPF}
        v_max_f32_dpp v41, v41, v41 quad_perm:[2,3,0,1] {DPPF}
        v_sub_f32 v41, v40, v41
        v_mul_f32 v41, s48, v41
        v_exp_f32 v41, v41
        v_mul_f32 v43, v41, v42
        v_add_f32_dpp v43, v43, v43 quad_perm:[1,0,3,2] {DPPF}
        v_add_f32_dpp v43, v43, v43 quad_perm:[2,3,0,1] {DPPF}
        v_rcp_f32 v43, v43
        v_mul_f32 v38, v41, v43"""
        mlchk = """v_xor_b32 v26, s43, v41
        v_xor_b32 v27, s43, v43
        v_or_b32 v26, v26, v27
        v_lshlrev_b32 v26, 3, v26
        v_cmp_ne_u32 vcc, 0, v26"""
        BT = 80
        tdone = 0
        wait_for(M1)
        a(mlchk)
        a("s_mov_b64 s[54:55], vcc")
        a(factor)
        a.zeroA()
        while tdone < 4 and pos[("T", 2*tdone+1)] <= st["done"]:
            a.transp(TR, BT, tdone); tdone += 1
        if p["b3b"]:
            a("s_barrier")
        nom = a.lab("nom2"); ml = a.lab("ml"); mlok = a.lab("ml_ok"); mlf = a.lab("ml_f")
        a(f"""s_cmp_eq_u64 s[54:55], 0
        s_cbranch_scc1 {nom}
        global_load_dwordx4 v[40:43], v247, s[28:29] sc1
        {nom}:
        global_load_dwordx4 v[28:31], v249, s[28:29] sc1""")
        st["issued"] += 1
        while tdone < 4:
            wait_for(("T", 2*tdone+1)); a.transp(TR, BT, tdone); tdone += 1
        a(f"""s_mov_b32 s42, 0
        s_cmp_eq_u64 s[54:55], 0
        s_cbranch_scc1 {mlok}
        {ml}:
        s_waitcnt vmcnt(0)
        {mlchk}
        s_cbranch_vccz {mlf}
        global_load_dwordx4 v[40:43], v247, s[28:29] sc1
        s_add_u32 s42, s42, 1
        s_cmp_lt_u32 s42, {SPIN}
        s_cbranch_scc1 {ml}
        s_waitcnt vmcnt(0)
        {mlf}:
        {"s_add_u32 s42, s42, 1" if self.diag else ""}
        {factor}
        {mlok}:""")
        a.stamp(21)
        a.pollt("og", lambda: a("global_load_dwordx4 v[28:31], v249, s[28:29] sc1"), [28, 29, 30, 31], 26, first_issued=True)
        a.stamp(6)
        a("""v_pk_mul_f32 v[28:29], v[28:29], v[38:39] op_sel_hi:[1,0]
        v_pk_mul_f32 v[30:31], v[30:31], v[38:39] op_sel_hi:[1,0]""")
        for d in ("quad_perm:[1,0,3,2]", "quad_perm:[2,3,0,1]"):
            for r in range(4):
                a(f"v_add_f32_dpp v{28+r}, v{28+r}, v{28+r} {d} {DPPF}")
        a("""v_cvt_pk_bf16_f32 v32, v28, v29
        v_cvt_pk_bf16_f32 v33, v30, v31
        v_mov_b32_dpp v64, v32 quad_perm:[0,1,2,3] row_mask:0xf bank_mask:0x5
        v_mov_b32_dpp v66, v32 row_half_mirror row_mask:0xf bank_mask:0x5
        v_mov_b32_dpp v65, v33 quad_perm:[0,1,2,3] row_mask:0xf bank_mask:0x5
        v_mov_b32_dpp v67, v33 row_half_mirror row_mask:0xf bank_mask:0x5
        v_mov_b32_dpp v68, v32 row_half_mirror row_mask:0xf bank_mask:0xa
        v_mov_b32_dpp v69, v33 row_half_mirror row_mask:0xf bank_mask:0xa
        v_mov_b32_dpp v70, v32 quad_perm:[0,1,2,3] row_mask:0xf bank_mask:0xa
        v_mov_b32_dpp v71, v33 quad_perm:[0,1,2,3] row_mask:0xf bank_mask:0xa""")
        a.nat8(BT)
        a(f"""v_mov_b32 v45, v48
        v_mov_b32 v46, v52
        v_mov_b32 v47, v56
        ds_write_b128 v248, v[44:47] offset:{L_RED2}
        s_waitcnt lgkmcnt(0)
        s_barrier
        global_load_ushort v20, v250, s[4:5]""")
        if not p["atrig"]:
            a("""s_waitcnt vmcnt(0)
            v_lshlrev_b32 v20, 16, v20
            s_barrier""")
        else:
            at = a.lab("at"); atd = a.lab("at_ok")
            a(f"""v_min_u32 v2, 19, v0
            s_lshl_b32 s35, s30, 8
            s_add_u32 s35, s35, {AF}
            v_lshl_add_u32 v2, v2, 2, s35
            s_min_u32 s42, s47, {p['cslow']}
            s_waitcnt vmcnt(0)
            v_lshlrev_b32 v20, 16, v20
            {at}:
            s_sub_u32 s42, s42, 1
            s_cmp_eq_u32 s42, 0
            s_cbranch_scc1 {atd}
            global_load_dword v3, v2, s[28:29] sc1
            s_waitcnt vmcnt(0)
            v_cmp_ne_u32 vcc, s43, v3
            s_cbranch_vccnz {at}
            {atd}:""")
        a.stamp(7)

        def ldA():
            a("global_load_dwordx4 v[28:31], v251, s[28:29] sc1")
            a("global_load_dwordx4 v[32:35], v253, s[28:29] sc1")
        assert AP == 0
        a.pollt("ha", ldA, list(range(28, 36)), 26)
        a.stamp(8)
        a("v_pk_add_f32 v[28:29], v[28:29], v[32:33]\nv_pk_add_f32 v[30:31], v[30:31], v[34:35]")
        a.red16(28)
        a(f"""v_cvt_pk_bf16_f32 v28, 0, v28
        s_mov_b32 exec_lo, 0x000f000f
        v_add_f32 v28, v28, v20
        s_mov_b32 exec_hi, 0x000f000f
        v_cvt_pk_bf16_f32 v19, 0, v28
        v_or_b32 v26, v19, v246
        global_store_dword v252, v26, s[28:29]
        global_store_dword v254, v26, s[28:29] sc1
        s_mov_b64 exec, -1""")
        a.stamp(9)
        fin = a.lab("fin"); nob = a.lab("nobump"); ct = a.lab("ct"); ctd = a.lab("ct_ok")
        a(f"""s_bfe_u32 s35, s38, 0x30001
        s_cmp_eq_u32 s35, s30
        s_cbranch_scc1 {fin}""")
        a.finish()
        a(f"""{fin}:
        s_cmp_ge_u32 s38, 40
        s_cselect_b32 s35, 1280, 0
        v_subrev_u32 v2, s35, v250
        global_load_ushort v21, v2, s[22:23]
        global_load_ushort v22, v250, s[24:25]
        s_cmp_lg_u32 s38, 0
        s_cbranch_scc1 {nob}
        v_mov_b32 v2, {EP}
        v_mov_b32 v3, s43
        global_store_dword v2, v3, s[28:29] sc1
        {nob}:""")
        for u in range(4):
            a(f"v_add_u32 v{48+u}, {CP + 16*5120*u}, v251")
        a(f"""s_cmp_lt_u32 s30, 3
        s_cselect_b32 s35, 31, 23
        v_min_u32 v2, s35, v0
        s_lshl_b32 s35, s30, 8
        s_add_u32 s35, s35, {LF}
        v_lshl_add_u32 v2, v2, 2, s35
        s_min_u32 s42, s47, {p['cslow']}
        s_waitcnt vmcnt(0)
        v_lshlrev_b32 v21, 16, v21
        {ct}:
        s_sub_u32 s42, s42, 1
        s_cmp_eq_u32 s42, 0
        s_cbranch_scc1 {ctd}
        global_load_dword v3, v2, s[28:29] sc1
        s_waitcnt vmcnt(0)
        v_cmp_ne_u32 vcc, s43, v3
        s_cbranch_vccnz {ct}
        {ctd}:""")
        a.stamp(22)

        def ldC():
            for u in range(3):
                a(f"global_load_dwordx4 v[{28+4*u}:{31+4*u}], v{48+u}, s[28:29] sc1")
            a("v_mov_b32 v40, v246\nv_mov_b32 v41, v246\nv_mov_b32 v42, v246\nv_mov_b32 v43, v246")
            a("s_mov_b64 exec, 0xffffff")
            a("global_load_dwordx4 v[40:43], v51, s[28:29] sc1")
            a("s_mov_b64 exec, -1")
        a.pollt("hc", ldC, list(range(28, 44)), 26)
        a.stamp(10)
        a("""v_pk_add_f32 v[28:29], v[28:29], v[32:33]
        v_pk_add_f32 v[30:31], v[30:31], v[34:35]
        v_pk_add_f32 v[36:37], v[36:37], v[40:41]
        v_pk_add_f32 v[38:39], v[38:39], v[42:43]
        v_pk_add_f32 v[28:29], v[28:29], v[36:37]
        v_pk_add_f32 v[30:31], v[30:31], v[38:39]""")
        a.red16(28)
        a("""v_cvt_pk_bf16_f32 v28, 0, v28
        s_mov_b32 exec_lo, 0x000f000f
        v_add_f32 v28, v28, v21
        s_mov_b32 exec_hi, 0x000f000f
        v_cvt_pk_bf16_f32 v28, 0, v28
        v_add_f32 v28, v28, v19
        v_cvt_pk_bf16_f32 v28, v28, v28
        global_store_short v250, v28, s[24:25]""")
        a.finish()

    def att_other(self):
        a = self
        p = self.p
        B1R = 104; B2R = 144; B3R = 176; XR = 184
        nT = p["mlpT"]
        a("L_att_n:")
        a(self.ROLES)
        a(f"""s_mul_i32 s36, s39, {32*1280}
        s_lshl_b32 s37, s3, 8
        s_add_u32 s36, s36, s37
        s_add_u32 s36, s36, {3*1280}""")
        a.rowaddr(15)
        a(f"""v_lshrrev_b32 v3, 4, v0
        v_and_b32 v2, 7, v0
        v_lshl_add_u32 v2, v3, 3, v2
        s_lshl_b32 s35, s39, 5
        v_add_lshl_u32 v252, v2, s35, 1
        s_mul_i32 s35, s3, {213*3456}
        s_lshl_b32 s37, s39, 6
        s_add_u32 s35, s35, s37
        v_mov_b32 v253, s35
        v_mov_b32 v254, s36""")
        extra = [(p.get("wat", 20), ("S", "global_load_ushort v252, v252, s[18:19]"))]
        if p["warm"]:
            extra += [(p.get("wat", 20), ("S", "global_load_dword v253, v253, s[16:17]")),
                      (p.get("wat", 20), ("S", "global_load_dword v254, v254, s[20:21]"))]
        st, pos, wait_for, lastchk = self.stream(nT, extra)
        go = a.lab("mlp_go")
        self.sect = "m"
        a(f"""s_cmp_eq_u32 s31, 1
        s_cbranch_scc1 {go}""")
        a.finish()
        a(f"""{go}:
        s_mul_i32 s36, s39, {32*1280}
        s_lshl_b32 s37, s3, 6
        s_add_u32 s36, s36, s37
        s_add_u32 s36, s36, {1024 + 3*1280}
        v_lshrrev_b32 v2, 4, v0
        v_mul_u32_u24 v3, 10240, v2
        v_and_b32 v12, 15, v0
        v_lshl_add_u32 v3, v12, 2, v3
        v_add_u32 v14, s36, v3
        v_add_u32 v16, 5120, v14
        s_barrier""")
        for t in range(nT, 8):
            self.emit(("T", t))
        for t in range(7):
            a(f"global_load_dword v{XR+t}, v14, s[20:21] offset:{(t-3)*1280}")
        a(f"global_load_dword v{XR+7}, v16, s[20:21]")
        a(f"""s_lshl_b32 s35, s3, 8
        v_and_b32 v3, 7, v0
        v_lshl_add_u32 v3, v2, 3, v3
        v_lshlrev_b32 v3, 3, v3
        v_bfe_u32 v18, v0, 3, 1
        v_lshl_add_u32 v21, v18, 2, v3
        v_lshl_add_u32 v22, v12, 3, s35
        v_add_u32 v22, {L_T1}, v22
        s_mul_i32 s35, s3, 320
        v_and_b32 v3, 1, v0
        v_mul_u32_u24 v3, {YS}, v3
        v_lshl_add_u32 v3, v2, 4, v3
        v_add_u32 v23, s35, v3
        s_mul_i32 s37, s3, 10240
        s_add_u32 s37, s37, {L_W1}
        v_bfe_u32 v3, v0, 2, 2
        v_lshl_add_u32 v3, v2, 3, v3
        v_lshlrev_b32 v3, 6, v3
        v_and_b32 v18, 3, v0
        v_lshl_add_u32 v3, v18, 3, v3
        v_add_u32 v24, s37, v3
        s_mul_i32 s38, s39, 5120
        s_add_u32 s38, s38, {CP}
        s_lshl_b32 s35, s3, 7
        s_add_u32 s35, s35, s38
        s_add_u32 s35, s35, 2048
        v_lshrrev_b32 v3, 5, v0
        v_mul_u32_u24 v3, 2560, v3
        v_lshl_add_u32 v3, v12, 3, v3
        v_and_b32 v18, 1, v2
        v_lshl_add_u32 v3, v18, 2, v3
        v_add_u32 v15, s35, v3
        s_lshl_b32 s35, s3, 9
        s_add_u32 s38, s38, s35""")
        a.dlayout(25, 3, 2560)
        a(f"""v_add_u32 v25, s38, v25
        s_lshl_b32 s36, s30, 1
        s_add_u32 s36, s36, s3
        s_mul_i32 s36, s36, 2560
        s_add_u32 s36, s36, {HB}
        v_lshl_add_u32 v2, v0, 4, s36
        v_lshl_add_u32 v3, v0, 3, s36
        s_mul_i32 s36, s3, {YS}
        v_lshl_add_u32 v26, v0, 3, s36
        v_lshl_add_u32 v27, v0, 2, s36
        v_lshlrev_b32 v20, 16, v252
        s_lshr_b32 s35, s39, 4
        s_lshl_b32 s35, s35, 1
        s_and_b32 s36, s39, 1
        s_add_u32 s35, s35, s36
        s_lshl_b32 s35, s35, 2
        s_add_u32 s35, s35, s3
        s_lshl_b32 s35, s35, 2
        s_lshl_b32 s36, s30, 8
        s_add_u32 s35, s35, s36
        s_add_u32 s35, s35, {LF}
        v_mov_b32 v18, s35
        v_mov_b32 v19, s43
        v_mov_b32 v12, 1.0""")
        a.zeroA()
        a("s_waitcnt vmcnt(8)")
        for pp in range(4):
            a.transp(TR, B2R, pp)
        a("s_waitcnt vmcnt(0)")
        for pp in range(4):
            for T in range(2):
                a(f"v_perm_b32 v{B3R+4*T+pp}, v{XR+2*pp+1}, v{XR+2*pp}, s{52+T}")
        a.stamp(15)
        a("s_barrier")
        for ks in range(5):
            for ct in range(2):
                for hf in range(2):
                    r = B1R + 4 * (2 * ks + ct) + 2 * hf
                    a(f"ds_read_b64_tr_b16 v[{r}:{r+1}], v24 offset:{(32*ks + 4*hf)*64 + 32*ct}")
        a.stamp(12)
        noln = a.lab("noln")
        a(f"""s_cmp_ge_u32 s3, 2
        s_cbranch_scc1 {noln}
        s_sub_u32 s47, s47, 1""")

        def ldH():
            a("global_load_dwordx4 v[28:31], v2, s[28:29] sc1")
            a("global_load_dwordx4 v[32:35], v2, s[28:29] offset:1024 sc1")
            a("global_load_dwordx2 v[36:37], v3, s[28:29] offset:2048 sc1")

        def preH():
            sw = a.lab("hb_sw")
            a(f"""s_cmp_lg_u32 s42, s47
            s_cbranch_scc1 {sw}
            v_add_u32 v2, {HB2 - HB}, v2
            v_add_u32 v3, {HB2 - HB}, v3
            {sw}:""")
        a.pollt("hb", ldH, list(range(28, 38)), 16, pre=preH)
        a.stamp(13)
        a.ln(28, 40, 46, True)
        a.ln(28, 40, 46, False)
        a(f"""ds_write_b64 v26, v[40:41] offset:{L_Y}
        ds_write_b64 v26, v[42:43] offset:{L_Y + 512}
        ds_write_b32 v27, v44 offset:{L_Y + 1024}
        {noln}:
        s_waitcnt lgkmcnt(0)
        s_barrier""")
        a.stamp(18)
        for ks in range(5):
            a(f"ds_read_b128 v[{28+4*ks}:{31+4*ks}], v23 offset:{L_Y + 64*ks}")
        for ks in range(5):
            a(f"s_waitcnt lgkmcnt({4-ks})")
            for ct in range(2):
                c = "0" if ks == 0 else f"v[{48+4*ct}:{51+4*ct}]"
                r = B1R + 4 * (2 * ks + ct)
                a(f"v_mfma_f32_16x16x32_bf16 v[{48+4*ct}:{51+4*ct}], v[{28+4*ks}:{31+4*ks}], v[{r}:{r+3}], {c}")
        lf = lambda k: "global_store_dword v18, v19, s[28:29]" if p["lfpos"] == k else ""
        a(f"""s_mov_b64 exec, 0xffff
        ds_write2_b64 v22, v[48:49], v[52:53] offset0:0 offset1:16
        s_mov_b64 exec, -1
        s_waitcnt lgkmcnt(0)
        s_barrier
        ds_read2st64_b32 v[28:29], v21 offset0:{L_T1//256} offset1:{L_T1//256+1}
        ds_read2st64_b32 v[30:31], v21 offset0:{L_T1//256+2} offset1:{L_T1//256+3}
        s_waitcnt lgkmcnt(0)
        v_pk_add_f32 v[28:29], v[28:29], v[30:31]
        v_add_f32 v28, v28, v29
        v_cvt_pk_bf16_f32 v28, 0, v28
        v_add_f32 v28, v28, v20
        v_cvt_pk_bf16_f32 v28, 0, v28
        v_mul_f32 v29, v28, v28
        v_mul_f32 v30, {hx(-2.0*math.sqrt(2.0/math.pi)*LOG2E)}, v28
        v_fmamk_f32 v29, v29, {hx(0.044715)}, v12
        v_mul_f32 v29, v29, v30
        v_exp_f32 v29, v29
        v_add_f32 v29, 1.0, v29
        v_rcp_f32 v29, v29
        v_mul_f32 v28, v28, v29
        v_mov_b32_dpp v29, v28 quad_perm:[1,1,3,3] {DPPF}
        v_cvt_pk_bf16_f32 v28, v28, v29
        v_mov_b32_dpp v70, v28 quad_perm:[0,0,0,0] row_mask:0xf bank_mask:0xa
        v_mov_b32_dpp v71, v28 quad_perm:[2,2,2,2] row_mask:0xf bank_mask:0xa
        v_mov_b32_dpp v64, v28 quad_perm:[0,0,0,0] row_mask:0xf bank_mask:0x5
        v_mov_b32_dpp v65, v28 quad_perm:[2,2,2,2] row_mask:0xf bank_mask:0x5
        v_mov_b32_dpp v66, v70 row_half_mirror row_mask:0xf bank_mask:0x5
        v_mov_b32_dpp v67, v71 row_half_mirror row_mask:0xf bank_mask:0x5
        v_mov_b32_dpp v68, v64 row_half_mirror row_mask:0xf bank_mask:0xa
        v_mov_b32_dpp v69, v65 row_half_mirror row_mask:0xf bank_mask:0xa
        v_mfma_f32_16x16x32_bf16 v[60:63], v[64:67], v[{B3R}:{B3R+3}], 0
        v_mfma_f32_16x16x32_bf16 v[60:63], v[68:71], v[{B3R+4}:{B3R+7}], v[60:63]""")
        a.nat8(B2R)
        a(f"""v_and_or_b32 v32, v60, s49, v246
        {lf(3)}
        global_store_dword v15, v32, s[28:29] sc1""")
        for r in range(4):
            a(f"v_and_or_b32 v{28+r}, v{44+4*r}, s49, v246")
        a(lf(4))
        a("global_store_dwordx4 v25, v[28:31], s[28:29] sc1")
        a(lf(2))
        a.stamp(14)
        a.finish()

    def compute(self):
        a = self
        self.sect = "a"
        QF = 144; DR = 160; SR = 16
        a("L_compute:")
        a("v_readfirstlane_b32 s43, v2\nv_and_b32 v246, 0xff, v2")
        a.stamp(2)
        for qd in range(4):
            a(f"ds_read_b128 v[{QF+4*qd}:{QF+4*qd+3}], v{200+qd}")
        for qd in range(4):
            a(f"s_waitcnt lgkmcnt({3-qd})")
            for u in range(4):
                t = 4 * u + qd
                c = "0" if qd == 0 else f"v[{DR+4*u}:{DR+4*u+3}]"
                a(f"v_mfma_f32_16x16x32_bf16 v[{DR+4*u}:{DR+4*u+3}], v[{KR+4*t}:{KR+4*t+3}], v[{QF+4*qd}:{QF+4*qd+3}], {c}")
        for u in range(4):
            a(f"v_mov_b32_dpp v{SR+u}, v{DR+4*u} quad_perm:[0,0,0,0] {DPPF}")
        for r in (1, 2, 3):
            for u in range(4):
                a(f"v_add_f32_dpp v{SR+u}, v{DR+4*u+r}, v{SR+u} quad_perm:[{r},{r},{r},{r}] {DPPF}")
        for r in range(16, 20):
            a.rnd(r, f"v{r}")
        a("""v_pk_mul_f32 v[16:17], v[16:17], s[40:41] op_sel_hi:[1,0]
        v_pk_mul_f32 v[18:19], v[18:19], s[40:41] op_sel_hi:[1,0]""")
        for r in range(16, 20):
            a.rnd(r, f"v{r}")
        a(f"""v_max3_f32 v28, v16, v17, v18
        v_max_f32 v28, v28, v19
        v_max_f32_dpp v28, v28, v28 row_ror:4 {DPPF}
        v_max_f32_dpp v28, v28, v28 row_ror:8 {DPPF}
        v_mov_b32 v29, v28
        v_permlane32_swap_b32 v28, v29
        v_max_f32 v28, v28, v29
        v_mov_b32 v29, v28
        v_permlane16_swap_b32 v28, v29
        v_max_f32 v28, v28, v29
        v_pk_add_f32 v[16:17], v[16:17], v[28:29] op_sel_hi:[1,0] neg_lo:[0,1] neg_hi:[0,1]
        v_pk_add_f32 v[18:19], v[18:19], v[28:29] op_sel_hi:[1,0] neg_lo:[0,1] neg_hi:[0,1]
        v_pk_mul_f32 v[16:17], v[16:17], s[48:49] op_sel_hi:[1,0]
        v_pk_mul_f32 v[18:19], v[18:19], s[48:49] op_sel_hi:[1,0]
        v_exp_f32 v16, v16
        v_exp_f32 v17, v17
        v_exp_f32 v18, v18
        v_exp_f32 v19, v19
        v_pk_add_f32 v[30:31], v[16:17], v[18:19]
        v_add_f32 v30, v30, v31
        v_cvt_pk_bf16_f32 v24, 0, v16
        v_cvt_pk_bf16_f32 v25, 0, v17
        v_add_f32_dpp v30, v30, v30 row_ror:4 {DPPF}
        v_cvt_pk_bf16_f32 v26, 0, v18
        v_cvt_pk_bf16_f32 v27, 0, v19
        v_add_f32_dpp v30, v30, v30 row_ror:8 {DPPF}
        v_mov_b32 v31, v30
        v_pk_add_f32 v[16:17], v[16:17], v[24:25] neg_lo:[0,1] neg_hi:[0,1]
        v_pk_add_f32 v[18:19], v[18:19], v[26:27] neg_lo:[0,1] neg_hi:[0,1]
        v_permlane32_swap_b32 v30, v31
        v_add_f32 v30, v30, v31
        v_mov_b32 v31, v30
        v_cvt_pk_bf16_f32 v20, v24, v16
        v_cvt_pk_bf16_f32 v21, v25, v17
        v_permlane16_swap_b32 v30, v31
        v_add_f32 v29, v30, v31
        v_cvt_pk_bf16_f32 v22, v26, v18
        v_cvt_pk_bf16_f32 v23, v27, v19
        ds_write_b64 v12, v[28:29] offset:{L_ML}""")
        a.stamp(4)
        a("s_nop 1\ns_setpc_b64 s[50:51]")

    def ctrl(self):
        a = self
        p = self.p
        WQ = 80
        self.sect = "c"
        a("L_ctrl:")
        a.stamp(1)
        a.selectors()
        a("""s_getreg_b32 s44, hwreg(HW_REG_XCC_ID, 0, 3)
        v_lshl_add_u32 v21, v0, 4, s45
        s_waitcnt vmcnt(22)""")
        a.stamp(2)
        for b_, (src, X) in enumerate(((24, 36), (30, 48))):
            for i in range(5):
                a(f"v_lshlrev_b32 v{X+2*i}, 16, v{src+i}")
                a(f"v_and_b32 v{X+2*i+1}, 0xffff0000, v{src+i}")
            a.ln(X, src, 60, False)
            a(f"""v_lshlrev_b32 v2, 2, v0
            ds_write_b64 v1, v[{src}:{src+1}] offset:{L_Y + b_*YS}
            ds_write_b64 v1, v[{src+2}:{src+3}] offset:{L_Y + b_*YS + 512}
            ds_write_b32 v2, v{src+4} offset:{L_Y + b_*YS + 1024}""")
        a(f"""s_mul_i32 s35, s33, 160
        v_lshrrev_b32 v2, 4, v0
        v_mul_u32_u24 v2, 40, v2
        v_bfe_u32 v3, v0, 3, 1
        v_mul_u32_u24 v3, {YS}, v3
        v_add3_u32 v2, v2, v3, s35
        s_waitcnt lgkmcnt(0)""")
        for i in range(5):
            a(f"ds_read_b64 v[{36+2*i}:{37+2*i}], v2 offset:{L_Y + 8*i}")
        a(f"""s_waitcnt vmcnt(21)
        v_readfirstlane_b32 s43, v15
        s_add_u32 s43, s43, 1
        s_and_b32 s43, s43, 0x1fffffff
        s_lshl_b32 s44, s44, 29
        s_or_b32 s44, s44, s43
        s_mov_b32 s43, s44
        s_and_b32 s35, s43, 0xff
        v_mov_b32 v246, s35
        s_mov_b32 s49, 0xffffff00
        v_mov_b32 v13, 0
        v_mov_b32 v53, s44
        v_mov_b32 v55, s44
        v_mov_b32 v57, s44
        v_mov_b32 v59, s44
        s_waitcnt lgkmcnt(0)""")
        a.stamp(3)
        FR = 160

        def frag(D, P, odd):
            for r in range(4):
                a(f"v_perm_b32 v{D+r}, v{P}, v{P}, v{(8 if odd else 4)+r}")
        frag(FR, 36, 0)
        for t in range(20):
            if t + 1 < 20:
                frag(FR + 4 * ((t + 1) % 4), 36 + (t + 1) // 2, (t + 1) & 1)
            a(f"s_waitcnt vmcnt({19-t})")
            c = "0" if t == 0 else "v[48:51]"
            a(f"v_mfma_f32_16x16x32_bf16 v[48:51], v[{FR+4*(t%4)}:{FR+4*(t%4)+3}], v[{WQ+4*t}:{WQ+4*t+3}], {c}")
        qfl = "" if p["fast"] else "sc1"
        a(f"""v_mov_b32 v52, v48
        v_mov_b32 v54, v49
        v_mov_b32 v56, v50
        v_mov_b32 v58, v51
        global_store_dwordx4 v21, v[52:55], s[28:29] {qfl}
        global_store_dwordx4 v21, v[56:59], s[28:29] offset:1024 {qfl}
""")
        oppre = """v_min_u32 v2, 4, v0
        v_lshl_add_u32 v2, v2, 7, s45
        global_load_dword v253, v2, s[28:29] offset:2048 nt"""
        if p["oppre"] == 1:
            a(oppre)
        a.stamp(4)
        a(self.ROLES)
        qg = a.lab("qg"); qgd = a.lab("qg_ok"); qns = a.lab("qg_nosc1"); qf = a.lab("qg_fast")
        qt = a.lab("qt"); qtd = a.lab("qt_ok")
        a(f"""s_mul_i32 s35, s32, 5120
        s_lshl_b32 s38, s33, 9
        s_add_u32 s35, s35, s38
        v_lshrrev_b32 v3, 5, v0
        v_mul_u32_u24 v2, 2560, v3
        v_and_b32 v22, 31, v0
        v_lshl_add_u32 v2, v22, 4, v2
        v_add_u32 v23, s35, v2
        s_lshl_b32 s35, s32, 15
        s_lshr_b32 s38, s33, 2
        s_lshl_b32 s38, s38, 9
        s_add_u32 s35, s35, s38
        s_add_u32 s35, s35, {BK + 4096}
        v_lshlrev_b32 v2, 10, v3
        v_lshl_add_u32 v2, v22, 4, v2
        v_add_u32 v60, s35, v2
        v_add_u32 v61, 8192, v60
        v_add_u32 v62, 8192, v61
        v_add_u32 v63, 8192, v62
        v_and_b32 v2, 15, v0
        v_lshlrev_b32 v2, 4, v2
        v_and_b32 v22, 16, v0
        v_lshrrev_b32 v22, 1, v22
        v_add_u32 v2, v2, v22
        v_lshl_add_u32 v22, v3, 2, v2
        s_mov_b32 s42, 0
        {qt}:
        ds_read_b128 v[36:39], v13 offset:{L_QT}
        ds_read_b128 v[40:43], v13 offset:{L_QT+16}
        s_add_u32 s42, s42, 1
        s_waitcnt lgkmcnt(0)
        v_min3_u32 v36, v36, v38, v40
        v_min_u32 v36, v36, v42
        v_cmp_eq_u32 vcc, 0, v36
        s_cbranch_vccz {qtd}
        s_cmp_lt_u32 s42, {SPIN*20}
        s_cbranch_scc1 {qt}
        {qtd}:
        s_mov_b32 s42, 0""")
        a.stamp(5)
        if p.get("noq"):
            a(f"v_mov_b32 v36, 0\ns_branch {qgd}")
        a(f"{qg}:")
        for u in range(8):
            a(f"global_load_dwordx4 v[{80+4*u}:{83+4*u}], v{60+u//2}, s[28:29] offset:{4096*(u%2)-4096} sc1")
        a("s_add_u32 s42, s42, 1\ns_waitcnt vmcnt(0)")
        a("v_xor_b32 v36, s44, v81\nv_xor_b32 v37, s44, v83")
        for u in range(1, 8):
            a(f"v_bitop3_b32 v36, v36, v{81+4*u}, s44 bitop3:0xf6")
            a(f"v_bitop3_b32 v37, v37, v{83+4*u}, s44 bitop3:0xf6")
        a(f"""v_or_b32 v36, v36, v37
        v_lshlrev_b32 v37, 3, v36
        v_cmp_ne_u32 vcc, 0, v37
        s_cbranch_vccz {qgd}
        s_cmp_lg_u32 s42, {p['qslow']}
        s_cbranch_scc1 {qns}
        global_store_dwordx4 v21, v[52:55], s[28:29] sc1
        global_store_dwordx4 v21, v[56:59], s[28:29] offset:1024 sc1
        {qns}:
        s_cmp_lt_u32 s42, {SPIN}
        s_cbranch_scc1 {qg}
        {qgd}:""")
        a(f"""v_add_f32 v80, v80, v84
        v_add_f32 v82, v82, v86
        v_add_f32 v88, v88, v92
        v_add_f32 v90, v90, v94
        v_add_f32 v96, v96, v100
        v_add_f32 v98, v98, v102
        v_add_f32 v104, v104, v108
        v_add_f32 v106, v106, v110
        v_add_f32 v80, v80, v88
        v_add_f32 v82, v82, v90
        v_add_f32 v96, v96, v104
        v_add_f32 v98, v98, v106
        v_add_f32 v80, v80, v96
        v_add_f32 v82, v82, v98
        v_cvt_pk_bf16_f32 v80, v80, v82
        ds_write_b32 v22, v80 offset:{L_Q}
        v_cmp_ne_u32 vcc, 0, v36
        v_mov_b32 v14, s44
        s_nop 0
        s_cmp_lg_u64 vcc, 0
        s_cselect_b32 s46, 1, {0 if p['fast'] else 1}
        s_cselect_b32 s35, 1, {p['hslow'] + 1 if p['fast'] else 1}
        v_mov_b32 v15, s35
        s_waitcnt lgkmcnt(0)
        ds_write_b64 v13, v[14:15] offset:{L_QF}
        s_cbranch_scc0 {qf}
        global_store_dwordx4 v21, v[52:55], s[28:29] sc1
        global_store_dwordx4 v21, v[56:59], s[28:29] offset:1024 sc1
        {qf}:""")
        a.stamp(6)
        mw = a.lab("mw"); mwd = a.lab("mw_ok"); msl = a.lab("ml_slow"); msd = a.lab("ml_done")
        a(f"""s_mov_b32 s40, {hx(LOG2E)}
        v_mov_b32 v20, s45
        v_lshl_add_u32 v21, v0, 3, s45
        s_lshl_b32 s36, s39, 6
        v_lshrrev_b32 v2, 2, v0
        v_mul_u32_u24 v2, 3456, v2
        v_and_b32 v3, 3, v0
        v_lshl_add_u32 v2, v3, 4, v2
        s_mov_b32 s54, {16*3456}
        s_movk_i32 s55, 1024
        s_mov_b32 s56, {L_W1}
        s_bitcmp1_b32 s39, 0
        s_cmov_b32 s54, {-16*3456 & 0xffffffff}
        s_cmov_b32 s55, {-1024 & 0xffffffff}
        s_cselect_b32 s37, {39*16*3456}, 0
        s_cmov_b32 s56, {L_W1 + 39*1024}
        s_add_u32 s36, s36, s37
        v_add_u32 v14, s36, v2
        s_setprio 0
        s_mov_b32 s42, 0
        {mw}:
        ds_read_b128 v[36:39], v13 offset:{L_ML}
        ds_read_b128 v[40:43], v13 offset:{L_ML+16}
        s_add_u32 s42, s42, 1
        s_waitcnt lgkmcnt(0)
        v_min3_u32 v44, v37, v39, v41
        v_min_u32 v44, v44, v43
        v_cmp_eq_u32 vcc, 0, v44
        s_cbranch_vccz {mwd}
        s_cmp_lt_u32 s42, {SPIN*20}
        s_cbranch_scc1 {mw}
        {mwd}:
        s_setprio 3
        v_max3_f32 v44, v36, v38, v40
        v_max_f32 v44, v44, v42""")
        for i in range(4):
            a(f"v_sub_f32 v{36+2*i}, v{36+2*i}, v44")
        for i in range(4):
            a(f"v_mul_f32 v{36+2*i}, s40, v{36+2*i}")
        for i in range(4):
            a(f"v_exp_f32 v{36+2*i}, v{36+2*i}")
        a(f"""v_mul_f32 v46, v36, v37
        v_mov_b32 v45, s44
        v_fmac_f32 v46, v38, v39
        v_mov_b32 v47, s44
        v_fmac_f32 v46, v40, v41
        v_fmac_f32 v46, v42, v43
        s_cmp_lg_u32 s46, 0
        s_cbranch_scc1 {msl}
        global_store_dwordx4 v20, v[44:47], s[28:29] offset:2560
        s_branch {msd}
        {msl}:
        global_store_dwordx4 v20, v[44:47], s[28:29] offset:2560 sc1
        {msd}:""")
        a.stamp(8)
        a("s_barrier")
        for u in range(4):
            a(f"ds_read2st64_b64 v[{48+4*u}:{51+4*u}], v1 offset0:{L_RED//512 + 2*u} offset1:{L_RED//512 + 2*u + 1}")
        osl = a.lab("op_slow"); osd = a.lab("op_done"); nf = a.lab("notfree"); dm = a.lab("dma"); dm2 = a.lab("dma2")
        a(f"""s_cmp_lg_u32 s46, 0
        s_waitcnt lgkmcnt(2)
        v_pk_add_f32 v[48:49], v[48:49], v[50:51]
        v_pk_add_f32 v[52:53], v[52:53], v[54:55]
        v_pk_mul_f32 v[48:49], v[48:49], v[36:37] op_sel_hi:[1,0]
        s_waitcnt lgkmcnt(0)
        v_pk_add_f32 v[56:57], v[56:57], v[58:59]
        v_pk_fma_f32 v[48:49], v[52:53], v[38:39], v[48:49] op_sel_hi:[1,0,1]
        v_pk_add_f32 v[60:61], v[60:61], v[62:63]
        v_pk_fma_f32 v[48:49], v[56:57], v[40:41], v[48:49] op_sel_hi:[1,0,1]
        v_pk_fma_f32 v[48:49], v[60:61], v[42:43], v[48:49] op_sel_hi:[1,0,1]
        v_and_or_b32 v48, v48, s49, v246
        v_and_or_b32 v49, v49, s49, v246
        s_cbranch_scc1 {osl}
        global_store_dwordx2 v21, v[48:49], s[28:29] offset:2048
        s_branch {osd}
        {osl}:
        global_store_dwordx2 v21, v[48:49], s[28:29] offset:2048 sc1
        {osd}:""")
        a.stamp(10)
        a(f"""s_cmp_eq_u32 s31, 0
        s_cbranch_scc1 L_ctrl_wo
        s_cmp_eq_u32 s31, 1
        s_cbranch_scc1 {nf}""")
        a.finish()

        def dma(n, lp):
            a(f"""s_mov_b32 s57, {n}
            {lp}:
            s_mov_b32 m0, s56
            s_add_u32 s56, s56, s55
            global_load_lds_dwordx4 v14, s[16:17] {p["w1fl"]}
            v_add_u32 v14, s54, v14
            s_sub_u32 s57, s57, 1
            s_cmp_lg_u32 s57, 0
            s_cbranch_scc1 {lp}""")
        a(f"{nf}:")
        n1 = p.get("n1", 0)
        if n1:
            dma(n1, dm)
        a("s_barrier")
        if n1 < 40:
            dma(40 - n1, dm2)
        a("s_waitcnt vmcnt(0)")
        a.stamp(15)
        a("s_barrier")
        a.finish()
        a("L_ctrl_wo:")
        if p["b3b"]:
            a("s_barrier")
        if p["atrig"]:
            a(f"""s_and_b32 s35, s32, 3
            s_mul_i32 s35, s35, 5
            s_add_u32 s35, s35, s33
            s_lshl_b32 s35, s35, 2
            s_lshl_b32 s36, s30, 8
            s_add_u32 s35, s35, s36
            s_add_u32 s35, s35, {AF}
            v_mov_b32 v24, s35
            global_load_dword v253, v24, s[28:29] sc1""")
        a("v_lshlrev_b32 v2, 4, v0\ns_barrier")
        for u in range(4):
            a(f"ds_read_b128 v[{48+4*u}:{51+4*u}], v2 offset:{L_RED2 + 1024*u}")
        a("""s_waitcnt lgkmcnt(2)
        v_pk_add_f32 v[48:49], v[48:49], v[52:53]
        v_pk_add_f32 v[50:51], v[50:51], v[54:55]
        s_waitcnt lgkmcnt(0)
        v_pk_add_f32 v[56:57], v[56:57], v[60:61]
        v_pk_add_f32 v[58:59], v[58:59], v[62:63]
        v_pk_add_f32 v[48:49], v[48:49], v[56:57]
        v_pk_add_f32 v[50:51], v[50:51], v[58:59]""")
        for r in range(48, 52):
            a(f"v_and_or_b32 v{r}, v{r}, s49, v246")
        if p["atrig"] == 1:
            a("global_store_dword v24, v45, s[28:29]")
        a("global_store_dwordx4 v23, v[48:51], s[28:29] sc1")
        if p["atrig"] == 2:
            a("global_store_dword v24, v45, s[28:29]")
        a.stamp(11)
        if p["atrig"] == 3:
            a("s_waitcnt vmcnt(0)\nglobal_store_dword v24, v45, s[28:29]")
        if not p["atrig"]:
            a("s_waitcnt vmcnt(0)\ns_barrier")
        a.finish()

    def write(self, fn):
        self.build()
        body = process(self.L)
        H = ["; fused decode block: one persistent launch, 256 workgroups x 5 waves",
             f"; @launch grid=(256,1,1) block=(320,1,1) lds={LDS_SIZE}",
             '.amdgcn_target "amdgcn-amd-amdhsa--gfx950"', ".text", f".globl {NAME}_kernel", ".p2align 8",
             f".type {NAME}_kernel,@function", f"{NAME}_kernel:"]
        T = ['.section .rodata,"a"', ".p2align 6", f".amdhsa_kernel {NAME}_kernel",
             "  .amdhsa_next_free_vgpr 256", "  .amdhsa_next_free_sgpr 102", "  .amdhsa_accum_offset 256",
             "  .amdhsa_group_segment_fixed_size 0", "  .amdhsa_kernarg_size 104", "  .amdhsa_user_sgpr_count 2",
             "  .amdhsa_user_sgpr_kernarg_segment_ptr 1", "  .amdhsa_system_sgpr_workgroup_id_x 1",
             "  .amdhsa_float_denorm_mode_32 3", "  .amdhsa_float_denorm_mode_16_64 3", ".end_amdhsa_kernel"]
        lines = [(l if l.endswith(":") else "    " + l) for l in body]
        open(fn, "w").write("\n".join(H + lines + T) + "\n")


if __name__ == "__main__":
    out = sys.argv[1] if len(sys.argv) > 1 else "k11.s"
    kw = {}
    diag = False
    for x in sys.argv[2:]:
        if x == "diag":
            diag = True
        else:
            k, v = x.split("=", 1)
            kw[k] = eval(v)
    G(diag=diag, **kw).write(out)
```

```python
import sys, struct, math
from hz import process

NAME = "sequential_preLN__sliding_block_cached__mixer_channel_mlp__decode"


def hx(x):
    return "0x%08x" % struct.unpack("<I", struct.pack("<f", x))[0]


AP = 0x00000
HB = 0x28000
CP = 0x32000
HB2 = 0x76000
EP = 0x80000
LF = 0x81000
AF = 0x82000
BK = 0x100000
STAMP = 0x8000000
L_Y = 0x0000; YS = 1408
L_Q = 0x0B00; L_ML = 0x0C00; L_Z = 0x0C80; L_QF = 0x0C90; L_QT = 0x0CC0
L_RED = 0x1000; L_RED2 = 0x2000; L_T1 = 0x3000
L_W1 = 0x4000
LDS_SIZE = L_W1 + 40960
KR, VR, FRG, TR = 16, 80, 144, 208
LOG2E = 1.4426950408889634
SPIN = 400000
DPPF = "row_mask:0xf bank_mask:0xf"


class G:
    def __init__(self, diag=False, **kw):
        self.L = []
        self.diag = diag
        self.n = 0
        self.sect = "a"
        self.cold = []
        self.p = dict(F=9, Pw=9, Pw2=10, Pn=8, Pn2=9, tsl=(8, 13, 18, 23, 28, 32, 32, 32), mat=32, chk=31,
                      qtrig=3, qslow=3, hslow=100, cslow=60, lfpos=2, fast=True, nt="nt", w1fl="", warm=True,
                      mlpT=0, b3b=True, atrig=1, actrl=2, hpipe=True, c2=False, n1=20, oppre=1)
        self.p.update(kw)

    def __call__(self, s):
        for ln in s.split("\n"):
            ln = ln.strip()
            if ln:
                self.L.append(ln)

    def lab(self, p):
        self.n += 1
        return f"L_{p}_{self.n}"

    def stamp(self, idx):
        p = self.p
        h = p.get("holdat")
        if h is not None and not self.diag:
            if (self.sect, idx) == tuple(h[:2]):
                self("s_memrealtime s[96:97]\ns_waitcnt lgkmcnt(0)\ns_mov_b32 s95, 1")
            return
        if not self.diag or (p.get("lite") and idx != 31):
            return
        if p.get("only") is not None and idx != 31 and (self.sect + str(idx)) not in p["only"].split(","):
            return
        self(f"s_memrealtime s[100:101]\ns_waitcnt lgkmcnt(0)\nv_writelane_b32 v255, s100, {idx}")

    def note(self, idx):
        if self.diag:
            self(f"v_writelane_b32 v255, s42, {idx}")

    def finish(self):
        if self.diag:
            self.stamp(31)
            self("s_branch L_dump")
        elif self.p.get("holdat") is not None:
            self("s_branch L_hold")
        else:
            self("s_endpgm")

    def rnd(self, d, src):
        self(f"v_cvt_pk_bf16_f32 v{d}, 0, {src}")

    def ln(self, X, P, T, keep):
        a = self
        pr = lambda r: f"v[{r}:{r+1}]"
        a(f"v_pk_add_f32 {pr(T)}, {pr(X)}, {pr(X+2)}")
        a(f"v_pk_mul_f32 {pr(T+2)}, {pr(X)}, {pr(X)}")
        for i in (4, 6, 8):
            a(f"v_pk_add_f32 {pr(T)}, {pr(T)}, {pr(X+i)}")
            a(f"v_pk_fma_f32 {pr(T+2)}, {pr(X+i-2)}, {pr(X+i-2)}, {pr(T+2)}")
        a(f"v_pk_fma_f32 {pr(T+2)}, {pr(X+8)}, {pr(X+8)}, {pr(T+2)}")
        a(f"v_add_f32 v{T}, v{T}, v{T+1}")
        a(f"v_add_f32 v{T+2}, v{T+2}, v{T+3}")
        a(f"v_permlane32_swap_b32 v{T}, v{T+2}")
        a(f"v_add_f32 v{T}, v{T}, v{T+2}")
        for d in ("quad_perm:[1,0,3,2]", "quad_perm:[2,3,0,1]", "row_half_mirror", "row_mirror"):
            a(f"v_add_f32_dpp v{T}, v{T}, v{T} {d} {DPPF}")
        a(f"v_add_f32_dpp v{T}, v{T}, v{T} row_bcast:15 row_mask:0xa bank_mask:0xf")
        a(f"v_mul_f32 v{T}, {hx(1.0/640.0)}, v{T}")
        a(f"v_readlane_b32 s41, v{T}, 63")
        a(f"v_readlane_b32 s40, v{T}, 31")
        a(f"v_mov_b32 v{T+2}, s41")
        a.rnd(T, "s40")
        a(f"v_fma_f32 v{T+2}, -s40, s40, v{T+2}")
        sub = lambda i: a(f"v_pk_add_f32 {pr(X+i)}, {pr(X+i)}, {pr(T)} op_sel_hi:[1,0] neg_lo:[0,1] neg_hi:[0,1]")
        sub(0)
        a(f"v_max_f32 v{T+2}, 0, v{T+2}")
        sub(2)
        a.rnd(T+2, f"v{T+2}")
        sub(4)
        a(f"v_add_f32 v{T+2}, {hx(1e-5)}, v{T+2}")
        sub(6)
        a.rnd(T+2, f"v{T+2}")
        sub(8)
        a(f"v_sqrt_f32 v{T+2}, v{T+2}")
        a.rnd(X, f"v{X}"); a.rnd(X+1, f"v{X+1}")
        a.rnd(T+2, f"v{T+2}")
        a.rnd(X+2, f"v{X+2}")
        a(f"v_rcp_f32 v{T+2}, v{T+2}")
        for i in range(3, 10):
            a.rnd(X+i, f"v{X+i}")
        for i in range(5):
            a(f"v_pk_mul_f32 {pr(X+2*i)}, {pr(X+2*i)}, {pr(T+2)} op_sel_hi:[1,0]")
        if keep:
            for i in range(10):
                a.rnd(X+i, f"v{X+i}")
        else:
            for i in range(5):
                a(f"v_cvt_pk_bf16_f32 v{P+i}, v{X+2*i}, v{X+2*i+1}")

    def selectors(self):
        a = self
        a("""v_and_b32 v2, 1, v0
        v_cmp_eq_u32 vcc, 1, v2
        v_mov_b32 v2, 0x0c0c0100
        v_mov_b32 v3, 0x01000c0c
        v_cndmask_b32 v12, v2, v3, vcc
        v_mov_b32 v2, 0x0c0c0302
        v_mov_b32 v3, 0x03020c0c
        v_cndmask_b32 v13, v2, v3, vcc
        v_bfe_u32 v2, v0, 1, 2
        v_mov_b32 v3, 0x0c0c0c0c""")
        for r in range(4):
            a(f"v_cmp_eq_u32 vcc, {r}, v2")
            a(f"v_cndmask_b32 v{4+r}, v3, v12, vcc")
            a(f"v_cndmask_b32 v{8+r}, v3, v13, vcc")

    def dlayout(self, dst, t, bstride):
        self(f"""v_and_b32 v{dst}, 15, v0
        v_lshlrev_b32 v{dst}, 5, v{dst}
        v_and_b32 v{t}, 16, v0
        v_add_u32 v{dst}, v{dst}, v{t}
        v_lshrrev_b32 v{t}, 5, v0
        v_mul_u32_u24 v{t}, {bstride}, v{t}
        v_add_u32 v{dst}, v{dst}, v{t}""")

    def rowaddr(self, dst):
        self(f"""v_lshrrev_b32 v2, 4, v0
        v_mul_u32_u24 v2, 10240, v2
        v_and_b32 v3, 15, v0
        v_lshl_add_u32 v2, v3, 4, v2
        v_add_u32 v{dst}, s36, v2""")

    ROLES = """s_and_b32 s35, s32, 3
        s_mul_i32 s35, s35, 3
        s_add_u32 s35, s35, s33
        s_sub_u32 s35, s35, 5
        s_and_b32 s39, s35, 1
        s_andn2_b32 s35, s35, 1
        s_lshl_b32 s35, s35, 2
        s_add_u32 s35, s35, s30
        s_cmp_lt_u32 s35, 27
        s_cselect_b32 s31, 1, 2
        s_lshl_b32 s35, s35, 1
        s_add_u32 s39, s39, s35
        s_min_u32 s39, s39, 53
        s_cmp_lt_u32 s33, 5
        s_cselect_b32 s31, 0, s31"""

    def gather(self, name, n, loads, R, first_issued=False):
        a = self
        lp = a.lab(name); dn = a.lab(name + "_ok"); re = a.lab(name + "_re")
        a("s_mov_b32 s42, 0")
        if first_issued:
            a(f"s_branch {lp}")
        a(f"{re}:")
        loads()
        a(f"s_add_u32 s42, s42, 1\ns_cmp_ge_u32 s42, {SPIN}\ns_cbranch_scc1 {dn}")
        a(f"{lp}:")
        for u in range(n):
            a(f"s_waitcnt vmcnt({n-1-u})")
            b = R + 4*u
            for r in range(b, b + 4):
                a(f"v_xor_b32 v{r}, v246, v{r}")
            if u == 0:
                a(f"v_or_b32 v26, v{b}, v{b+1}")
            else:
                a(f"v_or3_b32 v26, v26, v{b}, v{b+1}")
            a(f"v_or3_b32 v26, v26, v{b+2}, v{b+3}")
            if u == n - 1:
                a("v_cmp_ne_u32_sdwa vcc, v26, v13 src0_sel:BYTE_0 src1_sel:DWORD")
            if u:
                a(f"v_pk_add_f32 v[{R}:{R+1}], v[{R}:{R+1}], v[{b}:{b+1}]")
                a(f"v_pk_add_f32 v[{R+2}:{R+3}], v[{R+2}:{R+3}], v[{b+2}:{b+3}]")
        a(f"s_cbranch_vccnz {re}\n{dn}:")

    def flush_cold(self):
        c, self.cold = self.cold, []
        for f in c:
            f()

    def red16(self, A):
        self(f"""v_permlane32_swap_b32 v{A}, v{A+2}
        v_permlane32_swap_b32 v{A+1}, v{A+3}
        v_pk_add_f32 v[{A}:{A+1}], v[{A}:{A+1}], v[{A+2}:{A+3}]
        v_permlane16_swap_b32 v{A}, v{A+1}
        v_add_f32 v{A}, v{A}, v{A+1}
        v_add_f32_dpp v{A}, v{A}, v{A} row_ror:4 {DPPF}
        v_add_f32_dpp v{A}, v{A}, v{A} row_ror:8 {DPPF}""")

    def transp(self, R, B, pp):
        for T in range(8):
            self(f"v_perm_b32 v{B+4*T+pp}, v{R+4*(2*pp+1)+T//2}, v{R+4*(2*pp)+T//2}, s{52+(T&1)}")

    def nat8(self, B):
        for r in range(4):
            self(f"v_mfma_f32_16x16x32_bf16 v[{44+4*r}:{47+4*r}], v[64:67], v[{B+4*r}:{B+4*r+3}], 0")
        for r in range(4):
            self(f"v_mfma_f32_16x16x32_bf16 v[{44+4*r}:{47+4*r}], v[68:71], v[{B+16+4*r}:{B+16+4*r+3}], v[{44+4*r}:{47+4*r}]")

    def zeroA(self):
        self("s_mov_b32 s52, 0x05040100\ns_mov_b32 s53, 0x07060302")
        for r in range(64, 72, 2):
            self(f"v_mov_b64 v[{r}:{r+1}], 0")

    def stream(self, withT, extra):
        a = self
        p = self.p
        nt = p["nt"]
        F = p["F"]
        P1, P2 = (p["Pw"], p["Pw2"]) if withT == 8 else (p["Pn"], p["Pn2"])
        kv = [("K", t) for t in range(16)] + [("V", t) for t in range(16)]
        order = kv[:F]
        tsl = list(p["tsl"]) if withT == 8 else [32] * withT
        tk = 0
        for i in range(F, 33):
            for pos_, it in extra:
                if pos_ == i:
                    order.append(it)
            while tk < len(tsl) and tsl[tk] <= i:
                order.append(("T", tk)); tk += 1
            if i < 32:
                order.append(kv[i])
        NL = len(order)
        pos = {it: i for i, it in enumerate(order)}
        st = {"issued": F, "done": -1}
        big = lambda j: order[j][0] != "S"

        def emit(it):
            k, t = it
            if k == "K":
                if t == 8:
                    a("v_add_u32 v1, 32768, v1")
                a(f"global_load_dwordx4 v[{KR+4*t}:{KR+4*t+3}], v1, s[6:7] offset:{(t%8)*1024-4096} {nt}")
            elif k == "V":
                if t == 8:
                    a("v_add_u32 v14, 32768, v14")
                a(f"global_load_dwordx4 v[{VR+4*t}:{VR+4*t+3}], v14, s[8:9] offset:{(t%8)*1024-4096} {nt}")
            elif k == "T":
                base = "s[12:13]" if withT == 8 else "s[20:21]"
                if t == 7:
                    a("v_add_u32 v15, 5120, v15")
                a(f"global_load_dwordx4 v[{TR+4*t}:{TR+4*t+3}], v15, {base} offset:{(t-3)*1280 if t < 7 else 0} {nt}")
            else:
                a(t)
        self.emit = emit

        def issue(pace=0):
            i = st["issued"]
            if pace and big(i):
                cnt = 0; j = i
                while j > 0 and cnt < pace:
                    j -= 1
                    cnt += big(j)
                if cnt == pace and j > st["done"]:
                    a(f"s_waitcnt vmcnt({i-1-j})")
                    st["done"] = j
            emit(order[i])
            st["issued"] += 1

        def wait_for(it):
            i = pos[it]
            assert i < st["issued"]
            if st["done"] < i:
                a(f"s_waitcnt vmcnt({st['issued']-1-i})")
                st["done"] = i
        trig = False
        while st["done"] < pos[("K", 15)]:
            issue(P1)
            if not trig and st["done"] >= pos[("K", p["qtrig"])]:
                a(f"ds_write_b32 v12, v247 offset:{L_QT}")
                trig = True
        a.stamp(1)
        lastchk = pos[kv[p["chk"]]]
        first = True
        while st["issued"] <= lastchk:
            sk = a.lab("chk")
            if not first:
                a(f"s_cmp_lg_u32 s47, 0\ns_cbranch_scc1 {sk}")
            a(f"""ds_read_b64 v[2:3], v13 offset:{L_QF}
            s_waitcnt lgkmcnt(0)
            v_readfirstlane_b32 s47, v3
            s_cmp_eq_u32 s47, 0
            s_cbranch_scc1 {sk}
            s_call_b64 s[50:51], L_compute
            {sk}:""")
            first = False
            issue(P2)
        lp = a.lab("qw"); sk = a.lab("qw_done"); go = a.lab("qw_go")
        a(f"""s_cmp_lg_u32 s47, 0
        s_cbranch_scc1 {sk}
        s_mov_b32 s42, 0
        {lp}:
        ds_read_b64 v[2:3], v13 offset:{L_QF}
        s_add_u32 s42, s42, 1
        s_waitcnt lgkmcnt(0)
        v_readfirstlane_b32 s47, v3
        s_cmp_lg_u32 s47, 0
        s_cbranch_scc1 {go}
        s_cmp_lt_u32 s42, {SPIN*20}
        s_cbranch_scc1 {lp}
        {go}:
        s_call_b64 s[50:51], L_compute
        {sk}:""")
        a.stamp(19)

        def topup():
            while st["issued"] < NL:
                infl = sum(big(j) for j in range(st["done"] + 1, st["issued"]))
                if infl >= P2 and big(st["issued"]):
                    break
                issue()
        topup()
        for t in range(16):
            a(f"v_mov_b32_dpp v{48+t%2}, v{20+t//4} row_newbcast:{4*(t%4)} {DPPF}")
            for r in range(4):
                a(f"v_perm_b32 v{FRG+4*(t%4)+r}, v{48+t%2}, v{48+t%2}, v{240+r}")
            while st["issued"] <= pos[("V", t)]:
                issue(P2)
            wait_for(("V", t))
            topup()
            c = "0" if t == 0 else "v[44:47]"
            a(f"v_mfma_f32_16x16x32_bf16 v[44:47], v[{FRG+4*(t%4)}:{FRG+4*(t%4)+3}], v[{VR+4*t}:{VR+4*t+3}], {c}")
        while st["issued"] < NL:
            issue()
        a(f"ds_write_b128 v248, v[44:47] offset:{L_RED}\ns_waitcnt lgkmcnt(0)")
        a.stamp(20)
        a("s_barrier")
        a.stamp(5)
        return st, pos, wait_for, lastchk

    def build(self):
        a = self
        p = self.p
        nt = p["nt"]
        a(f"""
        s_cmp_ge_u32 s2, 256
        s_cbranch_scc1 L_exit
        s_load_dwordx16 s[4:19], s[0:1], 0
        s_load_dwordx8 s[20:27], s[0:1], 64
        s_load_dwordx2 s[28:29], s[0:1], 96
        v_lshrrev_b32 v1, 6, v0
        v_and_b32 v0, 63, v0
        v_readfirstlane_b32 s3, v1
        s_and_b32 s30, s2, 7
        s_lshr_b32 s31, s2, 3
        s_lshl_b32 s34, s30, 5
        s_add_u32 s34, s34, s31
        s_lshr_b32 s32, s34, 3
        s_and_b32 s33, s34, 7
        """)
        if self.diag:
            a("v_mov_b32 v255, 0\ns_memrealtime s[100:101]")
        if p.get("holdat") is not None:
            a("s_mov_b32 s95, 0")
        a("""s_sub_u32 s3, s3, 1
        s_cbranch_scc0 L_att""")
        WQ = 80
        a(f"""s_setprio 3
        s_mov_b32 s3, 4
        s_getpc_b64 s[36:37]
        L_pc:
        s_sub_u32 s36, s36, L_pc-{NAME}_kernel
        s_subb_u32 s37, s37, 0
        s_lshl_b32 s35, s33, 11
        v_and_b32 v12, 15, v0
        v_lshl_add_u32 v1, v12, 7, s35
        v_min_u32 v1, L_codeend-{NAME}_kernel-4, v1
        global_load_dword v254, v1, s[36:37]
        v_lshlrev_b32 v1, 3, v0
        v_lshlrev_b32 v2, 2, v0
        v_mov_b32 v36, 0
        ds_write_b32 v2, v36 offset:{L_ML}
        s_mul_i32 s35, s33, {80*8192}
        s_lshl_b32 s38, s32, 8
        s_add_u32 s35, s35, s38
        v_lshrrev_b32 v3, 4, v0
        v_mul_u32_u24 v3, {20*8192}, v3
        v_lshl_add_u32 v3, v12, 4, v3
        v_add_u32 v3, s35, v3
        s_lshl_b32 s45, s34, 12
        s_add_u32 s45, s45, {BK}
        {"v_min_u32 v12, 20, v0" if p["oppre"] == 0 else ""}
        v_lshl_add_u32 v20, v12, 7, s45
        v_mov_b32 v12, {EP}
        s_movk_i32 s38, 0x2000
        s_waitcnt lgkmcnt(0)
        """)
        if self.diag:
            a("v_writelane_b32 v255, s100, 0")
        a(f"""global_load_dwordx2 v[24:25], v1, s[4:5]
        global_load_dwordx2 v[26:27], v1, s[4:5] offset:512
        global_load_dword v28, v2, s[4:5] offset:1024
        global_load_dwordx2 v[30:31], v1, s[4:5] offset:1280
        global_load_dwordx2 v[32:33], v1, s[4:5] offset:1792
        global_load_dword v34, v2, s[4:5] offset:2304
        global_load_dword v15, v12, s[28:29] sc1
        global_load_dword v253, v20, s[28:29] nt""")
        for t in range(20):
            if t:
                a("v_add_u32 v3, s38, v3")
            a(f"global_load_dwordx4 v[{WQ+4*t}:{WQ+4*t+3}], v3, s[10:11] {nt}")
        a("s_barrier\ns_branch L_ctrl")
        a(f"""L_att:
        s_lshr_b32 s35, s33, 2
        s_lshl_b32 s35, s35, 5
        s_add_u32 s35, s35, s32
        s_lshl_b32 s35, s35, 4
        s_and_b32 s36, s33, 3
        s_add_u32 s35, s35, s36
        s_add_u32 s35, s35, 12
        s_lshl_b32 s35, s35, 3
        s_add_u32 s35, s35, s3
        s_lshl_b32 s35, s35, 13
        s_add_u32 s35, s35, 4096
        v_bfe_u32 v1, v0, 2, 2
        v_lshlrev_b32 v1, 8, v1
        v_lshrrev_b32 v2, 4, v0
        v_lshl_add_u32 v1, v2, 6, v1
        v_and_b32 v2, 3, v0
        v_lshl_add_u32 v1, v2, 4, v1
        v_add_u32 v1, s35, v1
        v_lshl_add_u32 v14, v0, 4, s35
        s_waitcnt lgkmcnt(0)
        """)
        if self.diag:
            a("v_writelane_b32 v255, s100, 0")
        a("s_barrier")
        for t in range(p["F"]):
            if t == 8:
                a("v_add_u32 v1, 32768, v1")
            a(f"global_load_dwordx4 v[{KR+4*t}:{KR+4*t+3}], v1, s[6:7] offset:{(t%8)*1024-4096} {nt}")
        a.stamp(16)
        a.selectors()
        a("v_and_b32 v2, 8, v0\nv_cmp_eq_u32 vcc, 8, v2")
        for r in range(4):
            a(f"v_cndmask_b32 v{240+r}, v{4+r}, v{8+r}, vcc")
        a(f"""v_lshrrev_b32 v2, 4, v0
        v_and_b32 v3, 3, v0
        v_lshl_add_u32 v2, v2, 2, v3
        v_lshlrev_b32 v2, 4, v2
        v_add_u32 v2, {L_Q}, v2
        v_bfe_u32 v3, v0, 2, 2
        v_mov_b32 v12, {L_Z}""")
        for qd in range(4):
            a(f"v_cmp_eq_u32 vcc, {qd}, v3")
            a(f"v_cndmask_b32 v{200+qd}, v12, v2, vcc")
        a.dlayout(248, 3, 512)
        a(f"""s_lshl_b32 s36, s3, 10
        v_add_u32 v248, s36, v248
        s_lshl_b32 s36, s32, 15
        s_add_u32 s36, s36, {BK + 2560}
        v_and_b32 v2, 8, v0
        v_lshlrev_b32 v2, 11, v2
        v_and_b32 v3, 3, v0
        v_lshl_add_u32 v2, v3, 12, v2
        v_add_u32 v247, s36, v2
        s_mov_b32 s40, {hx(128 ** -0.5)}
        s_mov_b32 s48, {hx(LOG2E)}
        s_mov_b32 s49, 0xffffff00
        s_lshl_b32 s36, s3, 3
        v_mov_b32 v12, s36
        v_mov_b32 v13, 0
        s_mov_b32 s47, 0
        s_cmp_ge_u32 s33, 5
        s_cbranch_scc1 L_att_n""")
        self.att_wo()
        self.att_other()
        self.compute()
        self.ctrl()
        if self.diag:
            a(f"""L_dump:
            s_mov_b64 exec, -1
            s_lshl_b32 s35, s34, 3
            s_add_u32 s35, s35, s3
            s_lshl_b32 s35, s35, 8
            s_add_u32 s35, s35, {STAMP}
            v_lshl_add_u32 v2, v0, 2, s35
            global_store_dword v2, v255, s[28:29]""")
        elif p.get("holdat") is not None:
            h = p["holdat"]
            a("L_hold:\ns_cmp_eq_u32 s95, 0\ns_cbranch_scc1 L_exit")
            a("""L_hold2:
            s_memrealtime s[92:93]
            s_waitcnt lgkmcnt(0)
            s_sub_u32 s92, s92, s96
            s_cmp_lt_u32 s92, 2000
            s_cbranch_scc1 L_hold2""")
        a("L_exit:\ns_endpgm\nL_codeend:")

    def att_wo(self):
        a = self
        p = self.p
        a(f"""s_lshl_b32 s36, s32, 2
        s_add_u32 s36, s36, s3
        s_mul_i32 s36, s36, {32*1280}
        s_lshl_b32 s37, s33, 8
        s_add_u32 s36, s36, s37
        s_add_u32 s36, s36, {3*1280}""")
        a.rowaddr(15)
        a(f"""s_lshl_b32 s35, s3, 7
        s_sub_u32 s35, s35, 512
        v_lshrrev_b32 v3, 4, v0
        v_lshl_add_u32 v2, v3, 5, s35
        v_and_b32 v3, 4, v0
        v_lshl_add_u32 v2, v3, 2, v2
        v_add_u32 v249, v247, v2
        s_and_b32 s38, s32, 3
        s_mul_i32 s38, s38, 5
        s_add_u32 s38, s38, s33
        s_lshl_b32 s38, s38, 2
        s_add_u32 s38, s38, s3
        s_lshl_b32 s35, s38, 4
        v_and_b32 v2, 3, v0
        v_lshrrev_b32 v3, 4, v0
        v_lshl_add_u32 v2, v2, 2, v3
        v_add_lshl_u32 v250, v2, s35, 1
        s_lshl_b32 s35, s38, 6
        v_lshrrev_b32 v2, 2, v0
        v_mul_u32_u24 v2, 5120, v2
        v_and_b32 v3, 3, v0
        v_lshl_add_u32 v2, v3, 4, v2
        v_add_u32 v251, s35, v2
        s_mul_i32 s35, s30, 5120
        s_add_u32 s35, s35, {HB}
        v_lshl_add_u32 v252, v250, 1, s35
        v_add_u32 v253, {AP + 16*5120}, v251
        v_add_u32 v254, {HB2 - HB}, v252""")
        M1 = ("S", "global_load_dwordx4 v[40:43], v247, s[28:29] sc1")
        st, pos, wait_for, lastchk = self.stream(8, [(p["mat"], M1)])
        assert pos[M1] > lastchk
        factor = f"""v_max_f32_dpp v41, v40, v40 quad_perm:[1,0,3,2] {DPPF}
        v_max_f32_dpp v41, v41, v41 quad_perm:[2,3,0,1] {DPPF}
        v_sub_f32 v41, v40, v41
        v_mul_f32 v41, s48, v41
        v_exp_f32 v41, v41
        v_mul_f32 v43, v41, v42
        v_add_f32_dpp v43, v43, v43 quad_perm:[1,0,3,2] {DPPF}
        v_add_f32_dpp v43, v43, v43 quad_perm:[2,3,0,1] {DPPF}
        v_rcp_f32 v43, v43
        v_mul_f32 v38, v41, v43"""
        mlchk = """v_xor_b32 v26, s43, v41
        v_xor_b32 v27, s43, v43
        v_or_b32 v26, v26, v27
        v_lshlrev_b32 v26, 3, v26
        v_cmp_ne_u32 vcc, 0, v26"""
        BT = 80
        tdone = 0
        wait_for(M1)
        a(mlchk)
        a("s_mov_b64 s[54:55], vcc")
        a(factor)
        a.zeroA()
        while tdone < 4 and pos[("T", 2*tdone+1)] <= st["done"]:
            a.transp(TR, BT, tdone); tdone += 1
        if p["b3b"]:
            a("s_barrier")
        m2 = a.lab("m2"); m2r = a.lab("m2r"); ml = a.lab("ml"); mlok = a.lab("ml_ok"); mlf = a.lab("ml_f")
        a(f"""s_cmp_lg_u64 s[54:55], 0
        s_cbranch_scc1 {m2}
        {m2r}:
        global_load_ushort v20, v250, s[4:5]
        global_load_dwordx4 v[28:31], v249, s[28:29] sc1""")
        st["issued"] += 2
        self.cold.append(lambda: a(f"""{m2}:
        global_load_dwordx4 v[40:43], v247, s[28:29] sc1
        s_branch {m2r}"""))
        while tdone < 4:
            wait_for(("T", 2*tdone+1)); a.transp(TR, BT, tdone); tdone += 1
        a(f"""s_mov_b32 s42, 0
        s_cmp_lg_u64 s[54:55], 0
        s_cbranch_scc1 {ml}
        {mlok}:""")
        self.cold.append(lambda: a(f"""{ml}:
        s_waitcnt vmcnt(0)
        {mlchk}
        s_cbranch_vccz {mlf}
        global_load_dwordx4 v[40:43], v247, s[28:29] sc1
        s_add_u32 s42, s42, 1
        s_cmp_lt_u32 s42, {SPIN}
        s_cbranch_scc1 {ml}
        s_waitcnt vmcnt(0)
        {mlf}:
        {"s_add_u32 s42, s42, 1" if self.diag else ""}
        {factor}
        s_branch {mlok}"""))
        a.stamp(21)
        a.gather("og", 1, lambda: a("global_load_dwordx4 v[28:31], v249, s[28:29] sc1"), 28, first_issued=True)
        a.stamp(6)
        a("""v_pk_mul_f32 v[28:29], v[28:29], v[38:39] op_sel_hi:[1,0]
        v_pk_mul_f32 v[30:31], v[30:31], v[38:39] op_sel_hi:[1,0]""")
        for d in ("quad_perm:[1,0,3,2]", "quad_perm:[2,3,0,1]"):
            for r in range(4):
                a(f"v_add_f32_dpp v{28+r}, v{28+r}, v{28+r} {d} {DPPF}")
        a("""v_cvt_pk_bf16_f32 v32, v28, v29
        v_cvt_pk_bf16_f32 v33, v30, v31
        v_mov_b32_dpp v64, v32 quad_perm:[0,1,2,3] row_mask:0xf bank_mask:0x5
        v_mov_b32_dpp v66, v32 row_half_mirror row_mask:0xf bank_mask:0x5
        v_mov_b32_dpp v65, v33 quad_perm:[0,1,2,3] row_mask:0xf bank_mask:0x5
        v_mov_b32_dpp v67, v33 row_half_mirror row_mask:0xf bank_mask:0x5
        v_mov_b32_dpp v68, v32 row_half_mirror row_mask:0xf bank_mask:0xa
        v_mov_b32_dpp v69, v33 row_half_mirror row_mask:0xf bank_mask:0xa
        v_mov_b32_dpp v70, v32 quad_perm:[0,1,2,3] row_mask:0xf bank_mask:0xa
        v_mov_b32_dpp v71, v33 quad_perm:[0,1,2,3] row_mask:0xf bank_mask:0xa""")
        a.nat8(BT)
        at = a.lab("at"); atd = a.lab("at_ok")
        a(f"""s_lshr_b32 s36, s38, 2
        v_min_u32 v2, 18, v0
        v_cmp_le_u32 vcc, s36, v2
        s_lshl_b32 s35, s30, 8
        v_addc_co_u32 v2, vcc, 0, v2, vcc
        s_add_u32 s35, s35, {AF}
        s_min_u32 s42, s47, {p['cslow']}
        {"v_min_u32 v2, 19, v0" if p["actrl"] == 0 else ""}
        v_lshl_add_u32 v2, v2, 2, s35
        v_lshlrev_b32 v20, 16, v20
        v_mov_b32 v45, v48
        v_mov_b32 v46, v52
        v_mov_b32 v47, v56
        ds_write_b128 v248, v[44:47] offset:{L_RED2}
        s_waitcnt lgkmcnt(0)
        s_barrier""")
        atloop = f"""{at}:
            s_sub_u32 s42, s42, 1
            s_cmp_eq_u32 s42, 0
            s_cbranch_scc1 {atd}
            global_load_dword v3, v2, s[28:29] sc1
            s_waitcnt vmcnt(0)
            v_cmp_ne_u32 vcc, s43, v3
            s_cbranch_vccnz {at}
            {atd}:"""
        if not p["atrig"] or p["actrl"] == 1:
            a("s_barrier")
        elif p["actrl"] == 2:
            a(f"s_cmp_lg_u32 s3, 0\ns_cbranch_scc1 {atd}")
            a(atloop)
            a("s_barrier")
        else:
            a(atloop)
        a.stamp(7)

        def ldA():
            a("global_load_dwordx4 v[28:31], v251, s[28:29] sc1")
            a("global_load_dwordx4 v[32:35], v253, s[28:29] sc1")
        assert AP == 0
        a.gather("ha", 2, ldA, 28)
        a.stamp(8)
        a.red16(28)
        a(f"""v_cvt_pk_bf16_f32 v28, 0, v28
        s_mov_b32 exec_lo, 0x000f000f
        v_add_f32 v28, v28, v20
        s_mov_b32 exec_hi, 0x000f000f
        v_cvt_pk_bf16_f32 v19, 0, v28
        v_or_b32 v26, v19, v246
        global_store_dword v252, v26, s[28:29]
        global_store_dword v254, v26, s[28:29] sc1
        s_mov_b64 exec, -1""")
        a.stamp(9)
        fin = a.lab("fin"); nob = a.lab("nobump"); ct = a.lab("ct"); ctd = a.lab("ct_ok")
        if p["c2"]:
            a(f"""s_bfe_u32 s35, s38, 0x20001
            s_lshr_b32 s36, s30, 1
            s_cmp_eq_u32 s35, s36
            s_cbranch_scc1 {fin}""")
        else:
            a(f"""s_bfe_u32 s35, s38, 0x30001
            s_cmp_eq_u32 s35, s30
            s_cbranch_scc1 {fin}""")
        a.finish()
        a.flush_cold()
        a(f"""{fin}:
        s_cmp_ge_u32 s38, 40
        s_cselect_b32 s35, 1280, 0
        v_subrev_u32 v2, s35, v250
        global_load_ushort v21, v2, s[22:23]
        global_load_ushort v22, v250, s[24:25]
        s_or_b32 s35, s38, s30
        s_cmp_lg_u32 s35, 0
        s_cbranch_scc1 {nob}
        v_mov_b32 v2, {EP}
        v_mov_b32 v3, s43
        global_store_dword v2, v3, s[28:29] sc1
        {nob}:""")
        if p["c2"]:
            a(f"""s_and_b32 s36, s30, 1
            s_lshl_b32 s35, s36, 5
            s_lshl_b32 s37, s38, 6
            s_add_u32 s35, s35, s37
            s_add_u32 s35, s35, {CP}
            v_lshrrev_b32 v2, 1, v0
            v_mul_u32_u24 v2, 5120, v2
            v_and_b32 v3, 1, v0
            v_lshl_add_u32 v2, v3, 4, v2
            v_add_u32 v48, s35, v2
            v_add_u32 v49, {32*5120}, v48
            s_lshl_b32 s36, s36, 1
            s_lshl_b32 s59, 0x00030003, s36""")
        else:
            a("s_mov_b32 s59, 0x000f000f")
            for u in range(4):
                a(f"v_add_u32 v{48+u}, {CP + 16*5120*u}, v251")
        a(f"""s_cmp_lt_u32 s30, 3
        s_cselect_b32 s35, 31, 23
        v_min_u32 v2, s35, v0
        s_lshl_b32 s35, s30, 8
        s_add_u32 s35, s35, {LF}
        v_lshl_add_u32 v2, v2, 2, s35
        s_min_u32 s42, s47, {p['cslow']}
        s_waitcnt vmcnt(0)
        v_lshlrev_b32 v21, 16, v21
        {ct}:
        s_sub_u32 s42, s42, 1
        s_cmp_eq_u32 s42, 0
        s_cbranch_scc1 {ctd}
        global_load_dword v3, v2, s[28:29] sc1
        s_waitcnt vmcnt(0)
        v_cmp_ne_u32 vcc, s43, v3
        s_cbranch_vccnz {ct}
        {ctd}:""")
        a.stamp(22)

        nC = 2 if p["c2"] else 4
        Z = 28 + 4 * (nC - 1)

        def ldC():
            for u in range(nC - 1):
                a(f"global_load_dwordx4 v[{28+4*u}:{31+4*u}], v{48+u}, s[28:29] sc1")
            for r in range(Z, Z + 4):
                a(f"v_mov_b32 v{r}, v246")
            a("s_mov_b32 exec_hi, 0xfff" if p["c2"] else "s_mov_b64 exec, 0xffffff")
            a(f"global_load_dwordx4 v[{Z}:{Z+3}], v{48+nC-1}, s[28:29] sc1")
            a("s_mov_b64 exec, -1")
        a.gather("hc", nC, ldC, 28)
        a.stamp(10)
        a.red16(28)
        if p["c2"]:
            a(f"v_add_f32_dpp v28, v28, v28 quad_perm:[2,3,0,1] {DPPF}")
        a("""v_cvt_pk_bf16_f32 v28, 0, v28
        s_mov_b32 exec_lo, s59
        v_add_f32 v28, v28, v21
        s_mov_b32 exec_hi, s59
        v_cvt_pk_bf16_f32 v28, 0, v28
        v_add_f32 v28, v28, v19
        v_cvt_pk_bf16_f32 v28, v28, v28
        global_store_short v250, v28, s[24:25]""")
        a.finish()
        a.flush_cold()

    def att_other(self):
        a = self
        p = self.p
        B1R = 104; B2R = 144; B3R = 176; XR = 184
        nT = p["mlpT"]
        a("L_att_n:")
        a(self.ROLES)
        a(f"""s_mul_i32 s36, s39, {32*1280}
        s_lshl_b32 s37, s3, 8
        s_add_u32 s36, s36, s37
        s_add_u32 s36, s36, {3*1280}""")
        a.rowaddr(15)
        a(f"""v_lshrrev_b32 v3, 4, v0
        v_and_b32 v2, 7, v0
        v_lshl_add_u32 v2, v3, 3, v2
        s_lshl_b32 s35, s39, 5
        v_add_lshl_u32 v252, v2, s35, 1
        s_mul_i32 s35, s3, {213*3456}
        s_lshl_b32 s37, s39, 6
        s_add_u32 s35, s35, s37
        v_mov_b32 v253, s35
        v_mov_b32 v254, s36""")
        extra = [(p.get("wat", 20), ("S", "global_load_ushort v252, v252, s[18:19]"))]
        if p["warm"]:
            extra += [(p.get("wat", 20), ("S", "global_load_dword v253, v253, s[16:17]")),
                      (p.get("wat", 20), ("S", "global_load_dword v254, v254, s[20:21]"))]
        st, pos, wait_for, lastchk = self.stream(nT, extra)
        go = a.lab("mlp_go")
        self.sect = "m"
        a(f"""s_cmp_eq_u32 s31, 1
        s_cbranch_scc1 {go}""")
        a.finish()
        a(f"""{go}:
        s_mul_i32 s36, s39, {32*1280}
        s_lshl_b32 s37, s3, 6
        s_add_u32 s36, s36, s37
        s_add_u32 s36, s36, {1024 + 3*1280}
        v_lshrrev_b32 v2, 4, v0
        v_mul_u32_u24 v3, 10240, v2
        v_and_b32 v12, 15, v0
        v_lshl_add_u32 v3, v12, 2, v3
        v_add_u32 v14, s36, v3
        v_add_u32 v16, 5120, v14
        s_barrier""")
        for t in range(nT, 8):
            self.emit(("T", t))
        for t in range(7):
            a(f"global_load_dword v{XR+t}, v14, s[20:21] offset:{(t-3)*1280}")
        a(f"global_load_dword v{XR+7}, v16, s[20:21]")
        a(f"""s_lshl_b32 s35, s3, 8
        v_and_b32 v3, 7, v0
        v_lshl_add_u32 v3, v2, 3, v3
        v_lshlrev_b32 v3, 3, v3
        v_bfe_u32 v18, v0, 3, 1
        v_lshl_add_u32 v21, v18, 2, v3
        v_lshl_add_u32 v22, v12, 3, s35
        v_add_u32 v22, {L_T1}, v22
        s_mul_i32 s35, s3, 320
        v_and_b32 v3, 1, v0
        v_mul_u32_u24 v3, {YS}, v3
        v_lshl_add_u32 v3, v2, 4, v3
        v_add_u32 v23, s35, v3
        s_mul_i32 s37, s3, 10240
        s_add_u32 s37, s37, {L_W1}
        v_bfe_u32 v3, v0, 2, 2
        v_lshl_add_u32 v3, v2, 3, v3
        v_lshlrev_b32 v3, 6, v3
        v_and_b32 v18, 3, v0
        v_lshl_add_u32 v3, v18, 3, v3
        v_add_u32 v24, s37, v3
        s_mul_i32 s38, s39, 5120
        s_add_u32 s38, s38, {CP}
        s_lshl_b32 s35, s3, 7
        s_add_u32 s35, s35, s38
        s_add_u32 s35, s35, 2048
        v_lshrrev_b32 v3, 5, v0
        v_mul_u32_u24 v3, 2560, v3
        v_lshl_add_u32 v3, v12, 3, v3
        v_and_b32 v18, 1, v2
        v_lshl_add_u32 v3, v18, 2, v3
        v_add_u32 v15, s35, v3
        s_lshl_b32 s35, s3, 9
        s_add_u32 s38, s38, s35""")
        a.dlayout(25, 3, 2560)
        a(f"""v_add_u32 v25, s38, v25
        s_lshl_b32 s36, s30, 1
        s_add_u32 s36, s36, s3
        s_mul_i32 s36, s36, 2560
        s_add_u32 s36, s36, {HB}
        v_lshl_add_u32 v2, v0, 4, s36
        v_lshl_add_u32 v3, v0, 3, s36
        s_mul_i32 s36, s3, {YS}
        v_lshl_add_u32 v26, v0, 3, s36
        v_lshl_add_u32 v27, v0, 2, s36
        v_lshlrev_b32 v20, 16, v252
        s_lshr_b32 s35, s39, 4
        s_lshl_b32 s35, s35, 1
        s_and_b32 s36, s39, 1
        s_add_u32 s35, s35, s36
        s_lshl_b32 s35, s35, 2
        s_add_u32 s35, s35, s3
        s_lshl_b32 s35, s35, 2
        s_lshl_b32 s36, s30, 8
        s_add_u32 s35, s35, s36
        s_add_u32 s35, s35, {LF}
        v_mov_b32 v18, s35
        v_mov_b32 v19, s43
        v_mov_b32 v12, 1.0""")
        a.zeroA()
        a("s_waitcnt vmcnt(8)")
        for pp in range(4):
            a.transp(TR, B2R, pp)
        a("s_waitcnt vmcnt(0)")
        for pp in range(4):
            for T in range(2):
                a(f"v_perm_b32 v{B3R+4*T+pp}, v{XR+2*pp+1}, v{XR+2*pp}, s{52+T}")
        a.stamp(15)
        a("s_barrier")
        for ks in range(5):
            for ct in range(2):
                for hf in range(2):
                    r = B1R + 4 * (2 * ks + ct) + 2 * hf
                    a(f"ds_read_b64_tr_b16 v[{r}:{r+1}], v24 offset:{(32*ks + 4*hf)*64 + 32*ct}")
        a.stamp(12)
        noln = a.lab("noln")
        a(f"""s_cmp_ge_u32 s3, 2
        s_cbranch_scc1 {noln}
        s_sub_u32 s47, s47, 1""")

        lp = a.lab("hb"); done = a.lab("hb_ok")

        def ld(B):
            a(f"global_load_dwordx4 v[{B}:{B+3}], v2, s[28:29] sc1")
            a(f"global_load_dwordx4 v[{B+4}:{B+7}], v2, s[28:29] offset:1024 sc1")
            a(f"global_load_dwordx2 v[{B+8}:{B+9}], v3, s[28:29] offset:2048 sc1")

        def chk(B, w):
            a(f"s_waitcnt vmcnt({w})")
            for r in range(10):
                a(f"v_xor_b32 v{28+r}, v246, v{B+r}")
            a("v_or_b32 v16, v28, v29")
            for i in range(2, 10, 2):
                a(f"v_or3_b32 v16, v16, v{28+i}, v{29+i}")
            a("v_cmp_ne_u32_sdwa vcc, v16, v13 src0_sel:BYTE_0 src1_sel:DWORD")
        sw = a.lab("hb_sw"); swr = a.lab("hb_swr")
        self.cold.append(lambda: a(f"""{sw}:
        s_cmp_ge_u32 s42, {SPIN}
        s_cbranch_scc1 {done}
        s_mov_b32 s47, {SPIN}
        v_add_u32 v2, {HB2 - HB}, v2
        v_add_u32 v3, {HB2 - HB}, v3
        s_branch {swr}"""))
        a("s_mov_b32 s42, 0")
        if p["hpipe"]:
            ld(80)
        a(f"""{lp}:
        s_cmp_eq_u32 s42, s47
        s_cbranch_scc1 {sw}
        {swr}:""")
        ld(92)
        a("s_add_u32 s42, s42, 1")
        if p["hpipe"]:
            chk(80, 3)
            a(f"s_cbranch_vccz {done}")
            ld(80)
            chk(92, 3)
        else:
            chk(92, 0)
        a(f"s_cbranch_vccnz {lp}\n{done}:")
        a.stamp(13)
        a.ln(28, 40, 46, True)
        a.ln(28, 40, 46, False)
        a(f"""ds_write_b64 v26, v[40:41] offset:{L_Y}
        ds_write_b64 v26, v[42:43] offset:{L_Y + 512}
        ds_write_b32 v27, v44 offset:{L_Y + 1024}
        {noln}:
        s_waitcnt lgkmcnt(0)
        s_barrier""")
        a.stamp(18)
        for ks in range(5):
            a(f"ds_read_b128 v[{28+4*ks}:{31+4*ks}], v23 offset:{L_Y + 64*ks}")
        for ks in range(5):
            a(f"s_waitcnt lgkmcnt({4-ks})")
            for ct in range(2):
                c = "0" if ks == 0 else f"v[{48+4*ct}:{51+4*ct}]"
                r = B1R + 4 * (2 * ks + ct)
                a(f"v_mfma_f32_16x16x32_bf16 v[{48+4*ct}:{51+4*ct}], v[{28+4*ks}:{31+4*ks}], v[{r}:{r+3}], {c}")
        lf = lambda k: "global_store_dword v18, v19, s[28:29]" if p["lfpos"] == k else ""
        a(f"""s_mov_b64 exec, 0xffff
        ds_write2_b64 v22, v[48:49], v[52:53] offset0:0 offset1:16
        s_mov_b64 exec, -1
        s_waitcnt lgkmcnt(0)
        s_barrier
        ds_read2st64_b32 v[28:29], v21 offset0:{L_T1//256} offset1:{L_T1//256+1}
        ds_read2st64_b32 v[30:31], v21 offset0:{L_T1//256+2} offset1:{L_T1//256+3}
        s_waitcnt lgkmcnt(0)
        v_pk_add_f32 v[28:29], v[28:29], v[30:31]
        v_add_f32 v28, v28, v29
        v_cvt_pk_bf16_f32 v28, 0, v28
        v_add_f32 v28, v28, v20
        v_cvt_pk_bf16_f32 v28, 0, v28
        v_mul_f32 v29, v28, v28
        v_mul_f32 v30, {hx(-2.0*math.sqrt(2.0/math.pi)*LOG2E)}, v28
        v_fmamk_f32 v29, v29, {hx(0.044715)}, v12
        v_mul_f32 v29, v29, v30
        v_exp_f32 v29, v29
        v_add_f32 v29, 1.0, v29
        v_rcp_f32 v29, v29
        v_mul_f32 v28, v28, v29
        v_mov_b32_dpp v29, v28 quad_perm:[1,1,3,3] {DPPF}
        v_cvt_pk_bf16_f32 v28, v28, v29
        v_mov_b32_dpp v70, v28 quad_perm:[0,0,0,0] row_mask:0xf bank_mask:0xa
        v_mov_b32_dpp v71, v28 quad_perm:[2,2,2,2] row_mask:0xf bank_mask:0xa
        v_mov_b32_dpp v64, v28 quad_perm:[0,0,0,0] row_mask:0xf bank_mask:0x5
        v_mov_b32_dpp v65, v28 quad_perm:[2,2,2,2] row_mask:0xf bank_mask:0x5
        v_mov_b32_dpp v66, v70 row_half_mirror row_mask:0xf bank_mask:0x5
        v_mov_b32_dpp v67, v71 row_half_mirror row_mask:0xf bank_mask:0x5
        v_mov_b32_dpp v68, v64 row_half_mirror row_mask:0xf bank_mask:0xa
        v_mov_b32_dpp v69, v65 row_half_mirror row_mask:0xf bank_mask:0xa
        v_mfma_f32_16x16x32_bf16 v[60:63], v[64:67], v[{B3R}:{B3R+3}], 0
        v_mfma_f32_16x16x32_bf16 v[60:63], v[68:71], v[{B3R+4}:{B3R+7}], v[60:63]""")
        a.nat8(B2R)
        a(f"""v_and_or_b32 v32, v60, s49, v246
        {lf(3)}
        global_store_dword v15, v32, s[28:29] sc1""")
        for r in range(4):
            a(f"v_and_or_b32 v{28+r}, v{44+4*r}, s49, v246")
        a(lf(4))
        a("global_store_dwordx4 v25, v[28:31], s[28:29] sc1")
        a(lf(2))
        a.stamp(14)
        a.finish()
        a.flush_cold()

    def compute(self):
        a = self
        self.sect = "a"
        QF = 144; DR = 160; SR = 16
        a("L_compute:")
        a("v_readfirstlane_b32 s43, v2\nv_and_b32 v246, 0xff, v2")
        a.stamp(2)
        for qd in range(4):
            a(f"ds_read_b128 v[{QF+4*qd}:{QF+4*qd+3}], v{200+qd}")
        for qd in range(4):
            a(f"s_waitcnt lgkmcnt({3-qd})")
            for u in range(4):
                t = 4 * u + qd
                c = "0" if qd == 0 else f"v[{DR+4*u}:{DR+4*u+3}]"
                a(f"v_mfma_f32_16x16x32_bf16 v[{DR+4*u}:{DR+4*u+3}], v[{KR+4*t}:{KR+4*t+3}], v[{QF+4*qd}:{QF+4*qd+3}], {c}")
        for u in range(4):
            a(f"v_mov_b32_dpp v{SR+u}, v{DR+4*u} quad_perm:[0,0,0,0] {DPPF}")
        for r in (1, 2, 3):
            for u in range(4):
                a(f"v_add_f32_dpp v{SR+u}, v{DR+4*u+r}, v{SR+u} quad_perm:[{r},{r},{r},{r}] {DPPF}")
        for r in range(16, 20):
            a.rnd(r, f"v{r}")
        a("""v_pk_mul_f32 v[16:17], v[16:17], s[40:41] op_sel_hi:[1,0]
        v_pk_mul_f32 v[18:19], v[18:19], s[40:41] op_sel_hi:[1,0]""")
        for r in range(16, 20):
            a.rnd(r, f"v{r}")
        a(f"""v_max3_f32 v28, v16, v17, v18
        v_max_f32 v28, v28, v19
        v_max_f32_dpp v28, v28, v28 row_ror:4 {DPPF}
        v_max_f32_dpp v28, v28, v28 row_ror:8 {DPPF}
        v_mov_b32 v29, v28
        v_permlane32_swap_b32 v28, v29
        v_max_f32 v28, v28, v29
        v_mov_b32 v29, v28
        v_permlane16_swap_b32 v28, v29
        v_max_f32 v28, v28, v29
        v_pk_add_f32 v[16:17], v[16:17], v[28:29] op_sel_hi:[1,0] neg_lo:[0,1] neg_hi:[0,1]
        v_pk_add_f32 v[18:19], v[18:19], v[28:29] op_sel_hi:[1,0] neg_lo:[0,1] neg_hi:[0,1]
        v_pk_mul_f32 v[16:17], v[16:17], s[48:49] op_sel_hi:[1,0]
        v_pk_mul_f32 v[18:19], v[18:19], s[48:49] op_sel_hi:[1,0]
        v_exp_f32 v16, v16
        v_exp_f32 v17, v17
        v_exp_f32 v18, v18
        v_exp_f32 v19, v19
        v_pk_add_f32 v[30:31], v[16:17], v[18:19]
        v_add_f32 v30, v30, v31
        v_cvt_pk_bf16_f32 v24, 0, v16
        v_cvt_pk_bf16_f32 v25, 0, v17
        v_add_f32_dpp v30, v30, v30 row_ror:4 {DPPF}
        v_cvt_pk_bf16_f32 v26, 0, v18
        v_cvt_pk_bf16_f32 v27, 0, v19
        v_add_f32_dpp v30, v30, v30 row_ror:8 {DPPF}
        v_mov_b32 v31, v30
        v_pk_add_f32 v[16:17], v[16:17], v[24:25] neg_lo:[0,1] neg_hi:[0,1]
        v_pk_add_f32 v[18:19], v[18:19], v[26:27] neg_lo:[0,1] neg_hi:[0,1]
        v_permlane32_swap_b32 v30, v31
        v_add_f32 v30, v30, v31
        v_mov_b32 v31, v30
        v_cvt_pk_bf16_f32 v20, v24, v16
        v_cvt_pk_bf16_f32 v21, v25, v17
        v_permlane16_swap_b32 v30, v31
        v_add_f32 v29, v30, v31
        v_cvt_pk_bf16_f32 v22, v26, v18
        v_cvt_pk_bf16_f32 v23, v27, v19
        ds_write_b64 v12, v[28:29] offset:{L_ML}""")
        a.stamp(4)
        a("s_nop 1\ns_setpc_b64 s[50:51]")

    def ctrl(self):
        a = self
        p = self.p
        WQ = 80
        self.sect = "c"
        a("L_ctrl:")
        a.stamp(1)
        a.selectors()
        a("""s_getreg_b32 s44, hwreg(HW_REG_XCC_ID, 0, 3)
        v_lshl_add_u32 v21, v0, 4, s45
        s_waitcnt vmcnt(22)""")
        a.stamp(2)
        for b_, (src, X) in enumerate(((24, 36), (30, 48))):
            for i in range(5):
                a(f"v_lshlrev_b32 v{X+2*i}, 16, v{src+i}")
                a(f"v_and_b32 v{X+2*i+1}, 0xffff0000, v{src+i}")
            a.ln(X, src, 60, False)
            a(f"""v_lshlrev_b32 v2, 2, v0
            ds_write_b64 v1, v[{src}:{src+1}] offset:{L_Y + b_*YS}
            ds_write_b64 v1, v[{src+2}:{src+3}] offset:{L_Y + b_*YS + 512}
            ds_write_b32 v2, v{src+4} offset:{L_Y + b_*YS + 1024}""")
        a(f"""s_mul_i32 s35, s33, 160
        v_lshrrev_b32 v2, 4, v0
        v_mul_u32_u24 v2, 40, v2
        v_bfe_u32 v3, v0, 3, 1
        v_mul_u32_u24 v3, {YS}, v3
        v_add3_u32 v2, v2, v3, s35
        s_waitcnt lgkmcnt(0)""")
        for i in range(5):
            a(f"ds_read_b64 v[{36+2*i}:{37+2*i}], v2 offset:{L_Y + 8*i}")
        a(f"""s_waitcnt vmcnt(21)
        v_readfirstlane_b32 s43, v15
        s_add_u32 s43, s43, 1
        s_and_b32 s43, s43, 0x1fffffff
        s_lshl_b32 s44, s44, 29
        s_or_b32 s44, s44, s43
        s_mov_b32 s43, s44
        s_and_b32 s35, s43, 0xff
        v_mov_b32 v246, s35
        s_mov_b32 s49, 0xffffff00
        v_mov_b32 v13, 0
        v_mov_b32 v53, s44
        v_mov_b32 v55, s44
        v_mov_b32 v57, s44
        v_mov_b32 v59, s44
        s_waitcnt lgkmcnt(0)""")
        a.stamp(3)
        FR = 160

        def frag(D, P, odd):
            for r in range(4):
                a(f"v_perm_b32 v{D+r}, v{P}, v{P}, v{(8 if odd else 4)+r}")
        frag(FR, 36, 0)
        for t in range(20):
            if t + 1 < 20:
                frag(FR + 4 * ((t + 1) % 4), 36 + (t + 1) // 2, (t + 1) & 1)
            a(f"s_waitcnt vmcnt({19-t})")
            c = "0" if t == 0 else "v[48:51]"
            a(f"v_mfma_f32_16x16x32_bf16 v[48:51], v[{FR+4*(t%4)}:{FR+4*(t%4)+3}], v[{WQ+4*t}:{WQ+4*t+3}], {c}")
        qfl = "" if p["fast"] else "sc1"
        a(f"""v_mov_b32 v52, v48
        v_mov_b32 v54, v49
        v_mov_b32 v56, v50
        v_mov_b32 v58, v51
        global_store_dwordx4 v21, v[52:55], s[28:29] {qfl}
        global_store_dwordx4 v21, v[56:59], s[28:29] offset:1024 {qfl}
""")
        oppre = """v_min_u32 v2, 4, v0
        v_lshl_add_u32 v2, v2, 7, s45
        global_load_dword v253, v2, s[28:29] offset:2048 nt"""
        if p["oppre"] == 1:
            a(oppre)
        a.stamp(4)
        a(self.ROLES)
        qg = a.lab("qg"); qgd = a.lab("qg_ok"); qns = a.lab("qg_nosc1"); qf = a.lab("qg_fast")
        qt = a.lab("qt"); qtd = a.lab("qt_ok")
        a(f"""s_mul_i32 s35, s32, 5120
        s_lshl_b32 s38, s33, 9
        s_add_u32 s35, s35, s38
        v_lshrrev_b32 v3, 5, v0
        v_mul_u32_u24 v2, 2560, v3
        v_and_b32 v22, 31, v0
        v_lshl_add_u32 v2, v22, 4, v2
        v_add_u32 v23, s35, v2
        s_lshl_b32 s35, s32, 15
        s_lshr_b32 s38, s33, 2
        s_lshl_b32 s38, s38, 9
        s_add_u32 s35, s35, s38
        s_add_u32 s35, s35, {BK + 4096}
        v_lshlrev_b32 v2, 10, v3
        v_lshl_add_u32 v2, v22, 4, v2
        v_add_u32 v60, s35, v2
        v_add_u32 v61, 8192, v60
        v_add_u32 v62, 8192, v61
        v_add_u32 v63, 8192, v62
        v_and_b32 v2, 15, v0
        v_lshlrev_b32 v2, 4, v2
        v_and_b32 v22, 16, v0
        v_lshrrev_b32 v22, 1, v22
        v_add_u32 v2, v2, v22
        v_lshl_add_u32 v22, v3, 2, v2
        s_mov_b32 s42, 0
        {qt}:
        ds_read_b128 v[36:39], v13 offset:{L_QT}
        ds_read_b128 v[40:43], v13 offset:{L_QT+16}
        s_add_u32 s42, s42, 1
        s_waitcnt lgkmcnt(0)
        v_min3_u32 v36, v36, v38, v40
        v_min_u32 v36, v36, v42
        v_cmp_eq_u32 vcc, 0, v36
        s_cbranch_vccz {qtd}
        s_cmp_lt_u32 s42, {SPIN*20}
        s_cbranch_scc1 {qt}
        {qtd}:
        s_mov_b32 s42, 0""")
        a.stamp(5)
        if p.get("noq"):
            a(f"v_mov_b32 v36, 0\ns_branch {qgd}")
        a(f"{qg}:")
        for u in range(8):
            a(f"global_load_dwordx4 v[{80+4*u}:{83+4*u}], v{60+u//2}, s[28:29] offset:{4096*(u%2)-4096} sc1")
        a("s_add_u32 s42, s42, 1\ns_waitcnt vmcnt(0)")
        a("v_xor_b32 v36, s44, v81\nv_xor_b32 v37, s44, v83")
        for u in range(1, 8):
            a(f"v_bitop3_b32 v36, v36, v{81+4*u}, s44 bitop3:0xf6")
            a(f"v_bitop3_b32 v37, v37, v{83+4*u}, s44 bitop3:0xf6")
        a(f"""v_or_b32 v36, v36, v37
        v_lshlrev_b32 v37, 3, v36
        v_cmp_ne_u32 vcc, 0, v37
        s_cbranch_vccz {qgd}
        s_cmp_lg_u32 s42, {p['qslow']}
        s_cbranch_scc1 {qns}
        global_store_dwordx4 v21, v[52:55], s[28:29] sc1
        global_store_dwordx4 v21, v[56:59], s[28:29] offset:1024 sc1
        {qns}:
        s_cmp_lt_u32 s42, {SPIN}
        s_cbranch_scc1 {qg}
        {qgd}:""")
        a(f"""v_add_f32 v80, v80, v84
        v_add_f32 v82, v82, v86
        v_add_f32 v88, v88, v92
        v_add_f32 v90, v90, v94
        v_add_f32 v96, v96, v100
        v_add_f32 v98, v98, v102
        v_add_f32 v104, v104, v108
        v_add_f32 v106, v106, v110
        v_add_f32 v80, v80, v88
        v_add_f32 v82, v82, v90
        v_add_f32 v96, v96, v104
        v_add_f32 v98, v98, v106
        v_add_f32 v80, v80, v96
        v_add_f32 v82, v82, v98
        v_cvt_pk_bf16_f32 v80, v80, v82
        ds_write_b32 v22, v80 offset:{L_Q}
        v_cmp_ne_u32 vcc, 0, v36
        v_mov_b32 v14, s44
        s_nop 0
        s_cmp_lg_u64 vcc, 0
        s_cselect_b32 s46, 1, {0 if p['fast'] else 1}
        s_cselect_b32 s35, 1, {p['hslow'] + 1 if p['fast'] else 1}
        v_mov_b32 v15, s35
        s_waitcnt lgkmcnt(0)
        ds_write_b64 v13, v[14:15] offset:{L_QF}
        s_cbranch_scc0 {qf}
        global_store_dwordx4 v21, v[52:55], s[28:29] sc1
        global_store_dwordx4 v21, v[56:59], s[28:29] offset:1024 sc1
        {qf}:""")
        a.stamp(6)
        mw = a.lab("mw"); mwd = a.lab("mw_ok"); msl = a.lab("ml_slow"); msd = a.lab("ml_done")
        a(f"""s_mov_b32 s40, {hx(LOG2E)}
        v_mov_b32 v20, s45
        v_lshl_add_u32 v21, v0, 3, s45
        s_lshl_b32 s36, s39, 6
        v_lshrrev_b32 v2, 2, v0
        v_mul_u32_u24 v2, 3456, v2
        v_and_b32 v3, 3, v0
        v_lshl_add_u32 v2, v3, 4, v2
        s_mov_b32 s54, {16*3456}
        s_movk_i32 s55, 1024
        s_mov_b32 s56, {L_W1}
        s_bitcmp1_b32 s39, 0
        s_cmov_b32 s54, {-16*3456 & 0xffffffff}
        s_cmov_b32 s55, {-1024 & 0xffffffff}
        s_cselect_b32 s37, {39*16*3456}, 0
        s_cmov_b32 s56, {L_W1 + 39*1024}
        s_add_u32 s36, s36, s37
        v_add_u32 v14, s36, v2
        s_setprio 0
        s_mov_b32 s42, 0
        {mw}:
        ds_read_b128 v[36:39], v13 offset:{L_ML}
        ds_read_b128 v[40:43], v13 offset:{L_ML+16}
        s_add_u32 s42, s42, 1
        s_waitcnt lgkmcnt(0)
        v_min3_u32 v44, v37, v39, v41
        v_min_u32 v44, v44, v43
        v_cmp_eq_u32 vcc, 0, v44
        s_cbranch_vccz {mwd}
        s_cmp_lt_u32 s42, {SPIN*20}
        s_cbranch_scc1 {mw}
        {mwd}:
        s_setprio 3
        v_max3_f32 v44, v36, v38, v40
        v_max_f32 v44, v44, v42""")
        for i in range(4):
            a(f"v_sub_f32 v{36+2*i}, v{36+2*i}, v44")
        for i in range(4):
            a(f"v_mul_f32 v{36+2*i}, s40, v{36+2*i}")
        for i in range(4):
            a(f"v_exp_f32 v{36+2*i}, v{36+2*i}")
        a(f"""v_mul_f32 v46, v36, v37
        v_mov_b32 v45, s44
        v_fmac_f32 v46, v38, v39
        v_mov_b32 v47, s44
        v_fmac_f32 v46, v40, v41
        v_fmac_f32 v46, v42, v43
        s_cmp_lg_u32 s46, 0
        s_cbranch_scc1 {msl}
        global_store_dwordx4 v20, v[44:47], s[28:29] offset:2560
        s_branch {msd}
        {msl}:
        global_store_dwordx4 v20, v[44:47], s[28:29] offset:2560 sc1
        {msd}:""")
        a.stamp(8)
        a("s_barrier")
        for u in range(4):
            a(f"ds_read2st64_b64 v[{48+4*u}:{51+4*u}], v1 offset0:{L_RED//512 + 2*u} offset1:{L_RED//512 + 2*u + 1}")
        osl = a.lab("op_slow"); osd = a.lab("op_done"); nf = a.lab("notfree"); dm = a.lab("dma"); dm2 = a.lab("dma2")
        a(f"""s_cmp_lg_u32 s46, 0
        s_waitcnt lgkmcnt(2)
        v_pk_add_f32 v[48:49], v[48:49], v[50:51]
        v_pk_add_f32 v[52:53], v[52:53], v[54:55]
        v_pk_mul_f32 v[48:49], v[48:49], v[36:37] op_sel_hi:[1,0]
        s_waitcnt lgkmcnt(0)
        v_pk_add_f32 v[56:57], v[56:57], v[58:59]
        v_pk_fma_f32 v[48:49], v[52:53], v[38:39], v[48:49] op_sel_hi:[1,0,1]
        v_pk_add_f32 v[60:61], v[60:61], v[62:63]
        v_pk_fma_f32 v[48:49], v[56:57], v[40:41], v[48:49] op_sel_hi:[1,0,1]
        v_pk_fma_f32 v[48:49], v[60:61], v[42:43], v[48:49] op_sel_hi:[1,0,1]
        v_and_or_b32 v48, v48, s49, v246
        v_and_or_b32 v49, v49, s49, v246
        s_cbranch_scc1 {osl}
        global_store_dwordx2 v21, v[48:49], s[28:29] offset:2048
        {osd}:""")
        self.cold.append(lambda: a(f"""{osl}:
        global_store_dwordx2 v21, v[48:49], s[28:29] offset:2048 sc1
        s_branch {osd}"""))
        a.stamp(10)
        a("""s_cmp_lg_u32 s31, 0
        s_cbranch_scc1 L_ctrl_n""")
        self.ctrl_wo()
        a.flush_cold()
        a(f"""L_ctrl_n:
        s_cmp_eq_u32 s31, 1
        s_cbranch_scc1 {nf}""")
        a.finish()

        def dma(n, lp):
            a(f"""s_mov_b32 s57, {n}
            {lp}:
            s_mov_b32 m0, s56
            s_add_u32 s56, s56, s55
            global_load_lds_dwordx4 v14, s[16:17] {p["w1fl"]}
            v_add_u32 v14, s54, v14
            s_sub_u32 s57, s57, 1
            s_cmp_lg_u32 s57, 0
            s_cbranch_scc1 {lp}""")
        a(f"{nf}:")
        n1 = p.get("n1", 0)
        if n1:
            dma(n1, dm)
        a("s_barrier")
        if n1 < 40:
            dma(40 - n1, dm2)
        a("s_waitcnt vmcnt(0)")
        a.stamp(15)
        a("s_barrier")
        a.finish()

    def ctrl_wo(self):
        a = self
        p = self.p
        if p["b3b"]:
            a("s_barrier")
        if p["atrig"]:
            a(f"""s_and_b32 s35, s32, 3
            s_mul_i32 s35, s35, 5
            s_add_u32 s35, s35, s33
            s_lshl_b32 s35, s35, 2
            s_lshl_b32 s36, s30, 8
            s_add_u32 s35, s35, s36
            s_add_u32 s35, s35, {AF}
            v_mov_b32 v24, s35
            global_load_dword v253, v24, s[28:29] sc1
            v_min_u32 v25, 19, v0
            s_add_u32 s36, s36, {AF}
            v_lshl_add_u32 v25, v25, 2, s36
            s_cmp_lg_u32 s46, 0
            s_cselect_b32 s42, 1, {p['cslow']}""")
        a("v_lshlrev_b32 v2, 4, v0\ns_barrier")
        for u in range(4):
            a(f"ds_read_b128 v[{48+4*u}:{51+4*u}], v2 offset:{L_RED2 + 1024*u}")
        a("""s_waitcnt lgkmcnt(2)
        v_pk_add_f32 v[48:49], v[48:49], v[52:53]
        v_pk_add_f32 v[50:51], v[50:51], v[54:55]
        s_waitcnt lgkmcnt(0)
        v_pk_add_f32 v[56:57], v[56:57], v[60:61]
        v_pk_add_f32 v[58:59], v[58:59], v[62:63]
        v_pk_add_f32 v[48:49], v[48:49], v[56:57]
        v_pk_add_f32 v[50:51], v[50:51], v[58:59]""")
        for r in range(48, 52):
            a(f"v_and_or_b32 v{r}, v{r}, s49, v246")
        if p["atrig"] == 1:
            a("global_store_dword v24, v45, s[28:29]")
        a("global_store_dwordx4 v23, v[48:51], s[28:29] sc1")
        if p["atrig"] == 2:
            a("global_store_dword v24, v45, s[28:29]")
        a.stamp(11)
        if p["atrig"] == 3:
            a("s_waitcnt vmcnt(0)\nglobal_store_dword v24, v45, s[28:29]")
        if not p["atrig"]:
            a("s_waitcnt vmcnt(0)\ns_barrier")
        elif p["actrl"] == 2:
            a("s_barrier")
        elif p["actrl"] == 1:
            at = a.lab("at"); atd = a.lab("at_ok")
            a(f"""{at}:
            s_sub_u32 s42, s42, 1
            s_cmp_eq_u32 s42, 0
            s_cbranch_scc1 {atd}
            s_load_dwordx16 s[60:75], s[28:29], s36 glc""" if False else f"""{at}:
            s_sub_u32 s42, s42, 1
            s_cmp_eq_u32 s42, 0
            s_cbranch_scc1 {atd}
            global_load_dword v3, v25, s[28:29] sc1
            s_waitcnt vmcnt(0)
            v_cmp_ne_u32 vcc, s44, v3
            s_cbranch_vccnz {at}
            {atd}:
            s_barrier""")
        a.finish()

    def write(self, fn):
        self.build()
        body = process(self.L)
        H = ["; fused decode block: one persistent launch, 256 workgroups x 5 waves",
             f"; @launch grid=(256,1,1) block=(320,1,1) lds={LDS_SIZE}",
             '.amdgcn_target "amdgcn-amd-amdhsa--gfx950"', ".text", f".globl {NAME}_kernel", ".p2align 8",
             f".type {NAME}_kernel,@function", f"{NAME}_kernel:"]
        T = ['.section .rodata,"a"', ".p2align 6", f".amdhsa_kernel {NAME}_kernel",
             "  .amdhsa_next_free_vgpr 256", "  .amdhsa_next_free_sgpr 102", "  .amdhsa_accum_offset 256",
             "  .amdhsa_group_segment_fixed_size 0", "  .amdhsa_kernarg_size 104", "  .amdhsa_user_sgpr_count 2",
             "  .amdhsa_user_sgpr_kernarg_segment_ptr 1", "  .amdhsa_system_sgpr_workgroup_id_x 1",
             "  .amdhsa_float_denorm_mode_32 3", "  .amdhsa_float_denorm_mode_16_64 3", ".end_amdhsa_kernel"]
        lines = [(l if l.endswith(":") else "    " + l) for l in body]
        open(fn, "w").write("\n".join(H + lines + T) + "\n")


if __name__ == "__main__":
    out = sys.argv[1] if len(sys.argv) > 1 else "k13.s"
    kw = {}
    diag = False
    for x in sys.argv[2:]:
        if x == "diag":
            diag = True
        else:
            k, v = x.split("=", 1)
            kw[k] = eval(v)
    G(diag=diag, **kw).write(out)
```

```python
import sys, struct, math
from hz import process

NAME = "sequential_preLN__sliding_block_cached__mixer_channel_mlp__decode"


def hx(x):
    return "0x%08x" % struct.unpack("<I", struct.pack("<f", x))[0]


A1 = 0x00000
A2 = 0x05000
PC = 0x0A000
EP = 0x80000
ZF = 0x81000
BK = 0x100000
STAMP = 0x8000000
L_Y = 0x0000; YS = 1408
L_Q = 0x0B00; L_ML = 0x0C00; L_Z = 0x0C80; L_QF = 0x0C90; L_QT = 0x0CC0; L_GO = 0x0CF0
L_RED = 0x1000; L_RED2 = 0x2000; L_T1 = 0x3000
L_H = 0x1000
L_W1 = 0x4000
LDS_SIZE = L_W1 + 81920
KR, VR, FRG, TR = 16, 80, 144, 208
LOG2E = 1.4426950408889634
SPIN = 400000
DPPF = "row_mask:0xf bank_mask:0xf"
KEXP = 22
MHI = ((1023 + KEXP) << 20) | (1 << 19)
for miss in range(1, 55):
    for slop in (-1, 0):
        top = (((1 - miss) * MHI + slop) & 0xffffffff) >> 20
        top2 = (((1 - miss) * MHI + (1 << 19) - 1 + (slop << 19)) & 0xffffffff) >> 20
        for t_ in (top, top2):
            assert t_ != 1023 + KEXP, miss
INIT1 = (-31 * MHI) & 0xffffffff
INIT2 = (-26 * MHI) & 0xffffffff


class G:
    def __init__(self, diag=False, **kw):
        self.L = []
        self.diag = diag
        self.n = 0
        self.sect = "a"
        self.cold = []
        self.p = dict(F=11, Pw=9, Pw2=10, Pn=8, Pn2=9, tsl=(8, 13, 18, 23, 28, 32, 32, 32), mat=32, chk=31,
                      qtrig=1, qslow=3, hslow=100, cslow=60, lfpos=2, fast=True, nt="nt", w1fl="", warm=True,
                      mlpT=0, b3b=True, atrig=1, actrl=2, hpipe=False, sp1=0, Pf=0, tfl="", tsn=None, n1=0, gf=True, afpos=1, gslow=40, gpre=8, gfv=False, oppre=1)
        self.p.update(kw)

    def __call__(self, s):
        for ln in s.split("\n"):
            ln = ln.strip()
            if ln:
                self.L.append(ln)

    def lab(self, p):
        self.n += 1
        return f"L_{p}_{self.n}"

    def stamp(self, idx):
        p = self.p
        h = p.get("holdat")
        if h is not None and not self.diag:
            if (self.sect, idx) == tuple(h[:2]):
                self("s_memrealtime s[96:97]\ns_waitcnt lgkmcnt(0)\ns_mov_b32 s95, 1")
            return
        if not self.diag or (p.get("lite") and idx != 31):
            return
        if p.get("only") is not None and idx != 31 and (self.sect + str(idx)) not in p["only"].split(","):
            return
        self(f"s_memrealtime s[100:101]\ns_waitcnt lgkmcnt(0)\nv_writelane_b32 v255, s100, {idx}")

    def note(self, idx):
        if self.diag:
            self(f"v_writelane_b32 v255, s42, {idx}")

    def finish(self):
        if self.diag:
            self.stamp(31)
            self("s_branch L_dump")
        elif self.p.get("holdat") is not None:
            self("s_branch L_hold")
        else:
            self("s_endpgm")

    def rnd(self, d, src):
        self(f"v_cvt_pk_bf16_f32 v{d}, 0, {src}")

    def ln(self, X, P, T, keep, hook=None):
        a = self
        pr = lambda r: f"v[{r}:{r+1}]"
        a(f"v_pk_add_f32 {pr(T)}, {pr(X)}, {pr(X+2)}")
        a(f"v_pk_mul_f32 {pr(T+2)}, {pr(X)}, {pr(X)}")
        for i in (4, 6, 8):
            a(f"v_pk_add_f32 {pr(T)}, {pr(T)}, {pr(X+i)}")
            a(f"v_pk_fma_f32 {pr(T+2)}, {pr(X+i-2)}, {pr(X+i-2)}, {pr(T+2)}")
        a(f"v_pk_fma_f32 {pr(T+2)}, {pr(X+8)}, {pr(X+8)}, {pr(T+2)}")
        a(f"v_add_f32 v{T}, v{T}, v{T+1}")
        a(f"v_add_f32 v{T+2}, v{T+2}, v{T+3}")
        if hook:
            hook()
        a(f"v_permlane32_swap_b32 v{T}, v{T+2}")
        a(f"v_add_f32 v{T}, v{T}, v{T+2}")
        for d in ("quad_perm:[1,0,3,2]", "quad_perm:[2,3,0,1]", "row_half_mirror", "row_mirror"):
            a(f"v_add_f32_dpp v{T}, v{T}, v{T} {d} {DPPF}")
        a(f"v_add_f32_dpp v{T}, v{T}, v{T} row_bcast:15 row_mask:0xa bank_mask:0xf")
        a(f"v_mul_f32 v{T}, {hx(1.0/640.0)}, v{T}")
        a(f"v_readlane_b32 s41, v{T}, 63")
        a(f"v_readlane_b32 s40, v{T}, 31")
        a(f"v_mov_b32 v{T+2}, s41")
        a.rnd(T, "s40")
        a(f"v_fma_f32 v{T+2}, -s40, s40, v{T+2}")
        sub = lambda i: a(f"v_pk_add_f32 {pr(X+i)}, {pr(X+i)}, {pr(T)} op_sel_hi:[1,0] neg_lo:[0,1] neg_hi:[0,1]")
        sub(0)
        a(f"v_max_f32 v{T+2}, 0, v{T+2}")
        sub(2)
        a.rnd(T+2, f"v{T+2}")
        sub(4)
        a(f"v_add_f32 v{T+2}, {hx(1e-5)}, v{T+2}")
        sub(6)
        a.rnd(T+2, f"v{T+2}")
        sub(8)
        a(f"v_sqrt_f32 v{T+2}, v{T+2}")
        a.rnd(X, f"v{X}"); a.rnd(X+1, f"v{X+1}")
        a.rnd(T+2, f"v{T+2}")
        a.rnd(X+2, f"v{X+2}")
        a(f"v_rcp_f32 v{T+2}, v{T+2}")
        for i in range(3, 10):
            a.rnd(X+i, f"v{X+i}")
        for i in range(5):
            a(f"v_pk_mul_f32 {pr(X+2*i)}, {pr(X+2*i)}, {pr(T+2)} op_sel_hi:[1,0]")
        if keep:
            for i in range(10):
                a.rnd(X+i, f"v{X+i}")
        else:
            for i in range(5):
                a(f"v_cvt_pk_bf16_f32 v{P+i}, v{X+2*i}, v{X+2*i+1}")

    def selectors(self):
        a = self
        a("""v_and_b32 v2, 1, v0
        v_cmp_eq_u32 vcc, 1, v2
        v_mov_b32 v2, 0x0c0c0100
        v_mov_b32 v3, 0x01000c0c
        v_cndmask_b32 v12, v2, v3, vcc
        v_mov_b32 v2, 0x0c0c0302
        v_mov_b32 v3, 0x03020c0c
        v_cndmask_b32 v13, v2, v3, vcc
        v_bfe_u32 v2, v0, 1, 2
        v_mov_b32 v3, 0x0c0c0c0c""")
        for r in range(4):
            a(f"v_cmp_eq_u32 vcc, {r}, v2")
            a(f"v_cndmask_b32 v{4+r}, v3, v12, vcc")
            a(f"v_cndmask_b32 v{8+r}, v3, v13, vcc")

    def dlayout(self, dst, t, bstride):
        self(f"""v_and_b32 v{dst}, 15, v0
        v_lshlrev_b32 v{dst}, 5, v{dst}
        v_and_b32 v{t}, 16, v0
        v_add_u32 v{dst}, v{dst}, v{t}
        v_lshrrev_b32 v{t}, 5, v0
        v_mul_u32_u24 v{t}, {bstride}, v{t}
        v_add_u32 v{dst}, v{dst}, v{t}""")

    def rowaddr(self, dst):
        self(f"""v_lshrrev_b32 v2, 4, v0
        v_mul_u32_u24 v2, 10240, v2
        v_and_b32 v3, 15, v0
        v_lshl_add_u32 v2, v3, 4, v2
        v_add_u32 v{dst}, s36, v2""")

    ROLES = """s_and_b32 s39, s32, 3
        s_lshl_b32 s39, s39, 3
        s_add_u32 s39, s39, s30
        s_cmp_lt_u32 s39, 27
        s_cselect_b32 s31, 1, 2
        s_min_u32 s39, s39, 26
        s_cmp_lt_u32 s33, 5
        s_cselect_b32 s31, 0, s31"""

    def gather(self, name, n, loads, R, first_issued=False):
        a = self
        lp = a.lab(name); dn = a.lab(name + "_ok"); re = a.lab(name + "_re")
        a("s_mov_b32 s42, 0")
        if first_issued:
            a(f"s_branch {lp}")
        a(f"{re}:")
        loads()
        a(f"s_add_u32 s42, s42, 1\ns_cmp_ge_u32 s42, {SPIN}\ns_cbranch_scc1 {dn}")
        a(f"{lp}:")
        for u in range(n):
            a(f"s_waitcnt vmcnt({n-1-u})")
            b = R + 4*u
            for r in range(b, b + 4):
                a(f"v_xor_b32 v{r}, s{64 + (r - b)}, v{r}")
            if u == 0:
                a(f"v_or_b32 v26, v{b}, v{b+1}")
            else:
                a(f"v_or3_b32 v26, v26, v{b}, v{b+1}")
            a(f"v_or3_b32 v26, v26, v{b+2}, v{b+3}")
            if u == n - 1:
                a("v_cmp_ne_u32_sdwa vcc, v26, v13 src0_sel:BYTE_0 src1_sel:DWORD")
            if u:
                a(f"v_pk_add_f32 v[{R}:{R+1}], v[{R}:{R+1}], v[{b}:{b+1}]")
                a(f"v_pk_add_f32 v[{R+2}:{R+3}], v[{R+2}:{R+3}], v[{b+2}:{b+3}]")
        a(f"s_cbranch_vccnz {re}\n{dn}:")

    def flush_cold(self):
        c, self.cold = self.cold, []
        for f in c:
            f()

    def red16(self, A):
        self(f"""v_permlane32_swap_b32 v{A}, v{A+2}
        v_permlane32_swap_b32 v{A+1}, v{A+3}
        v_pk_add_f32 v[{A}:{A+1}], v[{A}:{A+1}], v[{A+2}:{A+3}]
        v_permlane16_swap_b32 v{A}, v{A+1}
        v_add_f32 v{A}, v{A}, v{A+1}
        v_add_f32_dpp v{A}, v{A}, v{A} row_ror:4 {DPPF}
        v_add_f32_dpp v{A}, v{A}, v{A} row_ror:8 {DPPF}""")

    def transp(self, R, B, pp):
        for T in range(8):
            self(f"v_perm_b32 v{B+4*T+pp}, v{R+4*(2*pp+1)+T//2}, v{R+4*(2*pp)+T//2}, s{52+(T&1)}")

    def nat8(self, B):
        for r in range(4):
            self(f"v_mfma_f32_16x16x32_bf16 v[{44+4*r}:{47+4*r}], v[64:67], v[{B+4*r}:{B+4*r+3}], 0")
        for r in range(4):
            self(f"v_mfma_f32_16x16x32_bf16 v[{44+4*r}:{47+4*r}], v[68:71], v[{B+16+4*r}:{B+16+4*r+3}], v[{44+4*r}:{47+4*r}]")

    def zeroA(self):
        self("s_mov_b32 s52, 0x05040100\ns_mov_b32 s53, 0x07060302")
        for r in range(64, 72, 2):
            self(f"v_mov_b64 v[{r}:{r+1}], 0")

    def stream(self, wo, withT, extra):
        a = self
        p = self.p
        nt = p["nt"]
        F = p["F"]
        P1, P2 = (p["Pw"], p["Pw2"]) if wo else (p["Pn"], p["Pn2"])
        kv = [("K", t) for t in range(16)] + [("V", t) for t in range(16)]
        order = kv[:F]
        tsl = list(p["tsl"]) if wo else (list(p["tsn"]) if p["tsn"] else [32] * withT)
        tk = 0
        for i in range(F, 33):
            for pos_, it in extra:
                if pos_ == i:
                    order.append(it)
            while tk < len(tsl) and tsl[tk] <= i:
                order.append(("T", tk)); tk += 1
            if i < 32:
                order.append(kv[i])
        NL = len(order)
        pos = {it: i for i, it in enumerate(order)}
        st = {"issued": F, "done": -1}
        big = lambda j: order[j][0] != "S"

        def emit(it):
            k, t = it
            if k == "K":
                if t == 8:
                    a("v_add_u32 v1, 32768, v1")
                a(f"global_load_dwordx4 v[{KR+4*t}:{KR+4*t+3}], v1, s[6:7] offset:{(t%8)*1024-4096} {nt}")
            elif k == "V":
                if t == 8:
                    a("v_add_u32 v14, 32768, v14")
                a(f"global_load_dwordx4 v[{VR+4*t}:{VR+4*t+3}], v14, s[8:9] offset:{(t%8)*1024-4096} {nt}")
            elif k == "T":
                if wo:
                    if t == 7:
                        a("v_add_u32 v15, 5120, v15")
                    a(f"global_load_dwordx4 v[{TR+4*t}:{TR+4*t+3}], v15, s[12:13] offset:{(t-3)*1280 if t < 7 else 0} {nt}")
                else:
                    a(f"global_load_dwordx4 v[{TR+4*t}:{TR+4*t+3}], v15, s[44:45] {p['tfl']}")
                    if t < 7:
                        a("v_add_u32 v15, s46, v15")
            else:
                a(t)
        self.emit = emit

        def issue(pace=0):
            i = st["issued"]
            if pace and big(i):
                cnt = 0; j = i
                while j > 0 and cnt < pace:
                    j -= 1
                    cnt += big(j)
                if cnt == pace and j > st["done"]:
                    a(f"s_waitcnt vmcnt({i-1-j})")
                    st["done"] = j
            if not wo and p["Pf"] and big(i):
                cnt = 0; j = i
                while j > 0 and cnt < p["Pf"]:
                    j -= 1
                    cnt += big(j)
                if j > st["done"]:
                    sk = a.lab("pf")
                    a(f"s_cbranch_vccz {sk}\ns_waitcnt vmcnt({i-1-j})\n{sk}:")
            emit(order[i])
            st["issued"] += 1

        def wait_for(it):
            i = pos[it]
            assert i < st["issued"]
            if st["done"] < i:
                a(f"s_waitcnt vmcnt({st['issued']-1-i})")
                st["done"] = i
        trig = False
        while st["done"] < pos[("K", 15)]:
            issue(P1)
            if not trig and st["done"] >= pos[("K", max(0, p["qtrig"]))]:
                a(f"ds_write_b32 v12, v247 offset:{L_QT}")
                trig = True
        a.stamp(1)
        lastchk = pos[kv[p["chk"]]]
        first = True
        while st["issued"] <= lastchk:
            sk = a.lab("chk")
            if not first:
                a(f"s_cmp_lg_u32 s47, 0\ns_cbranch_scc1 {sk}")
            a(f"""ds_read_b64 v[2:3], v13 offset:{L_QF}
            s_waitcnt lgkmcnt(0)
            v_readfirstlane_b32 s47, v3
            s_cmp_eq_u32 s47, 0
            s_cbranch_scc1 {sk}
            s_call_b64 s[50:51], L_compute
            {sk}:""")
            first = False
            issue(P2)
        lp = a.lab("qw"); sk = a.lab("qw_done"); go = a.lab("qw_go")
        a(f"""s_cmp_lg_u32 s47, 0
        s_cbranch_scc1 {sk}
        s_mov_b32 s42, 0
        {lp}:
        ds_read_b64 v[2:3], v13 offset:{L_QF}
        s_add_u32 s42, s42, 1
        s_waitcnt lgkmcnt(0)
        v_readfirstlane_b32 s47, v3
        s_cmp_lg_u32 s47, 0
        s_cbranch_scc1 {go}
        s_cmp_lt_u32 s42, {SPIN*20}
        s_cbranch_scc1 {lp}
        {go}:
        s_call_b64 s[50:51], L_compute
        {sk}:""")
        a.stamp(19)

        def topup():
            while st["issued"] < NL:
                infl = sum(big(j) for j in range(st["done"] + 1, st["issued"]))
                if infl >= P2 and big(st["issued"]):
                    break
                issue()
        topup()
        for t in range(16):
            a(f"v_mov_b32_dpp v{48+t%2}, v{20+t//4} row_newbcast:{4*(t%4)} {DPPF}")
            for r in range(4):
                a(f"v_perm_b32 v{FRG+4*(t%4)+r}, v{48+t%2}, v{48+t%2}, v{240+r}")
            while st["issued"] <= pos[("V", t)]:
                issue(P2)
            wait_for(("V", t))
            topup()
            c = "0" if t == 0 else "v[44:47]"
            a(f"v_mfma_f32_16x16x32_bf16 v[44:47], v[{FRG+4*(t%4)}:{FRG+4*(t%4)+3}], v[{VR+4*t}:{VR+4*t+3}], {c}")
        while st["issued"] < NL:
            issue()
        a(f"ds_write_b128 v248, v[44:47] offset:{L_RED}\ns_waitcnt lgkmcnt(0)")
        a.stamp(20)
        a("s_barrier")
        a.stamp(5)
        return st, pos, wait_for, lastchk

    def build(self):
        a = self
        p = self.p
        nt = p["nt"]
        a(f"""
        s_cmp_ge_u32 s2, 256
        s_cbranch_scc1 L_exit
        s_load_dwordx16 s[4:19], s[0:1], 0
        s_load_dwordx8 s[20:27], s[0:1], 64
        s_load_dwordx2 s[28:29], s[0:1], 96
        v_lshrrev_b32 v1, 6, v0
        v_and_b32 v0, 63, v0
        v_readfirstlane_b32 s3, v1
        s_and_b32 s30, s2, 7
        s_lshr_b32 s31, s2, 3
        s_lshl_b32 s34, s30, 5
        s_add_u32 s34, s34, s31
        s_lshr_b32 s32, s34, 3
        s_and_b32 s33, s34, 7
        """)
        if self.diag:
            a("v_mov_b32 v255, 0\ns_memrealtime s[100:101]")
        if p.get("holdat") is not None:
            a("s_mov_b32 s95, 0")
        a("""s_sub_u32 s3, s3, 1
        s_cbranch_scc0 L_att""")
        WQ = 80
        a(f"""s_setprio 3
        s_mov_b32 s3, 4
        s_getpc_b64 s[36:37]
        L_pc:
        s_sub_u32 s36, s36, L_pc-{NAME}_kernel
        s_subb_u32 s37, s37, 0
        s_lshl_b32 s35, s33, 11
        v_and_b32 v12, 15, v0
        v_lshl_add_u32 v1, v12, 7, s35
        v_min_u32 v1, L_codeend-{NAME}_kernel-4, v1
        global_load_dword v254, v1, s[36:37]
        v_lshlrev_b32 v1, 3, v0
        v_lshlrev_b32 v2, 2, v0
        v_mov_b32 v36, 0
        ds_write_b32 v2, v36 offset:{L_ML}
        s_mul_i32 s35, s33, {80*8192}
        s_lshl_b32 s38, s32, 8
        s_add_u32 s35, s35, s38
        v_lshrrev_b32 v3, 4, v0
        v_mul_u32_u24 v3, {20*8192}, v3
        v_lshl_add_u32 v3, v12, 4, v3
        v_add_u32 v3, s35, v3
        s_lshl_b32 s45, s34, 12
        s_add_u32 s45, s45, {BK}
        v_and_b32 v12, 7, v0
        v_lshl_add_u32 v20, v12, 7, s45
        v_mov_b32 v12, {EP}
        s_movk_i32 s38, 0x2000
        s_waitcnt lgkmcnt(0)
        """)
        if self.diag:
            a("v_writelane_b32 v255, s100, 0")
        a(f"""global_load_dwordx2 v[24:25], v1, s[4:5]
        global_load_dwordx2 v[26:27], v1, s[4:5] offset:512
        global_load_dword v28, v2, s[4:5] offset:1024
        global_load_dwordx2 v[30:31], v1, s[4:5] offset:1280
        global_load_dwordx2 v[32:33], v1, s[4:5] offset:1792
        global_load_dword v34, v2, s[4:5] offset:2304
        global_load_dword v15, v12, s[28:29] sc1
        global_load_dword v253, v20, s[28:29] nt""")
        for t in range(20):
            if t:
                a("v_add_u32 v3, s38, v3")
            a(f"global_load_dwordx4 v[{WQ+4*t}:{WQ+4*t+3}], v3, s[10:11] {nt}")
            if t == p.get("bar0at", 19):
                a("s_barrier")
        a("s_branch L_ctrl")
        a(f"""L_att:
        s_lshr_b32 s35, s33, 2
        s_lshl_b32 s35, s35, 5
        s_add_u32 s35, s35, s32
        s_lshl_b32 s35, s35, 4
        s_and_b32 s36, s33, 3
        s_add_u32 s35, s35, s36
        s_add_u32 s35, s35, 12
        s_lshl_b32 s35, s35, 3
        s_add_u32 s35, s35, s3
        s_lshl_b32 s35, s35, 13
        s_add_u32 s35, s35, 4096
        v_bfe_u32 v1, v0, 2, 2
        v_lshlrev_b32 v1, 8, v1
        v_lshrrev_b32 v2, 4, v0
        v_lshl_add_u32 v1, v2, 6, v1
        v_and_b32 v2, 3, v0
        v_lshl_add_u32 v1, v2, 4, v1
        v_add_u32 v1, s35, v1
        v_lshl_add_u32 v14, v0, 4, s35
        s_waitcnt lgkmcnt(0)
        """)
        if self.diag:
            a("v_writelane_b32 v255, s100, 0")
        a("s_barrier")
        for t in range(p["F"]):
            if t == 8:
                a("v_add_u32 v1, 32768, v1")
            a(f"global_load_dwordx4 v[{KR+4*t}:{KR+4*t+3}], v1, s[6:7] offset:{(t%8)*1024-4096} {nt}")
        a.stamp(16)
        a.selectors()
        a("v_and_b32 v2, 8, v0\nv_cmp_eq_u32 vcc, 8, v2")
        for r in range(4):
            a(f"v_cndmask_b32 v{240+r}, v{4+r}, v{8+r}, vcc")
        a(f"""v_lshrrev_b32 v2, 4, v0
        v_and_b32 v3, 3, v0
        v_lshl_add_u32 v2, v2, 2, v3
        v_lshlrev_b32 v2, 4, v2
        v_add_u32 v2, {L_Q}, v2
        v_bfe_u32 v3, v0, 2, 2
        v_mov_b32 v12, {L_Z}""")
        for qd in range(4):
            a(f"v_cmp_eq_u32 vcc, {qd}, v3")
            a(f"v_cndmask_b32 v{200+qd}, v12, v2, vcc")
        a.dlayout(248, 3, 512)
        a(f"""s_lshl_b32 s36, s3, 10
        v_add_u32 v248, s36, v248
        s_lshl_b32 s36, s32, 15
        s_add_u32 s36, s36, {BK + 2560}
        v_and_b32 v2, 8, v0
        v_lshlrev_b32 v2, 11, v2
        v_and_b32 v3, 3, v0
        v_lshl_add_u32 v2, v3, 12, v2
        v_add_u32 v247, s36, v2
        s_mov_b32 s40, {hx(128 ** -0.5)}
        s_mov_b32 s48, {hx(LOG2E)}
        s_mov_b32 s49, 0xffffff00
        s_lshl_b32 s36, s3, 3
        v_mov_b32 v12, s36
        v_mov_b32 v13, 0
        s_mov_b32 s47, 0
        s_cmp_ge_u32 s33, 5
        s_cbranch_scc1 L_att_n""")
        self.att_wo()
        self.att_other()
        self.compute()
        self.ctrl()
        if self.diag:
            a(f"""L_dump:
            s_mov_b64 exec, -1
            s_lshl_b32 s35, s34, 3
            s_add_u32 s35, s35, s3
            s_lshl_b32 s35, s35, 8
            s_add_u32 s35, s35, {STAMP}
            v_lshl_add_u32 v2, v0, 2, s35
            global_store_dword v2, v255, s[28:29]""")
        elif p.get("holdat") is not None:
            h = p["holdat"]
            a("L_hold:\ns_cmp_eq_u32 s95, 0\ns_cbranch_scc1 L_exit")
            a("""L_hold2:
            s_memrealtime s[92:93]
            s_waitcnt lgkmcnt(0)
            s_sub_u32 s92, s92, s96
            s_cmp_lt_u32 s92, 2000
            s_cbranch_scc1 L_hold2""")
        a("L_exit:\ns_endpgm\nL_codeend:")

    def att_wo(self):
        a = self
        p = self.p
        a(f"""s_lshl_b32 s36, s32, 2
        s_add_u32 s36, s36, s3
        s_mul_i32 s36, s36, {32*1280}
        s_lshl_b32 s37, s33, 8
        s_add_u32 s36, s36, s37
        s_add_u32 s36, s36, {3*1280}""")
        a.rowaddr(15)
        a(f"""s_lshl_b32 s35, s3, 7
        s_sub_u32 s35, s35, 512
        v_lshrrev_b32 v3, 4, v0
        v_lshl_add_u32 v2, v3, 5, s35
        v_and_b32 v3, 4, v0
        v_lshl_add_u32 v2, v3, 2, v2
        v_add_u32 v249, v247, v2
        s_lshr_b32 s35, s3, 1
        s_mul_i32 s35, s35, 640
        s_lshl_b32 s36, s33, 7
        s_add_u32 s35, s35, s36
        s_and_b32 s36, s3, 1
        s_lshl_b32 s36, s36, 6
        s_add_u32 s35, s35, s36
        s_lshl_b32 s35, s35, {3 + p["sp1"]}
        v_lshl_add_u32 v250, v0, 3, s35
        {"v_and_b32 v2, 56, v0" if p["sp1"] else ""}
        {"v_lshl_add_u32 v250, v2, 3, v250" if p["sp1"] else ""}
        s_lshl_b32 s35, s3, 8
        v_lshl_add_u32 v251, v0, 2, s35
        s_mov_b32 s60, 0
        s_mov_b32 s61, {MHI}""")
        st, pos, wait_for, lastchk = self.stream(True, 8, [])
        BT = 80
        tdone = 0
        a.zeroA()
        a("""s_and_b32 s35, s43, 0x1fffffff
        s_and_b32 s67, s35, 0xff""")
        for k in range(3):
            a(f"s_lshr_b32 s36, s35, {8*(k+1)}\ns_add_u32 s36, s36, s35\ns_and_b32 s{64+k}, s36, 0xff")
        while tdone < 4 and pos[("T", 2*tdone+1)] <= st["done"]:
            a.transp(TR, BT, tdone); tdone += 1
        ld = """global_load_dwordx4 v[40:43], v247, s[28:29] sc1
        global_load_dwordx4 v[28:31], v249, s[28:29] sc1"""
        lp = a.lab("og"); re = a.lab("og_re"); dn = a.lab("og_ok")
        a(f"""s_mov_b32 s42, 0
        s_branch {re}_x
        {re}:
        {ld}
        s_add_u32 s42, s42, 1
        s_cmp_lt_u32 s42, {SPIN}
        s_cbranch_scc1 {lp}
        s_branch {dn}
        {re}_x:
        s_barrier""")
        a(ld)
        st["issued"] += 2
        while tdone < 4:
            wait_for(("T", 2*tdone+1)); a.transp(TR, BT, tdone); tdone += 1
        a.stamp(21)
        a(f"""{lp}:
        s_waitcnt vmcnt(1)
        v_max_f32_dpp v38, v40, v40 quad_perm:[1,0,3,2] {DPPF}
        v_xor_b32 v26, s43, v41
        v_bitop3_b32 v26, v26, v43, s43 bitop3:0xf6
        v_max_f32_dpp v38, v38, v38 quad_perm:[2,3,0,1] {DPPF}
        v_and_b32 v26, 0x1fffffff, v26
        v_sub_f32 v38, v40, v38
        v_min_u32 v26, 1, v26
        v_mul_f32 v38, s48, v38
        s_waitcnt vmcnt(0)
        v_exp_f32 v38, v38
        v_xor_b32 v28, s64, v28
        v_xor_b32 v29, s65, v29
        v_xor_b32 v30, s66, v30
        v_xor_b32 v31, s67, v31
        v_mul_f32 v36, v38, v42
        v_or3_b32 v26, v26, v28, v29
        v_pk_mul_f32 v[28:29], v[28:29], v[38:39] op_sel_hi:[1,0]
        v_or3_b32 v26, v26, v30, v31
        v_pk_mul_f32 v[30:31], v[30:31], v[38:39] op_sel_hi:[1,0]
        v_cmp_ne_u32_sdwa vcc, v26, v13 src0_sel:BYTE_0 src1_sel:DWORD
        v_add_f32_dpp v36, v36, v36 quad_perm:[1,0,3,2] {DPPF}
        s_cbranch_vccnz {re}
        {dn}:""")
        a.stamp(6)
        b3c = p.get("b3c", 2)
        if b3c == 1:
            a("s_barrier")
        a(f"""v_add_f32_dpp v28, v28, v28 quad_perm:[1,0,3,2] {DPPF}
        v_add_f32_dpp v29, v29, v29 quad_perm:[1,0,3,2] {DPPF}
        v_add_f32_dpp v36, v36, v36 quad_perm:[2,3,0,1] {DPPF}
        v_add_f32_dpp v30, v30, v30 quad_perm:[1,0,3,2] {DPPF}
        v_add_f32_dpp v31, v31, v31 quad_perm:[1,0,3,2] {DPPF}
        v_rcp_f32 v36, v36
        v_add_f32_dpp v28, v28, v28 quad_perm:[2,3,0,1] {DPPF}
        v_add_f32_dpp v29, v29, v29 quad_perm:[2,3,0,1] {DPPF}
        v_add_f32_dpp v30, v30, v30 quad_perm:[2,3,0,1] {DPPF}
        v_add_f32_dpp v31, v31, v31 quad_perm:[2,3,0,1] {DPPF}
        v_pk_mul_f32 v[28:29], v[28:29], v[36:37] op_sel_hi:[1,0]
        v_pk_mul_f32 v[30:31], v[30:31], v[36:37] op_sel_hi:[1,0]""")
        a("""v_cvt_pk_bf16_f32 v32, v28, v29
        v_cvt_pk_bf16_f32 v33, v30, v31
        v_mov_b32_dpp v64, v32 quad_perm:[0,1,2,3] row_mask:0xf bank_mask:0x5
        v_mov_b32_dpp v66, v32 row_half_mirror row_mask:0xf bank_mask:0x5
        v_mov_b32_dpp v65, v33 quad_perm:[0,1,2,3] row_mask:0xf bank_mask:0x5
        v_mov_b32_dpp v67, v33 row_half_mirror row_mask:0xf bank_mask:0x5
        v_mov_b32_dpp v68, v32 row_half_mirror row_mask:0xf bank_mask:0xa
        v_mov_b32_dpp v69, v33 row_half_mirror row_mask:0xf bank_mask:0xa
        v_mov_b32_dpp v70, v32 quad_perm:[0,1,2,3] row_mask:0xf bank_mask:0xa
        v_mov_b32_dpp v71, v33 quad_perm:[0,1,2,3] row_mask:0xf bank_mask:0xa""")
        if b3c == 3:
            a("s_barrier")
        a.nat8(BT)
        if b3c == 2:
            a("s_barrier")
        a(f"""v_mov_b32 v45, v48
        v_mov_b32 v46, v52
        v_mov_b32 v47, v56
        ds_write_b128 v248, v[44:47] offset:{L_RED2}
        s_waitcnt lgkmcnt(0)
        s_barrier
        ds_read2st64_b32 v[28:29], v251 offset0:{L_RED2//256} offset1:{L_RED2//256+4}
        ds_read2st64_b32 v[30:31], v251 offset0:{L_RED2//256+8} offset1:{L_RED2//256+12}
        s_waitcnt lgkmcnt(0)
        v_pk_add_f32 v[28:29], v[28:29], v[30:31]
        v_add_f32 v28, v28, v29
        v_cvt_f64_f32 v[30:31], v28
        v_add_f64 v[30:31], v[30:31], s[60:61]
        global_atomic_add_x2 v250, v[30:31], s[28:29] sc1""")
        assert A1 == 0
        a.stamp(11)
        a.finish()
        a.flush_cold()

    def att_other(self):
        a = self
        p = self.p
        B1R = 80; B2R = 160; AB = 208
        nT = p["mlpT"]
        a("L_att_n:")
        a(self.ROLES)
        a(f"""s_sub_u32 s58, s33, 5
        s_mul_i32 s38, s58, 3
        s_min_u32 s35, s58, 1
        s_add_u32 s38, s38, s35
        s_add_u32 s38, s38, s3
        s_min_u32 s38, s38, 9
        s_mul_i32 s36, s39, {64*1280}
        s_lshl_b32 s37, s38, 7
        s_add_u32 s36, s36, s37
        v_lshrrev_b32 v2, 4, v0
        v_bfe_u32 v3, v0, 3, 1
        v_lshl_add_u32 v4, v3, 2, v2
        v_mul_u32_u24 v4, 10240, v4
        v_and_b32 v5, 7, v0
        v_lshl_add_u32 v4, v5, 4, v4
        v_add_u32 v15, s36, v4
        s_mov_b64 s[44:45], s[20:21]
        s_movk_i32 s46, 1280
        v_lshl_add_u32 v4, v5, 3, v2
        v_lshl_add_u32 v192, v4, 1, s37
        v_mul_u32_u24 v3, 1280, v3
        v_add_u32 v199, v192, v3
        v_bfe_u32 v3, v0, 1, 1
        v_lshl_add_u32 v3, v3, 2, v2
        v_bfe_u32 v4, v0, 2, 2
        v_lshl_add_u32 v198, v3, 2, v4
        s_lshl_b32 s35, s39, 7
        v_lshl_add_u32 v252, v198, 2, s35
        s_mul_i32 s37, s3, {213*3456}
        s_add_u32 s35, s35, s37
        v_mov_b32 v253, s35
        v_mov_b32 v254, s36
        s_and_b32 s35, s3, 1
        s_mul_i32 s35, s35, 1280
        v_lshl_add_u32 v205, v0, 2, s35
        s_lshr_b32 vcc_lo, s31, 1
        s_mov_b32 vcc_hi, 0""")
        wat = p.get("wat", 20)
        extra = [(wat, ("S", "global_load_dword v252, v252, s[18:19]")),
                 (wat + 2, ("S", "global_load_ushort v193, v192, s[22:23] offset:8")),
                 (wat + 2, ("S", "global_load_ushort v192, v192, s[22:23]")),
                 (wat + 2, ("S", "global_load_ushort v206, v199, s[24:25]"))]
        extra += [(wat + 4, ("S", f"global_load_dword v{176+u}, v205, s[4:5] offset:{256*u}")) for u in range(5)]
        if p["warm"]:
            extra += [(wat, ("S", "global_load_dword v253, v253, s[16:17]")),
                      (wat, ("S", "global_load_dword v254, v254, s[20:21]"))]
        st, pos, wait_for, lastchk = self.stream(False, nT, extra)
        go = a.lab("mlp_go"); dm = a.lab("dma")
        self.sect = "m"
        a(f"""s_cmp_eq_u32 s31, 1
        s_cbranch_scc1 {go}""")
        a.finish()
        a(f"""{go}:
        v_lshrrev_b32 v2, 3, v0
        v_and_b32 v3, 2, v2
        v_and_b32 v4, 7, v0
        v_xor_b32 v3, v3, v4
        v_mul_u32_u24 v2, 3456, v2
        s_mul_i32 s35, s3, {160*3456}
        s_lshl_b32 s36, s39, 7
        s_add_u32 s35, s35, s36
        v_lshl_add_u32 v16, v3, 4, v2
        v_add_u32 v16, s35, v16
        v_xor_b32 v3, 4, v3
        v_lshl_add_u32 v17, v3, 4, v2
        s_add_u32 s35, s35, {8*3456}
        v_add_u32 v17, s35, v17
        s_mul_i32 s37, s3, 20480
        s_add_u32 s37, s37, {L_W1}
        s_mul_i32 s54, s58, {p.get("rot", 3)}
        s_mov_b32 s57, 10
        s_barrier""")

        def w2loads():
            for t in range(nT, 8):
                self.emit(("T", t))
        if p.get("nomlpw"):
            a(f"s_branch {dm}_x")
        if p.get("skipidle", 1):
            a(f"""s_lshr_b32 s35, s3, 1
            s_and_b32 s35, s35, s3
            s_mul_i32 s35, s35, s58
            s_cmp_lg_u32 s35, 0
            s_cbranch_scc1 {dm}""")
        w2loads()
        a(f"""{dm}:
        s_mul_i32 s55, s54, {16*3456}
        s_lshl_b32 s56, s54, 11
        s_add_u32 s56, s56, s37
        s_mov_b32 m0, s56
        v_add_u32 v2, s55, v16
        v_add_u32 v3, s55, v17
        global_load_lds_dwordx4 v2, s[16:17] {p["w1fl"]}
        s_add_u32 m0, s56, 1024
        s_add_u32 s54, s54, 1
        global_load_lds_dwordx4 v3, s[16:17] {p["w1fl"]}
        s_cmp_eq_u32 s54, 10
        s_cselect_b32 s54, 0, s54
        s_sub_u32 s57, s57, 1
        s_cmp_lg_u32 s57, 0
        s_cbranch_scc1 {dm}
        {dm}_x:""")
        a(f"""v_lshrrev_b32 v2, 4, v0
        v_and_b32 v12, 15, v0
        v_and_b32 v3, 1, v0
        v_lshlrev_b32 v4, 8, v3
        v_lshl_add_u32 v21, v198, 3, v4
        s_lshl_b32 s35, s3, 9
        s_add_u32 s35, s35, {L_T1}
        v_lshl_add_u32 v22, v12, 2, s35
        s_mul_i32 s35, s3, 320
        v_mul_u32_u24 v4, {YS}, v3
        v_lshl_add_u32 v4, v2, 4, v4
        v_add_u32 v23, s35, v4
        v_bfe_u32 v4, v0, 2, 2
        v_lshl_add_u32 v4, v2, 3, v4
        v_lshlrev_b32 v4, 7, v4
        v_lshl_add_u32 v4, v3, 3, v4
        v_add_u32 v4, s37, v4
        v_bfe_u32 v3, v0, 3, 2
        v_bfe_u32 v5, v0, 1, 1
        v_lshl_add_u32 v3, v3, 1, v5""")
        for ct in range(4):
            a(f"v_xor_b32 v5, {2*ct}, v3\nv_lshl_add_u32 v{16+ct}, v5, 4, v4")
        a(f"""s_lshl_b32 s35, s38, 11
        s_add_u32 s35, s35, {A2}
        v_and_b32 v3, 56, v0
        v_lshlrev_b32 v3, 3, v3
        v_lshl_add_u32 v3, v0, 3, v3
        v_add_u32 v25, s35, v3
        s_and_b32 s36, s3, 1
        s_mul_i32 s35, s36, 5120
        s_add_u32 s35, s35, 2048
        v_lshl_add_u32 v2, v0, 4, s35
        s_mul_i32 s35, s36, {YS}
        v_lshl_add_u32 v26, v0, 2, s35
        s_mul_i32 s35, s36, 2560
        v_lshl_add_u32 v27, v0, 3, s35
        v_lshlrev_b32 v197, 1, v199
        v_add_u32 v197, {L_H}, v197
        v_and_b32 v195, 0xffff0000, v252
        v_lshlrev_b32 v194, 16, v252
        v_lshlrev_b32 v192, 16, v192
        v_lshlrev_b32 v193, 16, v193
        v_mov_b32 v201, 1.0
        v_mov_b32 v200, {hx(0.044715)}
        s_mov_b32 s60, 0
        s_mov_b32 s61, {MHI}
        s_mov_b32 s62, {hx(2.0 ** (KEXP - 1))}
        s_mov_b32 s63, {hx(2.0 ** (2 * KEXP - 4))}
        s_mov_b32 s64, {hx(-2.0*math.sqrt(2.0/math.pi)*LOG2E)}
        s_mov_b32 s52, 0x05040100
        s_mov_b32 s53, 0x07060302""")
        for r in range(64, 80, 2):
            a(f"v_mov_b64 v[{r}:{r+1}], 0")
        for u in range(5):
            a(f"v_lshlrev_b32 v{52+2*u}, 16, v{176+u}")
            a(f"v_and_b32 v{53+2*u}, 0xffff0000, v{176+u}")

        def trreads():
            for ks in range(5):
                for ct in range(4):
                    for hf in range(2):
                        r = B1R + 4 * (4 * ks + ct) + 2 * hf
                        a(f"ds_read_b64_tr_b16 v[{r}:{r+1}], v{16+ct} offset:{(32*ks + 4*hf)*128}")

        def w2tr():
            for pp in range(4):
                a.transp(TR, B2R, pp)
        noln = a.lab("noln"); lp = a.lab("acc"); done = a.lab("acc_ok"); l2 = a.lab("acc_w"); nl2 = a.lab("noln2")
        a("s_waitcnt vmcnt(20)")
        w2tr()
        if p.get("trfirst", 0):
            a("s_waitcnt vmcnt(0)")
            a.stamp(15)
            trreads()
        a(f"""s_cmp_ge_u32 s3, 2
        s_mov_b32 s42, 0
        s_barrier
        s_cbranch_scc1 {noln if p.get("trfirst", 0) else nl2}""")

        def cold_noln():
            a(f"{nl2}:\ns_waitcnt vmcnt(0)")
            a.stamp(15)
            trreads()
            a(f"s_branch {noln}")
        if not p.get("trfirst", 0):
            self.cold.append(cold_noln)

        def ldacc():
            for u in range(5):
                a(f"global_load_dwordx4 v[{AB+4*u}:{AB+3+4*u}], v2, s[28:29] offset:{1024*u-2048} sc1")
        a.stamp(7)
        if not p.get("trfirst", 0):
            ldacc()
            a("s_waitcnt vmcnt(5)")
            trreads()
            a(f"s_branch {l2}")
        a(f"{lp}:")
        if p.get("aback"):
            a(f"s_sleep {p['aback']}")
        ldacc()
        a(f"s_add_u32 s42, s42, 1\ns_cmp_ge_u32 s42, {SPIN}\ns_cbranch_scc1 {done}\n{l2}:")
        for u in range(5):
            b = AB + 4 * u
            a(f"""s_waitcnt vmcnt({4-u})
            v_add_f64 v[{b}:{b+1}], v[{b}:{b+1}], -s[60:61]
            v_add_f64 v[{b+2}:{b+3}], v[{b+2}:{b+3}], -s[60:61]
            v_cvt_f32_f64 v{28+2*u}, v[{b}:{b+1}]
            v_cvt_f32_f64 v{29+2*u}, v[{b+2}:{b+3}]""")
            a.rnd(28+2*u, f"v{28+2*u}"); a.rnd(29+2*u, f"v{29+2*u}")
            a(f"v_pk_add_f32 v[{28+2*u}:{29+2*u}], v[{28+2*u}:{29+2*u}], v[{52+2*u}:{53+2*u}]")
            a.rnd(28+2*u, f"v{28+2*u}"); a.rnd(29+2*u, f"v{29+2*u}")

        def hook():
            a(f"""v_cmp_ngt_f32 vcc, s63, v48
            s_cbranch_vccnz {lp}
            {done}:""")
            a.stamp(13)
            a(f"""ds_write2st64_b64 v27, v[28:29], v[30:31] offset0:{L_H//512} offset1:{L_H//512+1}
            ds_write2st64_b64 v27, v[32:33], v[34:35] offset0:{L_H//512+2} offset1:{L_H//512+3}
            ds_write_b64 v27, v[36:37] offset:{L_H + 2048}""")
        a.ln(28, 40, 46, True, hook)
        a.ln(28, 40, 46, False)
        assert L_Y == 0
        a(f"""ds_write2st64_b32 v26, v40, v41 offset0:0 offset1:1
        ds_write2st64_b32 v26, v42, v43 offset0:2 offset1:3
        ds_write_b32 v26, v44 offset:1024
        {noln}:
        s_waitcnt lgkmcnt(0)
        s_barrier""")
        a.stamp(18)
        for ks in range(5):
            a(f"ds_read_b128 v[{28+4*ks}:{31+4*ks}], v23 offset:{L_Y + 64*ks}")
        for ks in range(5):
            a(f"s_waitcnt lgkmcnt({4-ks})")
            for ct in range(4):
                c = "0" if ks == 0 else f"v[{48+4*ct}:{51+4*ct}]"
                r = B1R + 4 * (4 * ks + ct)
                a(f"v_mfma_f32_16x16x32_bf16 v[{48+4*ct}:{51+4*ct}], v[{28+4*ks}:{31+4*ks}], v[{r}:{r+3}], {c}")
        a("""ds_read2_b32 v[202:203], v197 offset0:0 offset1:4
        s_lshr_b32 s35, s3, 1
        s_and_b32 s35, s35, s3
        s_mul_i32 s35, s35, s58
        s_cmp_lg_u32 s35, 0
        s_mov_b64 exec, 0xffff""")
        for ct in range(4):
            a(f"ds_write2_b32 v22, v{48+4*ct}, v{49+4*ct} offset0:{16*ct} offset1:{64+16*ct}")
        idle = a.lab("idle")
        a(f"""s_mov_b64 exec, -1
        s_waitcnt lgkmcnt(0)
        s_barrier
        s_cbranch_scc1 {idle}
        ds_read2st64_b64 v[28:31], v21 offset0:{L_T1//512} offset1:{L_T1//512+1}
        ds_read2st64_b64 v[32:35], v21 offset0:{L_T1//512+2} offset1:{L_T1//512+3}
        s_waitcnt lgkmcnt(1)
        v_pk_add_f32 v[28:29], v[28:29], v[30:31]
        s_waitcnt lgkmcnt(0)
        v_pk_add_f32 v[32:33], v[32:33], v[34:35]
        v_pk_add_f32 v[28:29], v[28:29], v[32:33]
        v_cvt_pk_bf16_f32 v28, 0, v28
        v_cvt_pk_bf16_f32 v29, 0, v29
        v_pk_add_f32 v[28:29], v[28:29], v[194:195]
        v_cvt_pk_bf16_f32 v28, 0, v28
        v_cvt_pk_bf16_f32 v29, 0, v29
        v_pk_mul_f32 v[30:31], v[28:29], v[28:29]
        v_pk_mul_f32 v[32:33], v[28:29], s[64:65] op_sel_hi:[1,0]
        v_pk_fma_f32 v[30:31], v[30:31], v[200:201], v[200:201] op_sel:[0,0,1] op_sel_hi:[1,0,1]
        v_pk_mul_f32 v[30:31], v[30:31], v[32:33]
        v_exp_f32 v30, v30
        v_exp_f32 v31, v31
        v_pk_add_f32 v[30:31], v[30:31], v[200:201] op_sel:[0,1] op_sel_hi:[1,1]
        v_rcp_f32 v30, v30
        v_rcp_f32 v31, v31
        v_pk_mul_f32 v[28:29], v[28:29], v[30:31]
        v_cvt_pk_bf16_f32 v28, v28, v29""")

        def afrag(G):
            for pp in range(4):
                sh = (4 * (G - pp)) % 16
                d = f"row_ror:{sh}" if sh else "quad_perm:[0,1,2,3]"
                a(f"v_mov_b32_dpp v{64+4*G+pp}, v28 {d} row_mask:0xf bank_mask:{hex(1 << G)}")
        afrag(0)
        for G in range(4):
            if G < 3:
                afrag(G + 1)
            for z in range(2):
                c = "0" if G == 0 else f"v[{44+4*z}:{47+4*z}]"
                r = B2R + 4 * (4 * z + G)
                a(f"v_mfma_f32_16x16x32_bf16 v[{44+4*z}:{47+4*z}], v[{64+4*G}:{67+4*G}], v[{r}:{r+3}], {c}")
        for z in range(2):
            a(f"v_add_f32_dpp v{32+z}, v{46+4*z}, v{44+4*z} row_ror:8 row_mask:0xf bank_mask:0x3")
        for z in range(2):
            a(f"v_add_f32_dpp v{32+z}, v{45+4*z}, v{47+4*z} row_ror:8 row_mask:0xf bank_mask:0xc")
        for z in range(2):
            a(f"""v_cvt_f64_f32 v[{36+2*z}:{37+2*z}], v{32+z}
            v_add_f64 v[{36+2*z}:{37+2*z}], v[{36+2*z}:{37+2*z}], s[60:61]
            global_atomic_add_x2 v[{40+2*z}:{41+2*z}], v25, v[{36+2*z}:{37+2*z}], s[28:29] offset:{1024*z} sc0 sc1""")
        a.stamp(14)
        for z in range(2):
            A = 40 + 2 * z
            sk = a.lab("nost")
            a(f"""s_waitcnt vmcnt({1-z if z == 0 else 0}){"" if z == 0 else ""}
            v_lshl_add_u64 v[{A}:{A+1}], v[{A}:{A+1}], 0, v[{36+2*z}:{37+2*z}]
            v_add_f64 v[{A}:{A+1}], v[{A}:{A+1}], -s[60:61]
            v_cvt_f32_f64 v{A}, v[{A}:{A+1}]
            v_cmp_gt_f32 s[{66+2*z}:{67+2*z}], s62, |v{A}|
            v_cvt_pk_bf16_f32 v{A}, 0, v{A}
            v_add_f32 v{A}, v{A}, v{192+z}
            v_cvt_pk_bf16_f32 v{A}, 0, v{A}
            v_add_f32 v{A}, v{A}, v{202+z}
            v_cvt_pk_bf16_f32 v{A}, v{A}, v{A}""")
        a.stamp(10)
        for z in range(2):
            sk = a.lab("nost")
            a(f"""s_mov_b64 exec, s[{66+2*z}:{67+2*z}]
            s_cbranch_execz {sk}
            global_store_short v199, v{40+2*z}, s[24:25] offset:{8*z} {p.get("ofl", "")}
            {sk}:""")
        if p.get("latebump"):
            a(f"""s_mov_b64 exec, -1
            s_or_b32 s35, s39, s38
            s_cmp_lg_u32 s35, 0
            s_cbranch_scc1 {idle}
            v_mov_b32 v2, {EP}
            v_mov_b32 v3, s43
            global_store_dword v2, v3, s[28:29] sc1
            {idle}:""")
        else:
            a.finish()
            a(f"""{idle}:
            s_cmp_lg_u32 s34, 6
            s_cbranch_scc1 {idle}_e
            v_mov_b32 v2, {EP}
            v_mov_b32 v3, s43
            global_store_dword v2, v3, s[28:29] sc1
            {idle}_e:""")
        a.finish()
        a.flush_cold()

    def compute(self):
        a = self
        self.sect = "a"
        QF = 144; DR = 160; SR = 16
        a("L_compute:")
        a("v_readfirstlane_b32 s43, v2")
        a.stamp(2)
        for qd in range(4):
            a(f"ds_read_b128 v[{QF+4*qd}:{QF+4*qd+3}], v{200+qd}")
        for qd in range(4):
            a(f"s_waitcnt lgkmcnt({3-qd})")
            for u in range(4):
                t = 4 * u + qd
                c = "0" if qd == 0 else f"v[{DR+4*u}:{DR+4*u+3}]"
                a(f"v_mfma_f32_16x16x32_bf16 v[{DR+4*u}:{DR+4*u+3}], v[{KR+4*t}:{KR+4*t+3}], v[{QF+4*qd}:{QF+4*qd+3}], {c}")
        for u in range(4):
            a(f"v_mov_b32_dpp v{SR+u}, v{DR+4*u} quad_perm:[0,0,0,0] {DPPF}")
        for r in (1, 2, 3):
            for u in range(4):
                a(f"v_add_f32_dpp v{SR+u}, v{DR+4*u+r}, v{SR+u} quad_perm:[{r},{r},{r},{r}] {DPPF}")
        for r in range(16, 20):
            a.rnd(r, f"v{r}")
        a("""v_pk_mul_f32 v[16:17], v[16:17], s[40:41] op_sel_hi:[1,0]
        v_pk_mul_f32 v[18:19], v[18:19], s[40:41] op_sel_hi:[1,0]""")
        for r in range(16, 20):
            a.rnd(r, f"v{r}")
        a(f"""v_max3_f32 v28, v16, v17, v18
        v_max_f32 v28, v28, v19
        v_max_f32_dpp v28, v28, v28 row_ror:4 {DPPF}
        v_max_f32_dpp v28, v28, v28 row_ror:8 {DPPF}
        v_mov_b32 v29, v28
        v_permlane32_swap_b32 v28, v29
        v_max_f32 v28, v28, v29
        v_mov_b32 v29, v28
        v_permlane16_swap_b32 v28, v29
        v_max_f32 v28, v28, v29
        v_pk_add_f32 v[16:17], v[16:17], v[28:29] op_sel_hi:[1,0] neg_lo:[0,1] neg_hi:[0,1]
        v_pk_add_f32 v[18:19], v[18:19], v[28:29] op_sel_hi:[1,0] neg_lo:[0,1] neg_hi:[0,1]
        v_pk_mul_f32 v[16:17], v[16:17], s[48:49] op_sel_hi:[1,0]
        v_pk_mul_f32 v[18:19], v[18:19], s[48:49] op_sel_hi:[1,0]
        v_exp_f32 v16, v16
        v_exp_f32 v17, v17
        v_exp_f32 v18, v18
        v_exp_f32 v19, v19
        v_pk_add_f32 v[30:31], v[16:17], v[18:19]
        v_add_f32 v30, v30, v31
        v_cvt_pk_bf16_f32 v24, 0, v16
        v_cvt_pk_bf16_f32 v25, 0, v17
        v_add_f32_dpp v30, v30, v30 row_ror:4 {DPPF}
        v_cvt_pk_bf16_f32 v26, 0, v18
        v_cvt_pk_bf16_f32 v27, 0, v19
        v_add_f32_dpp v30, v30, v30 row_ror:8 {DPPF}
        v_mov_b32 v31, v30
        v_pk_add_f32 v[16:17], v[16:17], v[24:25] neg_lo:[0,1] neg_hi:[0,1]
        v_pk_add_f32 v[18:19], v[18:19], v[26:27] neg_lo:[0,1] neg_hi:[0,1]
        v_permlane32_swap_b32 v30, v31
        v_add_f32 v30, v30, v31
        v_mov_b32 v31, v30
        v_cvt_pk_bf16_f32 v20, v24, v16
        v_cvt_pk_bf16_f32 v21, v25, v17
        v_permlane16_swap_b32 v30, v31
        v_add_f32 v29, v30, v31
        v_cvt_pk_bf16_f32 v22, v26, v18
        v_cvt_pk_bf16_f32 v23, v27, v19
        ds_write_b64 v12, v[28:29] offset:{L_ML}""")
        a.stamp(4)
        a("s_nop 1\ns_setpc_b64 s[50:51]")

    def ctrl(self):
        a = self
        p = self.p
        WQ = 80
        self.sect = "c"
        a("L_ctrl:")
        a.stamp(1)
        a.selectors()
        a("""s_getreg_b32 s44, hwreg(HW_REG_XCC_ID, 0, 3)
        v_lshl_add_u32 v21, v0, 4, s45
        s_waitcnt vmcnt(22)""")
        a.stamp(2)
        for b_, (src, X) in enumerate(((24, 36), (30, 48))):
            for i in range(5):
                a(f"v_lshlrev_b32 v{X+2*i}, 16, v{src+i}")
                a(f"v_and_b32 v{X+2*i+1}, 0xffff0000, v{src+i}")
            a.ln(X, src, 60, False)
            a(f"""v_lshlrev_b32 v2, 2, v0
            ds_write_b64 v1, v[{src}:{src+1}] offset:{L_Y + b_*YS}
            ds_write_b64 v1, v[{src+2}:{src+3}] offset:{L_Y + b_*YS + 512}
            ds_write_b32 v2, v{src+4} offset:{L_Y + b_*YS + 1024}""")
        a(f"""s_mul_i32 s35, s33, 160
        v_lshrrev_b32 v2, 4, v0
        v_mul_u32_u24 v2, 40, v2
        v_bfe_u32 v3, v0, 3, 1
        v_mul_u32_u24 v3, {YS}, v3
        v_add3_u32 v2, v2, v3, s35
        s_waitcnt lgkmcnt(0)""")
        for i in range(5):
            a(f"ds_read_b64 v[{36+2*i}:{37+2*i}], v2 offset:{L_Y + 8*i}")
        a(f"""s_waitcnt vmcnt(21)
        v_readfirstlane_b32 s43, v15
        s_add_u32 s43, s43, 1
        s_and_b32 s43, s43, 0x1fffffff
        s_mov_b32 s49, 0xffffff00
        v_mov_b32 v13, 0
        v_mov_b32 v245, s43
        v_and_b32 v2, 1, v0
        v_lshl_add_u32 v2, v2, 4, 8
        v_lshrrev_b32 v246, v2, v245
        v_add_u32 v246, s43, v246
        v_and_b32 v246, 0xff, v246
        v_add_u32 v2, 8, v2
        v_min_u32 v2, 31, v2
        v_lshrrev_b32 v247, v2, v245
        v_add_u32 v247, s43, v247
        v_and_b32 v247, 0xff, v247
        v_and_b32 v2, 3, v0
        v_mul_u32_u24 v2, 12, v2""")
        for k in range(4):
            a(f"""v_add_u32 v3, {3*(k+1)}, v2
            v_min_u32 v3, 31, v3
            v_lshrrev_b32 v3, v3, v245
            v_add_u32 v3, s43, v3
            s_lshl_b32 s35, s44, {3-k}
            s_and_b32 s35, s35, 8
            v_and_or_b32 v{56+k}, v3, 7, s35""")
        a(f"""s_lshl_b32 s44, s44, 29
        s_or_b32 s44, s44, s43
        s_mov_b32 s43, s44
        v_mov_b32 v245, s44
        s_waitcnt lgkmcnt(0)""")
        a.stamp(3)
        FR = 160

        def frag(D, P, odd):
            for r in range(4):
                a(f"v_perm_b32 v{D+r}, v{P}, v{P}, v{(8 if odd else 4)+r}")
        frag(FR, 36, 0)
        for t in range(20):
            if t + 1 < 20:
                frag(FR + 4 * ((t + 1) % 4), 36 + (t + 1) // 2, (t + 1) & 1)
            a(f"s_waitcnt vmcnt({19-t})")
            c = "0" if t == 0 else "v[48:51]"
            a(f"v_mfma_f32_16x16x32_bf16 v[48:51], v[{FR+4*(t%4)}:{FR+4*(t%4)+3}], v[{WQ+4*t}:{WQ+4*t+3}], {c}")
        qfl = p.get("qfl", "") if p["fast"] else "sc1"
        a(f"""v_and_or_b32 v52, v48, -16, v56
        v_and_or_b32 v53, v49, -16, v57
        v_and_or_b32 v54, v50, -16, v58
        v_and_or_b32 v55, v51, -16, v59
        global_store_dwordx4 v21, v[52:55], s[28:29] {qfl}
""")
        oppre = """v_min_u32 v2, 4, v0
        v_lshl_add_u32 v2, v2, 7, s45
        global_load_dword v253, v2, s[28:29] offset:2048 nt"""
        if p["oppre"] == 1:
            a(oppre)
        a.stamp(4)
        a(self.ROLES)
        qg = a.lab("qg"); qgd = a.lab("qg_ok"); qns = a.lab("qg_nosc1"); qf = a.lab("qg_fast")
        qt = a.lab("qt"); qtd = a.lab("qt_ok")
        zi = a.lab("zinit"); zf = a.lab("zflag")
        self.cold.append(lambda: a(f"""{zi}:
        s_mul_i32 s35, s30, 5120
        s_add_u32 s35, s35, 2048
        v_lshl_add_u32 v2, v0, 4, s35
        s_mov_b32 s35, {INIT1}
        s_cmp_ge_u32 s30, 4
        s_cmov_b32 s35, {INIT2}
        v_mov_b32 v64, 0
        v_mov_b32 v65, s35
        v_mov_b32 v66, 0
        v_mov_b32 v67, s35
        global_store_dwordx4 v2, v[64:67], s[28:29] offset:-2048 sc1
        global_store_dwordx4 v2, v[64:67], s[28:29] offset:-1024 sc1
        global_store_dwordx4 v2, v[64:67], s[28:29] sc1
        global_store_dwordx4 v2, v[64:67], s[28:29] offset:1024 sc1
        global_store_dwordx4 v2, v[64:67], s[28:29] offset:2048 sc1
        s_mul_i32 s35, s30, 5120
        s_add_u32 s35, s35, {PC}
        v_min_u32 v2, 39, v0
        v_lshl_add_u32 v2, v2, 7, s35
        global_store_dword v2, v64, s[28:29] sc1
        s_branch {zi}_r
        {zf}:
        s_lshl_b32 s35, s30, 2
        s_add_u32 s35, s35, {ZF}
        v_mov_b32 v2, s35
        s_waitcnt vmcnt(0)
        global_store_dword v2, v245, s[28:29] sc1
        s_branch {zf}_r"""))
        assert A2 == 4 * 5120
        a(f"""s_and_b32 s58, s34, 31
        s_cmp_eq_u32 s58, 31
        s_cbranch_scc1 {zi}
        {zi}_r:
        v_lshrrev_b32 v3, 5, v0
        v_and_b32 v22, 31, v0
        v_and_b32 v2, 7, v0
        v_lshlrev_b32 v2, 2, v2
        v_add_u32 v23, {ZF}, v2
        s_lshl_b32 s35, s32, 15
        s_lshr_b32 s38, s33, 2
        s_lshl_b32 s38, s38, 9
        s_add_u32 s35, s35, s38
        s_add_u32 s35, s35, {BK}
        v_lshlrev_b32 v2, 12, v3
        v_lshl_add_u32 v2, v22, 4, v2
        v_add_u32 v60, s35, v2
        v_add_u32 v61, 8192, v60
        v_add_u32 v62, 8192, v61
        v_add_u32 v63, 8192, v62
        v_and_b32 v2, 15, v0
        v_lshlrev_b32 v2, 4, v2
        v_and_b32 v22, 16, v0
        v_lshrrev_b32 v22, 1, v22
        v_add_u32 v2, v2, v22
        v_lshl_add_u32 v22, v3, 2, v2
        s_mov_b32 s42, 0
        {"s_branch " + qtd if p["qtrig"] < 0 else ""}
        {qt}:
        ds_read_b128 v[36:39], v13 offset:{L_QT}
        ds_read_b128 v[40:43], v13 offset:{L_QT+16}
        s_add_u32 s42, s42, 1
        s_waitcnt lgkmcnt(0)
        v_min3_u32 v36, v36, v38, v40
        v_min_u32 v36, v36, v42
        v_cmp_eq_u32 vcc, 0, v36
        s_cbranch_vccz {qtd}
        s_cmp_lt_u32 s42, {SPIN*20}
        s_cbranch_scc1 {qt}
        {qtd}:
        s_mov_b32 s42, 0""")
        a.stamp(5)
        if p.get("noq"):
            a(f"v_mov_b32 v36, 0\ns_branch {qgd}")
        a(f"{qg}:")
        for u in range(4):
            a(f"global_load_dwordx4 v[{80+4*u}:{83+4*u}], v{60+u}, s[28:29] sc1")
        a("s_add_u32 s42, s42, 1\ns_waitcnt vmcnt(0)")
        a("v_xor_b32 v36, v56, v80\nv_xor_b32 v37, v57, v81")
        for r in range(82, 96):
            a(f"v_bitop3_b32 v{36+r%2}, v{36+r%2}, v{r}, v{56+r%4} bitop3:0xf6")
        a(f"""v_or_b32 v36, v36, v37
        v_and_b32 v37, 7, v36
        v_and_b32 v36, 15, v36
        v_cmp_ne_u32 vcc, 0, v37
        s_cbranch_vccz {qgd}
        s_cmp_lg_u32 s42, {p['qslow']}
        s_cbranch_scc1 {qns}
        global_store_dwordx4 v21, v[52:55], s[28:29] sc1
        {qns}:
        s_cmp_lt_u32 s42, {SPIN}
        s_cbranch_scc1 {qg}
        {qgd}:""")
        for r in range(80, 96):
            a(f"v_and_b32 v{r}, -16, v{r}")
        a(f"""v_pk_add_f32 v[80:81], v[80:81], v[84:85]
        v_pk_add_f32 v[82:83], v[82:83], v[86:87]
        v_pk_add_f32 v[88:89], v[88:89], v[92:93]
        v_pk_add_f32 v[90:91], v[90:91], v[94:95]
        v_pk_add_f32 v[80:81], v[80:81], v[88:89]
        v_pk_add_f32 v[82:83], v[82:83], v[90:91]
        v_permlane32_swap_b32 v80, v82
        v_permlane32_swap_b32 v81, v83
        v_pk_add_f32 v[80:81], v[80:81], v[82:83]
        v_cvt_pk_bf16_f32 v80, v80, v81
        ds_write_b32 v22, v80 offset:{L_Q}
        v_cmp_ne_u32 vcc, 0, v36
        v_mov_b32 v14, s44
        s_nop 0
        s_cmp_lg_u64 vcc, 0
        s_cselect_b32 s46, 1, {0 if p['fast'] else 1}
        s_cselect_b32 s35, 1, {p['hslow'] + 1 if p['fast'] else 1}
        v_mov_b32 v15, s35
        s_waitcnt lgkmcnt(0)
        ds_write_b64 v13, v[14:15] offset:{L_QF}
        s_cbranch_scc0 {qf}
        global_store_dwordx4 v21, v[52:55], s[28:29] sc1
        {qf}:
        s_cmp_eq_u32 s58, 31
        s_cbranch_scc1 {zf}
        {zf}_r:""")
        a.stamp(6)
        mw = a.lab("mw"); mwd = a.lab("mw_ok"); msl = a.lab("ml_slow"); msd = a.lab("ml_done")
        a(f"""s_mov_b32 s40, {hx(LOG2E)}
        v_mov_b32 v20, s45
        v_lshl_add_u32 v21, v0, 3, s45
        s_setprio 0
        s_mov_b32 s42, 0
        {mw}:
        ds_read_b128 v[36:39], v13 offset:{L_ML}
        ds_read_b128 v[40:43], v13 offset:{L_ML+16}
        s_add_u32 s42, s42, 1
        s_waitcnt lgkmcnt(0)
        v_min3_u32 v44, v37, v39, v41
        v_min_u32 v44, v44, v43
        v_cmp_eq_u32 vcc, 0, v44
        s_cbranch_vccz {mwd}
        s_cmp_lt_u32 s42, {SPIN*20}
        s_cbranch_scc1 {mw}
        {mwd}:
        s_setprio 3
        v_max3_f32 v44, v36, v38, v40
        v_max_f32 v44, v44, v42""")
        for i in range(4):
            a(f"v_sub_f32 v{36+2*i}, v{36+2*i}, v44")
        for i in range(4):
            a(f"v_mul_f32 v{36+2*i}, s40, v{36+2*i}")
        for i in range(4):
            a(f"v_exp_f32 v{36+2*i}, v{36+2*i}")
        a(f"""v_mul_f32 v46, v36, v37
        v_mov_b32 v45, s44
        v_fmac_f32 v46, v38, v39
        v_mov_b32 v47, s44
        v_fmac_f32 v46, v40, v41
        v_fmac_f32 v46, v42, v43
        s_cmp_lg_u32 s46, 0
        s_cbranch_scc1 {msl}
        global_store_dwordx4 v20, v[44:47], s[28:29] offset:2560
        s_branch {msd}
        {msl}:
        global_store_dwordx4 v20, v[44:47], s[28:29] offset:2560 sc1
        {msd}:""")
        a.stamp(8)
        a("s_barrier")
        for u in range(4):
            a(f"ds_read2st64_b64 v[{48+4*u}:{51+4*u}], v1 offset0:{L_RED//512 + 2*u} offset1:{L_RED//512 + 2*u + 1}")
        osl = a.lab("op_slow"); osd = a.lab("op_done"); nf = a.lab("notfree"); dm = a.lab("dma"); dm2 = a.lab("dma2")
        a(f"""s_cmp_lg_u32 s46, 0
        s_waitcnt lgkmcnt(2)
        v_pk_add_f32 v[48:49], v[48:49], v[50:51]
        v_pk_add_f32 v[52:53], v[52:53], v[54:55]
        v_pk_mul_f32 v[48:49], v[48:49], v[36:37] op_sel_hi:[1,0]
        s_waitcnt lgkmcnt(0)
        v_pk_add_f32 v[56:57], v[56:57], v[58:59]
        v_pk_fma_f32 v[48:49], v[52:53], v[38:39], v[48:49] op_sel_hi:[1,0,1]
        v_pk_add_f32 v[60:61], v[60:61], v[62:63]
        v_pk_fma_f32 v[48:49], v[56:57], v[40:41], v[48:49] op_sel_hi:[1,0,1]
        v_pk_fma_f32 v[48:49], v[60:61], v[42:43], v[48:49] op_sel_hi:[1,0,1]
        v_and_or_b32 v48, v48, s49, v246
        v_and_or_b32 v49, v49, s49, v247
        s_cbranch_scc1 {osl}
        global_store_dwordx2 v21, v[48:49], s[28:29] offset:2048 {p.get("opfl", "")}
        {osd}:""")
        self.cold.append(lambda: a(f"""{osl}:
        global_store_dwordx2 v21, v[48:49], s[28:29] offset:2048 sc1
        s_branch {osd}"""))
        a.stamp(10)
        a("""s_cmp_lg_u32 s31, 0
        s_cbranch_scc1 L_ctrl_n""")
        self.ctrl_wo()
        a.flush_cold()
        a(f"""L_ctrl_n:
        {"buffer_wbl2 sc1" if p.get("wbl2") else ""}
        s_cmp_eq_u32 s31, 1
        s_cbranch_scc1 {nf}""")
        a.finish()
        a(f"""{nf}:
        global_load_dword v24, v23, s[28:29] sc1
        s_barrier
        s_waitcnt vmcnt(0)""")
        self.zcheck()
        if p.get("probe", 2) == 2:
            pb = a.lab("probe"); pbd = a.lab("probe_ok")
            nc = p.get("nc", 5)
            R = p.get("R", 27)
            if R == 27:
                a("s_mov_b32 s38, s39")
            elif R > 27:
                a(f"""s_mul_i32 s38, s39, 3
                s_add_u32 s38, s38, s33
                s_sub_u32 s38, s38, 5
                s_cmp_ge_u32 s38, {R}
                s_cselect_b32 s35, {R}, 0
                s_sub_u32 s38, s38, s35""")
            else:
                a(f"s_lshr_b32 s38, s39, 1")
            a(f"""s_mul_i32 s38, s38, 640
            s_add_u32 s38, s38, {PC}
            s_mov_b32 s42, {p['gslow'] * (4 if p.get("ppipe") else 1)}
            s_mov_b64 s[64:65], 0
            s_mov_b64 s[66:67], 0
            s_mov_b32 s68, 0
            {pb}:""")
            if p.get("ppipe"):
                a("s_waitcnt lgkmcnt(10)")
            for c in range(nc):
                a(f"s_load_dword s{64+c}, s[28:29], s38 offset:{128*c} glc")
            a(f"""s_sub_u32 s42, s42, 1
            s_cmp_eq_u32 s42, 0
            {"s_sleep %d" % p["ppipe"] if p.get("ppipe") else "s_waitcnt lgkmcnt(0)"}
            s_cbranch_scc1 {pbd}
            s_mov_b32 s70, s64""")
            for c in range(1, nc):
                a(f"s_add_u32 s70, s70, s{64+c}")
            a(f"""s_cmp_lg_u32 s70, {32 * nc}
            s_cbranch_scc1 {pb}
            {pbd}:""")
            a.stamp(7)
        elif p.get("probe", 2):
            pb = a.lab("probe"); pbd = a.lab("probe_ok")
            a(f"""s_mul_i32 s35, s39, 3
            s_add_u32 s35, s35, s33
            s_and_b32 s36, s35, 7
            s_lshl_b32 s36, s36, 7
            s_bitcmp1_b32 s35, 3
            s_cselect_b32 s35, 5120, 0
            s_add_u32 s38, s35, s36
            s_mov_b32 s42, {p['gslow']}
            {pb}:""")
            for c in range(5):
                a(f"s_load_dword s{64+c}, s[28:29], s38 offset:{1024*c + 4} glc")
            a(f"""s_sub_u32 s42, s42, 1
            s_cmp_eq_u32 s42, 0
            s_waitcnt lgkmcnt(0)
            s_cbranch_scc1 {pbd}
            s_xor_b32 s64, s64, {MHI}
            s_xor_b32 s65, s65, {MHI}
            s_xor_b32 s66, s66, {MHI}
            s_xor_b32 s67, s67, {MHI}
            s_xor_b32 s68, s68, {MHI}
            s_or_b64 s[64:65], s[64:65], s[66:67]
            s_or_b32 s64, s64, s68
            s_or_b32 s64, s64, s65
            s_lshr_b32 s64, s64, 20
            s_cbranch_scc1 {pb}
            {pbd}:""")
            a.stamp(7)
        a("s_barrier")
        a.finish()
        a.flush_cold()

    def zcheck(self):
        a = self
        zc = a.lab("zc"); zr = a.lab("zc_re"); zd = a.lab("zc_ok")
        a(f"""s_mov_b32 s42, 0
        {zc}:
        v_xor_b32 v24, s44, v24
        v_lshlrev_b32 v24, 3, v24
        v_cmp_ne_u32 vcc, 0, v24
        s_cbranch_vccnz {zr}
        {zd}:""")
        self.cold.append(lambda: a(f"""{zr}:
        global_load_dword v24, v23, s[28:29] sc1
        s_add_u32 s42, s42, 1
        s_cmp_ge_u32 s42, {SPIN}
        s_waitcnt vmcnt(0)
        s_cbranch_scc1 {zd}
        s_branch {zc}"""))

    def ctrl_wo(self):
        a = self
        p = self.p
        a("s_barrier")
        if p.get("probe", 2) != 2:
            a("global_load_dword v24, v23, s[28:29] sc1\ns_waitcnt vmcnt(0)")
            self.zcheck()
        else:
            sk = a.lab("ow_sk")
            a(f"""global_load_dword v24, v23, s[28:29] sc1
            v_mul_u32_u24 v2, 640, v0
            s_lshl_b32 s35, s33, 7
            s_add_u32 s35, s35, {PC}
            v_add_u32 v2, s35, v2
            v_mov_b32 v3, 1
            s_waitcnt vmcnt(0)""")
            self.zcheck()
            a(f"""s_cmp_ge_u32 s33, {p.get("nc", 5)}
            s_mov_b32 exec_lo, {hex(((1 << p.get("R", 27)) - 1) & 0xffffffff)}
            s_mov_b32 exec_hi, {hex(((1 << p.get("R", 27)) - 1) >> 32)}
            s_barrier
            s_cbranch_scc1 {sk}
            global_atomic_add v2, v3, s[28:29] sc1
            {sk}:""")
            if p.get("b3c", 2):
                a("s_barrier")
            a.stamp(9)
            a.finish()
            return
        a("s_barrier")
        a.finish()

    def write(self, fn):
        self.build()
        body = process(self.L)
        H = ["; fused decode block: one persistent launch, 256 workgroups x 5 waves",
             f"; @launch grid=(256,1,1) block=(320,1,1) lds={LDS_SIZE}",
             '.amdgcn_target "amdgcn-amd-amdhsa--gfx950"', ".text", f".globl {NAME}_kernel", ".p2align 8",
             f".type {NAME}_kernel,@function", f"{NAME}_kernel:"]
        T = ['.section .rodata,"a"', ".p2align 6", f".amdhsa_kernel {NAME}_kernel",
             f"  .amdhsa_next_free_vgpr 256", f"  .amdhsa_next_free_sgpr {102 if (self.diag or self.p.get('holdat')) else self.p.get('nsgpr', 102)}", "  .amdhsa_accum_offset 256",
             "  .amdhsa_group_segment_fixed_size 0", "  .amdhsa_kernarg_size 104", "  .amdhsa_user_sgpr_count 2",
             "  .amdhsa_user_sgpr_kernarg_segment_ptr 1", "  .amdhsa_system_sgpr_workgroup_id_x 1",
             "  .amdhsa_float_denorm_mode_32 3", "  .amdhsa_float_denorm_mode_16_64 3", ".end_amdhsa_kernel"]
        lines = [(l if l.endswith(":") else "    " + l) for l in body]
        open(fn, "w").write("\n".join(H + lines + T) + "\n")


if __name__ == "__main__":
    out = sys.argv[1] if len(sys.argv) > 1 else "k19.s"
    kw = {}
    diag = False
    for x in sys.argv[2:]:
        if x == "diag":
            diag = True
        else:
            k, v = x.split("=", 1)
            kw[k] = eval(v)
    G(diag=diag, **kw).write(out)
```

```python
import re
TRANS = ("v_exp_f32", "v_log_f32", "v_rcp_f32", "v_rsq_f32", "v_sqrt_f32", "v_sin_f32", "v_cos_f32")
def regs(tok):
    tok = tok.strip().lstrip("-").replace("|", "")
    m = re.fullmatch(r"abs\((.*)\)", tok)
    if m: tok = m.group(1)
    m = re.fullmatch(r"([vsa])(\d+)", tok)
    if m: return {(m.group(1), int(m.group(2)))}
    m = re.fullmatch(r"([vsa])\[(\d+):(\d+)\]", tok)
    if m: return {(m.group(1), i) for i in range(int(m.group(2)), int(m.group(3)) + 1)}
    if tok == "vcc": return {("s", 106), ("s", 107)}
    if tok == "exec": return {("s", 126), ("s", 127)}
    if tok == "m0": return {("s", 124)}
    return set()
class I:
    def __init__(self, text):
        self.text = text
        t = text.split(";")[0].strip()
        p = t.split(None, 1)
        self.op = p[0]
        rest = p[1] if len(p) > 1 else ""
        ops = [o.strip() for o in re.split(r",(?![^\[]*\])", rest)] if rest else []
        self.mods = ""
        if ops:
            q = ops[-1].split(None, 1)
            ops[-1] = q[0]
            self.mods = q[1] if len(q) > 1 else ""
        self.ops = ops
        op = self.op
        self.mfma = op.startswith("v_mfma") or op.startswith("v_smfmac")
        self.valu = op.startswith("v_") and not self.mfma
        self.trans = any(op.startswith(x) for x in TRANS)
        self.dpp = self.valu and ("_dpp" in op or "quad_perm" in text or "row_" in text)
        self.permlane = op.startswith("v_permlane")
        self.rdlane = op.startswith("v_readlane") or op.startswith("v_readfirstlane")
        self.vmem = op.startswith(("global_", "buffer_", "flat_"))
        self.ds = op.startswith("ds_")
        self.salu = op.startswith("s_")
        self.ldsdma = self.vmem and "_lds_" in op
        R = [regs(o) for o in ops]
        self.w = set(); self.r = set(); self.srcC = set(); self.srcAB = set(); self.stdata = set()
        if op.startswith("v_smfmac"):
            self.w = R[0]; self.srcAB = R[1] | R[2] | R[3]; self.srcC = R[0]; self.r = self.srcAB | self.srcC
        elif self.mfma:
            self.w = R[0]; self.srcAB = R[1] | R[2]; self.srcC = R[3]; self.r = self.srcAB | self.srcC
        elif self.valu:
            self.w = set(R[0]); self.r = set().union(*R[1:]) if len(R) > 1 else set()
            if op.startswith(("v_fmac", "v_dot2c", "v_pk_fmac")) or self.dpp or op.startswith("v_writelane"): self.r |= R[0]
            if self.permlane: self.w = R[0] | R[1]; self.r = R[0] | R[1]
            if op.startswith(("v_add_co", "v_sub_co", "v_addc_co")): self.w |= R[1]
            if op.startswith("v_cndmask") and len(ops) == 3: self.r |= regs("vcc")
        elif self.vmem:
            if "store" in op or ("atomic" in op):
                self.r = set().union(*R)
                if "x4" in op or "x3" in op: self.stdata = R[1]
            elif self.ldsdma:
                self.r = set().union(*R) | regs("m0")
            else:
                self.w = R[0]; self.r = set().union(*R[1:])
                if "d16" in op: self.r |= R[0]
        elif self.ds:
            if op.startswith(("ds_read", "ds_bpermute", "ds_permute", "ds_swizzle")):
                self.w = R[0]; self.r = set().union(*R[1:])
            else: self.r = set().union(*R)
        elif self.salu:
            if op.startswith(("s_cmp", "s_bitcmp", "s_cbranch", "s_branch", "s_waitcnt", "s_nop", "s_barrier", "s_sleep", "s_setprio", "s_endpgm")):
                self.r = set().union(*R) if R else set()
            else:
                self.w = R[0] if R else set(); self.r = set().union(*R[1:]) if len(R) > 1 else set()
        self.states = 1
        if op == "s_nop": self.states = int(ops[0], 0) + 1
def V(s): return {x for x in s if x[0] in "va"}
def S(s): return {x for x in s if x[0] == "s"}
def need(p, c):
    n = 0
    if p.valu:
        vw = V(p.w); sw = S(p.w)
        if c.mfma and vw & c.r: n = max(n, 2)
        if c.dpp and vw & c.r: n = max(n, 2)
        if c.permlane and vw & c.r: n = max(n, 2)
        if c.rdlane and vw & c.r: n = max(n, 1)
        if p.trans and c.valu and vw & c.r: n = max(n, 1)
        if p.trans and (c.vmem or c.ds) and vw & c.r: n = max(n, 1)
        if sw:
            if c.valu and sw & c.r: n = max(n, 4 if (c.op.startswith(("v_readlane", "v_writelane"))) else 2)
            if c.vmem and sw & c.r: n = max(n, 5)
            if c.salu and sw & c.r: n = max(n, 1)
    if p.mfma:
        if c.mfma:
            if p.w & c.srcAB: n = max(n, 8)
            if p.w & c.srcC and p.w != c.srcC: n = max(n, 6)
            if p.w & c.w and not (p.w == c.srcC): n = max(n, 6)
        elif c.valu or c.vmem or c.ds:
            if p.w & (c.r | c.w): n = max(n, 8)
        if c.valu and p.srcC & c.w: n = max(n, 3)
    if p.stdata and (c.valu or c.mfma) and p.stdata & c.w: n = max(n, 2)
    if p.stdata and (c.vmem or c.ds) and p.stdata & c.w: n = max(n, 1)
    if p.salu and ("s", 124) in p.w and c.ldsdma: n = max(n, 1)
    if p.salu and (("s", 126) in p.w) and (c.dpp or c.mfma or c.rdlane or c.permlane): n = max(n, 1)
    return n
def process(lines):
    out = []; hist = []
    for ln in lines:
        t = ln.strip()
        if not t or t.startswith(";") or t.startswith(".") or t.endswith(":"):
            out.append(ln); continue
        c = I(t)
        dist = 0; pad = 0
        for p in reversed(hist):
            n = need(p, c)
            if n - dist > pad: pad = n - dist
            dist += p.states
            if dist >= 12: break
        if pad > 0:
            nop = I(f"s_nop {pad-1}")
            out.append(f"s_nop {pad-1}"); hist.append(nop)
        out.append(ln); hist.append(c)
        hist = hist[-16:]
    return out
```

```python
import sys, struct, math
from hz import process

NAME = "sequential_preLN__sliding_block_cached__mixer_channel_mlp__decode"


def hx(x):
    return "0x%08x" % struct.unpack("<I", struct.pack("<f", x))[0]


A1 = 0x00000
A2 = 0x05000
PC = 0x0A000
EP = 0x80000
ZF = 0x81000
BK = 0x100000
OB = 0x40000
STAMP = 0x8000000
L_Y = 0x0000; YS = 1408
L_Q = 0x0B00; L_ML = 0x0C00; L_Z = 0x0C80; L_QF = 0x0C90; L_QT = 0x0CC0; L_GO = 0x0CF0
L_RED = 0x1000; L_RED2 = 0x2000; L_T1 = 0x3000
L_H = 0x1000
L_W1 = 0x4000
LDS_SIZE = L_W1 + 81920
KR, VR, FRG, TR = 16, 80, 144, 208
LOG2E = 1.4426950408889634
SPIN = 400000
DPPF = "row_mask:0xf bank_mask:0xf"
KEXP = 22
MHI = ((1023 + KEXP) << 20) | (1 << 19)
for miss in range(1, 55):
    for slop in (-1, 0):
        top = (((1 - miss) * MHI + slop) & 0xffffffff) >> 20
        top2 = (((1 - miss) * MHI + (1 << 19) - 1 + (slop << 19)) & 0xffffffff) >> 20
        for t_ in (top, top2):
            assert t_ != 1023 + KEXP, miss
INIT1 = (-31 * MHI) & 0xffffffff
INIT2 = (-26 * MHI) & 0xffffffff


class G:
    def __init__(self, diag=False, **kw):
        self.L = []
        self.diag = diag
        self.n = 0
        self.sect = "a"
        self.cold = []
        self.p = dict(F=11, Pw=9, Pw2=10, Pn=8, Pn2=9, tsl=(8, 13, 18, 23, 28, 32, 32, 32), mat=32, chk=31,
                      qtrig=1, qslow=3, hslow=100, cslow=60, lfpos=2, fast=True, nt="nt", w1fl="", warm=True,
                      mlpT=0, b3b=True, atrig=1, actrl=2, hpipe=False, sp1=0, Pf=0, tfl="", tsn=None, n1=0, gf=True, afpos=1, gslow=40, gpre=8, gfv=False, oppre=1)
        self.p.update(kw)

    def __call__(self, s):
        for ln in s.split("\n"):
            ln = ln.strip()
            if ln:
                self.L.append(ln)

    def lab(self, p):
        self.n += 1
        return f"L_{p}_{self.n}"

    def stamp(self, idx):
        p = self.p
        h = p.get("holdat")
        if h is not None and not self.diag:
            if (self.sect, idx) == tuple(h[:2]):
                self("s_memrealtime s[96:97]\ns_waitcnt lgkmcnt(0)\ns_mov_b32 s95, 1")
            return
        if not self.diag or (p.get("lite") and idx != 31):
            return
        if p.get("only") is not None and idx != 31 and (self.sect + str(idx)) not in p["only"].split(","):
            return
        self(f"s_memrealtime s[100:101]\ns_waitcnt lgkmcnt(0)\nv_writelane_b32 v255, s100, {idx}")

    def clk(self, where):
        c = self.p.get("clk")
        if self.diag and c and where in c:
            self(f"s_memtime s[100:101]\ns_waitcnt lgkmcnt(0)\nv_writelane_b32 v255, s100, {25 + c.index(where)}")

    def note(self, idx):
        if self.diag:
            self(f"v_writelane_b32 v255, s42, {idx}")

    def finish(self):
        if self.diag:
            self.stamp(31)
            self("s_branch L_dump")
        elif self.p.get("holdat") is not None:
            self("s_branch L_hold")
        else:
            self("s_endpgm")

    def rnd(self, d, src):
        self(f"v_cvt_pk_bf16_f32 v{d}, 0, {src}")

    def ln(self, X, P, T, keep, hook=None, fill=(), H=None):
        a = self
        pr = lambda r: f"v[{r}:{r+1}]"
        if H is None:
            H = X
            a(f"v_pk_add_f32 {pr(T)}, {pr(X)}, {pr(X+2)}")
            a(f"v_pk_mul_f32 {pr(T+2)}, {pr(X)}, {pr(X)}")
            for i in (4, 6, 8):
                a(f"v_pk_add_f32 {pr(T)}, {pr(T)}, {pr(X+i)}")
                a(f"v_pk_fma_f32 {pr(T+2)}, {pr(X+i-2)}, {pr(X+i-2)}, {pr(T+2)}")
            a(f"v_pk_fma_f32 {pr(T+2)}, {pr(X+8)}, {pr(X+8)}, {pr(T+2)}")
        a(f"v_add_f32 v{T+2}, v{T+2}, v{T+3}")
        a(f"v_add_f32 v{T}, v{T}, v{T+1}")
        if hook:
            hook()
        a(f"v_permlane32_swap_b32 v{T}, v{T+2}")
        a(f"v_add_f32 v{T}, v{T}, v{T+2}")
        fill = list(fill)
        for d in ("quad_perm:[1,0,3,2]", "quad_perm:[2,3,0,1]", "row_half_mirror", "row_mirror"):
            if fill:
                a(fill.pop(0))
            a(f"v_add_f32_dpp v{T}, v{T}, v{T} {d} {DPPF}")
        a(f"v_add_f32_dpp v{T}, v{T}, v{T} row_bcast:15 row_mask:0xa bank_mask:0xf")
        a(f"v_mul_f32 v{T}, {hx(1.0/640.0)}, v{T}")
        a(f"v_readlane_b32 s41, v{T}, 63")
        a(f"v_readlane_b32 s40, v{T}, 31")
        a(f"v_mov_b32 v{T+2}, s41")
        a.rnd(T, "s40")
        a(f"v_fma_f32 v{T+2}, -s40, s40, v{T+2}")
        sub = lambda i: a(f"v_pk_add_f32 {pr(X+i)}, {pr(H+i)}, {pr(T)} op_sel_hi:[1,0] neg_lo:[0,1] neg_hi:[0,1]")
        sub(0)
        a(f"v_max_f32 v{T+2}, 0, v{T+2}")
        sub(2)
        a.rnd(T+2, f"v{T+2}")
        sub(4)
        a(f"v_add_f32 v{T+2}, {hx(1e-5)}, v{T+2}")
        sub(6)
        a.rnd(T+2, f"v{T+2}")
        sub(8)
        a(f"v_sqrt_f32 v{T+2}, v{T+2}")
        a.rnd(X, f"v{X}"); a.rnd(X+1, f"v{X+1}")
        a.rnd(T+2, f"v{T+2}")
        a.rnd(X+2, f"v{X+2}")
        a(f"v_rcp_f32 v{T+2}, v{T+2}")
        for i in range(3, 10):
            a.rnd(X+i, f"v{X+i}")
        for i in range(5):
            a(f"v_pk_mul_f32 {pr(X+2*i)}, {pr(X+2*i)}, {pr(T+2)} op_sel_hi:[1,0]")
        if keep:
            for i in range(10):
                a.rnd(X+i, f"v{X+i}")
        else:
            for i in range(5):
                a(f"v_cvt_pk_bf16_f32 v{P+i}, v{X+2*i}, v{X+2*i+1}")

    def selectors(self):
        a = self
        a("""v_and_b32 v2, 1, v0
        v_cmp_eq_u32 vcc, 1, v2
        v_mov_b32 v2, 0x0c0c0100
        v_mov_b32 v3, 0x01000c0c
        v_cndmask_b32 v12, v2, v3, vcc
        v_mov_b32 v2, 0x0c0c0302
        v_mov_b32 v3, 0x03020c0c
        v_cndmask_b32 v13, v2, v3, vcc
        v_bfe_u32 v2, v0, 1, 2
        v_mov_b32 v3, 0x0c0c0c0c""")
        for r in range(4):
            a(f"v_cmp_eq_u32 vcc, {r}, v2")
            a(f"v_cndmask_b32 v{4+r}, v3, v12, vcc")
            a(f"v_cndmask_b32 v{8+r}, v3, v13, vcc")

    def dlayout(self, dst, t, bstride):
        self(f"""v_and_b32 v{dst}, 15, v0
        v_lshlrev_b32 v{dst}, 5, v{dst}
        v_and_b32 v{t}, 16, v0
        v_add_u32 v{dst}, v{dst}, v{t}
        v_lshrrev_b32 v{t}, 5, v0
        v_mul_u32_u24 v{t}, {bstride}, v{t}
        v_add_u32 v{dst}, v{dst}, v{t}""")

    def rowaddr(self, dst):
        self(f"""v_lshrrev_b32 v2, 4, v0
        v_mul_u32_u24 v2, 10240, v2
        v_and_b32 v3, 15, v0
        v_lshl_add_u32 v2, v3, 4, v2
        v_add_u32 v{dst}, s36, v2""")

    ROLES = """s_and_b32 s39, s32, 3
        s_lshl_b32 s39, s39, 3
        s_add_u32 s39, s39, s30
        s_cmp_lt_u32 s39, 27
        s_cselect_b32 s31, 1, 2
        s_min_u32 s39, s39, 26
        s_cmp_lt_u32 s33, 5
        s_cselect_b32 s31, 0, s31"""

    def gather(self, name, n, loads, R, first_issued=False):
        a = self
        lp = a.lab(name); dn = a.lab(name + "_ok"); re = a.lab(name + "_re")
        a("s_mov_b32 s42, 0")
        if first_issued:
            a(f"s_branch {lp}")
        a(f"{re}:")
        loads()
        a(f"s_add_u32 s42, s42, 1\ns_cmp_ge_u32 s42, {SPIN}\ns_cbranch_scc1 {dn}")
        a(f"{lp}:")
        for u in range(n):
            a(f"s_waitcnt vmcnt({n-1-u})")
            b = R + 4*u
            for r in range(b, b + 4):
                a(f"v_xor_b32 v{r}, s{64 + (r - b)}, v{r}")
            if u == 0:
                a(f"v_or_b32 v26, v{b}, v{b+1}")
            else:
                a(f"v_or3_b32 v26, v26, v{b}, v{b+1}")
            a(f"v_or3_b32 v26, v26, v{b+2}, v{b+3}")
            if u == n - 1:
                a("v_cmp_ne_u32_sdwa vcc, v26, v13 src0_sel:BYTE_0 src1_sel:DWORD")
            if u:
                a(f"v_pk_add_f32 v[{R}:{R+1}], v[{R}:{R+1}], v[{b}:{b+1}]")
                a(f"v_pk_add_f32 v[{R+2}:{R+3}], v[{R+2}:{R+3}], v[{b+2}:{b+3}]")
        a(f"s_cbranch_vccnz {re}\n{dn}:")

    def flush_cold(self):
        c, self.cold = self.cold, []
        for f in c:
            f()

    def red16(self, A):
        self(f"""v_permlane32_swap_b32 v{A}, v{A+2}
        v_permlane32_swap_b32 v{A+1}, v{A+3}
        v_pk_add_f32 v[{A}:{A+1}], v[{A}:{A+1}], v[{A+2}:{A+3}]
        v_permlane16_swap_b32 v{A}, v{A+1}
        v_add_f32 v{A}, v{A}, v{A+1}
        v_add_f32_dpp v{A}, v{A}, v{A} row_ror:4 {DPPF}
        v_add_f32_dpp v{A}, v{A}, v{A} row_ror:8 {DPPF}""")

    def transp(self, R, B, pp):
        for T in range(8):
            self(f"v_perm_b32 v{B+4*T+pp}, v{R+4*(2*pp+1)+T//2}, v{R+4*(2*pp)+T//2}, s{52+(T&1)}")

    def nat8(self, B):
        for r in range(4):
            self(f"v_mfma_f32_16x16x32_bf16 v[{44+4*r}:{47+4*r}], v[64:67], v[{B+4*r}:{B+4*r+3}], 0")
        for r in range(4):
            self(f"v_mfma_f32_16x16x32_bf16 v[{44+4*r}:{47+4*r}], v[68:71], v[{B+16+4*r}:{B+16+4*r+3}], v[{44+4*r}:{47+4*r}]")

    def zeroA(self):
        self("s_mov_b32 s52, 0x05040100\ns_mov_b32 s53, 0x07060302")
        for r in range(64, 72, 2):
            self(f"v_mov_b64 v[{r}:{r+1}], 0")

    def stream(self, wo, withT, extra):
        a = self
        p = self.p
        nt = p["nt"]
        F = p["F"]
        P1, P2 = (p["Pw"], p["Pw2"]) if wo else (p["Pn"], p["Pn2"])
        kv = [("K", t) for t in range(16)] + [("V", t) for t in range(16)]
        order = kv[:F]
        tsl = list(p["tsl"]) if wo else (list(p["tsn"]) if p["tsn"] else [32] * withT)
        tk = 0
        for i in range(F, 33):
            for pos_, it in extra:
                if pos_ == i:
                    order.append(it)
            while tk < len(tsl) and tsl[tk] <= i:
                order.append(("T", tk)); tk += 1
            if i < 32:
                order.append(kv[i])
        NL = len(order)
        pos = {it: i for i, it in enumerate(order)}
        st = {"issued": F, "done": -1}
        big = lambda j: order[j][0] != "S"

        def emit(it):
            k, t = it
            if k == "K":
                if t == 8:
                    a("v_add_u32 v1, 32768, v1")
                a(f"global_load_dwordx4 v[{KR+4*t}:{KR+4*t+3}], v1, s[6:7] offset:{(t%8)*1024-4096} {nt}")
            elif k == "V":
                if t == 8:
                    a("v_add_u32 v14, 32768, v14")
                a(f"global_load_dwordx4 v[{VR+4*t}:{VR+4*t+3}], v14, s[8:9] offset:{(t%8)*1024-4096} {nt}")
            elif k == "T":
                if wo:
                    if t == 7:
                        a("v_add_u32 v15, 5120, v15")
                    a(f"global_load_dwordx4 v[{TR+4*t}:{TR+4*t+3}], v15, s[12:13] offset:{(t-3)*1280 if t < 7 else 0} {nt}")
                else:
                    a(f"global_load_dwordx4 v[{TR+4*t}:{TR+4*t+3}], v15, s[44:45] {p['tfl']}")
                    if t < 7:
                        a("v_add_u32 v15, s46, v15")
            else:
                a(t)
        self.emit = emit

        def issue(pace=0):
            i = st["issued"]
            if pace and big(i):
                cnt = 0; j = i
                while j > 0 and cnt < pace:
                    j -= 1
                    cnt += big(j)
                if cnt == pace and j > st["done"]:
                    a(f"s_waitcnt vmcnt({i-1-j})")
                    st["done"] = j
            if not wo and p["Pf"] and big(i):
                cnt = 0; j = i
                while j > 0 and cnt < p["Pf"]:
                    j -= 1
                    cnt += big(j)
                if j > st["done"]:
                    sk = a.lab("pf")
                    a(f"s_cbranch_vccz {sk}\ns_waitcnt vmcnt({i-1-j})\n{sk}:")
            emit(order[i])
            st["issued"] += 1

        def wait_for(it):
            i = pos[it]
            assert i < st["issued"]
            if st["done"] < i:
                a(f"s_waitcnt vmcnt({st['issued']-1-i})")
                st["done"] = i
        trig = False
        while st["done"] < pos[("K", 15)]:
            issue(P1)
            if not trig and st["done"] >= pos[("K", max(0, p["qtrig"]))]:
                a(f"ds_write_b32 v12, v247 offset:{L_QT}")
                trig = True
        a.stamp(1)
        lastchk = pos[kv[p["chk"]]]
        first = True
        while st["issued"] <= lastchk:
            sk = a.lab("chk")
            if not first:
                a(f"s_cmp_lg_u32 s47, 0\ns_cbranch_scc1 {sk}")
            a(f"""ds_read_b64 v[2:3], v13 offset:{L_QF}
            s_waitcnt lgkmcnt(0)
            v_readfirstlane_b32 s47, v3
            s_cmp_eq_u32 s47, 0
            s_cbranch_scc1 {sk}
            s_call_b64 s[50:51], L_compute
            {sk}:""")
            first = False
            issue(P2)
        lp = a.lab("qw"); sk = a.lab("qw_done"); go = a.lab("qw_go")
        a(f"""s_cmp_lg_u32 s47, 0
        s_cbranch_scc1 {sk}
        s_mov_b32 s42, 0
        {lp}:
        ds_read_b64 v[2:3], v13 offset:{L_QF}
        s_add_u32 s42, s42, 1
        s_waitcnt lgkmcnt(0)
        v_readfirstlane_b32 s47, v3
        s_cmp_lg_u32 s47, 0
        s_cbranch_scc1 {go}
        s_cmp_lt_u32 s42, {SPIN*20}
        s_cbranch_scc1 {lp}
        {go}:
        s_call_b64 s[50:51], L_compute
        {sk}:""")
        a.stamp(19)

        def topup():
            while st["issued"] < NL:
                infl = sum(big(j) for j in range(st["done"] + 1, st["issued"]))
                if infl >= P2 and big(st["issued"]):
                    break
                issue()
        topup()
        for t in range(16):
            a(f"v_mov_b32_dpp v{48+t%2}, v{20+t//4} row_newbcast:{4*(t%4)} {DPPF}")
            for r in range(4):
                a(f"v_perm_b32 v{FRG+4*(t%4)+r}, v{48+t%2}, v{48+t%2}, v{240+r}")
            while st["issued"] <= pos[("V", t)]:
                issue(P2)
            wait_for(("V", t))
            topup()
            c = "0" if t == 0 else "v[44:47]"
            a(f"v_mfma_f32_16x16x32_bf16 v[44:47], v[{FRG+4*(t%4)}:{FRG+4*(t%4)+3}], v[{VR+4*t}:{VR+4*t+3}], {c}")
        while st["issued"] < NL:
            issue()
        a(f"ds_write_b128 v248, v[44:47] offset:{L_RED}\ns_waitcnt lgkmcnt(0)")
        a.stamp(20)
        a("s_barrier")
        a.stamp(5)
        return st, pos, wait_for, lastchk

    def build(self):
        a = self
        p = self.p
        nt = p["nt"]
        a(f"""
        s_cmp_ge_u32 s2, 256
        s_cbranch_scc1 L_exit
        s_load_dwordx16 s[4:19], s[0:1], 0
        s_load_dwordx8 s[20:27], s[0:1], 64
        s_load_dwordx2 s[28:29], s[0:1], 96
        v_lshrrev_b32 v1, 6, v0
        v_and_b32 v0, 63, v0
        v_readfirstlane_b32 s3, v1
        s_and_b32 s30, s2, 7
        s_lshr_b32 s31, s2, 3
        s_lshl_b32 s34, s30, 5
        s_add_u32 s34, s34, s31
        s_lshr_b32 s32, s34, 3
        s_and_b32 s33, s34, 7
        """)
        if self.diag:
            a("v_mov_b32 v255, 0\ns_memrealtime s[100:101]")
        if p.get("holdat") is not None:
            a("s_mov_b32 s95, 0")
        a("""s_sub_u32 s3, s3, 1
        s_cbranch_scc0 L_att""")
        WQ = 80
        a(f"""s_setprio 3
        s_mov_b32 s3, 4
        s_getpc_b64 s[36:37]
        L_pc:
        s_sub_u32 s36, s36, L_pc-{NAME}_kernel
        s_subb_u32 s37, s37, 0
        s_lshl_b32 s35, s33, 11
        v_and_b32 v12, 15, v0
        v_lshl_add_u32 v1, v12, 7, s35
        v_min_u32 v1, L_codeend-{NAME}_kernel-4, v1
        global_load_dword v254, v1, s[36:37]
        v_lshlrev_b32 v1, 3, v0
        v_lshlrev_b32 v2, 2, v0
        v_mov_b32 v36, 0
        ds_write_b32 v2, v36 offset:{L_ML}
        s_mul_i32 s35, s33, {80*8192}
        s_lshl_b32 s38, s32, 8
        s_add_u32 s35, s35, s38
        v_lshrrev_b32 v3, 4, v0
        v_mul_u32_u24 v3, {20*8192}, v3
        v_lshl_add_u32 v3, v12, 4, v3
        v_add_u32 v3, s35, v3
        s_lshl_b32 s45, s34, 12
        s_add_u32 s45, s45, {BK}
        v_and_b32 v12, 7, v0
        v_lshl_add_u32 v20, v12, 7, s45
        v_mov_b32 v12, {EP}
        s_movk_i32 s38, 0x2000
        s_waitcnt lgkmcnt(0)
        """)
        if self.diag:
            a("v_writelane_b32 v255, s100, 0")
        a(f"""global_load_dwordx2 v[24:25], v1, s[4:5]
        global_load_dwordx2 v[26:27], v1, s[4:5] offset:512
        global_load_dword v28, v2, s[4:5] offset:1024
        global_load_dwordx2 v[30:31], v1, s[4:5] offset:1280
        global_load_dwordx2 v[32:33], v1, s[4:5] offset:1792
        global_load_dword v34, v2, s[4:5] offset:2304
        global_load_dword v15, v12, s[28:29] sc1
        global_load_dword v253, v20, s[28:29] {p.get("prefl0", "nt")}""")
        for t in range(20):
            if t:
                a("v_add_u32 v3, s38, v3")
            a(f"global_load_dwordx4 v[{WQ+4*t}:{WQ+4*t+3}], v3, s[10:11] {nt}")
            if t == p.get("bar0at", 19):
                a("s_barrier")
        a("s_branch L_ctrl")
        a(f"""L_att:
        s_lshr_b32 s35, s33, 2
        s_lshl_b32 s35, s35, 5
        s_add_u32 s35, s35, s32
        s_lshl_b32 s35, s35, 4
        s_and_b32 s36, s33, 3
        s_add_u32 s35, s35, s36
        s_add_u32 s35, s35, 12
        s_lshl_b32 s35, s35, 3
        s_add_u32 s35, s35, s3
        s_lshl_b32 s35, s35, 13
        s_add_u32 s35, s35, 4096
        v_bfe_u32 v1, v0, 2, 2
        v_lshlrev_b32 v1, 8, v1
        v_lshrrev_b32 v2, 4, v0
        v_lshl_add_u32 v1, v2, 6, v1
        v_and_b32 v2, 3, v0
        v_lshl_add_u32 v1, v2, 4, v1
        v_add_u32 v1, s35, v1
        v_lshl_add_u32 v14, v0, 4, s35
        s_waitcnt lgkmcnt(0)
        """)
        if self.diag:
            a("v_writelane_b32 v255, s100, 0")
        a("s_barrier")
        for t in range(p["F"]):
            if t == 8:
                a("v_add_u32 v1, 32768, v1")
            a(f"global_load_dwordx4 v[{KR+4*t}:{KR+4*t+3}], v1, s[6:7] offset:{(t%8)*1024-4096} {nt}")
        a.stamp(16)
        a.selectors()
        a("v_and_b32 v2, 8, v0\nv_cmp_eq_u32 vcc, 8, v2")
        for r in range(4):
            a(f"v_cndmask_b32 v{240+r}, v{4+r}, v{8+r}, vcc")
        a(f"""v_lshrrev_b32 v2, 4, v0
        v_and_b32 v3, 3, v0
        v_lshl_add_u32 v2, v2, 2, v3
        v_lshlrev_b32 v2, 4, v2
        v_add_u32 v2, {L_Q}, v2
        v_bfe_u32 v3, v0, 2, 2
        v_mov_b32 v12, {L_Z}""")
        for qd in range(4):
            a(f"v_cmp_eq_u32 vcc, {qd}, v3")
            a(f"v_cndmask_b32 v{200+qd}, v12, v2, vcc")
        a.dlayout(248, 3, 512)
        a(f"""s_lshl_b32 s36, s3, 10
        v_add_u32 v248, s36, v248
        s_lshl_b32 s36, s32, 13
        s_add_u32 s36, s36, {OB + 4096}
        v_and_b32 v2, 8, v0
        v_lshlrev_b32 v2, 3, v2
        v_and_b32 v3, 3, v0
        v_lshl_add_u32 v2, v3, 4, v2
        v_add_u32 v247, s36, v2
        s_mov_b32 s40, {hx(128 ** -0.5)}
        s_mov_b32 s48, {hx(LOG2E)}
        s_mov_b32 s49, 0xffffff00
        s_lshl_b32 s36, s3, 3
        v_mov_b32 v12, s36
        v_mov_b32 v13, 0
        s_mov_b32 s47, 0
        s_cmp_ge_u32 s33, 5
        s_cbranch_scc1 L_att_n""")
        self.att_wo()
        self.att_other()
        self.compute()
        self.ctrl()
        if self.diag:
            a(f"""L_dump:
            s_mov_b64 exec, -1
            s_lshl_b32 s35, s34, 3
            s_add_u32 s35, s35, s3
            s_lshl_b32 s35, s35, 8
            s_add_u32 s35, s35, {STAMP}
            v_lshl_add_u32 v2, v0, 2, s35
            global_store_dword v2, v255, s[28:29]""")
        elif p.get("holdat") is not None:
            h = p["holdat"]
            a("L_hold:\ns_cmp_eq_u32 s95, 0\ns_cbranch_scc1 L_exit")
            a("""L_hold2:
            s_memrealtime s[92:93]
            s_waitcnt lgkmcnt(0)
            s_sub_u32 s92, s92, s96
            s_cmp_lt_u32 s92, 2000
            s_cbranch_scc1 L_hold2""")
        a("L_exit:\ns_endpgm\nL_codeend:")

    def att_wo(self):
        a = self
        p = self.p
        a(f"""s_lshl_b32 s36, s32, 2
        s_add_u32 s36, s36, s3
        s_mul_i32 s36, s36, {32*1280}
        s_lshl_b32 s37, s33, 8
        s_add_u32 s36, s36, s37
        s_add_u32 s36, s36, {3*1280}""")
        a.rowaddr(15)
        a(f"""s_lshl_b32 s35, s32, 3
        s_add_u32 s35, s35, s3
        s_lshl_b32 s35, s35, 10
        s_add_u32 s35, s35, {OB}
        v_lshl_add_u32 v249, v0, 4, s35
        s_lshr_b32 s35, s3, 1
        s_mul_i32 s35, s35, 640
        s_lshl_b32 s36, s33, 7
        s_add_u32 s35, s35, s36
        s_and_b32 s36, s3, 1
        s_lshl_b32 s36, s36, 6
        s_add_u32 s35, s35, s36
        s_lshl_b32 s35, s35, {3 + p["sp1"]}
        v_lshl_add_u32 v250, v0, 3, s35
        {"v_and_b32 v2, 56, v0" if p["sp1"] else ""}
        {"v_lshl_add_u32 v250, v2, 3, v250" if p["sp1"] else ""}
        s_lshl_b32 s35, s3, 8
        v_lshl_add_u32 v251, v0, 2, s35
        s_and_b32 s35, s32, 3
        s_lshl_b32 s35, s35, 3
        s_add_u32 s59, s35, s30
        s_min_u32 s35, s59, 26
        s_mul_i32 s35, s35, 20
        s_lshl_b32 s36, s33, 2
        s_add_u32 s35, s35, s36
        s_add_u32 s35, s35, s3
        s_lshl_b32 s35, s35, 12
        v_and_b32 v2, 31, v0
        v_lshl_add_u32 v252, v2, 7, s35
        s_mov_b32 s60, 0
        s_mov_b32 s61, {MHI}""")
        st, pos, wait_for, lastchk = self.stream(True, 8, [])
        BT = 80
        tdone = 0
        a.zeroA()
        a("""s_and_b32 s35, s43, 0x1fffffff
        s_and_b32 s67, s35, 0xff""")
        for k in range(3):
            a(f"s_lshr_b32 s36, s35, {8*(k+1)}\ns_add_u32 s36, s36, s35\ns_and_b32 s{64+k}, s36, 0xff")
        while tdone < 4 and pos[("T", 2*tdone+1)] <= st["done"]:
            a.transp(TR, BT, tdone); tdone += 1
        ld = """global_load_dwordx4 v[40:43], v247, s[28:29] sc1
        global_load_dwordx4 v[28:31], v249, s[28:29] sc1"""
        lp = a.lab("og"); re = a.lab("og_re"); dn = a.lab("og_ok")
        a(f"""s_mov_b32 s42, 0
        s_branch {re}_x
        {re}:
        {ld}
        s_add_u32 s42, s42, 1
        s_cmp_lt_u32 s42, {SPIN}
        s_cbranch_scc1 {lp}
        s_branch {dn}
        {re}_x:
        s_barrier""")
        a(ld)
        st["issued"] += 2
        while tdone < 4:
            wait_for(("T", 2*tdone+1)); a.transp(TR, BT, tdone); tdone += 1
        a.stamp(21)
        a(f"""{lp}:
        s_waitcnt vmcnt(1)
        v_max_f32_dpp v38, v40, v40 quad_perm:[1,0,3,2] {DPPF}
        v_xor_b32 v26, s43, v41
        v_bitop3_b32 v26, v26, v43, s43 bitop3:0xf6
        v_max_f32_dpp v38, v38, v38 quad_perm:[2,3,0,1] {DPPF}
        v_and_b32 v26, 0x1fffffff, v26
        v_sub_f32 v38, v40, v38
        v_min_u32 v26, 1, v26
        v_mul_f32 v38, s48, v38
        s_waitcnt vmcnt(0)
        v_exp_f32 v38, v38
        v_xor_b32 v28, s64, v28
        v_xor_b32 v29, s65, v29
        v_xor_b32 v30, s66, v30
        v_xor_b32 v31, s67, v31
        v_mul_f32 v36, v38, v42
        v_or3_b32 v26, v26, v28, v29
        v_pk_mul_f32 v[28:29], v[28:29], v[38:39] op_sel_hi:[1,0]
        v_or3_b32 v26, v26, v30, v31
        v_pk_mul_f32 v[30:31], v[30:31], v[38:39] op_sel_hi:[1,0]
        v_cmp_ne_u32_sdwa vcc, v26, v13 src0_sel:BYTE_0 src1_sel:DWORD
        v_add_f32_dpp v36, v36, v36 quad_perm:[1,0,3,2] {DPPF}
        s_cbranch_vccnz {re}
        {dn}:""")
        a.stamp(6)
        a.clk(20)
        b3c = p.get("b3c", 2)
        if b3c == 1:
            a("s_barrier")
        a(f"""v_add_f32_dpp v28, v28, v28 quad_perm:[1,0,3,2] {DPPF}
        v_add_f32_dpp v29, v29, v29 quad_perm:[1,0,3,2] {DPPF}
        v_add_f32_dpp v36, v36, v36 quad_perm:[2,3,0,1] {DPPF}
        v_add_f32_dpp v30, v30, v30 quad_perm:[1,0,3,2] {DPPF}
        v_add_f32_dpp v31, v31, v31 quad_perm:[1,0,3,2] {DPPF}
        v_rcp_f32 v36, v36
        v_add_f32_dpp v28, v28, v28 quad_perm:[2,3,0,1] {DPPF}
        v_add_f32_dpp v29, v29, v29 quad_perm:[2,3,0,1] {DPPF}
        v_add_f32_dpp v30, v30, v30 quad_perm:[2,3,0,1] {DPPF}
        v_add_f32_dpp v31, v31, v31 quad_perm:[2,3,0,1] {DPPF}
        v_pk_mul_f32 v[28:29], v[28:29], v[36:37] op_sel_hi:[1,0]
        v_pk_mul_f32 v[30:31], v[30:31], v[36:37] op_sel_hi:[1,0]""")
        a("""v_cvt_pk_bf16_f32 v32, v28, v29
        v_cvt_pk_bf16_f32 v33, v30, v31
        v_mov_b32_dpp v64, v32 quad_perm:[0,1,2,3] row_mask:0xf bank_mask:0x5
        v_mov_b32_dpp v66, v32 row_half_mirror row_mask:0xf bank_mask:0x5
        v_mov_b32_dpp v65, v33 quad_perm:[0,1,2,3] row_mask:0xf bank_mask:0x5
        v_mov_b32_dpp v67, v33 row_half_mirror row_mask:0xf bank_mask:0x5
        v_mov_b32_dpp v68, v32 row_half_mirror row_mask:0xf bank_mask:0xa
        v_mov_b32_dpp v69, v33 row_half_mirror row_mask:0xf bank_mask:0xa
        v_mov_b32_dpp v70, v32 quad_perm:[0,1,2,3] row_mask:0xf bank_mask:0xa
        v_mov_b32_dpp v71, v33 quad_perm:[0,1,2,3] row_mask:0xf bank_mask:0xa""")
        if b3c == 3:
            a("s_barrier")
        a.clk(21)
        a.nat8(BT)
        a.clk(22)
        if b3c == 2:
            a("s_barrier")
        if p.get("w2pf", 1) == 2:
            a("global_load_dword v253, v252, s[20:21]")
        a(f"""v_mov_b32 v45, v48
        v_mov_b32 v46, v52
        v_mov_b32 v47, v56
        ds_write_b128 v248, v[44:47] offset:{L_RED2}
        s_waitcnt lgkmcnt(0)""")
        a.clk(23)
        a("s_barrier")
        a.clk(24)
        a(f"""ds_read2st64_b32 v[28:29], v251 offset0:{L_RED2//256} offset1:{L_RED2//256+4}
        ds_read2st64_b32 v[30:31], v251 offset0:{L_RED2//256+8} offset1:{L_RED2//256+12}
        s_waitcnt lgkmcnt(0)
        v_pk_add_f32 v[28:29], v[28:29], v[30:31]
        v_add_f32 v28, v28, v29
        v_cvt_f64_f32 v[30:31], v28
        v_add_f64 v[30:31], v[30:31], s[60:61]
        global_atomic_add_x2 v250, v[30:31], s[28:29] sc1""")
        assert A1 == 0
        if p.get("w2pf", 1) == 1:
            sk = a.lab("nopf")
            a(f"""s_cmp_ge_u32 s59, 27
            s_cbranch_scc1 {sk}
            global_load_dword v253, v252, s[20:21]
            {sk}:""")
        a.stamp(11)
        a.clk(29)
        a.finish()
        a.flush_cold()

    def att_other(self):
        a = self
        p = self.p
        B1R = 80; B2R = 160; AB = 160; HR = 244
        D1 = (50, 54, 58, 240); XU = (4, 6, 8, 10, 62)

        def bar():
            a("s_barrier")
        nT = p["mlpT"]
        a("L_att_n:")
        a(self.ROLES)
        a(f"""s_sub_u32 s58, s33, 5
        s_mul_i32 s38, s58, 3
        s_min_u32 s35, s58, 1
        s_add_u32 s38, s38, s35
        s_add_u32 s38, s38, s3
        s_min_u32 s38, s38, 9
        s_mul_i32 s36, s39, {64*1280}
        s_lshl_b32 s37, s38, 7
        s_add_u32 s36, s36, s37
        v_lshrrev_b32 v2, 4, v0
        v_bfe_u32 v3, v0, 3, 1
        v_lshl_add_u32 v4, v3, 2, v2
        v_mul_u32_u24 v4, 10240, v4
        v_and_b32 v5, 7, v0
        v_lshl_add_u32 v4, v5, 4, v4
        v_add_u32 v15, s36, v4
        s_mov_b64 s[44:45], s[20:21]
        s_movk_i32 s46, 1280
        v_lshl_add_u32 v4, v5, 3, v2
        v_lshl_add_u32 v192, v4, 1, s37
        v_mul_u32_u24 v3, 1280, v3
        v_add_u32 v199, v192, v3
        v_bfe_u32 v3, v0, 1, 1
        v_lshl_add_u32 v3, v3, 2, v2
        v_bfe_u32 v4, v0, 2, 2
        v_lshl_add_u32 v198, v3, 2, v4
        s_lshl_b32 s35, s39, 7
        v_lshl_add_u32 v252, v198, 2, s35
        s_mul_i32 s37, s3, {213*3456}
        s_add_u32 s35, s35, s37
        v_mov_b32 v253, s35
        v_mov_b32 v254, s36
        s_and_b32 s35, s3, 1
        s_mul_i32 s35, s35, 1280
        v_lshl_add_u32 v205, v0, 2, s35
        s_lshr_b32 vcc_lo, s31, 1
        s_mov_b32 vcc_hi, 0""")
        wat = p.get("wat", 20)
        extra = [(wat, ("S", "global_load_dword v252, v252, s[18:19]")),
                 (wat + 2, ("S", "global_load_ushort v193, v192, s[22:23] offset:8")),
                 (wat + 2, ("S", "global_load_ushort v192, v192, s[22:23]")),
                 (wat + 2, ("S", "global_load_ushort v206, v199, s[24:25]"))]
        extra += [(wat + 4, ("S", f"global_load_dword v{176+u}, v205, s[4:5] offset:{256*u}")) for u in range(5)]
        if p["warm"]:
            extra += [(wat, ("S", "global_load_dword v253, v253, s[16:17]")),
                      (wat, ("S", "global_load_dword v254, v254, s[20:21]"))]
        st, pos, wait_for, lastchk = self.stream(False, nT, extra)
        go = a.lab("mlp_go"); dm = a.lab("dma")
        self.sect = "m"
        a(f"""s_cmp_eq_u32 s31, 1
        s_cbranch_scc1 {go}""")
        a.finish()
        a(f"""{go}:
        v_lshrrev_b32 v2, 3, v0
        v_and_b32 v3, 2, v2
        v_and_b32 v4, 7, v0
        v_xor_b32 v3, v3, v4
        v_mul_u32_u24 v2, 3456, v2
        s_mul_i32 s35, s3, {160*3456}
        s_lshl_b32 s36, s39, 7
        s_add_u32 s35, s35, s36
        v_lshl_add_u32 v16, v3, 4, v2
        v_add_u32 v16, s35, v16
        v_xor_b32 v3, 4, v3
        v_lshl_add_u32 v17, v3, 4, v2
        s_add_u32 s35, s35, {8*3456}
        v_add_u32 v17, s35, v17
        s_mul_i32 s37, s3, 20480
        s_add_u32 s37, s37, {L_W1}
        s_mul_i32 s54, s58, {p.get("rot", 3)}
        s_mov_b32 s57, 10
        s_barrier""")

        def w2loads():
            for t in range(nT, 8):
                self.emit(("T", t))
        if p.get("nomlpw"):
            a(f"s_branch {dm}_x")
        a(f"""{dm}:
        s_mul_i32 s55, s54, {16*3456}
        s_lshl_b32 s56, s54, 11
        s_add_u32 s56, s56, s37
        s_mov_b32 m0, s56
        v_add_u32 v2, s55, v16
        v_add_u32 v3, s55, v17
        global_load_lds_dwordx4 v2, s[16:17] {p["w1fl"]}
        s_add_u32 m0, s56, 1024
        s_add_u32 s54, s54, 1
        global_load_lds_dwordx4 v3, s[16:17] {p["w1fl"]}
        s_cmp_eq_u32 s54, 10
        s_cselect_b32 s54, 0, s54
        s_sub_u32 s57, s57, 1
        s_cmp_lg_u32 s57, 0
        s_cbranch_scc1 {dm}
        {dm}_x:""")
        a(f"""v_lshrrev_b32 v2, 4, v0
        v_and_b32 v12, 15, v0
        v_and_b32 v3, 1, v0
        v_lshlrev_b32 v21, 3, v0
        v_and_b32 v4, 16, v0
        v_xor_b32 v21, v21, v4
        s_lshl_b32 s35, s3, 9
        s_add_u32 s35, s35, {L_T1}
        v_bfe_u32 v4, v0, 1, 4
        v_lshl_add_u32 v22, v4, 5, s35
        v_lshl_add_u32 v22, v3, 2, v22
        v_lshrrev_b32 v4, 2, v0
        v_xor_b32 v4, v4, v0
        v_and_b32 v4, 8, v4
        v_lshl_add_u32 v22, v4, 1, v22
        s_mul_i32 s35, s3, {160 if p.get("sm", 1) else 320}
        v_mul_u32_u24 v4, {YS}, v3
        v_lshl_add_u32 v4, v2, 4, v4
        v_add_u32 v23, s35, v4
        v_bfe_u32 v4, v0, 2, 2
        v_lshl_add_u32 v4, v2, 3, v4
        v_lshlrev_b32 v4, 7, v4
        v_lshl_add_u32 v4, v3, 3, v4
        v_add_u32 v4, s37, v4
        v_bfe_u32 v3, v0, 3, 2
        v_bfe_u32 v5, v0, 1, 1
        v_lshl_add_u32 v3, v3, 1, v5""")
        for ct in range(4):
            a(f"v_xor_b32 v5, {2*ct}, v3\nv_lshl_add_u32 v{16+ct}, v5, 4, v4")
        a(f"""s_lshl_b32 s35, s38, 11
        s_add_u32 s35, s35, {A2}
        v_and_b32 v3, 56, v0
        v_lshlrev_b32 v3, 3, v3
        v_lshl_add_u32 v3, v0, 3, v3
        v_add_u32 v25, s35, v3
        s_and_b32 s36, s3, 1
        s_mul_i32 s35, s36, 5120
        s_add_u32 s35, s35, 2048
        v_lshl_add_u32 v2, v0, 4, s35
        s_mul_i32 s35, s36, {YS}
        v_lshl_add_u32 v26, v0, 2, s35""")
        if p.get("sm", 1):
            a(f"""v_lshrrev_b32 v3, 1, v0
            v_lshl_add_u32 v26, v3, 2, s35
            v_and_b32 v3, 1, v0
            v_mul_u32_u24 v3, 704, v3
            v_add_u32 v26, v26, v3
            v_bfe_u32 v3, v0, 1, 1
            v_mul_u32_u24 v4, 704, v3
            v_add_u32 v23, v23, v4
            v_mul_u32_u24 v3, 0xaaaa, v3
            v_add_u32 v204, 0x4444, v3
            v_add_u32 v3, 96, v23
            v_mov_b32 v4, {L_Z}
            v_cmp_gt_u32 vcc, 32, v0
            v_cndmask_b32 v24, v3, v4, vcc""")
        a(f"""s_mul_i32 s35, s36, 2560
        s_cmp_ge_u32 s3, 2
        s_cmov_b32 s35, {L_W1}
        v_lshl_add_u32 v27, v0, 3, s35
        v_lshlrev_b32 v197, 1, v199
        v_add_u32 v197, {L_H}, v197
        v_and_b32 v195, 0xffff0000, v252
        v_lshlrev_b32 v194, 16, v252
        v_lshlrev_b32 v192, 16, v192
        v_lshlrev_b32 v193, 16, v193
        v_mov_b32 v201, {hx(-2.0*math.sqrt(2.0/math.pi)*LOG2E)}
        v_mov_b32 v200, {hx(-2.0*math.sqrt(2.0/math.pi)*LOG2E*0.044715)}
        s_mov_b32 s60, 0
        s_mov_b32 s61, {MHI}
        s_mov_b32 s62, {hx(2.0 ** (KEXP - 1))}
        s_mov_b32 s63, {hx(2.0 ** (2 * KEXP - 4))}
        s_cmp_lt_u32 s3, 2
        s_cselect_b64 s[70:71], -1, 0
        s_mov_b32 s52, 0x05040100
        s_mov_b32 s53, 0x07060302""")
        for r in range(64, 80, 2):
            a(f"v_mov_b64 v[{r}:{r+1}], 0")
        for u in range(5):
            a(f"v_lshlrev_b32 v{XU[u]}, 16, v{176+u}")
            a(f"v_and_b32 v{XU[u]+1}, 0xffff0000, v{176+u}")

        def trreads():
            for ks in range(5):
                for ct in range(4):
                    for hf in range(2):
                        r = B1R + 4 * ((5 * ct + ks) if p.get("sm", 1) else (4 * ks + ct)) + 2 * hf
                        a(f"ds_read_b64_tr_b16 v[{r}:{r+1}], v{16+ct} offset:{(32*ks + 4*hf)*128}")

        def w2tr():
            for pp in range(4):
                a.transp(TR, B2R, pp)
        noln = a.lab("noln"); lp = a.lab("acc"); done = a.lab("acc_ok"); l2 = a.lab("acc_w"); nl2 = a.lab("noln2")
        for d_ in D1:
            a(f"v_mov_b64 v[{d_}:{d_+1}], 0\nv_mov_b64 v[{d_+2}:{d_+3}], 0")
        trf = p.get("trfirst", 0)
        if trf:
            a("s_waitcnt vmcnt(0)")
            a.stamp(15)
            trreads()

        def ldacc():
            for u in range(5):
                a(f"global_load_dwordx4 v[{AB+4*u}:{AB+3+4*u}], v2, s[28:29] offset:{1024*u-2048} sc1")
        a(f"""s_mov_b32 s42, 0
        s_branch {lp}_x
        {lp}:""")
        ldacc()
        a(f"""s_add_u32 s42, s42, 1
        s_cmp_lt_u32 s42, {SPIN}
        s_waitcnt vmcnt(0)
        s_cbranch_scc1 {l2}
        s_branch {done}
        {lp}_x:
        s_cmp_ge_u32 s3, 2
        s_barrier
        s_cbranch_scc1 {nl2}""")

        def cold_noln():
            a(f"{nl2}:")
            if not trf:
                a("s_waitcnt vmcnt(0)")
                a.stamp(15)
                trreads()
            else:
                a("s_nop 15\ns_nop 15")
            a(f"""s_and_b32 s35, s3, 1
            s_mul_i32 s35, s35, s58
            s_cmp_lg_u32 s35, 0
            s_cbranch_scc1 {noln}""")
            w2loads()
            a(f"s_branch {noln}")
        self.cold.append(cold_noln)
        a.stamp(7)
        a.clk(10)
        ldacc()
        if not trf:
            a("s_waitcnt vmcnt(5)")
            trreads()
        else:
            a("s_nop 15")
        w2loads()
        a(f"{l2}:")
        for u in range(5):
            b = AB + 4 * u
            a(f"""s_waitcnt vmcnt({4-u+8-nT})
            v_add_f64 v[{b}:{b+1}], v[{b}:{b+1}], -s[60:61]
            v_add_f64 v[{b+2}:{b+3}], v[{b+2}:{b+3}], -s[60:61]
            v_cvt_f32_f64 v{28+2*u}, v[{b}:{b+1}]
            v_cvt_f32_f64 v{29+2*u}, v[{b+2}:{b+3}]""")
            a.rnd(28+2*u, f"v{28+2*u}"); a.rnd(29+2*u, f"v{29+2*u}")
            a(f"v_pk_add_f32 v[{28+2*u}:{29+2*u}], v[{28+2*u}:{29+2*u}], v[{XU[u]}:{XU[u]+1}]")
            h0 = HR + 2 * u
            a.rnd(h0, f"v{28+2*u}"); a.rnd(h0+1, f"v{29+2*u}")
            if u == 0:
                a(f"v_pk_mul_f32 v[48:49], v[{h0}:{h0+1}], v[{h0}:{h0+1}]")
            else:
                a(f"v_pk_fma_f32 v[48:49], v[{h0}:{h0+1}], v[{h0}:{h0+1}], v[48:49]")
                a(f"v_pk_add_f32 v[46:47], v[{h0}:{h0+1}], v[{HR if u == 1 else 46}:{HR+1 if u == 1 else 47}]")

        a.clk(11)

        def hook():
            a(f"""v_cmp_ngt_f32 vcc, s63, v48
            s_cbranch_vccnz {lp}
            {done}:""")
            a.stamp(13)
            a.clk(12)
        a.ln(28, 40, 46, True, hook, H=HR)
        a.clk(13)
        a.ln(28, 40, 46, False)
        a.clk(14)
        assert L_Y == 0
        if p.get("sm", 1):
            a(f"""ds_write2_b32 v26, v40, v41 offset0:0 offset1:32
            ds_write2_b32 v26, v42, v43 offset0:64 offset1:96
            ds_write_b32 v26, v44 offset:512
            {noln}:
            s_waitcnt lgkmcnt(0)""")
            bar()
            a.stamp(18)
            a.clk(0)
            a("""ds_read_b128 v[28:31], v23
            ds_read_b128 v[32:35], v23 offset:64
            ds_read_b128 v[36:39], v24""")
            a.clk(1)
            hw = [f"ds_write_b64 v27, v[{HR+2*u}:{HR+2*u+1}] offset:{L_H + 512*u}" for u in range(5)]
            nw = 0
            if p.get("hpos", 1) == 0:
                a("s_mov_b64 exec, s[70:71]")
                for x_ in hw:
                    a(x_)
                a("s_mov_b64 exec, -1")
                nw = 5
            for kk in range(3):
                a(f"s_waitcnt lgkmcnt({2-kk+nw})")
                for ct in range(4):
                    r = B1R + 4 * (5 * ct + (0, 2, 3)[kk])
                    a(f"v_smfmac_f32_16x16x64_bf16 v[{D1[ct]}:{D1[ct]+3}], v[{28+4*kk}:{31+4*kk}], v[{r}:{r+7}], v204")
                    if p.get("hpos", 1) == 1 and nw < 5 and kk + ct > 0:
                        a(hw[nw]); nw += 1
        else:
            a(f"""ds_write2st64_b32 v26, v40, v41 offset0:0 offset1:1
            ds_write2st64_b32 v26, v42, v43 offset0:2 offset1:3
            ds_write_b32 v26, v44 offset:1024
            {noln}:
            s_waitcnt lgkmcnt(0)
            s_barrier""")
            a.stamp(18)
            for ks in range(5):
                a(f"ds_read_b128 v[{28+4*ks}:{31+4*ks}], v23 offset:{L_Y + 64*ks}")
            for ks in range(5):
                a(f"s_waitcnt lgkmcnt({4-ks})")
                for ct in range(4):
                    c = "0" if ks == 0 else f"v[{48+4*ct}:{51+4*ct}]"
                    r = B1R + 4 * (4 * ks + ct)
                    a(f"v_mfma_f32_16x16x32_bf16 v[{48+4*ct}:{51+4*ct}], v[{28+4*ks}:{31+4*ks}], v[{r}:{r+3}], {c}")
        a.clk(2)
        a("""s_lshr_b32 s35, s3, 1
        s_and_b32 s35, s35, s3
        s_mul_i32 s35, s35, s58
        s_cmp_lg_u32 s35, 0""")
        for ct in range(4):
            for b_ in range(2):
                a(f"v_add_f32_dpp v{48+b_}, v{D1[ct]+b_}, v{D1[ct]+2+b_} quad_perm:[0,1,2,3] row_mask:{hex(1 << ct)} bank_mask:0xf")
        idle = a.lab("idle")
        a("""ds_write2_b32 v22, v48, v49 offset0:0 offset1:2
        s_waitcnt vmcnt(4)""")
        a.transp(TR, B2R, 0); a.transp(TR, B2R, 1)
        a("s_waitcnt lgkmcnt(0)")
        a.clk(3)
        bar()
        a(f"s_cbranch_scc1 {idle}")
        a.clk(4)
        for w_ in range(4):
            a(f"ds_read_b64 v[{28+2*w_}:{29+2*w_}], v21 offset:{L_T1 + 512*w_}")
        a("ds_read2_b32 v[202:203], v197 offset0:0 offset1:4\ns_waitcnt vmcnt(0)")
        a.transp(TR, B2R, 2); a.transp(TR, B2R, 3)
        a.clk(5)
        a(f"""
        s_waitcnt lgkmcnt(3)
        v_pk_add_f32 v[28:29], v[28:29], v[30:31]
        s_waitcnt lgkmcnt(1)
        v_pk_add_f32 v[32:33], v[32:33], v[34:35]
        v_pk_add_f32 v[28:29], v[28:29], v[32:33]
        v_cvt_pk_bf16_f32 v28, 0, v28
        v_cvt_pk_bf16_f32 v29, 0, v29
        v_pk_add_f32 v[28:29], v[28:29], v[194:195]
        v_cvt_pk_bf16_f32 v28, 0, v28
        v_cvt_pk_bf16_f32 v29, 0, v29
        v_pk_mul_f32 v[30:31], v[28:29], v[28:29]
        v_pk_fma_f32 v[30:31], v[30:31], v[200:201], v[200:201] op_sel:[0,0,1] op_sel_hi:[1,0,1]
        v_pk_mul_f32 v[30:31], v[30:31], v[28:29]
        v_exp_f32 v30, v30
        v_exp_f32 v31, v31
        v_add_f32 v30, 1.0, v30
        v_add_f32 v31, 1.0, v31
        v_rcp_f32 v30, v30
        v_rcp_f32 v31, v31
        v_mul_f32 v28, v28, v30
        v_mul_f32 v29, v29, v31
        v_cvt_pk_bf16_f32 v28, v28, v29""")

        def afrag(G):
            for pp in range(4):
                sh = (4 * (G - pp)) % 16
                d = f"row_ror:{sh}" if sh else "quad_perm:[0,1,2,3]"
                a(f"v_mov_b32_dpp v{64+4*G+pp}, v28 {d} row_mask:0xf bank_mask:{hex(1 << G)}")
        a.clk(6)
        afrag(0)
        for G in range(4):
            if G < 3:
                afrag(G + 1)
            for z in range(2):
                c = "0" if G == 0 else f"v[{44+4*z}:{47+4*z}]"
                r = B2R + 4 * (4 * z + G)
                a(f"v_mfma_f32_16x16x32_bf16 v[{44+4*z}:{47+4*z}], v[{64+4*G}:{67+4*G}], v[{r}:{r+3}], {c}")
        a.clk(7)
        for z in range(2):
            a(f"v_add_f32_dpp v{32+z}, v{46+4*z}, v{44+4*z} row_ror:8 row_mask:0xf bank_mask:0x3")
        for z in range(2):
            a(f"v_add_f32_dpp v{32+z}, v{45+4*z}, v{47+4*z} row_ror:8 row_mask:0xf bank_mask:0xc")
        for z in range(2):
            a(f"""v_cvt_f64_f32 v[{36+2*z}:{37+2*z}], v{32+z}
            v_add_f64 v[{36+2*z}:{37+2*z}], v[{36+2*z}:{37+2*z}], s[60:61]
            global_atomic_add_x2 v[{40+2*z}:{41+2*z}], v25, v[{36+2*z}:{37+2*z}], s[28:29] offset:{1024*z} sc0 sc1""")
        a.stamp(14)
        a.clk(9)
        s0 = a.lab("nost"); s1 = a.lab("nost")
        a(f"""s_waitcnt vmcnt(1) lgkmcnt(0)
        v_lshl_add_u64 v[40:41], v[40:41], 0, v[36:37]
        v_add_f64 v[40:41], v[40:41], -s[60:61]
        v_cvt_f32_f64 v44, v[40:41]
        s_waitcnt vmcnt(0)
        v_lshl_add_u64 v[42:43], v[42:43], 0, v[38:39]
        v_cmp_gt_f32 s[66:67], s62, |v44|
        v_add_f64 v[42:43], v[42:43], -s[60:61]
        v_cvt_pk_bf16_f32 v44, 0, v44
        v_cvt_f32_f64 v45, v[42:43]
        v_cmp_gt_f32 s[68:69], s62, |v45|
        v_cvt_pk_bf16_f32 v45, 0, v45
        v_pk_add_f32 v[44:45], v[44:45], v[192:193]
        v_cvt_pk_bf16_f32 v44, 0, v44
        v_cvt_pk_bf16_f32 v45, 0, v45
        v_pk_add_f32 v[44:45], v[44:45], v[202:203]
        v_cvt_pk_bf16_f32 v44, v44, v45""")
        a.stamp(10)
        a(f"""s_mov_b64 exec, s[66:67]
        s_cbranch_execz {s0}
        global_store_short v199, v44, s[24:25]
        {s0}:
        s_mov_b64 exec, s[68:69]
        s_cbranch_execz {s1}
        global_store_short_d16_hi v199, v44, s[24:25] offset:8
        {s1}:""")
        if p.get("latebump"):
            a(f"""s_mov_b64 exec, -1
            s_or_b32 s35, s39, s38
            s_cmp_lg_u32 s35, 0
            s_cbranch_scc1 {idle}
            v_mov_b32 v2, {EP}
            v_mov_b32 v3, s43
            global_store_dword v2, v3, s[28:29] sc1
            {idle}:""")
        else:
            a.finish()
            a(f"""{idle}:
            s_cmp_lg_u32 s34, 6
            s_cbranch_scc1 {idle}_e
            v_mov_b32 v2, {EP}
            v_mov_b32 v3, s43
            global_store_dword v2, v3, s[28:29] sc1
            {idle}_e:""")
        a.finish()
        a.flush_cold()

    def compute(self):
        a = self
        self.sect = "a"
        QF = 144; DR = 160; SR = 16
        a("L_compute:")
        a("v_readfirstlane_b32 s43, v2")
        a.stamp(2)
        for qd in range(4):
            a(f"ds_read_b128 v[{QF+4*qd}:{QF+4*qd+3}], v{200+qd}")
        for qd in range(4):
            a(f"s_waitcnt lgkmcnt({3-qd})")
            for u in range(4):
                t = 4 * u + qd
                c = "0" if qd == 0 else f"v[{DR+4*u}:{DR+4*u+3}]"
                a(f"v_mfma_f32_16x16x32_bf16 v[{DR+4*u}:{DR+4*u+3}], v[{KR+4*t}:{KR+4*t+3}], v[{QF+4*qd}:{QF+4*qd+3}], {c}")
        for u in range(4):
            a(f"v_mov_b32_dpp v{SR+u}, v{DR+4*u} quad_perm:[0,0,0,0] {DPPF}")
        for r in (1, 2, 3):
            for u in range(4):
                a(f"v_add_f32_dpp v{SR+u}, v{DR+4*u+r}, v{SR+u} quad_perm:[{r},{r},{r},{r}] {DPPF}")
        for r in range(16, 20):
            a.rnd(r, f"v{r}")
        a("""v_pk_mul_f32 v[16:17], v[16:17], s[40:41] op_sel_hi:[1,0]
        v_pk_mul_f32 v[18:19], v[18:19], s[40:41] op_sel_hi:[1,0]""")
        for r in range(16, 20):
            a.rnd(r, f"v{r}")
        a(f"""v_max3_f32 v28, v16, v17, v18
        v_max_f32 v28, v28, v19
        v_max_f32_dpp v28, v28, v28 row_ror:4 {DPPF}
        v_max_f32_dpp v28, v28, v28 row_ror:8 {DPPF}
        v_mov_b32 v29, v28
        v_permlane32_swap_b32 v28, v29
        v_max_f32 v28, v28, v29
        v_mov_b32 v29, v28
        v_permlane16_swap_b32 v28, v29
        v_max_f32 v28, v28, v29
        v_pk_add_f32 v[16:17], v[16:17], v[28:29] op_sel_hi:[1,0] neg_lo:[0,1] neg_hi:[0,1]
        v_pk_add_f32 v[18:19], v[18:19], v[28:29] op_sel_hi:[1,0] neg_lo:[0,1] neg_hi:[0,1]
        v_pk_mul_f32 v[16:17], v[16:17], s[48:49] op_sel_hi:[1,0]
        v_pk_mul_f32 v[18:19], v[18:19], s[48:49] op_sel_hi:[1,0]
        v_exp_f32 v16, v16
        v_exp_f32 v17, v17
        v_exp_f32 v18, v18
        v_exp_f32 v19, v19
        v_pk_add_f32 v[30:31], v[16:17], v[18:19]
        v_add_f32 v30, v30, v31
        v_cvt_pk_bf16_f32 v24, 0, v16
        v_cvt_pk_bf16_f32 v25, 0, v17
        v_add_f32_dpp v30, v30, v30 row_ror:4 {DPPF}
        v_cvt_pk_bf16_f32 v26, 0, v18
        v_cvt_pk_bf16_f32 v27, 0, v19
        v_add_f32_dpp v30, v30, v30 row_ror:8 {DPPF}
        v_mov_b32 v31, v30
        v_pk_add_f32 v[16:17], v[16:17], v[24:25] neg_lo:[0,1] neg_hi:[0,1]
        v_pk_add_f32 v[18:19], v[18:19], v[26:27] neg_lo:[0,1] neg_hi:[0,1]
        v_permlane32_swap_b32 v30, v31
        v_add_f32 v30, v30, v31
        v_mov_b32 v31, v30
        v_cvt_pk_bf16_f32 v20, v24, v16
        v_cvt_pk_bf16_f32 v21, v25, v17
        v_permlane16_swap_b32 v30, v31
        v_add_f32 v29, v30, v31
        v_cvt_pk_bf16_f32 v22, v26, v18
        v_cvt_pk_bf16_f32 v23, v27, v19
        ds_write_b64 v12, v[28:29] offset:{L_ML}""")
        a.stamp(4)
        a("s_nop 1\ns_setpc_b64 s[50:51]")

    def ctrl(self):
        a = self
        p = self.p
        WQ = 80
        self.sect = "c"
        a("L_ctrl:")
        a.stamp(1)
        a.selectors()
        a("""s_getreg_b32 s44, hwreg(HW_REG_XCC_ID, 0, 3)
        v_lshl_add_u32 v21, v0, 4, s45
        s_waitcnt vmcnt(22)""")
        a.stamp(2)
        for b_, (src, X) in enumerate(((24, 36), (30, 48))):
            for i in range(5):
                a(f"v_lshlrev_b32 v{X+2*i}, 16, v{src+i}")
                a(f"v_and_b32 v{X+2*i+1}, 0xffff0000, v{src+i}")
            a.ln(X, src, 60, False)
            a(f"""v_lshlrev_b32 v2, 2, v0
            ds_write_b64 v1, v[{src}:{src+1}] offset:{L_Y + b_*YS}
            ds_write_b64 v1, v[{src+2}:{src+3}] offset:{L_Y + b_*YS + 512}
            ds_write_b32 v2, v{src+4} offset:{L_Y + b_*YS + 1024}""")
        a(f"""s_mul_i32 s35, s33, 160
        v_lshrrev_b32 v2, 4, v0
        v_mul_u32_u24 v2, 40, v2
        v_bfe_u32 v3, v0, 3, 1
        v_mul_u32_u24 v3, {YS}, v3
        v_add3_u32 v2, v2, v3, s35
        s_waitcnt lgkmcnt(0)""")
        for i in range(5):
            a(f"ds_read_b64 v[{36+2*i}:{37+2*i}], v2 offset:{L_Y + 8*i}")
        a(f"""s_waitcnt vmcnt(21)
        v_readfirstlane_b32 s43, v15
        s_add_u32 s43, s43, 1
        s_and_b32 s43, s43, 0x1fffffff
        s_mov_b32 s49, 0xffffff00
        v_mov_b32 v13, 0
        v_mov_b32 v245, s43
        v_and_b32 v2, 1, v0
        v_lshl_add_u32 v2, v2, 4, 8
        v_lshrrev_b32 v246, v2, v245
        v_add_u32 v246, s43, v246
        v_and_b32 v246, 0xff, v246
        v_add_u32 v2, 8, v2
        v_min_u32 v2, 31, v2
        v_lshrrev_b32 v247, v2, v245
        v_add_u32 v247, s43, v247
        v_and_b32 v247, 0xff, v247
        v_and_b32 v2, 3, v0
        v_mul_u32_u24 v2, 12, v2""")
        for k in range(4):
            a(f"""v_add_u32 v3, {3*(k+1)}, v2
            v_min_u32 v3, 31, v3
            v_lshrrev_b32 v3, v3, v245
            v_add_u32 v3, s43, v3
            s_lshl_b32 s35, s44, {3-k}
            s_and_b32 s35, s35, 8
            v_and_or_b32 v{56+k}, v3, 7, s35""")
        a(f"""s_lshl_b32 s44, s44, 29
        s_or_b32 s44, s44, s43
        s_mov_b32 s43, s44
        v_mov_b32 v245, s44
        s_waitcnt lgkmcnt(0)""")
        a.stamp(3)
        FR = 160

        def frag(D, P, odd):
            for r in range(4):
                a(f"v_perm_b32 v{D+r}, v{P}, v{P}, v{(8 if odd else 4)+r}")
        frag(FR, 36, 0)
        for t in range(20):
            if t + 1 < 20:
                frag(FR + 4 * ((t + 1) % 4), 36 + (t + 1) // 2, (t + 1) & 1)
            a(f"s_waitcnt vmcnt({19-t})")
            c = "0" if t == 0 else "v[48:51]"
            a(f"v_mfma_f32_16x16x32_bf16 v[48:51], v[{FR+4*(t%4)}:{FR+4*(t%4)+3}], v[{WQ+4*t}:{WQ+4*t+3}], {c}")
        qfl = p.get("qfl", "") if p["fast"] else "sc1"
        a(f"""v_and_or_b32 v52, v48, -16, v56
        v_and_or_b32 v53, v49, -16, v57
        v_and_or_b32 v54, v50, -16, v58
        v_and_or_b32 v55, v51, -16, v59
        global_store_dwordx4 v21, v[52:55], s[28:29] {qfl}
""")
        oppre = f"""s_lshl_b32 s45, s32, 13
        s_add_u32 s45, s45, {OB}
        s_lshl_b32 s35, s33, 2
        v_and_b32 v2, 3, v0
        v_add_u32 v2, s35, v2
        v_cmp_lt_u32 vcc, 3, v0
        v_cndmask_b32 v2, v2, 32, vcc
        v_lshl_add_u32 v2, v2, 7, s45
        global_load_dword v253, v2, s[28:29] {p.get("prefl", "")}"""
        if p["oppre"] == 1:
            a(oppre)
        a.stamp(4)
        a(self.ROLES)
        qg = a.lab("qg"); qgd = a.lab("qg_ok"); qns = a.lab("qg_nosc1"); qf = a.lab("qg_fast")
        qt = a.lab("qt"); qtd = a.lab("qt_ok")
        zi = a.lab("zinit"); zf = a.lab("zflag")
        self.cold.append(lambda: a(f"""{zi}:
        s_mul_i32 s35, s30, 5120
        s_add_u32 s35, s35, 2048
        v_lshl_add_u32 v2, v0, 4, s35
        s_mov_b32 s35, {INIT1}
        s_cmp_ge_u32 s30, 4
        s_cmov_b32 s35, {INIT2}
        v_mov_b32 v64, 0
        v_mov_b32 v65, s35
        v_mov_b32 v66, 0
        v_mov_b32 v67, s35
        global_store_dwordx4 v2, v[64:67], s[28:29] offset:-2048 sc1
        global_store_dwordx4 v2, v[64:67], s[28:29] offset:-1024 sc1
        global_store_dwordx4 v2, v[64:67], s[28:29] sc1
        global_store_dwordx4 v2, v[64:67], s[28:29] offset:1024 sc1
        global_store_dwordx4 v2, v[64:67], s[28:29] offset:2048 sc1
        s_mul_i32 s35, s30, 5120
        s_add_u32 s35, s35, {PC}
        v_min_u32 v2, 39, v0
        v_lshl_add_u32 v2, v2, 7, s35
        global_store_dword v2, v64, s[28:29] sc1
        s_branch {zi}_r
        {zf}:
        s_lshl_b32 s35, s30, 2
        s_add_u32 s35, s35, {ZF}
        v_mov_b32 v2, s35
        s_waitcnt vmcnt(0)
        global_store_dword v2, v245, s[28:29] sc1
        s_branch {zf}_r"""))
        assert A2 == 4 * 5120
        a(f"""s_and_b32 s58, s34, 31
        s_cmp_eq_u32 s58, 31
        s_cbranch_scc1 {zi}
        {zi}_r:
        v_lshrrev_b32 v3, 5, v0
        v_and_b32 v22, 31, v0
        v_and_b32 v2, 7, v0
        v_lshlrev_b32 v2, 2, v2
        v_add_u32 v23, {ZF}, v2
        s_lshl_b32 s35, s32, 15
        s_lshr_b32 s38, s33, 2
        s_lshl_b32 s38, s38, 9
        s_add_u32 s35, s35, s38
        s_add_u32 s35, s35, {BK}
        v_lshlrev_b32 v2, 12, v3
        v_lshl_add_u32 v2, v22, 4, v2
        v_add_u32 v60, s35, v2
        v_add_u32 v61, 8192, v60
        v_add_u32 v62, 8192, v61
        v_add_u32 v63, 8192, v62
        v_and_b32 v2, 15, v0
        v_lshlrev_b32 v2, 4, v2
        v_and_b32 v22, 16, v0
        v_lshrrev_b32 v22, 1, v22
        v_add_u32 v2, v2, v22
        v_lshl_add_u32 v22, v3, 2, v2
        s_mov_b32 s42, 0
        {"s_branch " + qtd if p["qtrig"] < 0 else ""}
        {qt}:
        ds_read_b128 v[36:39], v13 offset:{L_QT}
        ds_read_b128 v[40:43], v13 offset:{L_QT+16}
        s_add_u32 s42, s42, 1
        s_waitcnt lgkmcnt(0)
        v_min3_u32 v36, v36, v38, v40
        v_min_u32 v36, v36, v42
        v_cmp_eq_u32 vcc, 0, v36
        s_cbranch_vccz {qtd}
        s_cmp_lt_u32 s42, {SPIN*20}
        s_cbranch_scc1 {qt}
        {qtd}:
        s_mov_b32 s42, 0""")
        a.stamp(5)
        if p.get("noq"):
            a(f"v_mov_b32 v36, 0\ns_branch {qgd}")
        a(f"{qg}:")
        for u in range(4):
            a(f"global_load_dwordx4 v[{80+4*u}:{83+4*u}], v{60+u}, s[28:29] sc1")
        a("s_add_u32 s42, s42, 1\ns_waitcnt vmcnt(0)")
        a("v_xor_b32 v36, v56, v80\nv_xor_b32 v37, v57, v81")
        for r in range(82, 96):
            a(f"v_bitop3_b32 v{36+r%2}, v{36+r%2}, v{r}, v{56+r%4} bitop3:0xf6")
        a(f"""v_or_b32 v36, v36, v37
        v_and_b32 v37, 7, v36
        v_and_b32 v36, 15, v36
        v_cmp_ne_u32 vcc, 0, v37
        s_cbranch_vccz {qgd}
        s_cmp_lg_u32 s42, {p['qslow']}
        s_cbranch_scc1 {qns}
        global_store_dwordx4 v21, v[52:55], s[28:29] sc1
        {qns}:
        s_cmp_lt_u32 s42, {SPIN}
        s_cbranch_scc1 {qg}
        {qgd}:""")
        for r in range(80, 96):
            a(f"v_and_b32 v{r}, -16, v{r}")
        a(f"""v_pk_add_f32 v[80:81], v[80:81], v[84:85]
        v_pk_add_f32 v[82:83], v[82:83], v[86:87]
        v_pk_add_f32 v[88:89], v[88:89], v[92:93]
        v_pk_add_f32 v[90:91], v[90:91], v[94:95]
        v_pk_add_f32 v[80:81], v[80:81], v[88:89]
        v_pk_add_f32 v[82:83], v[82:83], v[90:91]
        v_permlane32_swap_b32 v80, v82
        v_permlane32_swap_b32 v81, v83
        v_pk_add_f32 v[80:81], v[80:81], v[82:83]
        v_cvt_pk_bf16_f32 v80, v80, v81
        ds_write_b32 v22, v80 offset:{L_Q}
        v_cmp_ne_u32 vcc, 0, v36
        v_mov_b32 v14, s44
        s_nop 0
        s_cmp_lg_u64 vcc, 0
        s_cselect_b32 s46, 1, {0 if p['fast'] else 1}
        s_cselect_b32 s35, 1, {p['hslow'] + 1 if p['fast'] else 1}
        v_mov_b32 v15, s35
        s_waitcnt lgkmcnt(0)
        ds_write_b64 v13, v[14:15] offset:{L_QF}
        s_cbranch_scc0 {qf}
        global_store_dwordx4 v21, v[52:55], s[28:29] sc1
        {qf}:
        s_cmp_eq_u32 s58, 31
        s_cbranch_scc1 {zf}
        {zf}_r:""")
        if p["oppre"] == 2:
            a(oppre)
        a.stamp(6)
        mw = a.lab("mw"); mwd = a.lab("mw_ok"); msl = a.lab("ml_slow"); msd = a.lab("ml_done")
        a(f"""s_mov_b32 s40, {hx(LOG2E)}
        s_lshl_b32 s35, s33, 4
        s_add_u32 s35, s35, s45
        s_add_u32 s36, s35, 4096
        v_mov_b32 v20, s36
        s_and_b32 s36, s33, 4
        s_lshl_b32 s36, s36, 4
        s_add_u32 s35, s35, s36
        v_lshrrev_b32 v2, 2, v0
        v_lshl_add_u32 v21, v2, 8, s35
        v_and_b32 v2, 2, v0
        v_lshl_add_u32 v21, v2, 5, v21
        v_and_b32 v2, 1, v0
        v_lshl_add_u32 v21, v2, 3, v21
        s_setprio 0
        s_mov_b32 s42, 0
        {mw}:
        ds_read_b128 v[36:39], v13 offset:{L_ML}
        ds_read_b128 v[40:43], v13 offset:{L_ML+16}
        s_add_u32 s42, s42, 1
        s_waitcnt lgkmcnt(0)
        v_min3_u32 v44, v37, v39, v41
        v_min_u32 v44, v44, v43
        v_cmp_eq_u32 vcc, 0, v44
        s_cbranch_vccz {mwd}
        s_cmp_lt_u32 s42, {SPIN*20}
        s_cbranch_scc1 {mw}
        {mwd}:
        s_setprio 3
        v_max3_f32 v44, v36, v38, v40
        v_max_f32 v44, v44, v42""")
        for i in range(4):
            a(f"v_sub_f32 v{36+2*i}, v{36+2*i}, v44")
        for i in range(4):
            a(f"v_mul_f32 v{36+2*i}, s40, v{36+2*i}")
        for i in range(4):
            a(f"v_exp_f32 v{36+2*i}, v{36+2*i}")
        a(f"""v_mul_f32 v46, v36, v37
        v_mov_b32 v45, s44
        v_fmac_f32 v46, v38, v39
        v_mov_b32 v47, s44
        v_fmac_f32 v46, v40, v41
        v_fmac_f32 v46, v42, v43
        s_cmp_lg_u32 s46, 0
        s_cbranch_scc1 {msl}
        global_store_dwordx4 v20, v[44:47], s[28:29]
        s_branch {msd}
        {msl}:
        global_store_dwordx4 v20, v[44:47], s[28:29] sc1
        {msd}:""")
        a.stamp(8)
        a("s_barrier")
        for u in range(4):
            a(f"ds_read2st64_b64 v[{48+4*u}:{51+4*u}], v1 offset0:{L_RED//512 + 2*u} offset1:{L_RED//512 + 2*u + 1}")
        osl = a.lab("op_slow"); osd = a.lab("op_done"); nf = a.lab("notfree"); dm = a.lab("dma"); dm2 = a.lab("dma2")
        a(f"""s_cmp_lg_u32 s46, 0
        s_waitcnt lgkmcnt(2)
        v_pk_add_f32 v[48:49], v[48:49], v[50:51]
        v_pk_add_f32 v[52:53], v[52:53], v[54:55]
        v_pk_mul_f32 v[48:49], v[48:49], v[36:37] op_sel_hi:[1,0]
        s_waitcnt lgkmcnt(0)
        v_pk_add_f32 v[56:57], v[56:57], v[58:59]
        v_pk_fma_f32 v[48:49], v[52:53], v[38:39], v[48:49] op_sel_hi:[1,0,1]
        v_pk_add_f32 v[60:61], v[60:61], v[62:63]
        v_pk_fma_f32 v[48:49], v[56:57], v[40:41], v[48:49] op_sel_hi:[1,0,1]
        v_pk_fma_f32 v[48:49], v[60:61], v[42:43], v[48:49] op_sel_hi:[1,0,1]
        v_and_or_b32 v48, v48, s49, v246
        v_and_or_b32 v49, v49, s49, v247
        s_cbranch_scc1 {osl}
        global_store_dwordx2 v21, v[48:49], s[28:29]
        {osd}:""")
        self.cold.append(lambda: a(f"""{osl}:
        global_store_dwordx2 v21, v[48:49], s[28:29] sc1
        s_branch {osd}"""))
        a.stamp(10)
        a("""s_cmp_lg_u32 s31, 0
        s_cbranch_scc1 L_ctrl_n""")
        self.ctrl_wo()
        a.flush_cold()
        a(f"""L_ctrl_n:
        {"buffer_wbl2 sc1" if p.get("wbl2") else ""}
        s_cmp_eq_u32 s31, 1
        s_cbranch_scc1 {nf}""")
        a.finish()
        a(f"""{nf}:
        global_load_dword v24, v23, s[28:29] sc1
        s_barrier
        s_waitcnt vmcnt(0)""")
        self.zcheck()
        if p.get("probe", 2) == 2:
            pb = a.lab("probe"); pbd = a.lab("probe_ok")
            nc = p.get("nc", 5)
            R = p.get("R", 27)
            if R == 27:
                a("s_mov_b32 s38, s39")
            elif R > 27:
                a(f"""s_mul_i32 s38, s39, 3
                s_add_u32 s38, s38, s33
                s_sub_u32 s38, s38, 5
                s_cmp_ge_u32 s38, {R}
                s_cselect_b32 s35, {R}, 0
                s_sub_u32 s38, s38, s35""")
            else:
                a(f"s_lshr_b32 s38, s39, 1")
            a(f"""s_mul_i32 s38, s38, 640
            s_add_u32 s38, s38, {PC}
            s_mov_b32 s42, {p['gslow'] * (4 if p.get("ppipe") else 1)}
            s_mov_b64 s[64:65], 0
            s_mov_b64 s[66:67], 0
            s_mov_b32 s68, 0
            {pb}:""")
            if p.get("ppipe"):
                a("s_waitcnt lgkmcnt(10)")
            for c in range(nc):
                a(f"s_load_dword s{64+c}, s[28:29], s38 offset:{128*c} glc")
            a(f"""s_sub_u32 s42, s42, 1
            s_cmp_eq_u32 s42, 0
            {"s_sleep %d" % p["ppipe"] if p.get("ppipe") else "s_waitcnt lgkmcnt(0)"}
            s_cbranch_scc1 {pbd}
            s_mov_b32 s70, s64""")
            for c in range(1, nc):
                a(f"s_add_u32 s70, s70, s{64+c}")
            a(f"""s_cmp_lg_u32 s70, {32 * nc}
            s_cbranch_scc1 {pb}
            {pbd}:""")
            a.stamp(7)
        elif p.get("probe", 2):
            pb = a.lab("probe"); pbd = a.lab("probe_ok")
            a(f"""s_mul_i32 s35, s39, 3
            s_add_u32 s35, s35, s33
            s_and_b32 s36, s35, 7
            s_lshl_b32 s36, s36, 7
            s_bitcmp1_b32 s35, 3
            s_cselect_b32 s35, 5120, 0
            s_add_u32 s38, s35, s36
            s_mov_b32 s42, {p['gslow']}
            {pb}:""")
            for c in range(5):
                a(f"s_load_dword s{64+c}, s[28:29], s38 offset:{1024*c + 4} glc")
            a(f"""s_sub_u32 s42, s42, 1
            s_cmp_eq_u32 s42, 0
            s_waitcnt lgkmcnt(0)
            s_cbranch_scc1 {pbd}
            s_xor_b32 s64, s64, {MHI}
            s_xor_b32 s65, s65, {MHI}
            s_xor_b32 s66, s66, {MHI}
            s_xor_b32 s67, s67, {MHI}
            s_xor_b32 s68, s68, {MHI}
            s_or_b64 s[64:65], s[64:65], s[66:67]
            s_or_b32 s64, s64, s68
            s_or_b32 s64, s64, s65
            s_lshr_b32 s64, s64, 20
            s_cbranch_scc1 {pb}
            {pbd}:""")
            a.stamp(7)
        a("s_barrier")
        a.finish()
        a.flush_cold()

    def zcheck(self):
        a = self
        zc = a.lab("zc"); zr = a.lab("zc_re"); zd = a.lab("zc_ok")
        a(f"""s_mov_b32 s42, 0
        {zc}:
        v_xor_b32 v24, s44, v24
        v_lshlrev_b32 v24, 3, v24
        v_cmp_ne_u32 vcc, 0, v24
        s_cbranch_vccnz {zr}
        {zd}:""")
        self.cold.append(lambda: a(f"""{zr}:
        global_load_dword v24, v23, s[28:29] sc1
        s_add_u32 s42, s42, 1
        s_cmp_ge_u32 s42, {SPIN}
        s_waitcnt vmcnt(0)
        s_cbranch_scc1 {zd}
        s_branch {zc}"""))

    def ctrl_wo(self):
        a = self
        p = self.p
        a("s_barrier")
        if p.get("probe", 2) != 2:
            a("global_load_dword v24, v23, s[28:29] sc1\ns_waitcnt vmcnt(0)")
            self.zcheck()
        else:
            sk = a.lab("ow_sk")
            a(f"""{"s_setprio 0" if p.get("zlate") else ""}
            {"s_nop 15" if p.get("zlate") else ""}
            global_load_dword v24, v23, s[28:29] sc1
            v_mul_u32_u24 v2, 640, v0
            s_lshl_b32 s35, s33, 7
            s_add_u32 s35, s35, {PC}
            v_add_u32 v2, s35, v2
            v_mov_b32 v3, 1
            s_waitcnt vmcnt(0)""")
            self.zcheck()
            a(f"""s_cmp_ge_u32 s33, {p.get("nc", 5)}
            s_mov_b32 exec_lo, {hex(((1 << p.get("R", 27)) - 1) & 0xffffffff)}
            s_mov_b32 exec_hi, {hex(((1 << p.get("R", 27)) - 1) >> 32)}
            s_barrier
            s_cbranch_scc1 {sk}
            global_atomic_add v2, v3, s[28:29] sc1
            {sk}:""")
            if p.get("b3c", 2):
                a("s_barrier")
            a.stamp(9)
            a.finish()
            return
        a("s_barrier")
        a.finish()

    def write(self, fn):
        self.build()
        body = process(self.L)
        H = ["; fused decode block: one persistent launch, 256 workgroups x 5 waves",
             f"; @launch grid=(256,1,1) block=(320,1,1) lds={LDS_SIZE}",
             '.amdgcn_target "amdgcn-amd-amdhsa--gfx950"', ".text", f".globl {NAME}_kernel", ".p2align 8",
             f".type {NAME}_kernel,@function", f"{NAME}_kernel:"]
        T = ['.section .rodata,"a"', ".p2align 6", f".amdhsa_kernel {NAME}_kernel",
             f"  .amdhsa_next_free_vgpr 256", f"  .amdhsa_next_free_sgpr {102 if (self.diag or self.p.get('holdat')) else self.p.get('nsgpr', 102)}", "  .amdhsa_accum_offset 256",
             "  .amdhsa_group_segment_fixed_size 0", "  .amdhsa_kernarg_size 104", "  .amdhsa_user_sgpr_count 2",
             "  .amdhsa_user_sgpr_kernarg_segment_ptr 1", "  .amdhsa_system_sgpr_workgroup_id_x 1",
             "  .amdhsa_float_denorm_mode_32 3", "  .amdhsa_float_denorm_mode_16_64 3", ".end_amdhsa_kernel"]
        lines = [(l if l.endswith(":") else "    " + l) for l in body]
        open(fn, "w").write("\n".join(H + lines + T) + "\n")


if __name__ == "__main__":
    out = sys.argv[1] if len(sys.argv) > 1 else "k22.s"
    kw = {}
    diag = False
    for x in sys.argv[2:]:
        if x == "diag":
            diag = True
        else:
            k, v = x.split("=", 1)
            kw[k] = eval(v)
    G(diag=diag, **kw).write(out)
```

```python
import sys, struct, math
from hz import process

NAME = "sequential_preLN__sliding_block_cached__mixer_channel_mlp__decode"


def hx(x):
    return "0x%08x" % struct.unpack("<I", struct.pack("<f", x))[0]


A1 = 0x00000
A2 = 0x05000
PC = 0x0A000
EP = 0x80000
ZF = 0x81000
BK = 0x100000
OB = 0x40000
STAMP = 0x8000000
L_Y = 0x0000; YS = 1408
L_Q = 0x0B00; L_ML = 0x0C00; L_Z = 0x0C80; L_QF = 0x0C90; L_QT = 0x0CC0; L_GO = 0x0CF0
L_RED = 0x1000; L_RED2 = 0x2000; L_T1 = 0x3000
L_H = 0x1000
L_W1 = 0x4000
LDS_SIZE = L_W1 + 81920
KR, VR, FRG, TR = 16, 80, 144, 208
LOG2E = 1.4426950408889634
SPIN = 400000
DPPF = "row_mask:0xf bank_mask:0xf"
KEXP = 22
MHI = ((1023 + KEXP) << 20) | (1 << 19)
for miss in range(1, 55):
    for slop in (-1, 0):
        top = (((1 - miss) * MHI + slop) & 0xffffffff) >> 20
        top2 = (((1 - miss) * MHI + (1 << 19) - 1 + (slop << 19)) & 0xffffffff) >> 20
        for t_ in (top, top2):
            assert t_ != 1023 + KEXP, miss
INIT1 = (-31 * MHI) & 0xffffffff
INIT2 = (-26 * MHI) & 0xffffffff


class G:
    def __init__(self, diag=False, **kw):
        self.L = []
        self.diag = diag
        self.n = 0
        self.sect = "a"
        self.cold = []
        self.p = dict(F=11, Pw=9, Pw2=10, Pn=8, Pn2=9, tsl=(8, 13, 18, 23, 28, 32, 32, 32), mat=32, chk=31,
                      qtrig=3, qslow=3, hslow=100, cslow=60, lfpos=2, fast=True, nt="nt", w1fl="", warm=True,
                      mlpT=0, b3b=True, atrig=1, actrl=2, hpipe=False, sp1=0, Pf=0, tfl="", tsn=None, n1=0, gf=True, afpos=1, gslow=40, gpre=8, gfv=False, oppre=1)
        self.p.update(kw)

    def __call__(self, s):
        for ln in s.split("\n"):
            ln = ln.strip()
            if ln:
                self.L.append(ln)

    def lab(self, p):
        self.n += 1
        return f"L_{p}_{self.n}"

    def stamp(self, idx):
        p = self.p
        h = p.get("holdat")
        if h is not None and not self.diag:
            if (self.sect, idx) == tuple(h[:2]):
                self("s_memrealtime s[96:97]\ns_waitcnt lgkmcnt(0)\ns_mov_b32 s95, 1")
            return
        if not self.diag or (p.get("lite") and idx != 31):
            return
        if p.get("only") is not None and idx != 31 and (self.sect + str(idx)) not in p["only"].split(","):
            return
        self(f"s_memrealtime s[100:101]\ns_waitcnt lgkmcnt(0)\nv_writelane_b32 v255, s100, {idx}")

    def clk(self, where):
        c = self.p.get("clk")
        if self.diag and c and where in c:
            self(f"s_memtime s[100:101]\ns_waitcnt lgkmcnt(0)\nv_writelane_b32 v255, s100, {25 + c.index(where)}")

    def note(self, idx):
        if self.diag:
            self(f"v_writelane_b32 v255, s42, {idx}")

    def finish(self):
        if self.diag:
            self.stamp(31)
            self("s_branch L_dump")
        elif self.p.get("holdat") is not None:
            self("s_branch L_hold")
        else:
            self("s_endpgm")

    def rnd(self, d, src):
        self(f"v_cvt_pk_bf16_f32 v{d}, 0, {src}")

    def ln(self, X, P, T, keep, hook=None, fill=(), H=None):
        a = self
        pr = lambda r: f"v[{r}:{r+1}]"
        if H is None:
            H = X
            a(f"v_pk_add_f32 {pr(T)}, {pr(X)}, {pr(X+2)}")
            a(f"v_pk_mul_f32 {pr(T+2)}, {pr(X)}, {pr(X)}")
            for i in (4, 6, 8):
                a(f"v_pk_add_f32 {pr(T)}, {pr(T)}, {pr(X+i)}")
                a(f"v_pk_fma_f32 {pr(T+2)}, {pr(X+i-2)}, {pr(X+i-2)}, {pr(T+2)}")
            a(f"v_pk_fma_f32 {pr(T+2)}, {pr(X+8)}, {pr(X+8)}, {pr(T+2)}")
        a(f"v_add_f32 v{T+2}, v{T+2}, v{T+3}")
        a(f"v_add_f32 v{T}, v{T}, v{T+1}")
        if hook:
            hook()
        a(f"v_permlane32_swap_b32 v{T}, v{T+2}")
        a(f"v_add_f32 v{T}, v{T}, v{T+2}")
        fill = list(fill)
        for d in ("quad_perm:[1,0,3,2]", "quad_perm:[2,3,0,1]", "row_half_mirror", "row_mirror"):
            if fill:
                a(fill.pop(0))
            a(f"v_add_f32_dpp v{T}, v{T}, v{T} {d} {DPPF}")
        a(f"v_add_f32_dpp v{T}, v{T}, v{T} row_bcast:15 row_mask:0xa bank_mask:0xf")
        a(f"v_mul_f32 v{T}, {hx(1.0/640.0)}, v{T}")
        a(f"v_readlane_b32 s41, v{T}, 63")
        a(f"v_readlane_b32 s40, v{T}, 31")
        a(f"v_mov_b32 v{T+2}, s41")
        a.rnd(T, "s40")
        a(f"v_fma_f32 v{T+2}, -s40, s40, v{T+2}")
        sub = lambda i: a(f"v_pk_add_f32 {pr(X+i)}, {pr(H+i)}, {pr(T)} op_sel_hi:[1,0] neg_lo:[0,1] neg_hi:[0,1]")
        sub(0)
        a(f"v_max_f32 v{T+2}, 0, v{T+2}")
        sub(2)
        a.rnd(T+2, f"v{T+2}")
        sub(4)
        a(f"v_add_f32 v{T+2}, {hx(1e-5)}, v{T+2}")
        sub(6)
        a.rnd(T+2, f"v{T+2}")
        sub(8)
        a(f"v_sqrt_f32 v{T+2}, v{T+2}")
        a.rnd(X, f"v{X}"); a.rnd(X+1, f"v{X+1}")
        a.rnd(T+2, f"v{T+2}")
        a.rnd(X+2, f"v{X+2}")
        a(f"v_rcp_f32 v{T+2}, v{T+2}")
        for i in range(3, 10):
            a.rnd(X+i, f"v{X+i}")
        for i in range(5):
            a(f"v_pk_mul_f32 {pr(X+2*i)}, {pr(X+2*i)}, {pr(T+2)} op_sel_hi:[1,0]")
        if keep:
            for i in range(10):
                a.rnd(X+i, f"v{X+i}")
        else:
            for i in range(5):
                a(f"v_cvt_pk_bf16_f32 v{P+i}, v{X+2*i}, v{X+2*i+1}")

    def selectors(self):
        a = self
        a("""v_and_b32 v2, 1, v0
        v_cmp_eq_u32 vcc, 1, v2
        v_mov_b32 v2, 0x0c0c0100
        v_mov_b32 v3, 0x01000c0c
        v_cndmask_b32 v12, v2, v3, vcc
        v_mov_b32 v2, 0x0c0c0302
        v_mov_b32 v3, 0x03020c0c
        v_cndmask_b32 v13, v2, v3, vcc
        v_bfe_u32 v2, v0, 1, 2
        v_mov_b32 v3, 0x0c0c0c0c""")
        for r in range(4):
            a(f"v_cmp_eq_u32 vcc, {r}, v2")
            a(f"v_cndmask_b32 v{4+r}, v3, v12, vcc")
            a(f"v_cndmask_b32 v{8+r}, v3, v13, vcc")

    def dlayout(self, dst, t, bstride):
        self(f"""v_and_b32 v{dst}, 15, v0
        v_lshlrev_b32 v{dst}, 5, v{dst}
        v_and_b32 v{t}, 16, v0
        v_add_u32 v{dst}, v{dst}, v{t}
        v_lshrrev_b32 v{t}, 5, v0
        v_mul_u32_u24 v{t}, {bstride}, v{t}
        v_add_u32 v{dst}, v{dst}, v{t}""")

    def rowaddr(self, dst):
        self(f"""v_lshrrev_b32 v2, 4, v0
        v_mul_u32_u24 v2, 10240, v2
        v_and_b32 v3, 15, v0
        v_lshl_add_u32 v2, v3, 4, v2
        v_add_u32 v{dst}, s36, v2""")

    ROLES = """s_and_b32 s39, s32, 3
        s_lshl_b32 s39, s39, 3
        s_add_u32 s39, s39, s30
        s_cmp_lt_u32 s39, 27
        s_cselect_b32 s31, 1, 2
        s_min_u32 s39, s39, 26
        s_cmp_lt_u32 s33, 5
        s_cselect_b32 s31, 0, s31"""

    def gather(self, name, n, loads, R, first_issued=False):
        a = self
        lp = a.lab(name); dn = a.lab(name + "_ok"); re = a.lab(name + "_re")
        a("s_mov_b32 s42, 0")
        if first_issued:
            a(f"s_branch {lp}")
        a(f"{re}:")
        loads()
        a(f"s_add_u32 s42, s42, 1\ns_cmp_ge_u32 s42, {SPIN}\ns_cbranch_scc1 {dn}")
        a(f"{lp}:")
        for u in range(n):
            a(f"s_waitcnt vmcnt({n-1-u})")
            b = R + 4*u
            for r in range(b, b + 4):
                a(f"v_xor_b32 v{r}, s{64 + (r - b)}, v{r}")
            if u == 0:
                a(f"v_or_b32 v26, v{b}, v{b+1}")
            else:
                a(f"v_or3_b32 v26, v26, v{b}, v{b+1}")
            a(f"v_or3_b32 v26, v26, v{b+2}, v{b+3}")
            if u == n - 1:
                a("v_cmp_ne_u32_sdwa vcc, v26, v13 src0_sel:BYTE_0 src1_sel:DWORD")
            if u:
                a(f"v_pk_add_f32 v[{R}:{R+1}], v[{R}:{R+1}], v[{b}:{b+1}]")
                a(f"v_pk_add_f32 v[{R+2}:{R+3}], v[{R+2}:{R+3}], v[{b+2}:{b+3}]")
        a(f"s_cbranch_vccnz {re}\n{dn}:")

    def flush_cold(self):
        c, self.cold = self.cold, []
        for f in c:
            f()

    def red16(self, A):
        self(f"""v_permlane32_swap_b32 v{A}, v{A+2}
        v_permlane32_swap_b32 v{A+1}, v{A+3}
        v_pk_add_f32 v[{A}:{A+1}], v[{A}:{A+1}], v[{A+2}:{A+3}]
        v_permlane16_swap_b32 v{A}, v{A+1}
        v_add_f32 v{A}, v{A}, v{A+1}
        v_add_f32_dpp v{A}, v{A}, v{A} row_ror:4 {DPPF}
        v_add_f32_dpp v{A}, v{A}, v{A} row_ror:8 {DPPF}""")

    def transp(self, R, B, pp):
        for T in range(8):
            self(f"v_perm_b32 v{B+4*T+pp}, v{R+4*(2*pp+1)+T//2}, v{R+4*(2*pp)+T//2}, s{52+(T&1)}")

    def nat8(self, B):
        for r in range(4):
            self(f"v_mfma_f32_16x16x32_bf16 v[{44+4*r}:{47+4*r}], v[64:67], v[{B+4*r}:{B+4*r+3}], 0")
        for r in range(4):
            self(f"v_mfma_f32_16x16x32_bf16 v[{44+4*r}:{47+4*r}], v[68:71], v[{B+16+4*r}:{B+16+4*r+3}], v[{44+4*r}:{47+4*r}]")

    def zeroA(self):
        self("s_mov_b32 s52, 0x05040100\ns_mov_b32 s53, 0x07060302")
        for r in range(64, 72, 2):
            self(f"v_mov_b64 v[{r}:{r+1}], 0")

    def stream(self, wo, withT, extra):
        a = self
        p = self.p
        nt = p["nt"]
        F = p["F"]
        P1, P2 = (p["Pw"], p["Pw2"]) if wo else (p["Pn"], p["Pn2"])
        kv = [("K", t) for t in range(16)] + [("V", t) for t in range(16)]
        order = kv[:F]
        tsl = list(p["tsl"]) if wo else (list(p["tsn"]) if p["tsn"] else [32] * withT)
        tk = 0
        for i in range(F, 33):
            for pos_, it in extra:
                if pos_ == i:
                    order.append(it)
            while tk < len(tsl) and tsl[tk] <= i:
                order.append(("T", tk)); tk += 1
            if i < 32:
                order.append(kv[i])
        NL = len(order)
        pos = {it: i for i, it in enumerate(order)}
        st = {"issued": F, "done": -1}
        big = lambda j: order[j][0] != "S"

        def emit(it):
            k, t = it
            if k == "K":
                if t == 8:
                    a("v_add_u32 v1, 32768, v1")
                a(f"global_load_dwordx4 v[{KR+4*t}:{KR+4*t+3}], v1, s[6:7] offset:{(t%8)*1024-4096} {nt}")
            elif k == "V":
                if t == 8:
                    a("v_add_u32 v14, 32768, v14")
                a(f"global_load_dwordx4 v[{VR+4*t}:{VR+4*t+3}], v14, s[8:9] offset:{(t%8)*1024-4096} {nt}")
            elif k == "T":
                if wo:
                    if t == 7:
                        a("v_add_u32 v15, 5120, v15")
                    a(f"global_load_dwordx4 v[{TR+4*t}:{TR+4*t+3}], v15, s[12:13] offset:{(t-3)*1280 if t < 7 else 0} {nt}")
                else:
                    a(f"global_load_dwordx4 v[{TR+4*t}:{TR+4*t+3}], v15, s[44:45] {p['tfl']}")
                    if t < 7:
                        a("v_add_u32 v15, s46, v15")
            else:
                a(t)
        self.emit = emit

        def issue(pace=0):
            i = st["issued"]
            if pace and big(i):
                cnt = 0; j = i
                while j > 0 and cnt < pace:
                    j -= 1
                    cnt += big(j)
                if cnt == pace and j > st["done"]:
                    a(f"s_waitcnt vmcnt({i-1-j})")
                    st["done"] = j
            if not wo and p["Pf"] and big(i):
                cnt = 0; j = i
                while j > 0 and cnt < p["Pf"]:
                    j -= 1
                    cnt += big(j)
                if j > st["done"]:
                    sk = a.lab("pf")
                    a(f"s_cbranch_vccz {sk}\ns_waitcnt vmcnt({i-1-j})\n{sk}:")
            emit(order[i])
            st["issued"] += 1

        def wait_for(it):
            i = pos[it]
            assert i < st["issued"]
            if st["done"] < i:
                a(f"s_waitcnt vmcnt({st['issued']-1-i})")
                st["done"] = i
        trig = False
        while st["done"] < pos[("K", 15)]:
            issue(P1)
            if not trig and st["done"] >= pos[("K", max(0, p["qtrig"]))]:
                a(f"ds_write_b32 v12, v247 offset:{L_QT}")
                trig = True
        a.stamp(1)
        lastchk = pos[kv[p["chk"]]]
        first = True
        while st["issued"] <= lastchk:
            sk = a.lab("chk")
            if not first:
                a(f"s_cmp_lg_u32 s47, 0\ns_cbranch_scc1 {sk}")
            a(f"""ds_read_b64 v[2:3], v13 offset:{L_QF}
            s_waitcnt lgkmcnt(0)
            v_readfirstlane_b32 s47, v3
            s_cmp_eq_u32 s47, 0
            s_cbranch_scc1 {sk}
            s_call_b64 s[50:51], L_compute
            {sk}:""")
            first = False
            issue(P2)
        lp = a.lab("qw"); sk = a.lab("qw_done"); go = a.lab("qw_go")
        a(f"""s_cmp_lg_u32 s47, 0
        s_cbranch_scc1 {sk}
        s_mov_b32 s42, 0
        {lp}:
        ds_read_b64 v[2:3], v13 offset:{L_QF}
        s_add_u32 s42, s42, 1
        s_waitcnt lgkmcnt(0)
        v_readfirstlane_b32 s47, v3
        s_cmp_lg_u32 s47, 0
        s_cbranch_scc1 {go}
        s_cmp_lt_u32 s42, {SPIN*20}
        s_cbranch_scc1 {lp}
        {go}:
        s_call_b64 s[50:51], L_compute
        {sk}:""")
        a.stamp(19)

        def topup():
            while st["issued"] < NL:
                infl = sum(big(j) for j in range(st["done"] + 1, st["issued"]))
                if infl >= P2 and big(st["issued"]):
                    break
                issue()
        topup()
        for t in range(16):
            a(f"v_mov_b32_dpp v{48+t%2}, v{20+t//4} row_newbcast:{4*(t%4)} {DPPF}")
            for r in range(4):
                a(f"v_perm_b32 v{FRG+4*(t%4)+r}, v{48+t%2}, v{48+t%2}, v{240+r}")
            while st["issued"] <= pos[("V", t)]:
                issue(P2)
            wait_for(("V", t))
            topup()
            c = "0" if t == 0 else "v[44:47]"
            a(f"v_mfma_f32_16x16x32_bf16 v[44:47], v[{FRG+4*(t%4)}:{FRG+4*(t%4)+3}], v[{VR+4*t}:{VR+4*t+3}], {c}")
        while st["issued"] < NL:
            issue()
        a(f"ds_write_b128 v248, v[44:47] offset:{L_RED}\ns_waitcnt lgkmcnt(0)")
        a.stamp(20)
        a("s_barrier")
        a.stamp(5)
        return st, pos, wait_for, lastchk

    def build(self):
        a = self
        p = self.p
        nt = p["nt"]
        IDS = """s_and_b32 s30, s2, 7
        s_lshr_b32 s31, s2, 3
        s_lshl_b32 s34, s30, 5
        s_add_u32 s34, s34, s31
        s_lshr_b32 s32, s34, 3
        s_and_b32 s33, s34, 7"""
        WQ = 80
        a(f"""
        s_load_dwordx16 s[4:19], s[0:1], 0
        s_load_dwordx8 s[20:27], s[0:1], 64
        s_load_dwordx2 s[28:29], s[0:1], 96""")
        if self.diag:
            a("s_memrealtime s[100:101]")
        a(f"""v_cmp_lt_u32 vcc, 63, v0
        s_cmp_ge_u32 s2, 256
        s_cbranch_scc1 L_exit
        s_cbranch_vccnz L_tramp
        s_setprio 3
        {IDS}
        s_getpc_b64 s[36:37]
        L_pc:
        s_lshl_b32 s35, s33, 11
        v_and_b32 v12, 15, v0
        v_lshl_add_u32 v1, v12, 7, s35
        v_min_u32 v1, L_codeend-L_pc-4, v1
        global_load_dword v254, v1, s[36:37]
        s_mul_i32 s35, s33, {80*32}
        s_add_u32 s35, s35, s32
        s_lshl_b32 s35, s35, 8
        v_lshrrev_b32 v3, 4, v0
        v_mul_u32_u24 v3, {20*8192}, v3
        v_lshl_add_u32 v3, v12, 4, v3
        v_add_u32 v3, s35, v3
        v_lshlrev_b32 v1, 3, v0
        v_lshlrev_b32 v2, 2, v0
        s_movk_i32 s38, 0x2000
        s_waitcnt lgkmcnt(0)
        global_load_dwordx2 v[24:25], v1, s[4:5]
        global_load_dwordx2 v[26:27], v1, s[4:5] offset:512
        global_load_dword v28, v2, s[4:5] offset:1024
        global_load_dwordx2 v[30:31], v1, s[4:5] offset:1280
        global_load_dwordx2 v[32:33], v1, s[4:5] offset:1792
        global_load_dword v34, v2, s[4:5] offset:2304""")
        n0 = 2 if self.diag else 3
        for t in range(20):
            if t == n0:
                a(f"""s_branch L_c2
                .if (. - {NAME}_kernel) > 256
                .error "first block too long"
                .endif
                .p2align 8
                L_tramp:
                s_branch L_att
                L_c2:""")
            if t == n0 + p.get("eat", 0):
                a(f"""s_lshl_b32 s45, s34, 12
                s_add_u32 s45, s45, {BK}
                v_and_b32 v12, 7, v0
                v_lshl_add_u32 v20, v12, 7, s45
                v_mov_b32 v12, {EP}
                global_load_dword v15, v12, s[28:29] sc1
                global_load_dword v253, v20, s[28:29] nt""")
                self.epos = t
            a(f"global_load_dwordx4 v[{WQ+4*t}:{WQ+4*t+3}], v3, s[10:11] {nt}")
            if t < 19:
                a("v_add_u32 v3, s38, v3")
            if t == n0 + 1:
                a(f"v_mov_b32 v36, 0\nds_write_b32 v2, v36 offset:{L_ML}\ns_mov_b32 s3, 4")
        if self.diag:
            a("v_mov_b32 v255, 0\nv_writelane_b32 v255, s100, 0")
        if p.get("holdat") is not None:
            a("s_mov_b32 s95, 0")
        a("s_waitcnt lgkmcnt(0)\ns_barrier\ns_branch L_ctrl")
        a(f"""L_att:
        v_lshrrev_b32 v1, 6, v0
        v_and_b32 v0, 63, v0
        v_readfirstlane_b32 s3, v1
        {IDS}
        s_sub_u32 s3, s3, 1
        s_lshr_b32 s35, s33, 2
        s_lshl_b32 s35, s35, 5
        s_add_u32 s35, s35, s32
        s_lshl_b32 s35, s35, 4
        s_and_b32 s36, s33, 3
        s_add_u32 s35, s35, s36
        s_add_u32 s35, s35, 12
        s_lshl_b32 s35, s35, 3
        s_add_u32 s35, s35, s3
        s_lshl_b32 s35, s35, 13
        s_add_u32 s35, s35, 4096
        v_bfe_u32 v1, v0, 2, 2
        v_lshlrev_b32 v1, 8, v1
        v_lshrrev_b32 v2, 4, v0
        v_lshl_add_u32 v1, v2, 6, v1
        v_and_b32 v2, 3, v0
        v_lshl_add_u32 v1, v2, 4, v1
        v_add_u32 v1, s35, v1
        v_lshl_add_u32 v14, v0, 4, s35
        s_waitcnt lgkmcnt(0)
        """)
        if self.diag:
            a("v_mov_b32 v255, 0\nv_writelane_b32 v255, s100, 0")
        if p.get("holdat") is not None:
            a("s_mov_b32 s95, 0")
        a.stamp(17)
        a("s_barrier")
        a.stamp(23)
        for t in range(p["F"]):
            if t == 8:
                a("v_add_u32 v1, 32768, v1")
            a(f"global_load_dwordx4 v[{KR+4*t}:{KR+4*t+3}], v1, s[6:7] offset:{(t%8)*1024-4096} {nt}")
        a.stamp(16)
        a.selectors()
        a("v_and_b32 v2, 8, v0\nv_cmp_eq_u32 vcc, 8, v2")
        for r in range(4):
            a(f"v_cndmask_b32 v{240+r}, v{4+r}, v{8+r}, vcc")
        a(f"""v_lshrrev_b32 v2, 4, v0
        v_and_b32 v3, 3, v0
        v_lshl_add_u32 v2, v2, 2, v3
        v_lshlrev_b32 v2, 4, v2
        v_add_u32 v2, {L_Q}, v2
        v_bfe_u32 v3, v0, 2, 2
        v_mov_b32 v12, {L_Z}""")
        for qd in range(4):
            a(f"v_cmp_eq_u32 vcc, {qd}, v3")
            a(f"v_cndmask_b32 v{200+qd}, v12, v2, vcc")
        a.dlayout(248, 3, 512)
        a(f"""s_lshl_b32 s36, s3, 10
        v_add_u32 v248, s36, v248
        s_lshl_b32 s36, s32, 13
        s_add_u32 s36, s36, {OB + 4096}
        v_and_b32 v2, 8, v0
        v_lshlrev_b32 v2, 3, v2
        v_and_b32 v3, 3, v0
        v_lshl_add_u32 v2, v3, 4, v2
        v_add_u32 v247, s36, v2
        s_mov_b32 s40, {hx(128 ** -0.5)}
        s_mov_b32 s48, {hx(LOG2E)}
        s_mov_b32 s49, 0xffffff00
        s_lshl_b32 s36, s3, 3
        v_mov_b32 v12, s36
        v_mov_b32 v13, 0
        s_mov_b32 s47, 0
        s_waitcnt lgkmcnt(0)
        s_cmp_ge_u32 s33, 5
        s_cbranch_scc1 L_att_n""")
        self.att_wo()
        self.att_other()
        self.compute()
        self.ctrl()
        if self.diag:
            a(f"""L_dump:
            s_mov_b64 exec, -1
            s_lshl_b32 s35, s34, 3
            s_add_u32 s35, s35, s3
            s_lshl_b32 s35, s35, 8
            s_add_u32 s35, s35, {STAMP}
            v_lshl_add_u32 v2, v0, 2, s35
            global_store_dword v2, v255, s[28:29]""")
        elif p.get("holdat") is not None:
            h = p["holdat"]
            a("L_hold:\ns_cmp_eq_u32 s95, 0\ns_cbranch_scc1 L_exit")
            a("""L_hold2:
            s_memrealtime s[92:93]
            s_waitcnt lgkmcnt(0)
            s_sub_u32 s92, s92, s96
            s_cmp_lt_u32 s92, 2000
            s_cbranch_scc1 L_hold2""")
        a("L_exit:\ns_endpgm\nL_codeend:")

    def att_wo(self):
        a = self
        p = self.p
        a(f"""s_lshl_b32 s36, s32, 2
        s_add_u32 s36, s36, s3
        s_mul_i32 s36, s36, {32*1280}
        s_lshl_b32 s37, s33, 8
        s_add_u32 s36, s36, s37
        s_add_u32 s36, s36, {3*1280}""")
        a.rowaddr(15)
        a(f"""s_lshl_b32 s35, s32, 3
        s_add_u32 s35, s35, s3
        s_lshl_b32 s35, s35, 10
        s_add_u32 s35, s35, {OB}
        v_lshl_add_u32 v249, v0, 4, s35
        s_lshr_b32 s35, s3, 1
        s_mul_i32 s35, s35, 640
        s_lshl_b32 s36, s33, 7
        s_add_u32 s35, s35, s36
        s_and_b32 s36, s3, 1
        s_lshl_b32 s36, s36, 6
        s_add_u32 s35, s35, s36
        s_lshl_b32 s35, s35, {3 + p["sp1"]}
        v_lshl_add_u32 v250, v0, 3, s35
        {"v_and_b32 v2, 56, v0" if p["sp1"] else ""}
        {"v_lshl_add_u32 v250, v2, 3, v250" if p["sp1"] else ""}
        s_lshl_b32 s35, s3, 8
        v_lshl_add_u32 v251, v0, 2, s35
        s_and_b32 s35, s32, 3
        s_lshl_b32 s35, s35, 3
        s_add_u32 s59, s35, s30
        s_min_u32 s35, s59, 26
        s_mul_i32 s35, s35, 20
        s_lshl_b32 s36, s33, 2
        s_add_u32 s35, s35, s36
        s_add_u32 s35, s35, s3
        s_lshl_b32 s35, s35, 12
        v_and_b32 v2, 31, v0
        v_lshl_add_u32 v252, v2, 7, s35
        s_mov_b32 s60, 0
        s_mov_b32 s61, {MHI}""")
        st, pos, wait_for, lastchk = self.stream(True, 8, [])
        BT = 80
        tdone = 0
        a.zeroA()
        a("""s_and_b32 s35, s43, 0x1fffffff
        s_and_b32 s67, s35, 0xff""")
        for k in range(3):
            a(f"s_lshr_b32 s36, s35, {8*(k+1)}\ns_add_u32 s36, s36, s35\ns_and_b32 s{64+k}, s36, 0xff")
        while tdone < 4 and pos[("T", 2*tdone+1)] <= st["done"]:
            a.transp(TR, BT, tdone); tdone += 1
        ld = """global_load_dwordx4 v[40:43], v247, s[28:29] sc1
        global_load_dwordx4 v[28:31], v249, s[28:29] sc1"""
        lp = a.lab("og"); re = a.lab("og_re"); dn = a.lab("og_ok")
        a(f"""s_mov_b32 s42, 0
        s_branch {re}_x
        {re}:
        {ld}
        s_add_u32 s42, s42, 1
        s_cmp_lt_u32 s42, {SPIN}
        s_cbranch_scc1 {lp}
        s_branch {dn}
        {re}_x:
        s_barrier""")
        a(ld)
        st["issued"] += 2
        while tdone < 4:
            wait_for(("T", 2*tdone+1)); a.transp(TR, BT, tdone); tdone += 1
        a.stamp(21)
        a(f"""{lp}:
        s_waitcnt vmcnt(1)
        v_max_f32_dpp v38, v40, v40 quad_perm:[1,0,3,2] {DPPF}
        v_xor_b32 v26, s43, v41
        v_bitop3_b32 v26, v26, v43, s43 bitop3:0xf6
        v_max_f32_dpp v38, v38, v38 quad_perm:[2,3,0,1] {DPPF}
        v_and_b32 v26, 0x1fffffff, v26
        v_sub_f32 v38, v40, v38
        v_min_u32 v26, 1, v26
        v_mul_f32 v38, s48, v38
        s_waitcnt vmcnt(0)
        v_exp_f32 v38, v38
        v_xor_b32 v28, s64, v28
        v_xor_b32 v29, s65, v29
        v_xor_b32 v30, s66, v30
        v_xor_b32 v31, s67, v31
        v_mul_f32 v36, v38, v42
        v_or3_b32 v26, v26, v28, v29
        v_pk_mul_f32 v[28:29], v[28:29], v[38:39] op_sel_hi:[1,0]
        v_or3_b32 v26, v26, v30, v31
        v_pk_mul_f32 v[30:31], v[30:31], v[38:39] op_sel_hi:[1,0]
        v_cmp_ne_u32_sdwa vcc, v26, v13 src0_sel:BYTE_0 src1_sel:DWORD
        v_add_f32_dpp v36, v36, v36 quad_perm:[1,0,3,2] {DPPF}
        s_cbranch_vccnz {re}
        {dn}:""")
        a.stamp(6)
        a.clk(20)
        b3c = p.get("b3c", 2)
        if b3c == 1:
            a("s_barrier")
        a(f"""v_add_f32_dpp v28, v28, v28 quad_perm:[1,0,3,2] {DPPF}
        v_add_f32_dpp v29, v29, v29 quad_perm:[1,0,3,2] {DPPF}
        v_add_f32_dpp v36, v36, v36 quad_perm:[2,3,0,1] {DPPF}
        v_add_f32_dpp v30, v30, v30 quad_perm:[1,0,3,2] {DPPF}
        v_add_f32_dpp v31, v31, v31 quad_perm:[1,0,3,2] {DPPF}
        v_rcp_f32 v36, v36
        v_add_f32_dpp v28, v28, v28 quad_perm:[2,3,0,1] {DPPF}
        v_add_f32_dpp v29, v29, v29 quad_perm:[2,3,0,1] {DPPF}
        v_add_f32_dpp v30, v30, v30 quad_perm:[2,3,0,1] {DPPF}
        v_add_f32_dpp v31, v31, v31 quad_perm:[2,3,0,1] {DPPF}
        v_pk_mul_f32 v[28:29], v[28:29], v[36:37] op_sel_hi:[1,0]
        v_pk_mul_f32 v[30:31], v[30:31], v[36:37] op_sel_hi:[1,0]""")
        a("""v_cvt_pk_bf16_f32 v32, v28, v29
        v_cvt_pk_bf16_f32 v33, v30, v31
        v_mov_b32_dpp v64, v32 quad_perm:[0,1,2,3] row_mask:0xf bank_mask:0x5
        v_mov_b32_dpp v66, v32 row_half_mirror row_mask:0xf bank_mask:0x5
        v_mov_b32_dpp v65, v33 quad_perm:[0,1,2,3] row_mask:0xf bank_mask:0x5
        v_mov_b32_dpp v67, v33 row_half_mirror row_mask:0xf bank_mask:0x5
        v_mov_b32_dpp v68, v32 row_half_mirror row_mask:0xf bank_mask:0xa
        v_mov_b32_dpp v69, v33 row_half_mirror row_mask:0xf bank_mask:0xa
        v_mov_b32_dpp v70, v32 quad_perm:[0,1,2,3] row_mask:0xf bank_mask:0xa
        v_mov_b32_dpp v71, v33 quad_perm:[0,1,2,3] row_mask:0xf bank_mask:0xa""")
        if b3c == 3:
            a("s_barrier")
        a.clk(21)
        a.nat8(BT)
        a.clk(22)
        if b3c == 2:
            a("s_barrier")
        if p.get("w2pf", 1) == 2:
            a("global_load_dword v253, v252, s[20:21]")
        a(f"""v_mov_b32 v45, v48
        v_mov_b32 v46, v52
        v_mov_b32 v47, v56
        ds_write_b128 v248, v[44:47] offset:{L_RED2}
        s_waitcnt lgkmcnt(0)""")
        a.clk(23)
        a("s_barrier")
        a.clk(24)
        a(f"""ds_read2st64_b32 v[28:29], v251 offset0:{L_RED2//256} offset1:{L_RED2//256+4}
        ds_read2st64_b32 v[30:31], v251 offset0:{L_RED2//256+8} offset1:{L_RED2//256+12}
        s_waitcnt lgkmcnt(0)
        v_pk_add_f32 v[28:29], v[28:29], v[30:31]
        v_add_f32 v28, v28, v29
        v_cvt_f64_f32 v[30:31], v28
        v_add_f64 v[30:31], v[30:31], s[60:61]
        global_atomic_add_x2 v250, v[30:31], s[28:29] sc1""")
        assert A1 == 0
        if p.get("w2pf", 1) == 1:
            sk = a.lab("nopf")
            a(f"""s_cmp_ge_u32 s59, 27
            s_cbranch_scc1 {sk}
            global_load_dword v253, v252, s[20:21]
            {sk}:""")
        a.stamp(11)
        a.clk(29)
        a.finish()
        a.flush_cold()

    def att_other(self):
        a = self
        p = self.p
        B1R = 80; B2R = 160; AB = 160; HR = 244
        D1 = (50, 54, 58, 240); XU = (4, 6, 8, 10, 62)

        def bar():
            a("s_barrier")
        nT = p["mlpT"]
        a("L_att_n:")
        a(self.ROLES)
        a(f"""s_sub_u32 s58, s33, 5
        s_mul_i32 s38, s58, 3
        s_min_u32 s35, s58, 1
        s_add_u32 s38, s38, s35
        s_add_u32 s38, s38, s3
        s_min_u32 s38, s38, 9
        s_mul_i32 s36, s39, {64*1280}
        s_lshl_b32 s37, s38, 7
        s_add_u32 s36, s36, s37
        v_lshrrev_b32 v2, 4, v0
        v_bfe_u32 v3, v0, 3, 1
        v_lshl_add_u32 v4, v3, 2, v2
        v_mul_u32_u24 v4, 10240, v4
        v_and_b32 v5, 7, v0
        v_lshl_add_u32 v4, v5, 4, v4
        v_add_u32 v15, s36, v4
        s_mov_b64 s[44:45], s[20:21]
        s_movk_i32 s46, 1280
        v_lshl_add_u32 v4, v5, 3, v2
        v_lshl_add_u32 v192, v4, 1, s37
        v_mul_u32_u24 v3, 1280, v3
        v_add_u32 v199, v192, v3
        v_bfe_u32 v3, v0, 1, 1
        v_lshl_add_u32 v3, v3, 2, v2
        v_bfe_u32 v4, v0, 2, 2
        v_lshl_add_u32 v198, v3, 2, v4
        s_lshl_b32 s35, s39, 7
        v_lshl_add_u32 v252, v198, 2, s35
        s_mul_i32 s37, s3, {213*3456}
        s_add_u32 s35, s35, s37
        v_mov_b32 v253, s35
        v_mov_b32 v254, s36
        s_and_b32 s35, s3, 1
        s_mul_i32 s35, s35, 1280
        v_lshl_add_u32 v205, v0, 2, s35
        s_lshr_b32 vcc_lo, s31, 1
        s_mov_b32 vcc_hi, 0""")
        wat = p.get("wat", 28)
        extra = [(wat, ("S", "global_load_dword v252, v252, s[18:19]")),
                 (wat + 2, ("S", "global_load_ushort v193, v192, s[22:23] offset:8")),
                 (wat + 2, ("S", "global_load_ushort v192, v192, s[22:23]")),
                 (wat + 2, ("S", "global_load_ushort v206, v199, s[24:25]"))]
        extra += [(wat + 4, ("S", f"global_load_dword v{176+u}, v205, s[4:5] offset:{256*u}")) for u in range(5)]
        if p["warm"]:
            extra += [(wat, ("S", "global_load_dword v253, v253, s[16:17]")),
                      (wat, ("S", "global_load_dword v254, v254, s[20:21]"))]
        st, pos, wait_for, lastchk = self.stream(False, nT, extra)
        go = a.lab("mlp_go"); dm = a.lab("dma")
        self.sect = "m"
        a(f"""s_cmp_eq_u32 s31, 1
        s_cbranch_scc1 {go}""")
        a.finish()
        a(f"""{go}:
        v_lshrrev_b32 v2, 3, v0
        v_and_b32 v3, 2, v2
        v_and_b32 v4, 7, v0
        v_xor_b32 v3, v3, v4
        v_mul_u32_u24 v2, 3456, v2
        s_mul_i32 s35, s3, {160*3456}
        s_lshl_b32 s36, s39, 7
        s_add_u32 s35, s35, s36
        v_lshl_add_u32 v16, v3, 4, v2
        v_add_u32 v16, s35, v16
        v_xor_b32 v3, 4, v3
        v_lshl_add_u32 v17, v3, 4, v2
        s_add_u32 s35, s35, {8*3456}
        v_add_u32 v17, s35, v17
        s_mul_i32 s37, s3, 20480
        s_add_u32 s37, s37, {L_W1}
        s_mul_i32 s54, s58, {p.get("rot", 3)}
        s_mov_b32 s57, 10
        s_barrier""")

        def w2loads():
            for t in range(nT, 8):
                self.emit(("T", t))
        if p.get("nomlpw"):
            a(f"s_branch {dm}_x")
        a(f"""{dm}:
        s_mul_i32 s55, s54, {16*3456}
        s_lshl_b32 s56, s54, 11
        s_add_u32 s56, s56, s37
        s_mov_b32 m0, s56
        v_add_u32 v2, s55, v16
        v_add_u32 v3, s55, v17
        global_load_lds_dwordx4 v2, s[16:17] {p["w1fl"]}
        s_add_u32 m0, s56, 1024
        s_add_u32 s54, s54, 1
        global_load_lds_dwordx4 v3, s[16:17] {p["w1fl"]}
        s_cmp_eq_u32 s54, 10
        s_cselect_b32 s54, 0, s54
        s_sub_u32 s57, s57, 1
        s_cmp_lg_u32 s57, 0
        s_cbranch_scc1 {dm}
        {dm}_x:""")
        a(f"""v_lshrrev_b32 v2, 4, v0
        v_and_b32 v12, 15, v0
        v_and_b32 v3, 1, v0
        v_lshlrev_b32 v21, 3, v0
        v_and_b32 v4, 16, v0
        v_xor_b32 v21, v21, v4
        s_lshl_b32 s35, s3, 9
        s_add_u32 s35, s35, {L_T1}
        v_bfe_u32 v4, v0, 1, 4
        v_lshl_add_u32 v22, v4, 5, s35
        v_lshl_add_u32 v22, v3, 2, v22
        v_lshrrev_b32 v4, 2, v0
        v_xor_b32 v4, v4, v0
        v_and_b32 v4, 8, v4
        v_lshl_add_u32 v22, v4, 1, v22
        s_mul_i32 s35, s3, {160 if p.get("sm", 1) else 320}
        v_mul_u32_u24 v4, {YS}, v3
        v_lshl_add_u32 v4, v2, 4, v4
        v_add_u32 v23, s35, v4
        v_bfe_u32 v4, v0, 2, 2
        v_lshl_add_u32 v4, v2, 3, v4
        v_lshlrev_b32 v4, 7, v4
        v_lshl_add_u32 v4, v3, 3, v4
        v_add_u32 v4, s37, v4
        v_bfe_u32 v3, v0, 3, 2
        v_bfe_u32 v5, v0, 1, 1
        v_lshl_add_u32 v3, v3, 1, v5""")
        for ct in range(4):
            a(f"v_xor_b32 v5, {2*ct}, v3\nv_lshl_add_u32 v{16+ct}, v5, 4, v4")
        a(f"""s_lshl_b32 s35, s38, 11
        s_add_u32 s35, s35, {A2}
        v_and_b32 v3, 56, v0
        v_lshlrev_b32 v3, 3, v3
        v_lshl_add_u32 v3, v0, 3, v3
        v_add_u32 v25, s35, v3
        s_and_b32 s36, s3, 1
        s_mul_i32 s35, s36, 5120
        s_add_u32 s35, s35, 2048
        v_lshl_add_u32 v2, v0, 4, s35
        s_mul_i32 s35, s36, {YS}
        v_lshl_add_u32 v26, v0, 2, s35""")
        if p.get("sm", 1):
            a(f"""v_lshrrev_b32 v3, 1, v0
            v_lshl_add_u32 v26, v3, 2, s35
            v_and_b32 v3, 1, v0
            v_mul_u32_u24 v3, 704, v3
            v_add_u32 v26, v26, v3
            v_bfe_u32 v3, v0, 1, 1
            v_mul_u32_u24 v4, 704, v3
            v_add_u32 v23, v23, v4
            v_mul_u32_u24 v3, 0xaaaa, v3
            v_add_u32 v204, 0x4444, v3
            v_add_u32 v3, 96, v23
            v_mov_b32 v4, {L_Z}
            v_cmp_gt_u32 vcc, 32, v0
            v_cndmask_b32 v24, v3, v4, vcc""")
        a(f"""s_mul_i32 s35, s36, 2560
        s_cmp_ge_u32 s3, 2
        s_cmov_b32 s35, {L_W1}
        v_lshl_add_u32 v27, v0, 3, s35
        v_lshlrev_b32 v197, 1, v199
        v_add_u32 v197, {L_H}, v197
        v_and_b32 v195, 0xffff0000, v252
        v_lshlrev_b32 v194, 16, v252
        v_lshlrev_b32 v192, 16, v192
        v_lshlrev_b32 v193, 16, v193
        v_mov_b32 v201, {hx(-2.0*math.sqrt(2.0/math.pi)*LOG2E)}
        v_mov_b32 v200, {hx(-2.0*math.sqrt(2.0/math.pi)*LOG2E*0.044715)}
        s_mov_b32 s60, 0
        s_mov_b32 s61, {MHI}
        s_mov_b32 s62, {hx(2.0 ** (KEXP - 1))}
        s_mov_b32 s63, {hx(2.0 ** (2 * KEXP - 4))}
        s_cmp_lt_u32 s3, 2
        s_cselect_b64 s[70:71], -1, 0
        s_mov_b32 s52, 0x05040100
        s_mov_b32 s53, 0x07060302""")
        for r in range(64, 80, 2):
            a(f"v_mov_b64 v[{r}:{r+1}], 0")
        for u in range(5):
            a(f"v_lshlrev_b32 v{XU[u]}, 16, v{176+u}")
            a(f"v_and_b32 v{XU[u]+1}, 0xffff0000, v{176+u}")

        def trreads():
            for ks in range(5):
                for ct in range(4):
                    for hf in range(2):
                        r = B1R + 4 * ((5 * ct + ks) if p.get("sm", 1) else (4 * ks + ct)) + 2 * hf
                        a(f"ds_read_b64_tr_b16 v[{r}:{r+1}], v{16+ct} offset:{(32*ks + 4*hf)*128}")

        def w2tr():
            for pp in range(4):
                a.transp(TR, B2R, pp)
        noln = a.lab("noln"); lp = a.lab("acc"); done = a.lab("acc_ok"); l2 = a.lab("acc_w"); nl2 = a.lab("noln2")
        for d_ in D1:
            a(f"v_mov_b64 v[{d_}:{d_+1}], 0\nv_mov_b64 v[{d_+2}:{d_+3}], 0")
        trf = p.get("trfirst", 0)
        if trf:
            a("s_waitcnt vmcnt(0)")
            a.stamp(15)
            trreads()

        def ldacc():
            for u in range(5):
                a(f"global_load_dwordx4 v[{AB+4*u}:{AB+3+4*u}], v2, s[28:29] offset:{1024*u-2048} sc1")
        a(f"""s_mov_b32 s42, 0
        s_branch {lp}_x
        {lp}:""")
        ldacc()
        a(f"""s_add_u32 s42, s42, 1
        s_cmp_lt_u32 s42, {SPIN}
        s_waitcnt vmcnt(0)
        s_cbranch_scc1 {l2}
        s_branch {done}
        {lp}_x:
        s_cmp_ge_u32 s3, 2
        s_barrier
        s_cbranch_scc1 {nl2}""")

        def cold_noln():
            a(f"{nl2}:")
            if not trf:
                a("s_waitcnt vmcnt(0)")
                a.stamp(15)
                trreads()
            else:
                a("s_nop 15\ns_nop 15")
            a(f"""s_and_b32 s35, s3, 1
            s_mul_i32 s35, s35, s58
            s_cmp_lg_u32 s35, 0
            s_cbranch_scc1 {noln}""")
            w2loads()
            a(f"s_branch {noln}")
        self.cold.append(cold_noln)
        a.stamp(7)
        a.clk(10)
        ldacc()
        if not trf:
            a("s_waitcnt vmcnt(5)")
            trreads()
        else:
            a("s_nop 15")
        w2loads()
        a(f"{l2}:")
        for u in range(5):
            b = AB + 4 * u
            a(f"""s_waitcnt vmcnt({4-u+8-nT})
            v_add_f64 v[{b}:{b+1}], v[{b}:{b+1}], -s[60:61]
            v_add_f64 v[{b+2}:{b+3}], v[{b+2}:{b+3}], -s[60:61]
            v_cvt_f32_f64 v{28+2*u}, v[{b}:{b+1}]
            v_cvt_f32_f64 v{29+2*u}, v[{b+2}:{b+3}]""")
            a.rnd(28+2*u, f"v{28+2*u}"); a.rnd(29+2*u, f"v{29+2*u}")
            a(f"v_pk_add_f32 v[{28+2*u}:{29+2*u}], v[{28+2*u}:{29+2*u}], v[{XU[u]}:{XU[u]+1}]")
            h0 = HR + 2 * u
            a.rnd(h0, f"v{28+2*u}"); a.rnd(h0+1, f"v{29+2*u}")
            if u == 0:
                a(f"v_pk_mul_f32 v[48:49], v[{h0}:{h0+1}], v[{h0}:{h0+1}]")
            else:
                a(f"v_pk_fma_f32 v[48:49], v[{h0}:{h0+1}], v[{h0}:{h0+1}], v[48:49]")
                a(f"v_pk_add_f32 v[46:47], v[{h0}:{h0+1}], v[{HR if u == 1 else 46}:{HR+1 if u == 1 else 47}]")

        a.clk(11)

        def hook():
            a(f"""v_cmp_ngt_f32 vcc, s63, v48
            s_cbranch_vccnz {lp}
            {done}:""")
            a.stamp(13)
            a.clk(12)
        a.ln(28, 40, 46, True, hook, H=HR)
        a.clk(13)
        a.ln(28, 40, 46, False)
        a.clk(14)
        assert L_Y == 0
        if p.get("sm", 1):
            a(f"""ds_write2_b32 v26, v40, v41 offset0:0 offset1:32
            ds_write2_b32 v26, v42, v43 offset0:64 offset1:96
            ds_write_b32 v26, v44 offset:512
            {noln}:
            s_waitcnt lgkmcnt(0)""")
            bar()
            a.stamp(18)
            a.clk(0)
            a("""ds_read_b128 v[28:31], v23
            ds_read_b128 v[32:35], v23 offset:64
            ds_read_b128 v[36:39], v24""")
            a.clk(1)
            hw = [f"ds_write_b64 v27, v[{HR+2*u}:{HR+2*u+1}] offset:{L_H + 512*u}" for u in range(5)]
            nw = 0
            if p.get("hpos", 1) == 0:
                a("s_mov_b64 exec, s[70:71]")
                for x_ in hw:
                    a(x_)
                a("s_mov_b64 exec, -1")
                nw = 5
            for kk in range(3):
                a(f"s_waitcnt lgkmcnt({2-kk+nw})")
                for ct in range(4):
                    r = B1R + 4 * (5 * ct + (0, 2, 3)[kk])
                    a(f"v_smfmac_f32_16x16x64_bf16 v[{D1[ct]}:{D1[ct]+3}], v[{28+4*kk}:{31+4*kk}], v[{r}:{r+7}], v204")
                    if p.get("hpos", 1) == 1 and nw < 5 and kk + ct > 0:
                        a(hw[nw]); nw += 1
        else:
            a(f"""ds_write2st64_b32 v26, v40, v41 offset0:0 offset1:1
            ds_write2st64_b32 v26, v42, v43 offset0:2 offset1:3
            ds_write_b32 v26, v44 offset:1024
            {noln}:
            s_waitcnt lgkmcnt(0)
            s_barrier""")
            a.stamp(18)
            for ks in range(5):
                a(f"ds_read_b128 v[{28+4*ks}:{31+4*ks}], v23 offset:{L_Y + 64*ks}")
            for ks in range(5):
                a(f"s_waitcnt lgkmcnt({4-ks})")
                for ct in range(4):
                    c = "0" if ks == 0 else f"v[{48+4*ct}:{51+4*ct}]"
                    r = B1R + 4 * (4 * ks + ct)
                    a(f"v_mfma_f32_16x16x32_bf16 v[{48+4*ct}:{51+4*ct}], v[{28+4*ks}:{31+4*ks}], v[{r}:{r+3}], {c}")
        a.clk(2)
        a("""s_lshr_b32 s35, s3, 1
        s_and_b32 s35, s35, s3
        s_mul_i32 s35, s35, s58
        s_cmp_lg_u32 s35, 0""")
        for ct in range(4):
            for b_ in range(2):
                a(f"v_add_f32_dpp v{48+b_}, v{D1[ct]+b_}, v{D1[ct]+2+b_} quad_perm:[0,1,2,3] row_mask:{hex(1 << ct)} bank_mask:0xf")
        idle = a.lab("idle")
        a("""ds_write2_b32 v22, v48, v49 offset0:0 offset1:2
        s_waitcnt vmcnt(4)""")
        a.transp(TR, B2R, 0); a.transp(TR, B2R, 1)
        a("s_waitcnt lgkmcnt(0)")
        a.clk(3)
        bar()
        a(f"s_cbranch_scc1 {idle}")
        a.clk(4)
        for w_ in range(4):
            a(f"ds_read_b64 v[{28+2*w_}:{29+2*w_}], v21 offset:{L_T1 + 512*w_}")
        a("ds_read2_b32 v[202:203], v197 offset0:0 offset1:4\ns_waitcnt vmcnt(0)")
        a.transp(TR, B2R, 2); a.transp(TR, B2R, 3)
        a.clk(5)
        a(f"""
        s_waitcnt lgkmcnt(3)
        v_pk_add_f32 v[28:29], v[28:29], v[30:31]
        s_waitcnt lgkmcnt(1)
        v_pk_add_f32 v[32:33], v[32:33], v[34:35]
        v_pk_add_f32 v[28:29], v[28:29], v[32:33]
        v_cvt_pk_bf16_f32 v28, 0, v28
        v_cvt_pk_bf16_f32 v29, 0, v29
        v_pk_add_f32 v[28:29], v[28:29], v[194:195]
        v_cvt_pk_bf16_f32 v28, 0, v28
        v_cvt_pk_bf16_f32 v29, 0, v29
        v_pk_mul_f32 v[30:31], v[28:29], v[28:29]
        v_pk_fma_f32 v[30:31], v[30:31], v[200:201], v[200:201] op_sel:[0,0,1] op_sel_hi:[1,0,1]
        v_pk_mul_f32 v[30:31], v[30:31], v[28:29]
        v_exp_f32 v30, v30
        v_exp_f32 v31, v31
        v_add_f32 v30, 1.0, v30
        v_add_f32 v31, 1.0, v31
        v_rcp_f32 v30, v30
        v_rcp_f32 v31, v31
        v_mul_f32 v28, v28, v30
        v_mul_f32 v29, v29, v31
        v_cvt_pk_bf16_f32 v28, v28, v29""")

        def afrag(G):
            for pp in range(4):
                sh = (4 * (G - pp)) % 16
                d = f"row_ror:{sh}" if sh else "quad_perm:[0,1,2,3]"
                a(f"v_mov_b32_dpp v{64+4*G+pp}, v28 {d} row_mask:0xf bank_mask:{hex(1 << G)}")
        a.clk(6)
        afrag(0)
        for G in range(4):
            if G < 3:
                afrag(G + 1)
            for z in range(2):
                c = "0" if G == 0 else f"v[{44+4*z}:{47+4*z}]"
                r = B2R + 4 * (4 * z + G)
                a(f"v_mfma_f32_16x16x32_bf16 v[{44+4*z}:{47+4*z}], v[{64+4*G}:{67+4*G}], v[{r}:{r+3}], {c}")
        a.clk(7)
        for z in range(2):
            a(f"v_add_f32_dpp v{32+z}, v{46+4*z}, v{44+4*z} row_ror:8 row_mask:0xf bank_mask:0x3")
        for z in range(2):
            a(f"v_add_f32_dpp v{32+z}, v{45+4*z}, v{47+4*z} row_ror:8 row_mask:0xf bank_mask:0xc")
        for z in range(2):
            a(f"""v_cvt_f64_f32 v[{36+2*z}:{37+2*z}], v{32+z}
            v_add_f64 v[{36+2*z}:{37+2*z}], v[{36+2*z}:{37+2*z}], s[60:61]
            global_atomic_add_x2 v[{40+2*z}:{41+2*z}], v25, v[{36+2*z}:{37+2*z}], s[28:29] offset:{1024*z} sc0 sc1""")
        a.stamp(14)
        a.clk(9)
        s0 = a.lab("nost"); s1 = a.lab("nost")
        a(f"""s_waitcnt vmcnt(1) lgkmcnt(0)
        v_lshl_add_u64 v[40:41], v[40:41], 0, v[36:37]
        v_add_f64 v[40:41], v[40:41], -s[60:61]
        v_cvt_f32_f64 v44, v[40:41]
        s_waitcnt vmcnt(0)
        v_lshl_add_u64 v[42:43], v[42:43], 0, v[38:39]
        v_cmp_gt_f32 s[66:67], s62, |v44|
        v_add_f64 v[42:43], v[42:43], -s[60:61]
        v_cvt_pk_bf16_f32 v44, 0, v44
        v_cvt_f32_f64 v45, v[42:43]
        v_cmp_gt_f32 s[68:69], s62, |v45|
        v_cvt_pk_bf16_f32 v45, 0, v45
        v_pk_add_f32 v[44:45], v[44:45], v[192:193]
        v_cvt_pk_bf16_f32 v44, 0, v44
        v_cvt_pk_bf16_f32 v45, 0, v45
        v_pk_add_f32 v[44:45], v[44:45], v[202:203]
        v_cvt_pk_bf16_f32 v44, v44, v45""")
        a.stamp(10)
        a(f"""s_mov_b64 exec, s[66:67]
        s_cbranch_execz {s0}
        global_store_short v199, v44, s[24:25]
        {s0}:
        s_mov_b64 exec, s[68:69]
        s_cbranch_execz {s1}
        global_store_short_d16_hi v199, v44, s[24:25] offset:8
        {s1}:""")
        if p.get("latebump"):
            a(f"""s_mov_b64 exec, -1
            s_or_b32 s35, s39, s38
            s_cmp_lg_u32 s35, 0
            s_cbranch_scc1 {idle}
            v_mov_b32 v2, {EP}
            v_mov_b32 v3, s43
            global_store_dword v2, v3, s[28:29] sc1
            {idle}:""")
        else:
            a.finish()
            a(f"""{idle}:
            s_cmp_lg_u32 s34, 6
            s_cbranch_scc1 {idle}_e
            v_mov_b32 v2, {EP}
            v_mov_b32 v3, s43
            global_store_dword v2, v3, s[28:29] sc1
            {idle}_e:""")
        a.finish()
        a.flush_cold()

    def compute(self):
        a = self
        self.sect = "a"
        QF = 144; DR = 160; SR = 16
        a("L_compute:")
        a("v_readfirstlane_b32 s43, v2")
        a.stamp(2)
        for qd in range(4):
            a(f"ds_read_b128 v[{QF+4*qd}:{QF+4*qd+3}], v{200+qd}")
        for qd in range(4):
            a(f"s_waitcnt lgkmcnt({3-qd})")
            for u in range(4):
                t = 4 * u + qd
                c = "0" if qd == 0 else f"v[{DR+4*u}:{DR+4*u+3}]"
                a(f"v_mfma_f32_16x16x32_bf16 v[{DR+4*u}:{DR+4*u+3}], v[{KR+4*t}:{KR+4*t+3}], v[{QF+4*qd}:{QF+4*qd+3}], {c}")
        for u in range(4):
            a(f"v_mov_b32_dpp v{SR+u}, v{DR+4*u} quad_perm:[0,0,0,0] {DPPF}")
        for r in (1, 2, 3):
            for u in range(4):
                a(f"v_add_f32_dpp v{SR+u}, v{DR+4*u+r}, v{SR+u} quad_perm:[{r},{r},{r},{r}] {DPPF}")
        for r in range(16, 20):
            a.rnd(r, f"v{r}")
        a("""v_pk_mul_f32 v[16:17], v[16:17], s[40:41] op_sel_hi:[1,0]
        v_pk_mul_f32 v[18:19], v[18:19], s[40:41] op_sel_hi:[1,0]""")
        for r in range(16, 20):
            a.rnd(r, f"v{r}")
        a(f"""v_max3_f32 v28, v16, v17, v18
        v_max_f32 v28, v28, v19
        v_max_f32_dpp v28, v28, v28 row_ror:4 {DPPF}
        v_max_f32_dpp v28, v28, v28 row_ror:8 {DPPF}
        v_mov_b32 v29, v28
        v_permlane32_swap_b32 v28, v29
        v_max_f32 v28, v28, v29
        v_mov_b32 v29, v28
        v_permlane16_swap_b32 v28, v29
        v_max_f32 v28, v28, v29
        v_pk_add_f32 v[16:17], v[16:17], v[28:29] op_sel_hi:[1,0] neg_lo:[0,1] neg_hi:[0,1]
        v_pk_add_f32 v[18:19], v[18:19], v[28:29] op_sel_hi:[1,0] neg_lo:[0,1] neg_hi:[0,1]
        v_pk_mul_f32 v[16:17], v[16:17], s[48:49] op_sel_hi:[1,0]
        v_pk_mul_f32 v[18:19], v[18:19], s[48:49] op_sel_hi:[1,0]
        v_exp_f32 v16, v16
        v_exp_f32 v17, v17
        v_exp_f32 v18, v18
        v_exp_f32 v19, v19
        v_pk_add_f32 v[30:31], v[16:17], v[18:19]
        v_add_f32 v30, v30, v31
        v_cvt_pk_bf16_f32 v24, 0, v16
        v_cvt_pk_bf16_f32 v25, 0, v17
        v_add_f32_dpp v30, v30, v30 row_ror:4 {DPPF}
        v_cvt_pk_bf16_f32 v26, 0, v18
        v_cvt_pk_bf16_f32 v27, 0, v19
        v_add_f32_dpp v30, v30, v30 row_ror:8 {DPPF}
        v_mov_b32 v31, v30
        v_pk_add_f32 v[16:17], v[16:17], v[24:25] neg_lo:[0,1] neg_hi:[0,1]
        v_pk_add_f32 v[18:19], v[18:19], v[26:27] neg_lo:[0,1] neg_hi:[0,1]
        v_permlane32_swap_b32 v30, v31
        v_add_f32 v30, v30, v31
        v_mov_b32 v31, v30
        v_cvt_pk_bf16_f32 v20, v24, v16
        v_cvt_pk_bf16_f32 v21, v25, v17
        v_permlane16_swap_b32 v30, v31
        v_add_f32 v29, v30, v31
        v_cvt_pk_bf16_f32 v22, v26, v18
        v_cvt_pk_bf16_f32 v23, v27, v19
        ds_write_b64 v12, v[28:29] offset:{L_ML}""")
        a.stamp(4)
        a("s_nop 1\ns_setpc_b64 s[50:51]")

    def ctrl(self):
        a = self
        p = self.p
        WQ = 80
        self.sect = "c"
        a("L_ctrl:")
        a.stamp(1)
        a.selectors()
        a("""s_getreg_b32 s44, hwreg(HW_REG_XCC_ID, 0, 3)
        v_lshl_add_u32 v21, v0, 4, s45
        s_waitcnt vmcnt(22)""")
        a.stamp(2)
        for b_, (src, X) in enumerate(((24, 36), (30, 48))):
            for i in range(5):
                a(f"v_lshlrev_b32 v{X+2*i}, 16, v{src+i}")
                a(f"v_and_b32 v{X+2*i+1}, 0xffff0000, v{src+i}")
            a.ln(X, src, 60, False)
            a(f"""v_lshlrev_b32 v2, 2, v0
            ds_write_b64 v1, v[{src}:{src+1}] offset:{L_Y + b_*YS}
            ds_write_b64 v1, v[{src+2}:{src+3}] offset:{L_Y + b_*YS + 512}
            ds_write_b32 v2, v{src+4} offset:{L_Y + b_*YS + 1024}""")
        a(f"""s_mul_i32 s35, s33, 160
        v_lshrrev_b32 v2, 4, v0
        v_mul_u32_u24 v2, 40, v2
        v_bfe_u32 v3, v0, 3, 1
        v_mul_u32_u24 v3, {YS}, v3
        v_add3_u32 v2, v2, v3, s35
        s_waitcnt lgkmcnt(0)""")
        for i in range(5):
            a(f"ds_read_b64 v[{36+2*i}:{37+2*i}], v2 offset:{L_Y + 8*i}")
        def tagc(w):
            a(f"""s_waitcnt vmcnt({w})
            v_readfirstlane_b32 s43, v15
            s_add_u32 s43, s43, 1
            s_and_b32 s43, s43, 0x1fffffff
            s_mov_b32 s49, 0xffffff00
            v_mov_b32 v13, 0
            v_mov_b32 v245, s43
            v_and_b32 v2, 1, v0
            v_lshl_add_u32 v2, v2, 4, 8
            v_lshrrev_b32 v246, v2, v245
            v_add_u32 v246, s43, v246
            v_and_b32 v246, 0xff, v246
            v_add_u32 v2, 8, v2
            v_min_u32 v2, 31, v2
            v_lshrrev_b32 v247, v2, v245
            v_add_u32 v247, s43, v247
            v_and_b32 v247, 0xff, v247
            v_and_b32 v2, 3, v0
            v_mul_u32_u24 v2, 12, v2""")
            for k in range(4):
                a(f"""v_add_u32 v3, {3*(k+1)}, v2
                v_min_u32 v3, 31, v3
                v_lshrrev_b32 v3, v3, v245
                v_add_u32 v3, s43, v3
                s_lshl_b32 s35, s44, {3-k}
                s_and_b32 s35, s35, 8
                v_and_or_b32 v{56+k}, v3, 7, s35""")
            a(f"""s_lshl_b32 s44, s44, 29
            s_or_b32 s44, s44, s43
            s_mov_b32 s43, s44
            v_mov_b32 v245, s44
    """)
        tagc(21 - self.epos)
        a("""        s_waitcnt lgkmcnt(0)""")
        a.stamp(3)
        FR = 160

        def frag(D, P, odd):
            for r in range(4):
                a(f"v_perm_b32 v{D+r}, v{P}, v{P}, v{(8 if odd else 4)+r}")
        frag(FR, 36, 0)
        for t in range(20):
            if t + 1 < 20:
                frag(FR + 4 * ((t + 1) % 4), 36 + (t + 1) // 2, (t + 1) & 1)
            a(f"s_waitcnt vmcnt({19-t+(2 if t < self.epos else 0)})")
            c = "0" if t == 0 else "v[48:51]"
            a(f"v_mfma_f32_16x16x32_bf16 v[48:51], v[{FR+4*(t%4)}:{FR+4*(t%4)+3}], v[{WQ+4*t}:{WQ+4*t+3}], {c}")
        qfl = p.get("qfl", "") if p["fast"] else "sc1"
        a(f"""v_and_or_b32 v52, v48, -16, v56
        v_and_or_b32 v53, v49, -16, v57
        v_and_or_b32 v54, v50, -16, v58
        v_and_or_b32 v55, v51, -16, v59
        global_store_dwordx4 v21, v[52:55], s[28:29] {qfl}
""")
        oppre = f"""s_lshl_b32 s45, s32, 13
        s_add_u32 s45, s45, {OB}
        s_lshl_b32 s35, s33, 2
        v_and_b32 v2, 3, v0
        v_add_u32 v2, s35, v2
        v_cmp_lt_u32 vcc, 3, v0
        v_cndmask_b32 v2, v2, 32, vcc
        v_lshl_add_u32 v2, v2, 7, s45
        global_load_dword v253, v2, s[28:29] {p.get("prefl", "")}"""
        if p["oppre"] == 1:
            a(oppre)
        a.stamp(4)
        a(self.ROLES)
        qg = a.lab("qg"); qgd = a.lab("qg_ok"); qns = a.lab("qg_nosc1"); qf = a.lab("qg_fast")
        qt = a.lab("qt"); qtd = a.lab("qt_ok")
        zi = a.lab("zinit"); zf = a.lab("zflag")
        self.cold.append(lambda: a(f"""{zi}:
        s_mul_i32 s35, s30, 5120
        s_add_u32 s35, s35, 2048
        v_lshl_add_u32 v2, v0, 4, s35
        s_mov_b32 s35, {INIT1}
        s_cmp_ge_u32 s30, 4
        s_cmov_b32 s35, {INIT2}
        v_mov_b32 v64, 0
        v_mov_b32 v65, s35
        v_mov_b32 v66, 0
        v_mov_b32 v67, s35
        global_store_dwordx4 v2, v[64:67], s[28:29] offset:-2048 sc1
        global_store_dwordx4 v2, v[64:67], s[28:29] offset:-1024 sc1
        global_store_dwordx4 v2, v[64:67], s[28:29] sc1
        global_store_dwordx4 v2, v[64:67], s[28:29] offset:1024 sc1
        global_store_dwordx4 v2, v[64:67], s[28:29] offset:2048 sc1
        s_mul_i32 s35, s30, 5120
        s_add_u32 s35, s35, {PC}
        v_min_u32 v2, 39, v0
        v_lshl_add_u32 v2, v2, 7, s35
        global_store_dword v2, v64, s[28:29] sc1
        s_branch {zi}_r
        {zf}:
        s_lshl_b32 s35, s30, 2
        s_add_u32 s35, s35, {ZF}
        v_mov_b32 v2, s35
        s_waitcnt vmcnt(0)
        global_store_dword v2, v245, s[28:29] sc1
        s_branch {zf}_r"""))
        assert A2 == 4 * 5120
        a(f"""s_and_b32 s58, s34, 31
        s_cmp_eq_u32 s58, 31
        s_cbranch_scc1 {zi}
        {zi}_r:
        v_lshrrev_b32 v3, 5, v0
        v_and_b32 v22, 31, v0
        v_and_b32 v2, 7, v0
        v_lshlrev_b32 v2, 2, v2
        v_add_u32 v23, {ZF}, v2
        s_lshl_b32 s35, s32, 15
        s_lshr_b32 s38, s33, 2
        s_lshl_b32 s38, s38, 9
        s_add_u32 s35, s35, s38
        s_add_u32 s35, s35, {BK}
        v_lshlrev_b32 v2, 12, v3
        v_lshl_add_u32 v2, v22, 4, v2
        v_add_u32 v60, s35, v2
        v_add_u32 v61, 8192, v60
        v_add_u32 v62, 8192, v61
        v_add_u32 v63, 8192, v62
        v_and_b32 v2, 15, v0
        v_lshlrev_b32 v2, 4, v2
        v_and_b32 v22, 16, v0
        v_lshrrev_b32 v22, 1, v22
        v_add_u32 v2, v2, v22
        v_lshl_add_u32 v22, v3, 2, v2
        s_mov_b32 s42, 0
        {"s_branch " + qtd if p["qtrig"] < 0 else ""}
        {qt}:
        ds_read_b128 v[36:39], v13 offset:{L_QT}
        ds_read_b128 v[40:43], v13 offset:{L_QT+16}
        s_add_u32 s42, s42, 1
        s_waitcnt lgkmcnt(0)
        v_min3_u32 v36, v36, v38, v40
        v_min_u32 v36, v36, v42
        v_cmp_eq_u32 vcc, 0, v36
        s_cbranch_vccz {qtd}
        s_cmp_lt_u32 s42, {SPIN*20}
        s_cbranch_scc1 {qt}
        {qtd}:
        s_mov_b32 s42, 0""")
        a.stamp(5)
        if p.get("noq"):
            a(f"v_mov_b32 v36, 0\ns_branch {qgd}")
        a(f"{qg}:")
        for u in range(4):
            a(f"global_load_dwordx4 v[{80+4*u}:{83+4*u}], v{60+u}, s[28:29] sc1")
        a("s_add_u32 s42, s42, 1\ns_waitcnt vmcnt(0)")
        a("v_xor_b32 v36, v56, v80\nv_xor_b32 v37, v57, v81")
        for r in range(82, 96):
            a(f"v_bitop3_b32 v{36+r%2}, v{36+r%2}, v{r}, v{56+r%4} bitop3:0xf6")
        a(f"""v_or_b32 v36, v36, v37
        v_and_b32 v37, 7, v36
        v_and_b32 v36, 15, v36
        v_cmp_ne_u32 vcc, 0, v37
        s_cbranch_vccz {qgd}
        s_cmp_lg_u32 s42, {p['qslow']}
        s_cbranch_scc1 {qns}
        global_store_dwordx4 v21, v[52:55], s[28:29] sc1
        {qns}:
        s_cmp_lt_u32 s42, {SPIN}
        s_cbranch_scc1 {qg}
        {qgd}:""")
        for r in range(80, 96):
            a(f"v_and_b32 v{r}, -16, v{r}")
        a(f"""v_pk_add_f32 v[80:81], v[80:81], v[84:85]
        v_pk_add_f32 v[82:83], v[82:83], v[86:87]
        v_pk_add_f32 v[88:89], v[88:89], v[92:93]
        v_pk_add_f32 v[90:91], v[90:91], v[94:95]
        v_pk_add_f32 v[80:81], v[80:81], v[88:89]
        v_pk_add_f32 v[82:83], v[82:83], v[90:91]
        v_permlane32_swap_b32 v80, v82
        v_permlane32_swap_b32 v81, v83
        v_pk_add_f32 v[80:81], v[80:81], v[82:83]
        v_cvt_pk_bf16_f32 v80, v80, v81
        ds_write_b32 v22, v80 offset:{L_Q}
        v_cmp_ne_u32 vcc, 0, v36
        v_mov_b32 v14, s44
        s_nop 0
        s_cmp_lg_u64 vcc, 0
        s_cselect_b32 s46, 1, {0 if p['fast'] else 1}
        s_cselect_b32 s35, 1, {p['hslow'] + 1 if p['fast'] else 1}
        v_mov_b32 v15, s35
        s_waitcnt lgkmcnt(0)
        ds_write_b64 v13, v[14:15] offset:{L_QF}
        s_cbranch_scc0 {qf}
        global_store_dwordx4 v21, v[52:55], s[28:29] sc1
        {qf}:
        s_cmp_eq_u32 s58, 31
        s_cbranch_scc1 {zf}
        {zf}_r:""")
        if p["oppre"] == 2:
            a(oppre)
        a.stamp(6)
        mw = a.lab("mw"); mwd = a.lab("mw_ok"); msl = a.lab("ml_slow"); msd = a.lab("ml_done")
        a(f"""s_mov_b32 s40, {hx(LOG2E)}
        s_lshl_b32 s35, s33, 4
        s_add_u32 s35, s35, s45
        s_add_u32 s36, s35, 4096
        v_mov_b32 v20, s36
        s_and_b32 s36, s33, 4
        s_lshl_b32 s36, s36, 4
        s_add_u32 s35, s35, s36
        v_lshrrev_b32 v2, 2, v0
        v_lshl_add_u32 v21, v2, 8, s35
        v_and_b32 v2, 2, v0
        v_lshl_add_u32 v21, v2, 5, v21
        v_and_b32 v2, 1, v0
        v_lshl_add_u32 v21, v2, 3, v21
        s_setprio 0
        s_mov_b32 s42, 0
        {mw}:
        ds_read_b128 v[36:39], v13 offset:{L_ML}
        ds_read_b128 v[40:43], v13 offset:{L_ML+16}
        s_add_u32 s42, s42, 1
        s_waitcnt lgkmcnt(0)
        v_min3_u32 v44, v37, v39, v41
        v_min_u32 v44, v44, v43
        v_cmp_eq_u32 vcc, 0, v44
        s_cbranch_vccz {mwd}
        s_cmp_lt_u32 s42, {SPIN*20}
        s_cbranch_scc1 {mw}
        {mwd}:
        s_setprio 3
        v_max3_f32 v44, v36, v38, v40
        v_max_f32 v44, v44, v42""")
        for i in range(4):
            a(f"v_sub_f32 v{36+2*i}, v{36+2*i}, v44")
        for i in range(4):
            a(f"v_mul_f32 v{36+2*i}, s40, v{36+2*i}")
        for i in range(4):
            a(f"v_exp_f32 v{36+2*i}, v{36+2*i}")
        a(f"""v_mul_f32 v46, v36, v37
        v_mov_b32 v45, s44
        v_fmac_f32 v46, v38, v39
        v_mov_b32 v47, s44
        v_fmac_f32 v46, v40, v41
        v_fmac_f32 v46, v42, v43
        s_cmp_lg_u32 s46, 0
        s_cbranch_scc1 {msl}
        global_store_dwordx4 v20, v[44:47], s[28:29]
        s_branch {msd}
        {msl}:
        global_store_dwordx4 v20, v[44:47], s[28:29] sc1
        {msd}:""")
        a.stamp(8)
        a("s_barrier")
        for u in range(4):
            a(f"ds_read2st64_b64 v[{48+4*u}:{51+4*u}], v1 offset0:{L_RED//512 + 2*u} offset1:{L_RED//512 + 2*u + 1}")
        osl = a.lab("op_slow"); osd = a.lab("op_done"); nf = a.lab("notfree"); dm = a.lab("dma"); dm2 = a.lab("dma2")
        a(f"""s_cmp_lg_u32 s46, 0
        s_waitcnt lgkmcnt(2)
        v_pk_add_f32 v[48:49], v[48:49], v[50:51]
        v_pk_add_f32 v[52:53], v[52:53], v[54:55]
        v_pk_mul_f32 v[48:49], v[48:49], v[36:37] op_sel_hi:[1,0]
        s_waitcnt lgkmcnt(0)
        v_pk_add_f32 v[56:57], v[56:57], v[58:59]
        v_pk_fma_f32 v[48:49], v[52:53], v[38:39], v[48:49] op_sel_hi:[1,0,1]
        v_pk_add_f32 v[60:61], v[60:61], v[62:63]
        v_pk_fma_f32 v[48:49], v[56:57], v[40:41], v[48:49] op_sel_hi:[1,0,1]
        v_pk_fma_f32 v[48:49], v[60:61], v[42:43], v[48:49] op_sel_hi:[1,0,1]
        v_and_or_b32 v48, v48, s49, v246
        v_and_or_b32 v49, v49, s49, v247
        s_cbranch_scc1 {osl}
        global_store_dwordx2 v21, v[48:49], s[28:29]
        {osd}:""")
        self.cold.append(lambda: a(f"""{osl}:
        global_store_dwordx2 v21, v[48:49], s[28:29] sc1
        s_branch {osd}"""))
        a.stamp(10)
        a("""s_cmp_lg_u32 s31, 0
        s_cbranch_scc1 L_ctrl_n""")
        self.ctrl_wo()
        a.flush_cold()
        a(f"""L_ctrl_n:
        {"buffer_wbl2 sc1" if p.get("wbl2") else ""}
        s_cmp_eq_u32 s31, 1
        s_cbranch_scc1 {nf}""")
        a.finish()
        a(f"""{nf}:
        global_load_dword v24, v23, s[28:29] sc1
        s_barrier
        s_waitcnt vmcnt(0)""")
        self.zcheck()
        if p.get("probe", 2) == 2:
            pb = a.lab("probe"); pbd = a.lab("probe_ok")
            nc = p.get("nc", 5)
            R = p.get("R", 27)
            if R == 27:
                a("s_mov_b32 s38, s39")
            elif R > 27:
                a(f"""s_mul_i32 s38, s39, 3
                s_add_u32 s38, s38, s33
                s_sub_u32 s38, s38, 5
                s_cmp_ge_u32 s38, {R}
                s_cselect_b32 s35, {R}, 0
                s_sub_u32 s38, s38, s35""")
            else:
                a(f"s_lshr_b32 s38, s39, 1")
            a(f"""s_mul_i32 s38, s38, 640
            s_add_u32 s38, s38, {PC}
            s_mov_b32 s42, {p['gslow'] * (4 if p.get("ppipe") else 1)}
            s_mov_b64 s[64:65], 0
            s_mov_b64 s[66:67], 0
            s_mov_b32 s68, 0
            {pb}:""")
            if p.get("ppipe"):
                a("s_waitcnt lgkmcnt(10)")
            for c in range(nc):
                if p.get("pskip", 1):
                    sk = a.lab("psk")
                    a(f"s_cmp_eq_u32 s{64+c}, 32\ns_cbranch_scc1 {sk}")
                a(f"s_load_dword s{64+c}, s[28:29], s38 offset:{p.get('pstr', 128)*c} glc")
                if p.get("pskip", 1):
                    a(f"{sk}:")
            a(f"""s_sub_u32 s42, s42, 1
            s_cmp_eq_u32 s42, 0
            {"s_sleep %d" % p["ppipe"] if p.get("ppipe") else "s_waitcnt lgkmcnt(0)"}
            s_cbranch_scc1 {pbd}
            s_mov_b32 s70, s64""")
            for c in range(1, nc):
                a(f"s_add_u32 s70, s70, s{64+c}")
            a(f"""s_cmp_lg_u32 s70, {32 * nc}
            s_cbranch_scc1 {pb}
            {pbd}:""")
            a.stamp(7)
        elif p.get("probe", 2):
            pb = a.lab("probe"); pbd = a.lab("probe_ok")
            a(f"""s_mul_i32 s35, s39, 3
            s_add_u32 s35, s35, s33
            s_and_b32 s36, s35, 7
            s_lshl_b32 s36, s36, 7
            s_bitcmp1_b32 s35, 3
            s_cselect_b32 s35, 5120, 0
            s_add_u32 s38, s35, s36
            s_mov_b32 s42, {p['gslow']}
            {pb}:""")
            for c in range(5):
                a(f"s_load_dword s{64+c}, s[28:29], s38 offset:{1024*c + 4} glc")
            a(f"""s_sub_u32 s42, s42, 1
            s_cmp_eq_u32 s42, 0
            s_waitcnt lgkmcnt(0)
            s_cbranch_scc1 {pbd}
            s_xor_b32 s64, s64, {MHI}
            s_xor_b32 s65, s65, {MHI}
            s_xor_b32 s66, s66, {MHI}
            s_xor_b32 s67, s67, {MHI}
            s_xor_b32 s68, s68, {MHI}
            s_or_b64 s[64:65], s[64:65], s[66:67]
            s_or_b32 s64, s64, s68
            s_or_b32 s64, s64, s65
            s_lshr_b32 s64, s64, 20
            s_cbranch_scc1 {pb}
            {pbd}:""")
            a.stamp(7)
        a("s_barrier")
        a.finish()
        a.flush_cold()

    def zcheck(self):
        a = self
        zc = a.lab("zc"); zr = a.lab("zc_re"); zd = a.lab("zc_ok")
        a(f"""s_mov_b32 s42, 0
        {zc}:
        v_xor_b32 v24, s44, v24
        v_lshlrev_b32 v24, 3, v24
        v_cmp_ne_u32 vcc, 0, v24
        s_cbranch_vccnz {zr}
        {zd}:""")
        self.cold.append(lambda: a(f"""{zr}:
        global_load_dword v24, v23, s[28:29] sc1
        s_add_u32 s42, s42, 1
        s_cmp_ge_u32 s42, {SPIN}
        s_waitcnt vmcnt(0)
        s_cbranch_scc1 {zd}
        s_branch {zc}"""))

    def ctrl_wo(self):
        a = self
        p = self.p
        a("s_barrier")
        if p.get("probe", 2) != 2:
            a("global_load_dword v24, v23, s[28:29] sc1\ns_waitcnt vmcnt(0)")
            self.zcheck()
        else:
            sk = a.lab("ow_sk")
            a(f"""{"s_setprio 0" if p.get("zlate") else ""}
            {"s_nop 15" if p.get("zlate") else ""}
            global_load_dword v24, v23, s[28:29] sc1
            v_mul_u32_u24 v2, 640, v0
            s_lshl_b32 s35, s33, 7
            s_add_u32 s35, s35, {PC}
            v_add_u32 v2, s35, v2
            v_mov_b32 v3, 1
            s_waitcnt vmcnt(0)""")
            self.zcheck()
            a(f"""s_cmp_ge_u32 s33, {p.get("nc", 5)}
            s_mov_b32 exec_lo, {hex(((1 << p.get("R", 27)) - 1) & 0xffffffff)}
            s_mov_b32 exec_hi, {hex(((1 << p.get("R", 27)) - 1) >> 32)}
            s_barrier
            s_cbranch_scc1 {sk}
            global_atomic_add v2, v3, s[28:29] sc1
            {sk}:""")
            if p.get("b3c", 2):
                a("s_barrier")
            a.stamp(9)
            a.finish()
            return
        a("s_barrier")
        a.finish()

    def write(self, fn):
        self.build()
        body = process(self.L)
        H = ["; fused decode block: one persistent launch, 256 workgroups x 5 waves",
             f"; @launch grid=(256,1,1) block=(320,1,1) lds={LDS_SIZE}",
             '.amdgcn_target "amdgcn-amd-amdhsa--gfx950"', ".text", f".globl {NAME}_kernel", ".p2align 8",
             f".type {NAME}_kernel,@function", f"{NAME}_kernel:"]
        T = ['.section .rodata,"a"', ".p2align 6", f".amdhsa_kernel {NAME}_kernel",
             f"  .amdhsa_next_free_vgpr 256", f"  .amdhsa_next_free_sgpr {102 if (self.diag or self.p.get('holdat')) else self.p.get('nsgpr', 102)}", "  .amdhsa_accum_offset 256",
             "  .amdhsa_group_segment_fixed_size 0", "  .amdhsa_kernarg_size 104", "  .amdhsa_user_sgpr_count 2",
             "  .amdhsa_user_sgpr_kernarg_segment_ptr 1", "  .amdhsa_system_sgpr_workgroup_id_x 1",
             "  .amdhsa_float_denorm_mode_32 3", "  .amdhsa_float_denorm_mode_16_64 3", ".end_amdhsa_kernel"]
        lines = [(l if l.endswith(":") or l.startswith(".") else "    " + l) for l in body]
        open(fn, "w").write("\n".join(H + lines + T) + "\n")


if __name__ == "__main__":
    out = sys.argv[1] if len(sys.argv) > 1 else "k23.s"
    kw = {}
    diag = False
    for x in sys.argv[2:]:
        if x == "diag":
            diag = True
        else:
            k, v = x.split("=", 1)
            kw[k] = eval(v)
    G(diag=diag, **kw).write(out)
```

```python
import sys, struct, math
from hz import process

NAME = "sequential_preLN__sliding_block_cached__mixer_channel_mlp__decode"


def hx(x):
    return "0x%08x" % struct.unpack("<I", struct.pack("<f", x))[0]


A1 = 0x00000
A2 = 0x05000
PC = 0x0A000
EP = 0x80000
ZF = 0x81000
BK = 0x100000
OB = 0x40000
STAMP = 0x8000000
L_Y = 0x0000; YS = 1408
L_Q = 0x0B00; L_ML = 0x0C00; L_Z = 0x0C80; L_QF = 0x0C90; L_QT = 0x0CC0; L_GO = 0x0CF0
L_RED = 0x1000; L_RED2 = 0x2000; L_T1 = 0x3000
L_H = 0x1000
L_W1 = 0x4000
LDS_SIZE = L_W1 + 81920
KR, VR, FRG, TR = 16, 80, 144, 208
LOG2E = 1.4426950408889634
SPIN = 400000
DPPF = "row_mask:0xf bank_mask:0xf"
KEXP = 22
MHI = ((1023 + KEXP) << 20) | (1 << 19)
for miss in range(1, 55):
    for slop in (-1, 0):
        top = (((1 - miss) * MHI + slop) & 0xffffffff) >> 20
        top2 = (((1 - miss) * MHI + (1 << 19) - 1 + (slop << 19)) & 0xffffffff) >> 20
        for t_ in (top, top2):
            assert t_ != 1023 + KEXP, miss
INIT1 = (-31 * MHI) & 0xffffffff
INIT2 = (-26 * MHI) & 0xffffffff

HEADER = """; Pre-LN sliding-window attention + pre-LN channel MLP, decode step (B=2, D=640, 32 heads x 128, window 1024, F=1728).
; earlier launch are never taken for this launch's. Stores stay in the L2 only when all readers were seen to run on
; doubles (1.5*2^22 + v): exact, order independent, and readable as a double only once every add has arrived.
"""


class G:
    def __init__(self, diag=False, **kw):
        self.L = []
        self.diag = diag
        self.n = 0
        self.sect = "a"
        self.cold = []
        self.p = dict(F=11, Pw=9, Pw2=10, Pn=8, Pn2=9, tsl=(11, 17, 23, 29, 32, 32, 32, 32), mat=32, chk=31,
                      qtrig=3, qslow=3, hslow=100, cslow=60, lfpos=2, fast=True, nt="nt", w1fl="", warm=True,
                      mlpT=0, b3b=True, atrig=1, actrl=2, hpipe=False, sp1=0, Pf=0, tfl="", tsn=None, n1=0, gf=True, afpos=1, gslow=40, gpre=8, gfv=False, oppre=1)
        self.p.update(kw)

    def __call__(self, s):
        for ln in s.split("\n"):
            ln = ln.strip()
            if ln:
                self.L.append(ln)

    def lab(self, p):
        self.n += 1
        return f"L_{p}_{self.n}"

    def stamp(self, idx):
        p = self.p
        h = p.get("holdat")
        if h is not None and not self.diag:
            if (self.sect, idx) == tuple(h[:2]):
                self("s_memrealtime s[96:97]\ns_waitcnt lgkmcnt(0)\ns_mov_b32 s95, 1")
            return
        if not self.diag or (p.get("lite") and idx != 31):
            return
        if p.get("only") is not None and idx != 31 and (self.sect + str(idx)) not in p["only"].split(","):
            return
        self(f"s_memrealtime s[100:101]\ns_waitcnt lgkmcnt(0)\nv_writelane_b32 v255, s100, {idx}")

    def clk(self, where):
        c = self.p.get("clk")
        if self.diag and c and where in c:
            self(f"s_memtime s[100:101]\ns_waitcnt lgkmcnt(0)\nv_writelane_b32 v255, s100, {25 + c.index(where)}")

    def note(self, idx):
        if self.diag:
            self(f"v_writelane_b32 v255, s42, {idx}")

    def finish(self):
        if self.diag:
            self.stamp(31)
            self("s_branch L_dump")
        elif self.p.get("holdat") is not None:
            self("s_branch L_hold")
        else:
            self("s_endpgm")

    def rnd(self, d, src):
        self(f"v_cvt_pk_bf16_f32 v{d}, 0, {src}")

    def ln(self, X, P, T, keep, hook=None, fill=(), H=None):
        a = self
        pr = lambda r: f"v[{r}:{r+1}]"
        if H is None:
            H = X
            a(f"v_pk_add_f32 {pr(T)}, {pr(X)}, {pr(X+2)}")
            a(f"v_pk_mul_f32 {pr(T+2)}, {pr(X)}, {pr(X)}")
            for i in (4, 6, 8):
                a(f"v_pk_add_f32 {pr(T)}, {pr(T)}, {pr(X+i)}")
                a(f"v_pk_fma_f32 {pr(T+2)}, {pr(X+i-2)}, {pr(X+i-2)}, {pr(T+2)}")
            a(f"v_pk_fma_f32 {pr(T+2)}, {pr(X+8)}, {pr(X+8)}, {pr(T+2)}")
        a(f"v_add_f32 v{T+2}, v{T+2}, v{T+3}")
        a(f"v_add_f32 v{T}, v{T}, v{T+1}")
        if hook:
            hook()
        a(f"v_permlane32_swap_b32 v{T}, v{T+2}")
        a(f"v_add_f32 v{T}, v{T}, v{T+2}")
        fill = list(fill)
        for d in ("quad_perm:[1,0,3,2]", "quad_perm:[2,3,0,1]", "row_half_mirror", "row_mirror"):
            if fill:
                a(fill.pop(0))
            a(f"v_add_f32_dpp v{T}, v{T}, v{T} {d} {DPPF}")
        a(f"v_add_f32_dpp v{T}, v{T}, v{T} row_bcast:15 row_mask:0xa bank_mask:0xf")
        a(f"v_mul_f32 v{T}, {hx(1.0/640.0)}, v{T}")
        a(f"v_readlane_b32 s41, v{T}, 63")
        a(f"v_readlane_b32 s40, v{T}, 31")
        a(f"v_mov_b32 v{T+2}, s41")
        a.rnd(T, "s40")
        a(f"v_fma_f32 v{T+2}, -s40, s40, v{T+2}")
        sub = lambda i: a(f"v_pk_add_f32 {pr(X+i)}, {pr(H+i)}, {pr(T)} op_sel_hi:[1,0] neg_lo:[0,1] neg_hi:[0,1]")
        sub(0)
        a(f"v_max_f32 v{T+2}, 0, v{T+2}")
        sub(2)
        a.rnd(T+2, f"v{T+2}")
        sub(4)
        a(f"v_add_f32 v{T+2}, {hx(1e-5)}, v{T+2}")
        sub(6)
        a.rnd(T+2, f"v{T+2}")
        sub(8)
        a(f"v_sqrt_f32 v{T+2}, v{T+2}")
        a.rnd(X, f"v{X}"); a.rnd(X+1, f"v{X+1}")
        a.rnd(T+2, f"v{T+2}")
        a.rnd(X+2, f"v{X+2}")
        a(f"v_rcp_f32 v{T+2}, v{T+2}")
        for i in range(3, 10):
            a.rnd(X+i, f"v{X+i}")
        for i in range(5):
            a(f"v_pk_mul_f32 {pr(X+2*i)}, {pr(X+2*i)}, {pr(T+2)} op_sel_hi:[1,0]")
        if keep:
            for i in range(10):
                a.rnd(X+i, f"v{X+i}")
        else:
            for i in range(5):
                a(f"v_cvt_pk_bf16_f32 v{P+i}, v{X+2*i}, v{X+2*i+1}")

    def selectors(self):
        a = self
        a("""v_and_b32 v2, 1, v0
        v_cmp_eq_u32 vcc, 1, v2
        v_mov_b32 v2, 0x0c0c0100
        v_mov_b32 v3, 0x01000c0c
        v_cndmask_b32 v12, v2, v3, vcc
        v_mov_b32 v2, 0x0c0c0302
        v_mov_b32 v3, 0x03020c0c
        v_cndmask_b32 v13, v2, v3, vcc
        v_bfe_u32 v2, v0, 1, 2
        v_mov_b32 v3, 0x0c0c0c0c""")
        for r in range(4):
            a(f"v_cmp_eq_u32 vcc, {r}, v2")
            a(f"v_cndmask_b32 v{4+r}, v3, v12, vcc")
            a(f"v_cndmask_b32 v{8+r}, v3, v13, vcc")

    def dlayout(self, dst, t, bstride):
        self(f"""v_and_b32 v{dst}, 15, v0
        v_lshlrev_b32 v{dst}, 5, v{dst}
        v_and_b32 v{t}, 16, v0
        v_add_u32 v{dst}, v{dst}, v{t}
        v_lshrrev_b32 v{t}, 5, v0
        v_mul_u32_u24 v{t}, {bstride}, v{t}
        v_add_u32 v{dst}, v{dst}, v{t}""")

    def rowaddr(self, dst):
        self(f"""v_lshrrev_b32 v2, 4, v0
        v_mul_u32_u24 v2, 10240, v2
        v_and_b32 v3, 15, v0
        v_lshl_add_u32 v2, v3, 4, v2
        v_add_u32 v{dst}, s36, v2""")

    ROLES = """s_and_b32 s39, s32, 3
        s_lshl_b32 s39, s39, 3
        s_add_u32 s39, s39, s30
        s_cmp_lt_u32 s39, 27
        s_cselect_b32 s31, 1, 2
        s_min_u32 s39, s39, 26
        s_cmp_lt_u32 s33, 5
        s_cselect_b32 s31, 0, s31"""

    def gather(self, name, n, loads, R, first_issued=False):
        a = self
        lp = a.lab(name); dn = a.lab(name + "_ok"); re = a.lab(name + "_re")
        a("s_mov_b32 s42, 0")
        if first_issued:
            a(f"s_branch {lp}")
        a(f"{re}:")
        loads()
        a(f"s_add_u32 s42, s42, 1\ns_cmp_ge_u32 s42, {SPIN}\ns_cbranch_scc1 {dn}")
        a(f"{lp}:")
        for u in range(n):
            a(f"s_waitcnt vmcnt({n-1-u})")
            b = R + 4*u
            for r in range(b, b + 4):
                a(f"v_xor_b32 v{r}, s{64 + (r - b)}, v{r}")
            if u == 0:
                a(f"v_or_b32 v26, v{b}, v{b+1}")
            else:
                a(f"v_or3_b32 v26, v26, v{b}, v{b+1}")
            a(f"v_or3_b32 v26, v26, v{b+2}, v{b+3}")
            if u == n - 1:
                a("v_cmp_ne_u32_sdwa vcc, v26, v13 src0_sel:BYTE_0 src1_sel:DWORD")
            if u:
                a(f"v_pk_add_f32 v[{R}:{R+1}], v[{R}:{R+1}], v[{b}:{b+1}]")
                a(f"v_pk_add_f32 v[{R+2}:{R+3}], v[{R+2}:{R+3}], v[{b+2}:{b+3}]")
        a(f"s_cbranch_vccnz {re}\n{dn}:")

    def flush_cold(self):
        c, self.cold = self.cold, []
        for f in c:
            f()

    def red16(self, A):
        self(f"""v_permlane32_swap_b32 v{A}, v{A+2}
        v_permlane32_swap_b32 v{A+1}, v{A+3}
        v_pk_add_f32 v[{A}:{A+1}], v[{A}:{A+1}], v[{A+2}:{A+3}]
        v_permlane16_swap_b32 v{A}, v{A+1}
        v_add_f32 v{A}, v{A}, v{A+1}
        v_add_f32_dpp v{A}, v{A}, v{A} row_ror:4 {DPPF}
        v_add_f32_dpp v{A}, v{A}, v{A} row_ror:8 {DPPF}""")

    def transp(self, R, B, pp):
        for T in range(8):
            self(f"v_perm_b32 v{B+4*T+pp}, v{R+4*(2*pp+1)+T//2}, v{R+4*(2*pp)+T//2}, s{52+(T&1)}")

    def nat8(self, B):
        for r in range(4):
            self(f"v_mfma_f32_16x16x32_bf16 v[{44+4*r}:{47+4*r}], v[64:67], v[{B+4*r}:{B+4*r+3}], 0")
        for r in range(4):
            self(f"v_mfma_f32_16x16x32_bf16 v[{44+4*r}:{47+4*r}], v[68:71], v[{B+16+4*r}:{B+16+4*r+3}], v[{44+4*r}:{47+4*r}]")

    def zeroA(self):
        self("s_mov_b32 s52, 0x05040100\ns_mov_b32 s53, 0x07060302")
        for r in range(64, 72, 2):
            self(f"v_mov_b64 v[{r}:{r+1}], 0")

    def stream(self, wo, withT, extra):
        a = self
        p = self.p
        nt = p["nt"]
        F = p["F"]
        P1, P2 = (p["Pw"], p["Pw2"]) if wo else (p["Pn"], p["Pn2"])
        kv = [("K", t) for t in range(16)] + [("V", t) for t in range(16)]
        order = kv[:F]
        tsl = list(p["tsl"]) if wo else (list(p["tsn"]) if p["tsn"] else [32] * withT)
        tk = 0
        for i in range(F, 33):
            for pos_, it in extra:
                if pos_ == i:
                    order.append(it)
            while tk < len(tsl) and tsl[tk] <= i:
                order.append(("T", tk)); tk += 1
            if i < 32:
                order.append(kv[i])
        NL = len(order)
        pos = {it: i for i, it in enumerate(order)}
        st = {"issued": F, "done": -1}
        big = lambda j: order[j][0] != "S"

        def emit(it):
            k, t = it
            if k == "K":
                if t == 8:
                    a("v_add_u32 v1, 32768, v1")
                a(f"global_load_dwordx4 v[{KR+4*t}:{KR+4*t+3}], v1, s[6:7] offset:{(t%8)*1024-4096} {nt}")
            elif k == "V":
                if t == 8:
                    a("v_add_u32 v14, 32768, v14")
                a(f"global_load_dwordx4 v[{VR+4*t}:{VR+4*t+3}], v14, s[8:9] offset:{(t%8)*1024-4096} {nt}")
            elif k == "T":
                if wo:
                    if t == 7:
                        a("v_add_u32 v15, 5120, v15")
                    a(f"global_load_dwordx4 v[{TR+4*t}:{TR+4*t+3}], v15, s[12:13] offset:{(t-3)*1280 if t < 7 else 0} {nt}")
                else:
                    a(f"global_load_dwordx4 v[{TR+4*t}:{TR+4*t+3}], v15, s[44:45] {p['tfl']}")
                    if t < 7:
                        a("v_add_u32 v15, s46, v15")
            else:
                a(t)
        self.emit = emit

        def issue(pace=0):
            i = st["issued"]
            if pace and big(i):
                cnt = 0; j = i
                while j > 0 and cnt < pace:
                    j -= 1
                    cnt += big(j)
                if cnt == pace and j > st["done"]:
                    a(f"s_waitcnt vmcnt({i-1-j})")
                    st["done"] = j
            if not wo and p["Pf"] and big(i):
                cnt = 0; j = i
                while j > 0 and cnt < p["Pf"]:
                    j -= 1
                    cnt += big(j)
                if j > st["done"]:
                    sk = a.lab("pf")
                    a(f"s_cbranch_vccz {sk}\ns_waitcnt vmcnt({i-1-j})\n{sk}:")
            emit(order[i])
            st["issued"] += 1

        def wait_for(it):
            i = pos[it]
            assert i < st["issued"]
            if st["done"] < i:
                a(f"s_waitcnt vmcnt({st['issued']-1-i})")
                st["done"] = i
        trig = False
        while st["done"] < pos[("K", 15)]:
            issue(P1)
            if not trig and st["done"] >= pos[("K", max(0, p["qtrig"]))]:
                a(f"ds_write_b32 v12, v247 offset:{L_QT}")
                trig = True
        a.stamp(1)
        lastchk = pos[kv[p["chk"]]]
        first = True
        while st["issued"] <= lastchk:
            sk = a.lab("chk")
            if not first:
                a(f"s_cmp_lg_u32 s47, 0\ns_cbranch_scc1 {sk}")
            a(f"""ds_read_b64 v[2:3], v13 offset:{L_QF}
            s_waitcnt lgkmcnt(0)
            v_readfirstlane_b32 s47, v3
            s_cmp_eq_u32 s47, 0
            s_cbranch_scc1 {sk}
            s_call_b64 s[50:51], L_compute
            {sk}:""")
            first = False
            issue(P2)
        lp = a.lab("qw"); sk = a.lab("qw_done"); go = a.lab("qw_go")
        a(f"""s_cmp_lg_u32 s47, 0
        s_cbranch_scc1 {sk}
        s_mov_b32 s42, 0
        {lp}:
        ds_read_b64 v[2:3], v13 offset:{L_QF}
        s_add_u32 s42, s42, 1
        s_waitcnt lgkmcnt(0)
        v_readfirstlane_b32 s47, v3
        s_cmp_lg_u32 s47, 0
        s_cbranch_scc1 {go}
        s_cmp_lt_u32 s42, {SPIN*20}
        s_cbranch_scc1 {lp}
        {go}:
        s_call_b64 s[50:51], L_compute
        {sk}:""")
        a.stamp(19)
        if p.get("aprio"):
            a(f"s_setprio {p['aprio']}")

        def topup():
            while st["issued"] < NL:
                infl = sum(big(j) for j in range(st["done"] + 1, st["issued"]))
                if infl >= P2 and big(st["issued"]):
                    break
                issue()
        a("; P.V : A = p (hi and lo halves) on the diagonal, B = V rows as loaded")
        topup()
        for t in range(16):
            a(f"v_mov_b32_dpp v{48+t%2}, v{20+t//4} row_newbcast:{4*(t%4)} {DPPF}")
            for r in range(4):
                a(f"v_perm_b32 v{FRG+4*(t%4)+r}, v{48+t%2}, v{48+t%2}, v{240+r}")
            while st["issued"] <= pos[("V", t)]:
                issue(P2)
            wait_for(("V", t))
            topup()
            c = "0" if t == 0 else "v[44:47]"
            a(f"v_mfma_f32_16x16x32_bf16 v[44:47], v[{FRG+4*(t%4)}:{FRG+4*(t%4)+3}], v[{VR+4*t}:{VR+4*t+3}], {c}")
        while st["issued"] < NL:
            issue()
        a(f"ds_write_b128 v248, v[44:47] offset:{L_RED}\ns_waitcnt lgkmcnt(0)")
        a.stamp(20)
        a("s_barrier")
        a.stamp(5)
        return st, pos, wait_for, lastchk

    def build(self):
        a = self
        p = self.p
        nt = p["nt"]
        IDS = """s_and_b32 s30, s2, 7
        s_lshr_b32 s31, s2, 3
        s_lshl_b32 s34, s30, 5
        s_add_u32 s34, s34, s31
        s_lshr_b32 s32, s34, 3
        s_and_b32 s33, s34, 7"""
        WQ = 80
        a(f"""
        s_load_dwordx16 s[4:19], s[0:1], 0
        s_load_dwordx8 s[20:27], s[0:1], 64
        s_load_dwordx2 s[28:29], s[0:1], 96""")
        if self.diag:
            a("s_memrealtime s[100:101]")
        a(f"""v_cmp_lt_u32 vcc, 63, v0
        s_cmp_ge_u32 s2, 256
        s_cbranch_scc1 L_exit
        s_cbranch_vccnz L_tramp
        s_setprio 3
        {IDS}
        s_getpc_b64 s[36:37]
        L_pc:
        s_lshl_b32 s35, s33, 11
        v_and_b32 v12, 15, v0
        v_lshl_add_u32 v1, v12, 7, s35
        v_min_u32 v1, L_codeend-L_pc-4, v1
        global_load_dword v254, v1, s[36:37]
        s_mul_i32 s35, s33, {80*32}
        s_add_u32 s35, s35, s32
        s_lshl_b32 s35, s35, 8
        v_lshrrev_b32 v3, 4, v0
        v_mul_u32_u24 v3, {20*8192}, v3
        v_lshl_add_u32 v3, v12, 4, v3
        v_add_u32 v3, s35, v3
        v_lshlrev_b32 v1, 3, v0
        v_lshlrev_b32 v2, 2, v0
        s_movk_i32 s38, 0x2000
        s_waitcnt lgkmcnt(0)
        global_load_dwordx2 v[24:25], v1, s[4:5]
        global_load_dwordx2 v[26:27], v1, s[4:5] offset:512
        global_load_dword v28, v2, s[4:5] offset:1024
        global_load_dwordx2 v[30:31], v1, s[4:5] offset:1280
        global_load_dwordx2 v[32:33], v1, s[4:5] offset:1792
        global_load_dword v34, v2, s[4:5] offset:2304""")
        n0 = 2 if self.diag else 3
        for t in range(20):
            if t == n0:
                a(f"""s_branch L_c2
                .if (. - {NAME}_kernel) > 256
                .error "first block too long"
                .endif
                .p2align 8
                L_tramp:
                s_branch L_att
                L_c2:""")
            if t == n0 + p.get("eat", 0):
                a(f"""s_lshl_b32 s45, s34, 12
                s_add_u32 s45, s45, {BK}
                v_and_b32 v12, 7, v0
                v_lshl_add_u32 v20, v12, 7, s45
                v_mov_b32 v12, {EP}
                global_load_dword v15, v12, s[28:29] sc1
                global_load_dword v253, v20, s[28:29] nt""")
                self.epos = t
            a(f"global_load_dwordx4 v[{WQ+4*t}:{WQ+4*t+3}], v3, s[10:11] {nt}")
            if t < 19:
                a("v_add_u32 v3, s38, v3")
            if t == n0 + 1:
                a(f"v_mov_b32 v36, 0\nds_write_b32 v2, v36 offset:{L_ML}\ns_mov_b32 s3, 4")
        if self.diag:
            a("v_mov_b32 v255, 0\nv_writelane_b32 v255, s100, 0")
        if p.get("holdat") is not None:
            a("s_mov_b32 s95, 0")
        a("s_waitcnt lgkmcnt(0)\ns_barrier\ns_branch L_ctrl")
        a(f"""L_att:
        v_lshrrev_b32 v1, 6, v0
        v_and_b32 v0, 63, v0
        v_readfirstlane_b32 s3, v1
        {IDS}
        s_sub_u32 s3, s3, 1
        s_lshr_b32 s35, s33, 2
        s_lshl_b32 s35, s35, 5
        s_add_u32 s35, s35, s32
        s_lshl_b32 s35, s35, 4
        s_and_b32 s36, s33, 3
        s_add_u32 s35, s35, s36
        s_add_u32 s35, s35, 12
        s_lshl_b32 s35, s35, 3
        s_add_u32 s35, s35, s3
        s_lshl_b32 s35, s35, 13
        s_add_u32 s35, s35, 4096
        v_bfe_u32 v1, v0, 2, 2
        v_lshlrev_b32 v1, 8, v1
        v_lshrrev_b32 v2, 4, v0
        v_lshl_add_u32 v1, v2, 6, v1
        v_and_b32 v2, 3, v0
        v_lshl_add_u32 v1, v2, 4, v1
        v_add_u32 v1, s35, v1
        v_lshl_add_u32 v14, v0, 4, s35
        s_waitcnt lgkmcnt(0)
        """)
        if self.diag:
            a("v_mov_b32 v255, 0\nv_writelane_b32 v255, s100, 0")
        if p.get("holdat") is not None:
            a("s_mov_b32 s95, 0")
        a.stamp(17)
        a("s_barrier")
        a.stamp(23)
        for t in range(p["F"]):
            if t == 8:
                a("v_add_u32 v1, 32768, v1")
            a(f"global_load_dwordx4 v[{KR+4*t}:{KR+4*t+3}], v1, s[6:7] offset:{(t%8)*1024-4096} {nt}")
        a.stamp(16)
        a.selectors()
        a("v_and_b32 v2, 8, v0\nv_cmp_eq_u32 vcc, 8, v2")
        for r in range(4):
            a(f"v_cndmask_b32 v{240+r}, v{4+r}, v{8+r}, vcc")
        a(f"""v_lshrrev_b32 v2, 4, v0
        v_and_b32 v3, 3, v0
        v_lshl_add_u32 v2, v2, 2, v3
        v_lshlrev_b32 v2, 4, v2
        v_add_u32 v2, {L_Q}, v2
        v_bfe_u32 v3, v0, 2, 2
        v_mov_b32 v12, {L_Z}""")
        for qd in range(4):
            a(f"v_cmp_eq_u32 vcc, {qd}, v3")
            a(f"v_cndmask_b32 v{200+qd}, v12, v2, vcc")
        a.dlayout(248, 3, 512)
        a(f"""s_lshl_b32 s36, s3, 10
        v_add_u32 v248, s36, v248
        s_lshl_b32 s36, s32, 13
        s_add_u32 s36, s36, {OB + 4096}
        v_and_b32 v2, 8, v0
        v_lshlrev_b32 v2, 3, v2
        v_and_b32 v3, 3, v0
        v_lshl_add_u32 v2, v3, 4, v2
        v_add_u32 v247, s36, v2
        s_mov_b32 s40, {hx(128 ** -0.5)}
        s_mov_b32 s48, {hx(LOG2E)}
        s_mov_b32 s49, 0xffffff00
        s_lshl_b32 s36, s3, 3
        v_mov_b32 v12, s36
        v_mov_b32 v13, 0
        s_mov_b32 s47, 0
        s_waitcnt lgkmcnt(0)
        s_cmp_ge_u32 s33, 5
        s_cbranch_scc1 L_att_n""")
        self.att_wo()
        self.att_other()
        self.compute()
        self.ctrl()
        if self.diag:
            a(f"""L_dump:
            s_mov_b64 exec, -1
            s_lshl_b32 s35, s34, 3
            s_add_u32 s35, s35, s3
            s_lshl_b32 s35, s35, 8
            s_add_u32 s35, s35, {STAMP}
            v_lshl_add_u32 v2, v0, 2, s35
            global_store_dword v2, v255, s[28:29]""")
        elif p.get("holdat") is not None:
            h = p["holdat"]
            a("L_hold:\ns_cmp_eq_u32 s95, 0\ns_cbranch_scc1 L_exit")
            a("""L_hold2:
            s_memrealtime s[92:93]
            s_waitcnt lgkmcnt(0)
            s_sub_u32 s92, s92, s96
            s_cmp_lt_u32 s92, 2000
            s_cbranch_scc1 L_hold2""")
        a("L_exit:\ns_endpgm\nL_codeend:")

    def att_wo(self):
        a = self
        p = self.p
        a(f"""s_lshl_b32 s36, s32, 2
        s_add_u32 s36, s36, s3
        s_mul_i32 s36, s36, {32*1280}
        s_lshl_b32 s37, s33, 8
        s_add_u32 s36, s36, s37
        s_add_u32 s36, s36, {3*1280}""")
        a.rowaddr(15)
        a(f"""s_lshl_b32 s35, s32, 3
        s_add_u32 s35, s35, s3
        s_lshl_b32 s35, s35, 10
        s_add_u32 s35, s35, {OB}
        v_lshl_add_u32 v249, v0, 4, s35
        s_lshr_b32 s35, s3, 1
        s_mul_i32 s35, s35, 640
        s_lshl_b32 s36, s33, 7
        s_add_u32 s35, s35, s36
        s_and_b32 s36, s3, 1
        s_lshl_b32 s36, s36, 6
        s_add_u32 s35, s35, s36
        s_lshl_b32 s35, s35, {3 + p["sp1"]}
        v_lshl_add_u32 v250, v0, 3, s35
        {"v_and_b32 v2, 56, v0" if p["sp1"] else ""}
        {"v_lshl_add_u32 v250, v2, 3, v250" if p["sp1"] else ""}
        s_lshl_b32 s35, s3, 8
        v_lshl_add_u32 v251, v0, 2, s35
        s_and_b32 s35, s32, 3
        s_lshl_b32 s35, s35, 3
        s_add_u32 s59, s35, s30
        s_min_u32 s35, s59, 26
        s_mul_i32 s35, s35, 20
        s_lshl_b32 s36, s33, 2
        s_add_u32 s35, s35, s36
        s_add_u32 s35, s35, s3
        s_lshl_b32 s35, s35, 12
        v_and_b32 v2, 31, v0
        v_lshl_add_u32 v252, v2, 7, s35
        s_mov_b32 s60, 0
        s_mov_b32 s61, {MHI}""")
        st, pos, wait_for, lastchk = self.stream(True, 8, [])
        BT = 80
        tdone = 0
        a.zeroA()
        a("""s_and_b32 s35, s43, 0x1fffffff
        s_and_b32 s67, s35, 0xff""")
        for k in range(3):
            a(f"s_lshr_b32 s36, s35, {8*(k+1)}\ns_add_u32 s36, s36, s35\ns_and_b32 s{64+k}, s36, 0xff")
        while tdone < 4 and pos[("T", 2*tdone+1)] <= st["done"]:
            a.transp(TR, BT, tdone); tdone += 1
        ld = """global_load_dwordx4 v[40:43], v247, s[28:29] sc1
        global_load_dwordx4 v[28:31], v249, s[28:29] sc1"""
        lp = a.lab("og"); re = a.lab("og_re"); dn = a.lab("og_ok")
        a(f"""s_mov_b32 s42, 0
        s_branch {re}_x
        {re}:
        {ld}
        s_add_u32 s42, s42, 1
        s_cmp_lt_u32 s42, {SPIN}
        s_cbranch_scc1 {lp}
        s_branch {dn}
        {re}_x:
        s_barrier""")
        a(ld)
        st["issued"] += 2
        while tdone < 4:
            wait_for(("T", 2*tdone+1)); a.transp(TR, BT, tdone); tdone += 1
        a.stamp(21)
        a(f"""{lp}:
        s_waitcnt vmcnt(1)
        v_max_f32_dpp v38, v40, v40 quad_perm:[1,0,3,2] {DPPF}
        v_xor_b32 v26, s43, v41
        v_bitop3_b32 v26, v26, v43, s43 bitop3:0xf6
        v_max_f32_dpp v38, v38, v38 quad_perm:[2,3,0,1] {DPPF}
        v_and_b32 v26, 0x1fffffff, v26
        v_sub_f32 v38, v40, v38
        v_min_u32 v26, 1, v26
        v_mul_f32 v38, s48, v38
        s_waitcnt vmcnt(0)
        v_exp_f32 v38, v38
        v_xor_b32 v28, s64, v28
        v_xor_b32 v29, s65, v29
        v_xor_b32 v30, s66, v30
        v_xor_b32 v31, s67, v31
        v_mul_f32 v36, v38, v42
        v_or3_b32 v26, v26, v28, v29
        v_pk_mul_f32 v[28:29], v[28:29], v[38:39] op_sel_hi:[1,0]
        v_or3_b32 v26, v26, v30, v31
        v_pk_mul_f32 v[30:31], v[30:31], v[38:39] op_sel_hi:[1,0]
        v_cmp_ne_u32_sdwa vcc, v26, v13 src0_sel:BYTE_0 src1_sel:DWORD
        v_add_f32_dpp v36, v36, v36 quad_perm:[1,0,3,2] {DPPF}
        s_cbranch_vccnz {re}
        {dn}:""")
        a.stamp(6)
        a.clk(20)
        b3c = p.get("b3c", 2)
        if b3c == 1:
            a("s_barrier")
        a(f"""v_add_f32_dpp v28, v28, v28 quad_perm:[1,0,3,2] {DPPF}
        v_add_f32_dpp v29, v29, v29 quad_perm:[1,0,3,2] {DPPF}
        v_add_f32_dpp v36, v36, v36 quad_perm:[2,3,0,1] {DPPF}
        v_add_f32_dpp v30, v30, v30 quad_perm:[1,0,3,2] {DPPF}
        v_add_f32_dpp v31, v31, v31 quad_perm:[1,0,3,2] {DPPF}
        v_rcp_f32 v36, v36
        v_add_f32_dpp v28, v28, v28 quad_perm:[2,3,0,1] {DPPF}
        v_add_f32_dpp v29, v29, v29 quad_perm:[2,3,0,1] {DPPF}
        v_add_f32_dpp v30, v30, v30 quad_perm:[2,3,0,1] {DPPF}
        v_add_f32_dpp v31, v31, v31 quad_perm:[2,3,0,1] {DPPF}
        v_pk_mul_f32 v[28:29], v[28:29], v[36:37] op_sel_hi:[1,0]
        v_pk_mul_f32 v[30:31], v[30:31], v[36:37] op_sel_hi:[1,0]""")
        a("""v_cvt_pk_bf16_f32 v32, v28, v29
        v_cvt_pk_bf16_f32 v33, v30, v31
        v_mov_b32_dpp v64, v32 quad_perm:[0,1,2,3] row_mask:0xf bank_mask:0x5
        v_mov_b32_dpp v66, v32 row_half_mirror row_mask:0xf bank_mask:0x5
        v_mov_b32_dpp v65, v33 quad_perm:[0,1,2,3] row_mask:0xf bank_mask:0x5
        v_mov_b32_dpp v67, v33 row_half_mirror row_mask:0xf bank_mask:0x5
        v_mov_b32_dpp v68, v32 row_half_mirror row_mask:0xf bank_mask:0xa
        v_mov_b32_dpp v69, v33 row_half_mirror row_mask:0xf bank_mask:0xa
        v_mov_b32_dpp v70, v32 quad_perm:[0,1,2,3] row_mask:0xf bank_mask:0xa
        v_mov_b32_dpp v71, v33 quad_perm:[0,1,2,3] row_mask:0xf bank_mask:0xa""")
        if b3c == 3:
            a("s_barrier")
        a.clk(21)
        a.nat8(BT)
        a.clk(22)
        if b3c == 2:
            a("s_barrier")
        if p.get("w2pf", 1) == 2:
            a("global_load_dword v253, v252, s[20:21]")
        a(f"""v_mov_b32 v45, v48
        v_mov_b32 v46, v52
        v_mov_b32 v47, v56
        ds_write_b128 v248, v[44:47] offset:{L_RED2}
        s_waitcnt lgkmcnt(0)""")
        a.clk(23)
        a("s_barrier")
        a.clk(24)
        a(f"""ds_read2st64_b32 v[28:29], v251 offset0:{L_RED2//256} offset1:{L_RED2//256+4}
        ds_read2st64_b32 v[30:31], v251 offset0:{L_RED2//256+8} offset1:{L_RED2//256+12}
        s_waitcnt lgkmcnt(0)
        v_pk_add_f32 v[28:29], v[28:29], v[30:31]
        v_add_f32 v28, v28, v29
        v_cvt_f64_f32 v[30:31], v28
        v_add_f64 v[30:31], v[30:31], s[60:61]
        global_atomic_add_x2 v250, v[30:31], s[28:29] sc1""")
        assert A1 == 0
        if p.get("w2pf", 1) == 1:
            sk = a.lab("nopf")
            a(f"""s_cmp_ge_u32 s59, 27
            s_cbranch_scc1 {sk}
            global_load_dword v253, v252, s[20:21]
            {sk}:""")
        a.stamp(11)
        a.clk(29)
        a.finish()
        a.flush_cold()

    def att_other(self):
        a = self
        p = self.p
        B1R = 80; B2R = 160; AB = 160; HR = 244
        D1 = (50, 54, 58, 240); XU = (4, 6, 8, 10, 62)

        def bar():
            a("s_barrier")
        nT = p["mlpT"]
        a("L_att_n:")
        a(self.ROLES)
        a(f"""s_sub_u32 s58, s33, 5
        s_mul_i32 s38, s58, 3
        s_min_u32 s35, s58, 1
        s_add_u32 s38, s38, s35
        s_add_u32 s38, s38, s3
        s_min_u32 s38, s38, 9
        s_mul_i32 s36, s39, {64*1280}
        s_lshl_b32 s37, s38, 7
        s_add_u32 s36, s36, s37
        v_lshrrev_b32 v2, 4, v0
        v_bfe_u32 v3, v0, 3, 1
        v_lshl_add_u32 v4, v3, 2, v2
        v_mul_u32_u24 v4, 10240, v4
        v_and_b32 v5, 7, v0
        v_lshl_add_u32 v4, v5, 4, v4
        v_add_u32 v15, s36, v4
        s_mov_b64 s[44:45], s[20:21]
        s_movk_i32 s46, 1280
        v_lshl_add_u32 v4, v5, 3, v2
        v_lshl_add_u32 v192, v4, 1, s37
        v_mul_u32_u24 v3, 1280, v3
        v_add_u32 v199, v192, v3
        v_bfe_u32 v3, v0, 1, 1
        v_lshl_add_u32 v3, v3, 2, v2
        v_bfe_u32 v4, v0, 2, 2
        v_lshl_add_u32 v198, v3, 2, v4
        s_lshl_b32 s35, s39, 7
        v_lshl_add_u32 v252, v198, 2, s35
        s_mul_i32 s37, s3, {213*3456}
        s_add_u32 s35, s35, s37
        v_mov_b32 v253, s35
        v_mov_b32 v254, s36
        s_and_b32 s35, s3, 1
        s_mul_i32 s35, s35, 1280
        v_lshl_add_u32 v205, v0, 2, s35
        s_lshr_b32 vcc_lo, s31, 1
        s_mov_b32 vcc_hi, 0""")
        wat = p.get("wat", 28)
        extra = [(wat, ("S", "global_load_dword v252, v252, s[18:19]")),
                 (wat + 2, ("S", "global_load_ushort v193, v192, s[22:23] offset:8")),
                 (wat + 2, ("S", "global_load_ushort v192, v192, s[22:23]")),
                 (wat + 2, ("S", "global_load_ushort v206, v199, s[24:25]"))]
        extra += [(wat + 4, ("S", f"global_load_dword v{176+u}, v205, s[4:5] offset:{256*u}")) for u in range(5)]
        if p["warm"]:
            extra += [(wat, ("S", "global_load_dword v253, v253, s[16:17]")),
                      (wat, ("S", "global_load_dword v254, v254, s[20:21]"))]
        st, pos, wait_for, lastchk = self.stream(False, nT, extra)
        go = a.lab("mlp_go"); dm = a.lab("dma")
        self.sect = "m"
        a(f"""s_cmp_eq_u32 s31, 1
        s_cbranch_scc1 {go}""")
        a.finish()
        a(f"""{go}:
        v_lshrrev_b32 v2, 3, v0
        v_and_b32 v3, 2, v2
        v_and_b32 v4, 7, v0
        v_xor_b32 v3, v3, v4
        v_mul_u32_u24 v2, 3456, v2
        s_mul_i32 s35, s3, {160*3456}
        s_lshl_b32 s36, s39, 7
        s_add_u32 s35, s35, s36
        v_lshl_add_u32 v16, v3, 4, v2
        v_add_u32 v16, s35, v16
        v_xor_b32 v3, 4, v3
        v_lshl_add_u32 v17, v3, 4, v2
        s_add_u32 s35, s35, {8*3456}
        v_add_u32 v17, s35, v17
        s_mul_i32 s37, s3, 20480
        s_add_u32 s37, s37, {L_W1}
        s_mul_i32 s54, s58, {p.get("rot", 3)}
        s_mov_b32 s57, 10
        s_barrier""")

        def w2loads():
            for t in range(nT, 8):
                self.emit(("T", t))
        if p.get("nomlpw"):
            a(f"s_branch {dm}_x")
        a(f"""{dm}:
        s_mul_i32 s55, s54, {16*3456}
        s_lshl_b32 s56, s54, 11
        s_add_u32 s56, s56, s37
        s_mov_b32 m0, s56
        v_add_u32 v2, s55, v16
        v_add_u32 v3, s55, v17
        global_load_lds_dwordx4 v2, s[16:17] {p["w1fl"]}
        s_add_u32 m0, s56, 1024
        s_add_u32 s54, s54, 1
        global_load_lds_dwordx4 v3, s[16:17] {p["w1fl"]}
        s_cmp_eq_u32 s54, 10
        s_cselect_b32 s54, 0, s54
        s_sub_u32 s57, s57, 1
        s_cmp_lg_u32 s57, 0
        s_cbranch_scc1 {dm}
        {dm}_x:""")
        a(f"""v_lshrrev_b32 v2, 4, v0
        v_and_b32 v12, 15, v0
        v_and_b32 v3, 1, v0
        v_lshlrev_b32 v21, 3, v0
        v_and_b32 v4, 16, v0
        v_xor_b32 v21, v21, v4
        s_lshl_b32 s35, s3, 9
        s_add_u32 s35, s35, {L_T1}
        v_bfe_u32 v4, v0, 1, 4
        v_lshl_add_u32 v22, v4, 5, s35
        v_lshl_add_u32 v22, v3, 2, v22
        v_lshrrev_b32 v4, 2, v0
        v_xor_b32 v4, v4, v0
        v_and_b32 v4, 8, v4
        v_lshl_add_u32 v22, v4, 1, v22
        s_mul_i32 s35, s3, {160 if p.get("sm", 1) else 320}
        v_mul_u32_u24 v4, {YS}, v3
        v_lshl_add_u32 v4, v2, 4, v4
        v_add_u32 v23, s35, v4
        v_bfe_u32 v4, v0, 2, 2
        v_lshl_add_u32 v4, v2, 3, v4
        v_lshlrev_b32 v4, 7, v4
        v_lshl_add_u32 v4, v3, 3, v4
        v_add_u32 v4, s37, v4
        v_bfe_u32 v3, v0, 3, 2
        v_bfe_u32 v5, v0, 1, 1
        v_lshl_add_u32 v3, v3, 1, v5""")
        for ct in range(4):
            a(f"v_xor_b32 v5, {2*ct}, v3\nv_lshl_add_u32 v{16+ct}, v5, 4, v4")
        a(f"""s_lshl_b32 s35, s38, 11
        s_add_u32 s35, s35, {A2}
        v_and_b32 v3, 56, v0
        v_lshlrev_b32 v3, 3, v3
        v_lshl_add_u32 v3, v0, 3, v3
        v_add_u32 v25, s35, v3
        s_and_b32 s36, s3, 1
        s_mul_i32 s35, s36, 5120
        s_add_u32 s35, s35, 2048
        v_lshl_add_u32 v2, v0, 4, s35
        s_mul_i32 s35, s36, {YS}
        v_lshl_add_u32 v26, v0, 2, s35""")
        if p.get("sm", 1):
            a(f"""v_lshrrev_b32 v3, 1, v0
            v_lshl_add_u32 v26, v3, 2, s35
            v_and_b32 v3, 1, v0
            v_mul_u32_u24 v3, 704, v3
            v_add_u32 v26, v26, v3
            v_bfe_u32 v3, v0, 1, 1
            v_mul_u32_u24 v4, 704, v3
            v_add_u32 v23, v23, v4
            v_mul_u32_u24 v3, 0xaaaa, v3
            v_add_u32 v204, 0x4444, v3
            v_add_u32 v3, 96, v23
            v_mov_b32 v4, {L_Z}
            v_cmp_gt_u32 vcc, 32, v0
            v_cndmask_b32 v24, v3, v4, vcc""")
        a(f"""s_mul_i32 s35, s36, 2560
        s_cmp_ge_u32 s3, 2
        s_cmov_b32 s35, {L_W1}
        v_lshl_add_u32 v27, v0, 3, s35
        v_lshlrev_b32 v197, 1, v199
        v_add_u32 v197, {L_H}, v197
        v_and_b32 v195, 0xffff0000, v252
        v_lshlrev_b32 v194, 16, v252
        v_lshlrev_b32 v192, 16, v192
        v_lshlrev_b32 v193, 16, v193
        v_mov_b32 v201, {hx(-2.0*math.sqrt(2.0/math.pi)*LOG2E)}
        v_mov_b32 v200, {hx(-2.0*math.sqrt(2.0/math.pi)*LOG2E*0.044715)}
        s_mov_b32 s60, 0
        s_mov_b32 s61, {MHI}
        s_mov_b32 s62, {hx(2.0 ** (KEXP - 1))}
        s_mov_b32 s63, {hx(2.0 ** (2 * KEXP - 4))}
        s_cmp_lt_u32 s3, 2
        s_cselect_b64 s[70:71], -1, 0
        s_mov_b32 s52, 0x05040100
        s_mov_b32 s53, 0x07060302""")
        for r in range(64, 80, 2):
            a(f"v_mov_b64 v[{r}:{r+1}], 0")
        for u in range(5):
            a(f"v_lshlrev_b32 v{XU[u]}, 16, v{176+u}")
            a(f"v_and_b32 v{XU[u]+1}, 0xffff0000, v{176+u}")

        def trreads():
            for ks in range(5):
                for ct in range(4):
                    for hf in range(2):
                        r = B1R + 4 * ((5 * ct + ks) if p.get("sm", 1) else (4 * ks + ct)) + 2 * hf
                        a(f"ds_read_b64_tr_b16 v[{r}:{r+1}], v{16+ct} offset:{(32*ks + 4*hf)*128}")

        def w2tr():
            for pp in range(4):
                a.transp(TR, B2R, pp)
        noln = a.lab("noln"); lp = a.lab("acc"); done = a.lab("acc_ok"); l2 = a.lab("acc_w"); nl2 = a.lab("noln2")
        for d_ in D1:
            a(f"v_mov_b64 v[{d_}:{d_+1}], 0\nv_mov_b64 v[{d_+2}:{d_+3}], 0")
        trf = p.get("trfirst", 0)
        if trf:
            a("s_waitcnt vmcnt(0)")
            a.stamp(15)
            trreads()

        def ldacc():
            for u in range(5):
                a(f"global_load_dwordx4 v[{AB+4*u}:{AB+3+4*u}], v2, s[28:29] offset:{1024*u-2048} sc1")
        a(f"""s_mov_b32 s42, 0
        s_branch {lp}_x
        {lp}:""")
        ldacc()
        a(f"""s_add_u32 s42, s42, 1
        s_cmp_lt_u32 s42, {SPIN}
        s_waitcnt vmcnt(0)
        s_cbranch_scc1 {l2}
        s_branch {done}
        {lp}_x:
        s_cmp_ge_u32 s3, 2
        s_barrier
        s_cbranch_scc1 {nl2}""")

        def cold_noln():
            a(f"{nl2}:")
            if not trf:
                a("s_waitcnt vmcnt(0)")
                a.stamp(15)
                trreads()
            else:
                a("s_nop 15\ns_nop 15")
            a(f"""s_and_b32 s35, s3, 1
            s_mul_i32 s35, s35, s58
            s_cmp_lg_u32 s35, 0
            s_cbranch_scc1 {noln}""")
            w2loads()
            a(f"s_branch {noln}")
        self.cold.append(cold_noln)
        a.stamp(7)
        a.clk(10)
        ldacc()
        if not trf:
            a("s_waitcnt vmcnt(5)")
            trreads()
        else:
            a("s_nop 15")
        w2loads()
        a(f"{l2}:\nL_dry_in:")
        for u in range(5):
            b = AB + 4 * u
            a(f"""s_waitcnt vmcnt({4-u+8-nT})
            v_add_f64 v[{b}:{b+1}], v[{b}:{b+1}], -s[60:61]
            v_add_f64 v[{b+2}:{b+3}], v[{b+2}:{b+3}], -s[60:61]
            v_cvt_f32_f64 v{28+2*u}, v[{b}:{b+1}]
            v_cvt_f32_f64 v{29+2*u}, v[{b+2}:{b+3}]""")
            a.rnd(28+2*u, f"v{28+2*u}"); a.rnd(29+2*u, f"v{29+2*u}")
            a(f"v_pk_add_f32 v[{28+2*u}:{29+2*u}], v[{28+2*u}:{29+2*u}], v[{XU[u]}:{XU[u]+1}]")
            h0 = HR + 2 * u
            a.rnd(h0, f"v{28+2*u}"); a.rnd(h0+1, f"v{29+2*u}")
            if u == 0:
                a(f"v_pk_mul_f32 v[48:49], v[{h0}:{h0+1}], v[{h0}:{h0+1}]")
            else:
                a(f"v_pk_fma_f32 v[48:49], v[{h0}:{h0+1}], v[{h0}:{h0+1}], v[48:49]")
                a(f"v_pk_add_f32 v[46:47], v[{h0}:{h0+1}], v[{HR if u == 1 else 46}:{HR+1 if u == 1 else 47}]")

        a.clk(11)

        def hook():
            a(f"""v_cmp_ngt_f32 vcc, s63, v48
            s_cbranch_vccnz {lp}
            {done}:""")
            a.stamp(13)
            a.clk(12)
        a.ln(28, 40, 46, True, hook, H=HR)
        a.clk(13)
        a.ln(28, 40, 46, False)
        a.clk(14)
        assert L_Y == 0
        if p.get("sm", 1):
            a(f"""ds_write2_b32 v26, v40, v41 offset0:0 offset1:32
            ds_write2_b32 v26, v42, v43 offset0:64 offset1:96
            ds_write_b32 v26, v44 offset:512
            {("", "s_cbranch_execz L_dry_out", "s_cbranch_execz L_dry_1")[p.get("dry", 1)]}
            {noln}:
            s_waitcnt lgkmcnt(0)""")
            bar()
            a("L_dry_1:")
            a.stamp(18)
            a.clk(0)
            a("""ds_read_b128 v[28:31], v23
            ds_read_b128 v[32:35], v23 offset:64
            ds_read_b128 v[36:39], v24""")
            a.clk(1)
            tp = p.get("tp", 0)
            if tp:
                a("s_waitcnt vmcnt(4)")
                a.transp(TR, B2R, 0)
            p1 = [f"v_perm_b32 v{B2R+4*T+1}, v{TR+12+T//2}, v{TR+8+T//2}, s{52+(T&1)}" for T in range(8)] if tp else []
            hw = [f"ds_write_b64 v27, v[{HR+2*u}:{HR+2*u+1}] offset:{L_H + 512*u}" for u in range(5)]
            nw = 0
            if p.get("hpos", 1) == 0:
                a("s_mov_b64 exec, s[70:71]")
                for x_ in hw:
                    a(x_)
                a("s_mov_b64 exec, -1")
                nw = 5
            for kk in range(3):
                a(f"s_waitcnt lgkmcnt({2-kk+nw})")
                for ct in range(4):
                    r = B1R + 4 * (5 * ct + (0, 2, 3)[kk])
                    a(f"v_smfmac_f32_16x16x64_bf16 v[{D1[ct]}:{D1[ct]+3}], v[{28+4*kk}:{31+4*kk}], v[{r}:{r+7}], v204")
                    if p.get("hpos", 1) == 1 and nw < 5 and kk + ct > 0:
                        a(hw[nw]); nw += 1
                    elif p1:
                        a(p1.pop(0))
            while p1:
                a(p1.pop(0))
        else:
            a(f"""ds_write2st64_b32 v26, v40, v41 offset0:0 offset1:1
            ds_write2st64_b32 v26, v42, v43 offset0:2 offset1:3
            ds_write_b32 v26, v44 offset:1024
            {noln}:
            s_waitcnt lgkmcnt(0)
            s_barrier""")
            a.stamp(18)
            for ks in range(5):
                a(f"ds_read_b128 v[{28+4*ks}:{31+4*ks}], v23 offset:{L_Y + 64*ks}")
            for ks in range(5):
                a(f"s_waitcnt lgkmcnt({4-ks})")
                for ct in range(4):
                    c = "0" if ks == 0 else f"v[{48+4*ct}:{51+4*ct}]"
                    r = B1R + 4 * (4 * ks + ct)
                    a(f"v_mfma_f32_16x16x32_bf16 v[{48+4*ct}:{51+4*ct}], v[{28+4*ks}:{31+4*ks}], v[{r}:{r+3}], {c}")
        a.clk(2)
        a("""s_lshr_b32 s35, s3, 1
        s_and_b32 s35, s35, s3
        s_mul_i32 s35, s35, s58
        s_cmp_lg_u32 s35, 0""")
        for ct in range(4):
            for b_ in range(2):
                a(f"v_add_f32_dpp v{48+b_}, v{D1[ct]+b_}, v{D1[ct]+2+b_} quad_perm:[0,1,2,3] row_mask:{hex(1 << ct)} bank_mask:0xf")
        idle = a.lab("idle")
        a("""ds_write2_b32 v22, v48, v49 offset0:0 offset1:2
        s_waitcnt vmcnt(2)""")
        if p.get("tp", 0):
            a.transp(TR, B2R, 2)
        else:
            a.transp(TR, B2R, 0); a.transp(TR, B2R, 1)
        if p.get("dry", 1) == 2:
            a("s_cbranch_execz L_dry_2")
        a("s_waitcnt lgkmcnt(0)")
        a.clk(3)
        bar()
        a("L_dry_2:")
        a(f"s_cbranch_scc1 {idle}")
        a.clk(4)
        for w_ in range(4):
            a(f"ds_read_b64 v[{28+2*w_}:{29+2*w_}], v21 offset:{L_T1 + 512*w_}")
        a("ds_read2_b32 v[202:203], v197 offset0:0 offset1:4\ns_waitcnt vmcnt(0)")
        if not p.get("tp", 0):
            a.transp(TR, B2R, 2)
        a.transp(TR, B2R, 3)
        a.clk(5)
        a(f"""
        s_waitcnt lgkmcnt(3)
        v_pk_add_f32 v[28:29], v[28:29], v[30:31]
        s_waitcnt lgkmcnt(1)
        v_pk_add_f32 v[32:33], v[32:33], v[34:35]
        v_pk_add_f32 v[28:29], v[28:29], v[32:33]
        v_cvt_pk_bf16_f32 v28, 0, v28
        v_cvt_pk_bf16_f32 v29, 0, v29
        v_pk_add_f32 v[28:29], v[28:29], v[194:195]
        v_cvt_pk_bf16_f32 v28, 0, v28
        v_cvt_pk_bf16_f32 v29, 0, v29
        v_pk_mul_f32 v[30:31], v[28:29], v[28:29]
        v_pk_fma_f32 v[30:31], v[30:31], v[200:201], v[200:201] op_sel:[0,0,1] op_sel_hi:[1,0,1]
        v_pk_mul_f32 v[30:31], v[30:31], v[28:29]
        v_exp_f32 v30, v30
        v_exp_f32 v31, v31
        v_add_f32 v30, 1.0, v30
        v_add_f32 v31, 1.0, v31
        v_rcp_f32 v30, v30
        v_rcp_f32 v31, v31
        v_mul_f32 v28, v28, v30
        v_mul_f32 v29, v29, v31
        v_cvt_pk_bf16_f32 v28, v28, v29""")

        def afrag(G):
            for pp in range(4):
                sh = (4 * (G - pp)) % 16
                d = f"row_ror:{sh}" if sh else "quad_perm:[0,1,2,3]"
                a(f"v_mov_b32_dpp v{64+4*G+pp}, v28 {d} row_mask:0xf bank_mask:{hex(1 << G)}")
        a.clk(6)
        afrag(0)
        for G in range(4):
            if G < 3:
                afrag(G + 1)
            for z in range(2):
                c = "0" if G == 0 else f"v[{44+4*z}:{47+4*z}]"
                r = B2R + 4 * (4 * z + G)
                a(f"v_mfma_f32_16x16x32_bf16 v[{44+4*z}:{47+4*z}], v[{64+4*G}:{67+4*G}], v[{r}:{r+3}], {c}")
        a.clk(7)
        if p.get("dry", 1) == 2:
            a("s_cbranch_execz L_dry_3")
        for z in range(2):
            a(f"v_add_f32_dpp v{32+z}, v{46+4*z}, v{44+4*z} row_ror:8 row_mask:0xf bank_mask:0x3")
        for z in range(2):
            a(f"v_add_f32_dpp v{32+z}, v{45+4*z}, v{47+4*z} row_ror:8 row_mask:0xf bank_mask:0xc")
        for z in range(2):
            a(f"""v_cvt_f64_f32 v[{36+2*z}:{37+2*z}], v{32+z}
            v_add_f64 v[{36+2*z}:{37+2*z}], v[{36+2*z}:{37+2*z}], s[60:61]
            global_atomic_add_x2 v[{40+2*z}:{41+2*z}], v25, v[{36+2*z}:{37+2*z}], s[28:29] offset:{1024*z} sc0 sc1""")
        a.stamp(14)
        a.clk(9)
        s0 = a.lab("nost"); s1 = a.lab("nost")
        a(f"""L_dry_3:
        s_waitcnt vmcnt(1) lgkmcnt(0)
        v_lshl_add_u64 v[40:41], v[40:41], 0, v[36:37]
        v_add_f64 v[40:41], v[40:41], -s[60:61]
        v_cvt_f32_f64 v44, v[40:41]
        s_waitcnt vmcnt(0)
        v_lshl_add_u64 v[42:43], v[42:43], 0, v[38:39]
        v_cmp_gt_f32 s[66:67], s62, |v44|
        v_add_f64 v[42:43], v[42:43], -s[60:61]
        v_cvt_pk_bf16_f32 v44, 0, v44
        v_cvt_f32_f64 v45, v[42:43]
        v_cmp_gt_f32 s[68:69], s62, |v45|
        v_cvt_pk_bf16_f32 v45, 0, v45
        v_pk_add_f32 v[44:45], v[44:45], v[192:193]
        v_cvt_pk_bf16_f32 v44, 0, v44
        v_cvt_pk_bf16_f32 v45, 0, v45
        v_pk_add_f32 v[44:45], v[44:45], v[202:203]
        v_cvt_pk_bf16_f32 v44, v44, v45""")
        a.stamp(10)
        a(f"""s_mov_b64 exec, s[66:67]
        s_cbranch_execz {s0}
        global_store_short v199, v44, s[24:25]
        {s0}:
        s_mov_b64 exec, s[68:69]
        s_cbranch_execz {s1}
        global_store_short_d16_hi v199, v44, s[24:25] offset:8
        {s1}:""")
        if p.get("dry", 1) == 2:
            a("s_cmp_eq_u32 s3, 4\ns_cbranch_scc1 L_dry_out")
        if p.get("latebump"):
            a(f"""s_mov_b64 exec, -1
            s_or_b32 s35, s39, s38
            s_cmp_lg_u32 s35, 0
            s_cbranch_scc1 {idle}
            v_mov_b32 v2, {EP}
            v_mov_b32 v3, s43
            global_store_dword v2, v3, s[28:29] sc1
            {idle}:""")
        else:
            a.finish()
            a(f"""{idle}:
            s_cmp_lg_u32 s34, 6
            s_cbranch_scc1 {idle}_e
            v_mov_b32 v2, {EP}
            v_mov_b32 v3, s43
            global_store_dword v2, v3, s[28:29] sc1
            {idle}_e:""")
        a.finish()
        a.flush_cold()

    def compute(self):
        a = self
        self.sect = "a"
        QF = 144; DR = 160; SR = 16
        a("L_compute:")
        a("v_readfirstlane_b32 s43, v2")
        a.stamp(2)
        for qd in range(4):
            a(f"ds_read_b128 v[{QF+4*qd}:{QF+4*qd+3}], v{200+qd}")
        for qd in range(4):
            a(f"s_waitcnt lgkmcnt({3-qd})")
            for u in range(4):
                t = 4 * u + qd
                c = "0" if qd == 0 else f"v[{DR+4*u}:{DR+4*u+3}]"
                a(f"v_mfma_f32_16x16x32_bf16 v[{DR+4*u}:{DR+4*u+3}], v[{KR+4*t}:{KR+4*t+3}], v[{QF+4*qd}:{QF+4*qd+3}], {c}")
        for u in range(4):
            a(f"v_mov_b32_dpp v{SR+u}, v{DR+4*u} quad_perm:[0,0,0,0] {DPPF}")
        for r in (1, 2, 3):
            for u in range(4):
                a(f"v_add_f32_dpp v{SR+u}, v{DR+4*u+r}, v{SR+u} quad_perm:[{r},{r},{r},{r}] {DPPF}")
        for r in range(16, 20):
            a.rnd(r, f"v{r}")
        a("""v_pk_mul_f32 v[16:17], v[16:17], s[40:41] op_sel_hi:[1,0]
        v_pk_mul_f32 v[18:19], v[18:19], s[40:41] op_sel_hi:[1,0]""")
        for r in range(16, 20):
            a.rnd(r, f"v{r}")
        a(f"""v_max3_f32 v28, v16, v17, v18
        v_max_f32 v28, v28, v19
        v_max_f32_dpp v28, v28, v28 row_ror:4 {DPPF}
        v_max_f32_dpp v28, v28, v28 row_ror:8 {DPPF}
        v_mov_b32 v29, v28
        v_permlane32_swap_b32 v28, v29
        v_max_f32 v28, v28, v29
        v_mov_b32 v29, v28
        v_permlane16_swap_b32 v28, v29
        v_max_f32 v28, v28, v29
        v_pk_add_f32 v[16:17], v[16:17], v[28:29] op_sel_hi:[1,0] neg_lo:[0,1] neg_hi:[0,1]
        v_pk_add_f32 v[18:19], v[18:19], v[28:29] op_sel_hi:[1,0] neg_lo:[0,1] neg_hi:[0,1]
        v_pk_mul_f32 v[16:17], v[16:17], s[48:49] op_sel_hi:[1,0]
        v_pk_mul_f32 v[18:19], v[18:19], s[48:49] op_sel_hi:[1,0]
        v_exp_f32 v16, v16
        v_exp_f32 v17, v17
        v_exp_f32 v18, v18
        v_exp_f32 v19, v19
        v_pk_add_f32 v[30:31], v[16:17], v[18:19]
        v_add_f32 v30, v30, v31
        v_cvt_pk_bf16_f32 v24, 0, v16
        v_cvt_pk_bf16_f32 v25, 0, v17
        v_add_f32_dpp v30, v30, v30 row_ror:4 {DPPF}
        v_cvt_pk_bf16_f32 v26, 0, v18
        v_cvt_pk_bf16_f32 v27, 0, v19
        v_add_f32_dpp v30, v30, v30 row_ror:8 {DPPF}
        v_mov_b32 v31, v30
        v_pk_add_f32 v[16:17], v[16:17], v[24:25] neg_lo:[0,1] neg_hi:[0,1]
        v_pk_add_f32 v[18:19], v[18:19], v[26:27] neg_lo:[0,1] neg_hi:[0,1]
        v_permlane32_swap_b32 v30, v31
        v_add_f32 v30, v30, v31
        v_mov_b32 v31, v30
        v_cvt_pk_bf16_f32 v20, v24, v16
        v_cvt_pk_bf16_f32 v21, v25, v17
        v_permlane16_swap_b32 v30, v31
        v_add_f32 v29, v30, v31
        v_cvt_pk_bf16_f32 v22, v26, v18
        v_cvt_pk_bf16_f32 v23, v27, v19
        ds_write_b64 v12, v[28:29] offset:{L_ML}""")
        a.stamp(4)
        a("s_nop 1\ns_setpc_b64 s[50:51]")

    def ctrl(self):
        a = self
        p = self.p
        WQ = 80
        self.sect = "c"
        a("L_ctrl:")
        a.stamp(1)
        a.selectors()
        a("""s_getreg_b32 s44, hwreg(HW_REG_XCC_ID, 0, 3)
        v_lshl_add_u32 v21, v0, 4, s45
        s_waitcnt vmcnt(22)""")
        a.stamp(2)
        for b_, (src, X) in enumerate(((24, 36), (30, 48))):
            for i in range(5):
                a(f"v_lshlrev_b32 v{X+2*i}, 16, v{src+i}")
                a(f"v_and_b32 v{X+2*i+1}, 0xffff0000, v{src+i}")
            a.ln(X, src, 60, False)
            a(f"""v_lshlrev_b32 v2, 2, v0
            ds_write_b64 v1, v[{src}:{src+1}] offset:{L_Y + b_*YS}
            ds_write_b64 v1, v[{src+2}:{src+3}] offset:{L_Y + b_*YS + 512}
            ds_write_b32 v2, v{src+4} offset:{L_Y + b_*YS + 1024}""")
        a(f"""s_mul_i32 s35, s33, 160
        v_lshrrev_b32 v2, 4, v0
        v_mul_u32_u24 v2, 40, v2
        v_bfe_u32 v3, v0, 3, 1
        v_mul_u32_u24 v3, {YS}, v3
        v_add3_u32 v2, v2, v3, s35
        s_waitcnt lgkmcnt(0)""")
        for i in range(5):
            a(f"ds_read_b64 v[{36+2*i}:{37+2*i}], v2 offset:{L_Y + 8*i}")
        def tagc(w):
            a(f"""s_waitcnt vmcnt({w})
            v_readfirstlane_b32 s43, v15
            s_add_u32 s43, s43, 1
            s_and_b32 s43, s43, 0x1fffffff
            s_mov_b32 s49, 0xffffff00
            v_mov_b32 v13, 0
            v_mov_b32 v245, s43
            v_and_b32 v2, 1, v0
            v_lshl_add_u32 v2, v2, 4, 8
            v_lshrrev_b32 v246, v2, v245
            v_add_u32 v246, s43, v246
            v_and_b32 v246, 0xff, v246
            v_add_u32 v2, 8, v2
            v_min_u32 v2, 31, v2
            v_lshrrev_b32 v247, v2, v245
            v_add_u32 v247, s43, v247
            v_and_b32 v247, 0xff, v247
            v_and_b32 v2, 3, v0
            v_mul_u32_u24 v2, 12, v2""")
            for k in range(4):
                a(f"""v_add_u32 v3, {3*(k+1)}, v2
                v_min_u32 v3, 31, v3
                v_lshrrev_b32 v3, v3, v245
                v_add_u32 v3, s43, v3
                s_lshl_b32 s35, s44, {3-k}
                s_and_b32 s35, s35, 8
                v_and_or_b32 v{56+k}, v3, 7, s35""")
            a(f"""s_lshl_b32 s44, s44, 29
            s_or_b32 s44, s44, s43
            s_mov_b32 s43, s44
            v_mov_b32 v245, s44
    """)
        tagc(21 - self.epos)
        a("""        s_waitcnt lgkmcnt(0)""")
        a.stamp(3)
        FR = 160

        def frag(D, P, odd):
            for r in range(4):
                a(f"v_perm_b32 v{D+r}, v{P}, v{P}, v{(8 if odd else 4)+r}")
        frag(FR, 36, 0)
        for t in range(20):
            if t + 1 < 20:
                frag(FR + 4 * ((t + 1) % 4), 36 + (t + 1) // 2, (t + 1) & 1)
            a(f"s_waitcnt vmcnt({19-t+(2 if t < self.epos else 0)})")
            c = "0" if t == 0 else "v[48:51]"
            a(f"v_mfma_f32_16x16x32_bf16 v[48:51], v[{FR+4*(t%4)}:{FR+4*(t%4)+3}], v[{WQ+4*t}:{WQ+4*t+3}], {c}")
        qfl = p.get("qfl", "") if p["fast"] else "sc1"
        a(f"""v_and_or_b32 v52, v48, -16, v56
        v_and_or_b32 v53, v49, -16, v57
        v_and_or_b32 v54, v50, -16, v58
        v_and_or_b32 v55, v51, -16, v59
        global_store_dwordx4 v21, v[52:55], s[28:29] {qfl}
""")
        oppre = f"""s_lshl_b32 s45, s32, 13
        s_add_u32 s45, s45, {OB}
        s_lshl_b32 s35, s33, 2
        v_and_b32 v2, 3, v0
        v_add_u32 v2, s35, v2
        v_cmp_lt_u32 vcc, 3, v0
        v_cndmask_b32 v2, v2, 32, vcc
        v_lshl_add_u32 v2, v2, 7, s45
        global_load_dword v253, v2, s[28:29] {p.get("prefl", "")}"""
        if p["oppre"] == 1:
            a(oppre)
        a.stamp(4)
        a(self.ROLES)
        qg = a.lab("qg"); qgd = a.lab("qg_ok"); qns = a.lab("qg_nosc1"); qf = a.lab("qg_fast")
        qt = a.lab("qt"); qtd = a.lab("qt_ok")
        zi = a.lab("zinit"); zf = a.lab("zflag")
        self.cold.append(lambda: a(f"""{zi}:
        s_mul_i32 s35, s30, 5120
        s_add_u32 s35, s35, 2048
        v_lshl_add_u32 v2, v0, 4, s35
        s_mov_b32 s35, {INIT1}
        s_cmp_ge_u32 s30, 4
        s_cmov_b32 s35, {INIT2}
        v_mov_b32 v64, 0
        v_mov_b32 v65, s35
        v_mov_b32 v66, 0
        v_mov_b32 v67, s35
        global_store_dwordx4 v2, v[64:67], s[28:29] offset:-2048 sc1
        global_store_dwordx4 v2, v[64:67], s[28:29] offset:-1024 sc1
        global_store_dwordx4 v2, v[64:67], s[28:29] sc1
        global_store_dwordx4 v2, v[64:67], s[28:29] offset:1024 sc1
        global_store_dwordx4 v2, v[64:67], s[28:29] offset:2048 sc1
        s_mul_i32 s35, s30, 5120
        s_add_u32 s35, s35, {PC}
        v_min_u32 v2, 39, v0
        v_lshl_add_u32 v2, v2, 7, s35
        global_store_dword v2, v64, s[28:29] sc1
        s_branch {zi}_r
        {zf}:
        s_lshl_b32 s35, s30, 2
        s_add_u32 s35, s35, {ZF}
        v_mov_b32 v2, s35
        s_waitcnt vmcnt(0)
        global_store_dword v2, v245, s[28:29] sc1
        s_branch {zf}_r"""))
        assert A2 == 4 * 5120
        a(f"""s_and_b32 s58, s34, 31
        s_cmp_eq_u32 s58, 31
        s_cbranch_scc1 {zi}
        {zi}_r:
        v_lshrrev_b32 v3, 5, v0
        v_and_b32 v22, 31, v0
        v_and_b32 v2, 7, v0
        v_lshlrev_b32 v2, 2, v2
        v_add_u32 v23, {ZF}, v2
        s_lshl_b32 s35, s32, 15
        s_lshr_b32 s38, s33, 2
        s_lshl_b32 s38, s38, 9
        s_add_u32 s35, s35, s38
        s_add_u32 s35, s35, {BK}
        v_lshlrev_b32 v2, 12, v3
        v_lshl_add_u32 v2, v22, 4, v2
        v_add_u32 v60, s35, v2
        v_add_u32 v61, 8192, v60
        v_add_u32 v62, 8192, v61
        v_add_u32 v63, 8192, v62
        v_and_b32 v2, 15, v0
        v_lshlrev_b32 v2, 4, v2
        v_and_b32 v22, 16, v0
        v_lshrrev_b32 v22, 1, v22
        v_add_u32 v2, v2, v22
        v_lshl_add_u32 v22, v3, 2, v2
        s_mov_b32 s42, 0
        {"s_branch " + qtd if p["qtrig"] < 0 else ""}
        {qt}:
        ds_read_b128 v[36:39], v13 offset:{L_QT}
        ds_read_b128 v[40:43], v13 offset:{L_QT+16}
        s_add_u32 s42, s42, 1
        s_waitcnt lgkmcnt(0)
        v_min3_u32 v36, v36, v38, v40
        v_min_u32 v36, v36, v42
        v_cmp_eq_u32 vcc, 0, v36
        s_cbranch_vccz {qtd}
        s_cmp_lt_u32 s42, {SPIN*20}
        s_cbranch_scc1 {qt}
        {qtd}:
        s_mov_b32 s42, 0""")
        a.stamp(5)
        if p.get("noq"):
            a(f"v_mov_b32 v36, 0\ns_branch {qgd}")
        a(f"{qg}:")
        for u in range(4):
            a(f"global_load_dwordx4 v[{80+4*u}:{83+4*u}], v{60+u}, s[28:29] sc1")
        a("s_add_u32 s42, s42, 1\ns_waitcnt vmcnt(0)")
        a("v_xor_b32 v36, v56, v80\nv_xor_b32 v37, v57, v81")
        for r in range(82, 96):
            a(f"v_bitop3_b32 v{36+r%2}, v{36+r%2}, v{r}, v{56+r%4} bitop3:0xf6")
        a(f"""v_or_b32 v36, v36, v37
        v_and_b32 v37, 7, v36
        v_and_b32 v36, 15, v36
        v_cmp_ne_u32 vcc, 0, v37
        s_cbranch_vccz {qgd}
        s_cmp_lg_u32 s42, {p['qslow']}
        s_cbranch_scc1 {qns}
        global_store_dwordx4 v21, v[52:55], s[28:29] sc1
        {qns}:
        s_cmp_lt_u32 s42, {SPIN}
        s_cbranch_scc1 {qg}
        {qgd}:""")
        for r in range(80, 96):
            a(f"v_and_b32 v{r}, -16, v{r}")
        a(f"""v_pk_add_f32 v[80:81], v[80:81], v[84:85]
        v_pk_add_f32 v[82:83], v[82:83], v[86:87]
        v_pk_add_f32 v[88:89], v[88:89], v[92:93]
        v_pk_add_f32 v[90:91], v[90:91], v[94:95]
        v_pk_add_f32 v[80:81], v[80:81], v[88:89]
        v_pk_add_f32 v[82:83], v[82:83], v[90:91]
        v_permlane32_swap_b32 v80, v82
        v_permlane32_swap_b32 v81, v83
        v_pk_add_f32 v[80:81], v[80:81], v[82:83]
        v_cvt_pk_bf16_f32 v80, v80, v81
        ds_write_b32 v22, v80 offset:{L_Q}
        v_cmp_ne_u32 vcc, 0, v36
        v_mov_b32 v14, s44
        s_nop 0
        s_cmp_lg_u64 vcc, 0
        s_cselect_b32 s46, 1, {0 if p['fast'] else 1}
        s_cselect_b32 s35, 1, {p['hslow'] + 1 if p['fast'] else 1}
        v_mov_b32 v15, s35
        s_waitcnt lgkmcnt(0)
        ds_write_b64 v13, v[14:15] offset:{L_QF}
        s_cbranch_scc0 {qf}
        global_store_dwordx4 v21, v[52:55], s[28:29] sc1
        {qf}:
        s_cmp_eq_u32 s58, 31
        s_cbranch_scc1 {zf}
        {zf}_r:""")
        if p["oppre"] == 2:
            a(oppre)
        a.stamp(6)
        mw = a.lab("mw"); mwd = a.lab("mw_ok"); msl = a.lab("ml_slow"); msd = a.lab("ml_done")
        a(f"""s_mov_b32 s40, {hx(LOG2E)}
        s_lshl_b32 s35, s33, 4
        s_add_u32 s35, s35, s45
        s_add_u32 s36, s35, 4096
        v_mov_b32 v20, s36
        s_and_b32 s36, s33, 4
        s_lshl_b32 s36, s36, 4
        s_add_u32 s35, s35, s36
        v_lshrrev_b32 v2, 2, v0
        v_lshl_add_u32 v21, v2, 8, s35
        v_and_b32 v2, 2, v0
        v_lshl_add_u32 v21, v2, 5, v21
        v_and_b32 v2, 1, v0
        v_lshl_add_u32 v21, v2, 3, v21
        s_setprio 0
        s_mov_b32 s42, 0
        {mw}:
        ds_read_b128 v[36:39], v13 offset:{L_ML}
        ds_read_b128 v[40:43], v13 offset:{L_ML+16}
        s_add_u32 s42, s42, 1
        s_waitcnt lgkmcnt(0)
        v_min3_u32 v44, v37, v39, v41
        v_min_u32 v44, v44, v43
        v_cmp_eq_u32 vcc, 0, v44
        s_cbranch_vccz {mwd}
        s_cmp_lt_u32 s42, {SPIN*20}
        s_cbranch_scc1 {mw}
        {mwd}:
        s_setprio 3
        v_max3_f32 v44, v36, v38, v40
        v_max_f32 v44, v44, v42""")
        for i in range(4):
            a(f"v_sub_f32 v{36+2*i}, v{36+2*i}, v44")
        for i in range(4):
            a(f"v_mul_f32 v{36+2*i}, s40, v{36+2*i}")
        for i in range(4):
            a(f"v_exp_f32 v{36+2*i}, v{36+2*i}")
        a(f"""v_mul_f32 v46, v36, v37
        v_mov_b32 v45, s44
        v_fmac_f32 v46, v38, v39
        v_mov_b32 v47, s44
        v_fmac_f32 v46, v40, v41
        v_fmac_f32 v46, v42, v43
        s_cmp_lg_u32 s46, 0
        s_cbranch_scc1 {msl}
        global_store_dwordx4 v20, v[44:47], s[28:29]
        s_branch {msd}
        {msl}:
        global_store_dwordx4 v20, v[44:47], s[28:29] sc1
        {msd}:""")
        a.stamp(8)
        a("s_barrier")
        for u in range(4):
            a(f"ds_read2st64_b64 v[{48+4*u}:{51+4*u}], v1 offset0:{L_RED//512 + 2*u} offset1:{L_RED//512 + 2*u + 1}")
        osl = a.lab("op_slow"); osd = a.lab("op_done"); nf = a.lab("notfree"); dm = a.lab("dma"); dm2 = a.lab("dma2")
        a(f"""s_cmp_lg_u32 s46, 0
        s_waitcnt lgkmcnt(2)
        v_pk_add_f32 v[48:49], v[48:49], v[50:51]
        v_pk_add_f32 v[52:53], v[52:53], v[54:55]
        v_pk_mul_f32 v[48:49], v[48:49], v[36:37] op_sel_hi:[1,0]
        s_waitcnt lgkmcnt(0)
        v_pk_add_f32 v[56:57], v[56:57], v[58:59]
        v_pk_fma_f32 v[48:49], v[52:53], v[38:39], v[48:49] op_sel_hi:[1,0,1]
        v_pk_add_f32 v[60:61], v[60:61], v[62:63]
        v_pk_fma_f32 v[48:49], v[56:57], v[40:41], v[48:49] op_sel_hi:[1,0,1]
        v_pk_fma_f32 v[48:49], v[60:61], v[42:43], v[48:49] op_sel_hi:[1,0,1]
        v_and_or_b32 v48, v48, s49, v246
        v_and_or_b32 v49, v49, s49, v247
        s_cbranch_scc1 {osl}
        global_store_dwordx2 v21, v[48:49], s[28:29]
        {osd}:""")
        self.cold.append(lambda: a(f"""{osl}:
        global_store_dwordx2 v21, v[48:49], s[28:29] sc1
        s_branch {osd}"""))
        a.stamp(10)
        a("""s_cmp_lg_u32 s31, 0
        s_cbranch_scc1 L_ctrl_n""")
        self.ctrl_wo()
        a.flush_cold()
        a(f"""L_ctrl_n:
        {"buffer_wbl2 sc1" if p.get("wbl2") else ""}
        s_cmp_eq_u32 s31, 1
        s_cbranch_scc1 {nf}""")
        a.finish()
        a(f"""{nf}:
        global_load_dword v24, v23, s[28:29] sc1
        s_barrier
        s_waitcnt vmcnt(0)""")
        self.zcheck()
        if p.get("dry", 1):
            a("""s_mov_b64 exec, 0
            s_branch L_dry_in
            L_dry_out:
            s_mov_b64 exec, -1""")
        if p.get("probe", 2) == 2:
            pb = a.lab("probe"); pbd = a.lab("probe_ok")
            nc = p.get("nc", 5)
            R = p.get("R", 27)
            if R == 27:
                a("s_mov_b32 s38, s39")
            elif R > 27:
                a(f"""s_mul_i32 s38, s39, 3
                s_add_u32 s38, s38, s33
                s_sub_u32 s38, s38, 5
                s_cmp_ge_u32 s38, {R}
                s_cselect_b32 s35, {R}, 0
                s_sub_u32 s38, s38, s35""")
            else:
                a(f"s_lshr_b32 s38, s39, 1")
            a(f"""s_mul_i32 s38, s38, 640
            s_add_u32 s38, s38, {PC}
            s_mov_b32 s42, {p['gslow'] * (4 if p.get("ppipe") else 1)}
            s_mov_b64 s[64:65], 0
            s_mov_b64 s[66:67], 0
            s_mov_b32 s68, 0
            {pb}:""")
            if p.get("ppipe"):
                a("s_waitcnt lgkmcnt(10)")
            for c in range(nc):
                if p.get("pskip", 1):
                    sk = a.lab("psk")
                    a(f"s_cmp_eq_u32 s{64+c}, 32\ns_cbranch_scc1 {sk}")
                a(f"s_load_dword s{64+c}, s[28:29], s38 offset:{p.get('pstr', 128)*c} glc")
                if p.get("pskip", 1):
                    a(f"{sk}:")
            assert nc == 5
            a(f"""s_sub_u32 s42, s42, 1
            s_cmp_eq_u32 s42, 0
            s_cbranch_scc1 {pbd}
            s_waitcnt lgkmcnt(0)
            s_and_b64 s[70:71], s[64:65], s[66:67]
            s_and_b32 s70, s70, s68
            s_and_b32 s70, s70, s71
            s_cbranch_scc0 {pb}
            s_bitcmp0_b32 s70, 5
            s_cbranch_scc1 {pb}
            {pbd}:""" if False else f"""s_sub_u32 s42, s42, 1
            s_cmp_eq_u32 s42, 0
            s_cbranch_scc1 {pbd}
            s_waitcnt lgkmcnt(0)
            s_and_b64 s[70:71], s[64:65], s[66:67]
            s_and_b32 s70, s70, s68
            s_and_b32 s70, s70, s71
            s_bitcmp0_b32 s70, 5
            s_cbranch_scc1 {pb}
            {pbd}:""")
            a.stamp(7)
        elif p.get("probe", 2):
            pb = a.lab("probe"); pbd = a.lab("probe_ok")
            a(f"""s_mul_i32 s35, s39, 3
            s_add_u32 s35, s35, s33
            s_and_b32 s36, s35, 7
            s_lshl_b32 s36, s36, 7
            s_bitcmp1_b32 s35, 3
            s_cselect_b32 s35, 5120, 0
            s_add_u32 s38, s35, s36
            s_mov_b32 s42, {p['gslow']}
            {pb}:""")
            for c in range(5):
                a(f"s_load_dword s{64+c}, s[28:29], s38 offset:{1024*c + 4} glc")
            a(f"""s_sub_u32 s42, s42, 1
            s_cmp_eq_u32 s42, 0
            s_waitcnt lgkmcnt(0)
            s_cbranch_scc1 {pbd}
            s_xor_b32 s64, s64, {MHI}
            s_xor_b32 s65, s65, {MHI}
            s_xor_b32 s66, s66, {MHI}
            s_xor_b32 s67, s67, {MHI}
            s_xor_b32 s68, s68, {MHI}
            s_or_b64 s[64:65], s[64:65], s[66:67]
            s_or_b32 s64, s64, s68
            s_or_b32 s64, s64, s65
            s_lshr_b32 s64, s64, 20
            s_cbranch_scc1 {pb}
            {pbd}:""")
            a.stamp(7)
        a("s_barrier")
        a.finish()
        a.flush_cold()

    def zcheck(self):
        a = self
        zc = a.lab("zc"); zr = a.lab("zc_re"); zd = a.lab("zc_ok")
        a(f"""s_mov_b32 s42, 0
        {zc}:
        v_xor_b32 v24, s44, v24
        v_lshlrev_b32 v24, 3, v24
        v_cmp_ne_u32 vcc, 0, v24
        s_cbranch_vccnz {zr}
        {zd}:""")
        self.cold.append(lambda: a(f"""{zr}:
        global_load_dword v24, v23, s[28:29] sc1
        s_add_u32 s42, s42, 1
        s_cmp_ge_u32 s42, {SPIN}
        s_waitcnt vmcnt(0)
        s_cbranch_scc1 {zd}
        s_branch {zc}"""))

    def ctrl_wo(self):
        a = self
        p = self.p
        a("s_barrier")
        if p.get("probe", 2) != 2:
            a("global_load_dword v24, v23, s[28:29] sc1\ns_waitcnt vmcnt(0)")
            self.zcheck()
        else:
            sk = a.lab("ow_sk")
            a(f"""{"s_setprio 0" if p.get("zlate") else ""}
            {"s_nop 15" if p.get("zlate") else ""}
            global_load_dword v24, v23, s[28:29] sc1
            v_mul_u32_u24 v2, 640, v0
            s_lshl_b32 s35, s33, 7
            s_add_u32 s35, s35, {PC}
            v_add_u32 v2, s35, v2
            v_mov_b32 v3, 1
            s_waitcnt vmcnt(0)""")
            self.zcheck()
            a(f"""s_mov_b32 exec_lo, {hex(((1 << p.get("R", 27)) - 1) & 0xffffffff)}
            s_mov_b32 exec_hi, {hex(((1 << p.get("R", 27)) - 1) >> 32)}
            s_barrier
            global_atomic_add v2, v3, s[28:29] sc1""")
            if p.get("b3c", 2):
                a("s_barrier")
            a.stamp(9)
            a.finish()
            return
        a("s_barrier")
        a.finish()

    def write(self, fn):
        self.build()
        body = process(self.L)
        H = [HEADER.rstrip(),
             f"; @launch grid=(256,1,1) block=(320,1,1) lds={LDS_SIZE}",
             '.amdgcn_target "amdgcn-amd-amdhsa--gfx950"', ".text", f".globl {NAME}_kernel", ".p2align 8",
             f".type {NAME}_kernel,@function", f"{NAME}_kernel:"]
        T = ['.section .rodata,"a"', ".p2align 6", f".amdhsa_kernel {NAME}_kernel",
             f"  .amdhsa_next_free_vgpr 256", f"  .amdhsa_next_free_sgpr {102 if (self.diag or self.p.get('holdat')) else self.p.get('nsgpr', 102)}", "  .amdhsa_accum_offset 256",
             "  .amdhsa_group_segment_fixed_size 0", "  .amdhsa_kernarg_size 104", "  .amdhsa_user_sgpr_count 2",
             "  .amdhsa_user_sgpr_kernarg_segment_ptr 1", "  .amdhsa_system_sgpr_workgroup_id_x 1",
             "  .amdhsa_float_denorm_mode_32 3", "  .amdhsa_float_denorm_mode_16_64 3", ".end_amdhsa_kernel"]
        lines = [(l if l.endswith(":") or l.startswith(".") or l.startswith(";") else "    " + l) for l in body]
        open(fn, "w").write("\n".join(H + lines + T) + "\n")


if __name__ == "__main__":
    out = sys.argv[1] if len(sys.argv) > 1 else "k24.s"
    kw = {}
    diag = False
    for x in sys.argv[2:]:
        if x == "diag":
            diag = True
        else:
            k, v = x.split("=", 1)
            kw[k] = eval(v)
    G(diag=diag, **kw).write(out)
```

```python
import re, subprocess, os, tempfile
E64 = ("v_add_f32", "v_sub_f32", "v_mul_f32", "v_max_f32", "v_min_f32", "v_mov_b32", "v_xor_b32", "v_and_b32", "v_or_b32",
       "v_exp_f32", "v_rcp_f32", "v_sqrt_f32", "v_cvt_f32_f64", "v_cvt_f64_f32", "v_lshlrev_b32", "v_lshrrev_b32", "v_add_u32",
       "v_min_u32", "v_fmac_f32", "v_cndmask_b32", "v_mul_u32_u24", "v_mov_b64", "v_cmp_", "v_permlane32_swap_b32",
       "v_permlane16_swap_b32", "v_subrev_u32")
def isins(l):
    t = l.strip()
    return t and not t.startswith((";", ".")) and not t.endswith(":")
def sizes(lines, name):
    src = '.amdgcn_target "amdgcn-amd-amdhsa--gfx950"\n.text\n.p2align 8\n%s:\n' % name + "\n".join(lines) + "\n"
    d = tempfile.mkdtemp()
    open(d + "/a.s", "w").write(src)
    subprocess.run(["clang", "-x", "assembler", "-target", "amdgcn-amd-amdhsa", "-mcpu=gfx950", "-c", d + "/a.s", "-o", d + "/a.o"], check=True)
    out = subprocess.run(["llvm-objdump", "-d", "--mcpu=gfx950", d + "/a.o"], capture_output=True, text=True).stdout
    res = []
    for ln in out.splitlines():
        m = re.search(r"// ([0-9A-F]{12}): ((?:[0-9A-F]{8} ?)+)", ln)
        if m: res.append((int(m.group(1), 16), 4 * len(m.group(2).split())))
    return res
def align(lines, name, minrun=4, start_label="L_c2:"):
    sz = sizes(lines, name)
    k0 = lines.index(start_label)
    head = lines[:k0]; body = lines[k0:]
    n_after = sum(1 for l in body if isins(l))
    sz = sz[len(sz) - n_after:]
    addr = sz[0][0]
    idx = [i for i, l in enumerate(body) if isins(l)]
    S = {i: s for i, (_, s) in zip(idx, sz)}
    out = []
    par = addr % 8
    nfix = 0
    for pos, i in enumerate(range(len(body))):
        l = body[i]
        if i not in S:
            out.append((l, 0)); continue
        s = S[i]
        if s == 8 and par == 4:
            run = 0
            for j in range(i, len(body)):
                if j not in S: continue
                if S[j] == 8 and not body[j].strip().startswith(("v_mfma", "v_smfmac", "global_", "s_load")): run += 1
                else: break
            if run >= minrun:
                done = False
                b = len(out) - 1
                while b >= 0 and out[b][1] in (0, 4):
                    t = out[b][0].strip()
                    if out[b][1] == 4:
                        op = t.split()[0]
                        if op.startswith(E64) and not op.endswith(("_e64", "_dpp", "_sdwa")):
                            out[b] = (t.replace(op, op + "_e64", 1), 8); done = True
                        elif op == "s_nop" and int(t.split()[1]) >= 1:
                            out[b:b+1] = [("s_nop 0", 4), (f"s_nop {int(t.split()[1]) - 1}", 4)]; done = True
                        elif op == "s_waitcnt":
                            out[b:b+1] = [(t, 4), (t, 4)] if False else [("s_nop 0", 4), (t, 4)]; done = True
                        elif op in ("s_branch", "s_endpgm", "s_setpc_b64"):
                            out[b+1:b+1] = [("s_nop 0", 4)]; done = True
                        if done: break
                    b -= 1
                if not done and run >= 8:
                    out.append(("s_nop 0", 4)); done = True
                if done:
                    par = 0; nfix += 1
        out.append((l, s)); par = (par + s) % 8
    return head + [l for l, _ in out], nfix
```

```python
import sys, struct, math
from hz import process

NAME = "sequential_preLN__sliding_block_cached__mixer_channel_mlp__decode"


def hx(x):
    return "0x%08x" % struct.unpack("<I", struct.pack("<f", x))[0]


A1 = 0x00000
A2 = 0x05000
PC = 0x0A000
EP = 0x80000
ZF = 0x81000
BK = 0x100000
OB = 0x40000
STAMP = 0x8000000
L_Y = 0x0000; YS = 1408
L_Q = 0x0B00; L_ML = 0x0C00; L_Z = 0x0C80; L_QF = 0x0C90; L_QT = 0x0CC0; L_GO = 0x0CF0; L_OG = 0x0C40; L_FIN = 0x0C60
L_RED = 0x1000; L_RED2 = 0x2000; L_T1 = 0x3000
L_H = 0x1000
L_W1 = 0x4000
LDS_SIZE = L_W1 + 81920
KR, VR, FRG, TR = 16, 80, 144, 208
LOG2E = 1.4426950408889634
SPIN = 400000
DPPF = "row_mask:0xf bank_mask:0xf"
KEXP = 22
MHI = ((1023 + KEXP) << 20) | (1 << 19)
for miss in range(1, 55):
    for slop in (-1, 0):
        top = (((1 - miss) * MHI + slop) & 0xffffffff) >> 20
        top2 = (((1 - miss) * MHI + (1 << 19) - 1 + (slop << 19)) & 0xffffffff) >> 20
        for t_ in (top, top2):
            assert t_ != 1023 + KEXP, miss
INIT1 = (-31 * MHI) & 0xffffffff
INIT2 = (-26 * MHI) & 0xffffffff

HEADER = """; Pre-LN sliding-window attention + pre-LN channel MLP, decode step (B=2, D=640, 32 heads x 128, window 1024, F=1728).
; earlier launch are never taken for this launch's. Stores stay in the L2 only when all readers were seen to run on
; doubles (1.5*2^22 + v): exact, order independent, and readable as a double only once every add has arrived.
"""


class G:
    def __init__(self, diag=False, **kw):
        self.L = []
        self.diag = diag
        self.n = 0
        self.sect = "a"
        self.cold = []
        self.p = dict(F=11, Pw=9, Pw2=10, Pn=8, Pn2=9, tsl=(11, 17, 23, 29, 32, 32, 32, 32), mat=32, chk=31,
                      qtrig=3, qslow=3, hslow=100, cslow=60, lfpos=2, fast=True, nt="nt", w1fl="", warm=True,
                      mlpT=0, b3b=True, atrig=1, actrl=2, hpipe=False, sp1=0, Pf=0, tfl="", tsn=None, n1=0, gf=True, afpos=1, gslow=40, gpre=8, gfv=False, oppre=1)
        self.p.update(kw)

    def __call__(self, s):
        for ln in s.split("\n"):
            ln = ln.strip()
            if ln:
                self.L.append(ln)

    def lab(self, p):
        self.n += 1
        return f"L_{p}_{self.n}"

    def stamp(self, idx):
        p = self.p
        h = p.get("holdat")
        if h is not None and not self.diag:
            if (self.sect, idx) == tuple(h[:2]):
                self("s_memrealtime s[96:97]\ns_waitcnt lgkmcnt(0)\ns_mov_b32 s95, 1")
            return
        if not self.diag or (p.get("lite") and idx != 31):
            return
        if p.get("only") is not None and idx != 31 and (self.sect + str(idx)) not in p["only"].split(","):
            return
        self(f"s_memrealtime s[100:101]\ns_waitcnt lgkmcnt(0)\nv_writelane_b32 v255, s100, {idx}")

    def clk(self, where):
        c = self.p.get("clk")
        if self.diag and c and where in c:
            self(f"s_memtime s[100:101]\ns_waitcnt lgkmcnt(0)\nv_writelane_b32 v255, s100, {25 + c.index(where)}")

    def note(self, idx):
        if self.diag:
            self(f"v_writelane_b32 v255, s42, {idx}")

    def finish(self):
        if self.diag:
            self.stamp(31)
            self("s_branch L_dump")
        elif self.p.get("holdat") is not None:
            self("s_branch L_hold")
        else:
            self("s_endpgm")

    def rnd(self, d, src):
        self(f"v_cvt_pk_bf16_f32 v{d}, 0, {src}")

    def ln(self, X, P, T, keep, hook=None, fill=(), H=None):
        a = self
        pr = lambda r: f"v[{r}:{r+1}]"
        if H is None:
            H = X
            a(f"v_pk_add_f32 {pr(T)}, {pr(X)}, {pr(X+2)}")
            a(f"v_pk_mul_f32 {pr(T+2)}, {pr(X)}, {pr(X)}")
            for i in (4, 6, 8):
                a(f"v_pk_add_f32 {pr(T)}, {pr(T)}, {pr(X+i)}")
                a(f"v_pk_fma_f32 {pr(T+2)}, {pr(X+i-2)}, {pr(X+i-2)}, {pr(T+2)}")
            a(f"v_pk_fma_f32 {pr(T+2)}, {pr(X+8)}, {pr(X+8)}, {pr(T+2)}")
        a(f"v_add_f32 v{T+2}, v{T+2}, v{T+3}")
        a(f"v_add_f32 v{T}, v{T}, v{T+1}")
        fill = list(fill)

        def f(n_):
            for _ in range(n_):
                if fill:
                    a(fill.pop(0))
        if hook:
            hook()
        f(2)
        a(f"v_permlane32_swap_b32 v{T}, v{T+2}")
        a(f"v_add_f32 v{T}, v{T}, v{T+2}")
        for d in ("quad_perm:[1,0,3,2]", "quad_perm:[2,3,0,1]", "row_half_mirror", "row_mirror"):
            f(2)
            a(f"v_add_f32_dpp v{T}, v{T}, v{T} {d} {DPPF}")
        f(2)
        a(f"v_add_f32_dpp v{T}, v{T}, v{T} row_bcast:15 row_mask:0xa bank_mask:0xf")
        a(f"v_mul_f32 v{T}, {hx(1.0/640.0)}, v{T}")
        f(1)
        a(f"v_readlane_b32 s41, v{T}, 63")
        a(f"v_readlane_b32 s40, v{T}, 31")
        f(99)
        a(f"v_mov_b32 v{T+2}, s41")
        a.rnd(T, "s40")
        a(f"v_fma_f32 v{T+2}, -s40, s40, v{T+2}")
        sub = lambda i: a(f"v_pk_add_f32 {pr(X+i)}, {pr(H+i)}, {pr(T)} op_sel_hi:[1,0] neg_lo:[0,1] neg_hi:[0,1]")
        sub(0)
        a(f"v_max_f32 v{T+2}, 0, v{T+2}")
        sub(2)
        a.rnd(T+2, f"v{T+2}")
        sub(4)
        a(f"v_add_f32 v{T+2}, {hx(1e-5)}, v{T+2}")
        sub(6)
        a.rnd(T+2, f"v{T+2}")
        sub(8)
        a(f"v_sqrt_f32 v{T+2}, v{T+2}")
        a.rnd(X, f"v{X}"); a.rnd(X+1, f"v{X+1}")
        a.rnd(T+2, f"v{T+2}")
        a.rnd(X+2, f"v{X+2}")
        a(f"v_rcp_f32 v{T+2}, v{T+2}")
        for i in range(3, 10):
            a.rnd(X+i, f"v{X+i}")
        for i in range(5):
            a(f"v_pk_mul_f32 {pr(X+2*i)}, {pr(X+2*i)}, {pr(T+2)} op_sel_hi:[1,0]")
        if keep:
            for i in range(10):
                a.rnd(X+i, f"v{X+i}")
        else:
            for i in range(5):
                a(f"v_cvt_pk_bf16_f32 v{P+i}, v{X+2*i}, v{X+2*i+1}")

    def selectors(self):
        a = self
        a("""v_and_b32 v2, 1, v0
        v_cmp_eq_u32 vcc, 1, v2
        v_mov_b32 v2, 0x0c0c0100
        v_mov_b32 v3, 0x01000c0c
        v_cndmask_b32 v12, v2, v3, vcc
        v_mov_b32 v2, 0x0c0c0302
        v_mov_b32 v3, 0x03020c0c
        v_cndmask_b32 v13, v2, v3, vcc
        v_bfe_u32 v2, v0, 1, 2
        v_mov_b32 v3, 0x0c0c0c0c""")
        for r in range(4):
            a(f"v_cmp_eq_u32 vcc, {r}, v2")
            a(f"v_cndmask_b32 v{4+r}, v3, v12, vcc")
            a(f"v_cndmask_b32 v{8+r}, v3, v13, vcc")

    def dlayout(self, dst, t, bstride):
        self(f"""v_and_b32 v{dst}, 15, v0
        v_lshlrev_b32 v{dst}, 5, v{dst}
        v_and_b32 v{t}, 16, v0
        v_add_u32 v{dst}, v{dst}, v{t}
        v_lshrrev_b32 v{t}, 5, v0
        v_mul_u32_u24 v{t}, {bstride}, v{t}
        v_add_u32 v{dst}, v{dst}, v{t}""")

    def rowaddr(self, dst):
        self(f"""v_lshrrev_b32 v2, 4, v0
        v_mul_u32_u24 v2, 10240, v2
        v_and_b32 v3, 15, v0
        v_lshl_add_u32 v2, v3, 4, v2
        v_add_u32 v{dst}, s36, v2""")

    ROLES = """s_and_b32 s39, s32, 3
        s_lshl_b32 s39, s39, 3
        s_add_u32 s39, s39, s30
        s_cmp_lt_u32 s39, 27
        s_cselect_b32 s31, 1, 2
        s_min_u32 s39, s39, 26
        s_cmp_lt_u32 s33, 5
        s_cselect_b32 s31, 0, s31"""

    def gather(self, name, n, loads, R, first_issued=False):
        a = self
        lp = a.lab(name); dn = a.lab(name + "_ok"); re = a.lab(name + "_re")
        a("s_mov_b32 s42, 0")
        if first_issued:
            a(f"s_branch {lp}")
        a(f"{re}:")
        loads()
        a(f"s_add_u32 s42, s42, 1\ns_cmp_ge_u32 s42, {SPIN}\ns_cbranch_scc1 {dn}")
        a(f"{lp}:")
        for u in range(n):
            a(f"s_waitcnt vmcnt({n-1-u})")
            b = R + 4*u
            for r in range(b, b + 4):
                a(f"v_xor_b32 v{r}, s{64 + (r - b)}, v{r}")
            if u == 0:
                a(f"v_or_b32 v26, v{b}, v{b+1}")
            else:
                a(f"v_or3_b32 v26, v26, v{b}, v{b+1}")
            a(f"v_or3_b32 v26, v26, v{b+2}, v{b+3}")
            if u == n - 1:
                a("v_cmp_ne_u32_sdwa vcc, v26, v13 src0_sel:BYTE_0 src1_sel:DWORD")
            if u:
                a(f"v_pk_add_f32 v[{R}:{R+1}], v[{R}:{R+1}], v[{b}:{b+1}]")
                a(f"v_pk_add_f32 v[{R+2}:{R+3}], v[{R+2}:{R+3}], v[{b+2}:{b+3}]")
        a(f"s_cbranch_vccnz {re}\n{dn}:")

    def busy(self, name, rd, cond, nfill=12, reg=38):
        a = self
        lp = a.lab(name); dn = a.lab(name + "_ok")
        a(f"s_mov_b32 s42, {SPIN*20}\n{lp}:\n{rd}")
        for _ in range(nfill // 2):
            a(f"v_add_u32 v{reg}, v{reg}, v0")
        a(f"s_sub_u32 s42, s42, 1\ns_cbranch_scc1 {dn}")
        for _ in range(nfill - nfill // 2):
            a(f"v_add_u32 v{reg}, v{reg}, v0")
        a(f"s_waitcnt lgkmcnt(0)\n{cond}\ns_cbranch_vccnz {lp}\n{dn}:")

    def flush_cold(self):
        c, self.cold = self.cold, []
        for f in c:
            f()

    def red16(self, A):
        self(f"""v_permlane32_swap_b32 v{A}, v{A+2}
        v_permlane32_swap_b32 v{A+1}, v{A+3}
        v_pk_add_f32 v[{A}:{A+1}], v[{A}:{A+1}], v[{A+2}:{A+3}]
        v_permlane16_swap_b32 v{A}, v{A+1}
        v_add_f32 v{A}, v{A}, v{A+1}
        v_add_f32_dpp v{A}, v{A}, v{A} row_ror:4 {DPPF}
        v_add_f32_dpp v{A}, v{A}, v{A} row_ror:8 {DPPF}""")

    def transp(self, R, B, pp):
        for T in range(8):
            self(f"v_perm_b32 v{B+4*T+pp}, v{R+4*(2*pp+1)+T//2}, v{R+4*(2*pp)+T//2}, s{52+(T&1)}")

    def nat8(self, B):
        for r in range(4):
            self(f"v_mfma_f32_16x16x32_bf16 v[{44+4*r}:{47+4*r}], v[64:67], v[{B+4*r}:{B+4*r+3}], 0")
        for r in range(4):
            self(f"v_mfma_f32_16x16x32_bf16 v[{44+4*r}:{47+4*r}], v[68:71], v[{B+16+4*r}:{B+16+4*r+3}], v[{44+4*r}:{47+4*r}]")

    def zeroA(self):
        self("s_mov_b32 s52, 0x05040100\ns_mov_b32 s53, 0x07060302")
        for r in range(64, 72, 2):
            self(f"v_mov_b64 v[{r}:{r+1}], 0")

    def stream(self, wo, withT, extra):
        a = self
        p = self.p
        nt = p["nt"]
        F = p["F"]
        P1, P2 = (p["Pw"], p["Pw2"]) if wo else (p["Pn"], p["Pn2"])
        kv = [("K", t) for t in range(16)] + [("V", t) for t in range(16)]
        order = kv[:F]
        tsl = list(p["tsl"]) if wo else (list(p["tsn"]) if p["tsn"] else [32] * withT)
        tk = 0
        for i in range(F, 33):
            for pos_, it in extra:
                if pos_ == i:
                    order.append(it)
            while tk < len(tsl) and tsl[tk] <= i:
                order.append(("T", tk)); tk += 1
            if i < 32:
                order.append(kv[i])
        NL = len(order)
        pos = {it: i for i, it in enumerate(order)}
        st = {"issued": F, "done": -1}
        big = lambda j: order[j][0] != "S"

        def emit(it):
            k, t = it
            if k == "K":
                if t == 8:
                    a("v_add_u32 v1, 32768, v1")
                a(f"global_load_dwordx4 v[{KR+4*t}:{KR+4*t+3}], v1, s[6:7] offset:{(t%8)*1024-4096} {nt}")
            elif k == "V":
                if t == 8:
                    a("v_add_u32 v14, 32768, v14")
                a(f"global_load_dwordx4 v[{VR+4*t}:{VR+4*t+3}], v14, s[8:9] offset:{(t%8)*1024-4096} {nt}")
            elif k == "T":
                if wo:
                    if t == 7:
                        a("v_add_u32 v15, 5120, v15")
                    a(f"global_load_dwordx4 v[{TR+4*t}:{TR+4*t+3}], v15, s[12:13] offset:{(t-3)*1280 if t < 7 else 0} {nt}")
                else:
                    a(f"global_load_dwordx4 v[{TR+4*t}:{TR+4*t+3}], v15, s[44:45] {p['tfl']}")
                    if t < 7:
                        a("v_add_u32 v15, s46, v15")
            else:
                a(t)
        self.emit = emit

        def issue(pace=0):
            i = st["issued"]
            if pace and big(i):
                cnt = 0; j = i
                while j > 0 and cnt < pace:
                    j -= 1
                    cnt += big(j)
                if cnt == pace and j > st["done"]:
                    a(f"s_waitcnt vmcnt({i-1-j})")
                    st["done"] = j
            if not wo and p["Pf"] and big(i):
                cnt = 0; j = i
                while j > 0 and cnt < p["Pf"]:
                    j -= 1
                    cnt += big(j)
                if j > st["done"]:
                    sk = a.lab("pf")
                    a(f"s_cbranch_vccz {sk}\ns_waitcnt vmcnt({i-1-j})\n{sk}:")
            emit(order[i])
            st["issued"] += 1

        def wait_for(it):
            i = pos[it]
            assert i < st["issued"]
            if st["done"] < i:
                a(f"s_waitcnt vmcnt({st['issued']-1-i})")
                st["done"] = i
        trig = False
        while st["done"] < pos[("K", 15)]:
            issue(P1)
            if not trig and st["done"] >= pos[("K", max(0, p["qtrig"]))]:
                a(f"ds_write_b32 v12, v247 offset:{L_QT}")
                trig = True
        a.stamp(1)
        lastchk = pos[kv[p["chk"]]]
        first = True
        while st["issued"] <= lastchk:
            sk = a.lab("chk")
            if not first:
                a(f"s_cmp_lg_u32 s47, 0\ns_cbranch_scc1 {sk}")
            a(f"""ds_read_b64 v[2:3], v13 offset:{L_QF}
            s_waitcnt lgkmcnt(0)
            v_readfirstlane_b32 s47, v3
            s_cmp_eq_u32 s47, 0
            s_cbranch_scc1 {sk}
            s_call_b64 s[50:51], L_compute
            {sk}:""")
            first = False
            issue(P2)
        lp = a.lab("qw"); sk = a.lab("qw_done"); go = a.lab("qw_go")
        a(f"""s_cmp_lg_u32 s47, 0
        s_cbranch_scc1 {sk}
        s_mov_b32 s42, 0
        {lp}:
        ds_read_b64 v[2:3], v13 offset:{L_QF}
        s_add_u32 s42, s42, 1
        s_waitcnt lgkmcnt(0)
        v_readfirstlane_b32 s47, v3
        s_cmp_lg_u32 s47, 0
        s_cbranch_scc1 {go}
        s_cmp_lt_u32 s42, {SPIN*20}
        s_cbranch_scc1 {lp}
        {go}:
        s_call_b64 s[50:51], L_compute
        {sk}:""")
        a.stamp(19)
        if p.get("aprio"):
            a(f"s_setprio {p['aprio']}")

        def topup():
            while st["issued"] < NL:
                infl = sum(big(j) for j in range(st["done"] + 1, st["issued"]))
                if infl >= P2 and big(st["issued"]):
                    break
                issue()
        a("; P.V : A = p (hi and lo halves) on the diagonal, B = V rows as loaded")
        topup()
        for t in range(16):
            a(f"v_mov_b32_dpp v{48+t%2}, v{20+t//4} row_newbcast:{4*(t%4)} {DPPF}")
            for r in range(4):
                a(f"v_perm_b32 v{FRG+4*(t%4)+r}, v{48+t%2}, v{48+t%2}, v{240+r}")
            while st["issued"] <= pos[("V", t)]:
                issue(P2)
            wait_for(("V", t))
            topup()
            c = "0" if t == 0 else "v[44:47]"
            a(f"v_mfma_f32_16x16x32_bf16 v[44:47], v[{FRG+4*(t%4)}:{FRG+4*(t%4)+3}], v[{VR+4*t}:{VR+4*t+3}], {c}")
        while st["issued"] < NL:
            issue()
        a(f"ds_write_b128 v248, v[44:47] offset:{L_RED}\ns_waitcnt lgkmcnt(0)")
        a.stamp(20)
        a("s_barrier")
        a.stamp(5)
        return st, pos, wait_for, lastchk

    def build(self):
        a = self
        p = self.p
        nt = p["nt"]
        IDS = """s_and_b32 s30, s2, 7
        s_lshr_b32 s31, s2, 3
        s_lshl_b32 s34, s30, 5
        s_add_u32 s34, s34, s31
        s_lshr_b32 s32, s34, 3
        s_and_b32 s33, s34, 7"""
        WQ = 80
        a(f"""
        s_load_dwordx16 s[4:19], s[0:1], 0
        s_load_dwordx8 s[20:27], s[0:1], 64
        s_load_dwordx2 s[28:29], s[0:1], 96""")
        if self.diag:
            a("s_memrealtime s[100:101]")
        a(f"""v_cmp_lt_u32 vcc, 63, v0
        s_cmp_ge_u32 s2, 256
        s_cbranch_scc1 L_exit
        s_cbranch_vccnz L_tramp
        s_setprio 3
        {IDS}
        s_getpc_b64 s[36:37]
        L_pc:
        s_lshl_b32 s35, s33, 11
        v_and_b32 v12, 15, v0
        v_lshl_add_u32 v1, v12, 7, s35
        v_min_u32 v1, L_codeend-L_pc-4, v1
        global_load_dword v254, v1, s[36:37]
        s_mul_i32 s35, s33, {80*32}
        s_add_u32 s35, s35, s32
        s_lshl_b32 s35, s35, 8
        v_lshrrev_b32 v3, 4, v0
        v_mul_u32_u24 v3, {20*8192}, v3
        v_lshl_add_u32 v3, v12, 4, v3
        v_add_u32 v3, s35, v3
        v_lshlrev_b32 v1, 3, v0
        v_lshlrev_b32 v2, 2, v0
        s_movk_i32 s38, 0x2000
        s_waitcnt lgkmcnt(0)
        global_load_dwordx2 v[24:25], v1, s[4:5]
        global_load_dwordx2 v[26:27], v1, s[4:5] offset:512
        global_load_dword v28, v2, s[4:5] offset:1024
        global_load_dwordx2 v[30:31], v1, s[4:5] offset:1280
        global_load_dwordx2 v[32:33], v1, s[4:5] offset:1792
        global_load_dword v34, v2, s[4:5] offset:2304""")
        n0 = 2 if self.diag else 3
        for t in range(20):
            if t == n0:
                a(f"""s_branch L_c2
                .if (. - {NAME}_kernel) > 256
                .error "first block too long"
                .endif
                .p2align 8
                L_tramp:
                s_branch L_att
                L_c2:""")
            if t == n0 + p.get("eat", 0):
                a(f"""s_lshl_b32 s45, s34, 12
                s_add_u32 s45, s45, {BK}
                v_and_b32 v12, 7, v0
                v_lshl_add_u32 v20, v12, 7, s45
                v_mov_b32 v12, {EP}
                global_load_dword v15, v12, s[28:29] sc1
                global_load_dword v253, v20, s[28:29] nt""")
                self.epos = t
            a(f"global_load_dwordx4 v[{WQ+4*t}:{WQ+4*t+3}], v3, s[10:11] {nt}")
            if t < 19:
                a("v_add_u32 v3, s38, v3")
            if t == n0 + 1:
                a(f"v_mov_b32 v36, 0\nds_write_b32 v2, v36 offset:{L_ML}\ns_mov_b32 s3, 4")
        if self.diag:
            a("v_mov_b32 v255, 0\nv_writelane_b32 v255, s100, 0")
        if p.get("holdat") is not None:
            a("s_mov_b32 s95, 0")
        a("s_waitcnt lgkmcnt(0)\ns_barrier\ns_branch L_ctrl")
        a(f"""L_att:
        v_lshrrev_b32 v1, 6, v0
        v_and_b32 v0, 63, v0
        v_readfirstlane_b32 s3, v1
        {IDS}
        s_sub_u32 s3, s3, 1
        s_lshr_b32 s35, s33, 2
        s_lshl_b32 s35, s35, 5
        s_add_u32 s35, s35, s32
        s_lshl_b32 s35, s35, 4
        s_and_b32 s36, s33, 3
        s_add_u32 s35, s35, s36
        s_add_u32 s35, s35, 12
        s_lshl_b32 s35, s35, 3
        s_add_u32 s35, s35, s3
        s_lshl_b32 s35, s35, 13
        s_add_u32 s35, s35, 4096
        v_bfe_u32 v1, v0, 2, 2
        v_lshlrev_b32 v1, 8, v1
        v_lshrrev_b32 v2, 4, v0
        v_lshl_add_u32 v1, v2, 6, v1
        v_and_b32 v2, 3, v0
        v_lshl_add_u32 v1, v2, 4, v1
        v_add_u32 v1, s35, v1
        v_lshl_add_u32 v14, v0, 4, s35
        s_waitcnt lgkmcnt(0)
        """)
        if self.diag:
            a("v_mov_b32 v255, 0\nv_writelane_b32 v255, s100, 0")
        if p.get("holdat") is not None:
            a("s_mov_b32 s95, 0")
        a.stamp(17)
        a("s_barrier")
        a.stamp(23)
        for t in range(p["F"]):
            if t == 8:
                a("v_add_u32 v1, 32768, v1")
            a(f"global_load_dwordx4 v[{KR+4*t}:{KR+4*t+3}], v1, s[6:7] offset:{(t%8)*1024-4096} {nt}")
        a.stamp(16)
        a.selectors()
        a("v_and_b32 v2, 8, v0\nv_cmp_eq_u32 vcc, 8, v2")
        for r in range(4):
            a(f"v_cndmask_b32 v{240+r}, v{4+r}, v{8+r}, vcc")
        a(f"""v_lshrrev_b32 v2, 4, v0
        v_and_b32 v3, 3, v0
        v_lshl_add_u32 v2, v2, 2, v3
        v_lshlrev_b32 v2, 4, v2
        v_add_u32 v2, {L_Q}, v2
        v_bfe_u32 v3, v0, 2, 2
        v_mov_b32 v12, {L_Z}""")
        for qd in range(4):
            a(f"v_cmp_eq_u32 vcc, {qd}, v3")
            a(f"v_cndmask_b32 v{200+qd}, v12, v2, vcc")
        a.dlayout(248, 3, 512)
        a(f"""s_lshl_b32 s36, s3, 10
        v_add_u32 v248, s36, v248
        s_lshl_b32 s36, s32, 13
        s_add_u32 s36, s36, {OB + 4096}
        v_and_b32 v2, 8, v0
        v_lshlrev_b32 v2, 3, v2
        v_and_b32 v3, 3, v0
        v_lshl_add_u32 v2, v3, 4, v2
        v_add_u32 v247, s36, v2
        s_mov_b32 s40, {hx(128 ** -0.5)}
        s_mov_b32 s48, {hx(LOG2E)}
        s_mov_b32 s49, 0xffffff00
        s_lshl_b32 s36, s3, 3
        v_mov_b32 v12, s36
        v_mov_b32 v13, 0
        s_mov_b32 s47, 0
        s_waitcnt lgkmcnt(0)
        s_cmp_ge_u32 s33, 5
        s_cbranch_scc1 L_att_n""")
        self.att_wo()
        self.att_other()
        self.compute()
        self.ctrl()
        if self.diag:
            a(f"""L_dump:
            s_mov_b64 exec, -1
            s_lshl_b32 s35, s34, 3
            s_add_u32 s35, s35, s3
            s_lshl_b32 s35, s35, 8
            s_add_u32 s35, s35, {STAMP}
            v_lshl_add_u32 v2, v0, 2, s35
            global_store_dword v2, v255, s[28:29]""")
        elif p.get("holdat") is not None:
            h = p["holdat"]
            a("L_hold:\ns_cmp_eq_u32 s95, 0\ns_cbranch_scc1 L_exit")
            a("""L_hold2:
            s_memrealtime s[92:93]
            s_waitcnt lgkmcnt(0)
            s_sub_u32 s92, s92, s96
            s_cmp_lt_u32 s92, 2000
            s_cbranch_scc1 L_hold2""")
        a("L_exit:\ns_endpgm\nL_codeend:")

    def att_wo(self):
        a = self
        p = self.p
        a(f"""s_lshl_b32 s36, s32, 2
        s_add_u32 s36, s36, s3
        s_mul_i32 s36, s36, {32*1280}
        s_lshl_b32 s37, s33, 8
        s_add_u32 s36, s36, s37
        s_add_u32 s36, s36, {3*1280}""")
        a.rowaddr(15)
        a(f"""s_lshl_b32 s35, s32, 3
        s_add_u32 s35, s35, s3
        s_lshl_b32 s35, s35, 10
        s_add_u32 s35, s35, {OB}
        v_lshl_add_u32 v249, v0, 4, s35
        s_lshr_b32 s35, s3, 1
        s_mul_i32 s35, s35, 640
        s_lshl_b32 s36, s33, 7
        s_add_u32 s35, s35, s36
        s_and_b32 s36, s3, 1
        s_lshl_b32 s36, s36, 6
        s_add_u32 s35, s35, s36
        s_lshl_b32 s35, s35, {3 + p["sp1"]}
        v_lshl_add_u32 v250, v0, 3, s35
        {"v_and_b32 v2, 56, v0" if p["sp1"] else ""}
        {"v_lshl_add_u32 v250, v2, 3, v250" if p["sp1"] else ""}
        s_lshl_b32 s35, s3, 8
        v_lshl_add_u32 v251, v0, 2, s35
        s_and_b32 s35, s32, 3
        s_lshl_b32 s35, s35, 3
        s_add_u32 s59, s35, s30
        s_min_u32 s35, s59, 26
        s_mul_i32 s35, s35, 20
        s_lshl_b32 s36, s33, 2
        s_add_u32 s35, s35, s36
        s_add_u32 s35, s35, s3
        s_lshl_b32 s35, s35, 12
        v_and_b32 v2, 31, v0
        v_lshl_add_u32 v252, v2, 7, s35
        s_mov_b32 s60, 0
        s_mov_b32 s61, {MHI}""")
        st, pos, wait_for, lastchk = self.stream(True, 8, [])
        BT = 80
        tdone = 0
        a.zeroA()
        a("""s_and_b32 s35, s43, 0x1fffffff
        s_and_b32 s67, s35, 0xff""")
        for k in range(3):
            a(f"s_lshr_b32 s36, s35, {8*(k+1)}\ns_add_u32 s36, s36, s35\ns_and_b32 s{64+k}, s36, 0xff")
        while tdone < 4 and pos[("T", 2*tdone+1)] <= st["done"]:
            a.transp(TR, BT, tdone); tdone += 1
        ld = """global_load_dwordx4 v[40:43], v247, s[28:29] sc1
        global_load_dwordx4 v[28:31], v249, s[28:29] sc1"""
        lp = a.lab("og"); re = a.lab("og_re"); dn = a.lab("og_ok")
        a(f"""s_mov_b32 s42, 0
        s_branch {re}_x
        {re}:
        {ld}
        s_add_u32 s42, s42, 1
        s_cmp_lt_u32 s42, {SPIN}
        s_cbranch_scc1 {lp}
        s_branch {dn}
        {re}_x:
        s_barrier""")
        a(ld)
        st["issued"] += 2
        while tdone < 4:
            wait_for(("T", 2*tdone+1)); a.transp(TR, BT, tdone); tdone += 1
        a.stamp(21)
        a(f"""{lp}:
        s_waitcnt vmcnt(1)
        v_max_f32_dpp v38, v40, v40 quad_perm:[1,0,3,2] {DPPF}
        v_xor_b32 v26, s43, v41
        v_bitop3_b32 v26, v26, v43, s43 bitop3:0xf6
        v_max_f32_dpp v38, v38, v38 quad_perm:[2,3,0,1] {DPPF}
        v_and_b32 v26, 0x1fffffff, v26
        v_sub_f32 v38, v40, v38
        v_min_u32 v26, 1, v26
        v_mul_f32 v38, s48, v38
        s_waitcnt vmcnt(0)
        v_exp_f32 v38, v38
        v_xor_b32 v28, s64, v28
        v_xor_b32 v29, s65, v29
        v_xor_b32 v30, s66, v30
        v_xor_b32 v31, s67, v31
        v_mul_f32 v36, v38, v42
        v_or3_b32 v26, v26, v28, v29
        v_pk_mul_f32 v[28:29], v[28:29], v[38:39] op_sel_hi:[1,0]
        v_or3_b32 v26, v26, v30, v31
        v_pk_mul_f32 v[30:31], v[30:31], v[38:39] op_sel_hi:[1,0]
        v_cmp_ne_u32_sdwa vcc, v26, v13 src0_sel:BYTE_0 src1_sel:DWORD
        v_add_f32_dpp v36, v36, v36 quad_perm:[1,0,3,2] {DPPF}
        s_cbranch_vccnz {re}
        {dn}:""")
        a.stamp(6)
        a.clk(20)
        b3c = p.get("b3c", 2)
        if b3c == 1:
            a("s_barrier")
        a(f"""v_add_f32_dpp v28, v28, v28 quad_perm:[1,0,3,2] {DPPF}
        v_add_f32_dpp v29, v29, v29 quad_perm:[1,0,3,2] {DPPF}
        v_add_f32_dpp v36, v36, v36 quad_perm:[2,3,0,1] {DPPF}
        v_add_f32_dpp v30, v30, v30 quad_perm:[1,0,3,2] {DPPF}
        v_add_f32_dpp v31, v31, v31 quad_perm:[1,0,3,2] {DPPF}
        v_rcp_f32 v36, v36
        v_add_f32_dpp v28, v28, v28 quad_perm:[2,3,0,1] {DPPF}
        v_add_f32_dpp v29, v29, v29 quad_perm:[2,3,0,1] {DPPF}
        v_add_f32_dpp v30, v30, v30 quad_perm:[2,3,0,1] {DPPF}
        v_add_f32_dpp v31, v31, v31 quad_perm:[2,3,0,1] {DPPF}
        v_pk_mul_f32 v[28:29], v[28:29], v[36:37] op_sel_hi:[1,0]
        v_pk_mul_f32 v[30:31], v[30:31], v[36:37] op_sel_hi:[1,0]""")
        a("""v_cvt_pk_bf16_f32 v32, v28, v29
        v_cvt_pk_bf16_f32 v33, v30, v31
        v_mov_b32_dpp v64, v32 quad_perm:[0,1,2,3] row_mask:0xf bank_mask:0x5
        v_mov_b32_dpp v66, v32 row_half_mirror row_mask:0xf bank_mask:0x5
        v_mov_b32_dpp v65, v33 quad_perm:[0,1,2,3] row_mask:0xf bank_mask:0x5
        v_mov_b32_dpp v67, v33 row_half_mirror row_mask:0xf bank_mask:0x5
        v_mov_b32_dpp v68, v32 row_half_mirror row_mask:0xf bank_mask:0xa
        v_mov_b32_dpp v69, v33 row_half_mirror row_mask:0xf bank_mask:0xa
        v_mov_b32_dpp v70, v32 quad_perm:[0,1,2,3] row_mask:0xf bank_mask:0xa
        v_mov_b32_dpp v71, v33 quad_perm:[0,1,2,3] row_mask:0xf bank_mask:0xa""")
        if b3c == 3:
            a("s_barrier")
        a.clk(21)
        a.nat8(BT)
        a.clk(22)
        if b3c == 2:
            a("s_barrier")
        if p.get("w2pf", 1) == 2:
            a("global_load_dword v253, v252, s[20:21]")
        a(f"""v_mov_b32 v45, v48
        v_mov_b32 v46, v52
        v_mov_b32 v47, v56
        ds_write_b128 v248, v[44:47] offset:{L_RED2}
        s_waitcnt lgkmcnt(0)""")
        a.clk(23)
        a("s_barrier")
        a.clk(24)
        a(f"""ds_read2st64_b32 v[28:29], v251 offset0:{L_RED2//256} offset1:{L_RED2//256+4}
        ds_read2st64_b32 v[30:31], v251 offset0:{L_RED2//256+8} offset1:{L_RED2//256+12}
        s_waitcnt lgkmcnt(0)
        v_pk_add_f32 v[28:29], v[28:29], v[30:31]
        v_add_f32 v28, v28, v29
        v_cvt_f64_f32 v[30:31], v28
        v_add_f64 v[30:31], v[30:31], s[60:61]
        global_atomic_add_x2 v250, v[30:31], s[28:29] sc1""")
        assert A1 == 0
        if p.get("w2pf", 1) == 1:
            sk = a.lab("nopf")
            a(f"""s_cmp_ge_u32 s59, 27
            s_cbranch_scc1 {sk}
            global_load_dword v253, v252, s[20:21]
            {sk}:""")
        a.stamp(11)
        a.clk(29)
        a.finish()
        a.flush_cold()

    def att_other(self):
        a = self
        p = self.p
        B1R = 80; B2R = 160; AB = 160; HR = 244
        D1 = (50, 54, 58, 240); XU = (4, 6, 8, 10, 62)

        def bar():
            a("s_barrier")
        nT = p["mlpT"]
        a("L_att_n:")
        a(self.ROLES)
        a(f"""s_sub_u32 s58, s33, 5
        s_mul_i32 s38, s58, 3
        s_min_u32 s35, s58, 1
        s_add_u32 s38, s38, s35
        s_add_u32 s38, s38, s3
        s_min_u32 s38, s38, 9
        s_mul_i32 s36, s39, {64*1280}
        s_lshl_b32 s37, s38, 7
        s_add_u32 s36, s36, s37
        v_lshrrev_b32 v2, 4, v0
        v_bfe_u32 v3, v0, 3, 1
        v_lshl_add_u32 v4, v3, 2, v2
        v_mul_u32_u24 v4, 10240, v4
        v_and_b32 v5, 7, v0
        v_lshl_add_u32 v4, v5, 4, v4
        v_add_u32 v15, s36, v4
        s_mov_b64 s[44:45], s[20:21]
        s_movk_i32 s46, 1280
        v_lshl_add_u32 v4, v5, 3, v2
        v_lshl_add_u32 v192, v4, 1, s37
        v_mul_u32_u24 v3, 1280, v3
        v_add_u32 v199, v192, v3
        v_bfe_u32 v3, v0, 1, 1
        v_lshl_add_u32 v3, v3, 2, v2
        v_bfe_u32 v4, v0, 2, 2
        v_lshl_add_u32 v198, v3, 2, v4
        s_lshl_b32 s35, s39, 7
        v_lshl_add_u32 v252, v198, 2, s35
        s_mul_i32 s37, s3, {213*3456}
        s_add_u32 s35, s35, s37
        v_mov_b32 v253, s35
        v_mov_b32 v254, s36
        s_and_b32 s35, s3, 1
        s_mul_i32 s35, s35, 1280
        v_lshl_add_u32 v205, v0, 2, s35
        s_lshr_b32 vcc_lo, s31, 1
        s_mov_b32 vcc_hi, 0""")
        wat = p.get("wat", 28)
        extra = [(wat, ("S", "global_load_dword v252, v252, s[18:19]")),
                 (wat + 2, ("S", "global_load_ushort v193, v192, s[22:23] offset:8")),
                 (wat + 2, ("S", "global_load_ushort v192, v192, s[22:23]")),
                 (wat + 2, ("S", "global_load_ushort v206, v199, s[24:25]"))]
        extra += [(wat + 4, ("S", f"global_load_dword v{176+u}, v205, s[4:5] offset:{256*u}")) for u in range(5)]
        if p["warm"]:
            extra += [(wat, ("S", "global_load_dword v253, v253, s[16:17]")),
                      (wat, ("S", "global_load_dword v254, v254, s[20:21]"))]
        st, pos, wait_for, lastchk = self.stream(False, nT, extra)
        go = a.lab("mlp_go"); dm = a.lab("dma")
        self.sect = "m"
        a(f"""s_cmp_eq_u32 s31, 1
        s_cbranch_scc1 {go}""")
        a.finish()
        a(f"""{go}:
        v_lshrrev_b32 v2, 3, v0
        v_and_b32 v3, 2, v2
        v_and_b32 v4, 7, v0
        v_xor_b32 v3, v3, v4
        v_mul_u32_u24 v2, 3456, v2
        s_mul_i32 s35, s3, {160*3456}
        s_lshl_b32 s36, s39, 7
        s_add_u32 s35, s35, s36
        v_lshl_add_u32 v16, v3, 4, v2
        v_add_u32 v16, s35, v16
        v_xor_b32 v3, 4, v3
        v_lshl_add_u32 v17, v3, 4, v2
        s_add_u32 s35, s35, {8*3456}
        v_add_u32 v17, s35, v17
        s_mul_i32 s37, s3, 20480
        s_add_u32 s37, s37, {L_W1}
        s_mul_i32 s54, s58, {p.get("rot", 3)}
        s_mov_b32 s57, 10
        s_barrier""")

        def w2loads():
            for t in range(nT, 8):
                self.emit(("T", t))
        if p.get("nomlpw"):
            a(f"s_branch {dm}_x")
        a(f"""{dm}:
        s_mul_i32 s55, s54, {16*3456}
        s_lshl_b32 s56, s54, 11
        s_add_u32 s56, s56, s37
        s_mov_b32 m0, s56
        v_add_u32 v2, s55, v16
        v_add_u32 v3, s55, v17
        global_load_lds_dwordx4 v2, s[16:17] {p["w1fl"]}
        s_add_u32 m0, s56, 1024
        s_add_u32 s54, s54, 1
        global_load_lds_dwordx4 v3, s[16:17] {p["w1fl"]}
        s_cmp_eq_u32 s54, 10
        s_cselect_b32 s54, 0, s54
        s_sub_u32 s57, s57, 1
        s_cmp_lg_u32 s57, 0
        s_cbranch_scc1 {dm}
        {dm}_x:""")
        a(f"""v_lshrrev_b32 v2, 4, v0
        v_and_b32 v12, 15, v0
        v_and_b32 v3, 1, v0
        v_lshlrev_b32 v21, 3, v0
        v_and_b32 v4, 16, v0
        v_xor_b32 v21, v21, v4
        s_lshl_b32 s35, s3, 9
        s_add_u32 s35, s35, {L_T1}
        v_bfe_u32 v4, v0, 1, 4
        v_lshl_add_u32 v22, v4, 5, s35
        v_lshl_add_u32 v22, v3, 2, v22
        v_lshrrev_b32 v4, 2, v0
        v_xor_b32 v4, v4, v0
        v_and_b32 v4, 8, v4
        v_lshl_add_u32 v22, v4, 1, v22
        s_mul_i32 s35, s3, {160 if p.get("sm", 1) else 320}
        v_mul_u32_u24 v4, {YS}, v3
        v_lshl_add_u32 v4, v2, 4, v4
        v_add_u32 v23, s35, v4
        v_bfe_u32 v4, v0, 2, 2
        v_lshl_add_u32 v4, v2, 3, v4
        v_lshlrev_b32 v4, 7, v4
        v_lshl_add_u32 v4, v3, 3, v4
        v_add_u32 v4, s37, v4
        v_bfe_u32 v3, v0, 3, 2
        v_bfe_u32 v5, v0, 1, 1
        v_lshl_add_u32 v3, v3, 1, v5""")
        for ct in range(4):
            a(f"v_xor_b32 v5, {2*ct}, v3\nv_lshl_add_u32 v{16+ct}, v5, 4, v4")
        a(f"""s_lshl_b32 s35, s38, 11
        s_add_u32 s35, s35, {A2}
        v_and_b32 v3, 56, v0
        v_lshlrev_b32 v3, 3, v3
        v_lshl_add_u32 v3, v0, 3, v3
        v_add_u32 v25, s35, v3
        s_and_b32 s36, s3, 1
        s_mul_i32 s35, s36, 5120
        s_add_u32 s35, s35, 2048
        v_lshl_add_u32 v2, v0, 4, s35
        s_mul_i32 s35, s36, {YS}
        v_lshl_add_u32 v26, v0, 2, s35""")
        if p.get("sm", 1):
            a(f"""v_lshrrev_b32 v3, 1, v0
            v_lshl_add_u32 v26, v3, 2, s35
            v_and_b32 v3, 1, v0
            v_mul_u32_u24 v3, 704, v3
            v_add_u32 v26, v26, v3
            v_bfe_u32 v3, v0, 1, 1
            v_mul_u32_u24 v4, 704, v3
            v_add_u32 v23, v23, v4
            v_mul_u32_u24 v3, 0xaaaa, v3
            v_add_u32 v204, 0x4444, v3
            v_add_u32 v3, 96, v23
            v_mov_b32 v4, {L_Z}
            v_cmp_gt_u32 vcc, 32, v0
            v_cndmask_b32 v24, v3, v4, vcc""")
        a(f"""s_mul_i32 s35, s36, 2560
        s_cmp_ge_u32 s3, 2
        s_cmov_b32 s35, {L_W1}
        v_lshl_add_u32 v27, v0, 3, s35
        v_lshlrev_b32 v197, 1, v199
        v_add_u32 v197, {L_H}, v197
        v_and_b32 v195, 0xffff0000, v252
        v_lshlrev_b32 v194, 16, v252
        v_lshlrev_b32 v192, 16, v192
        v_lshlrev_b32 v193, 16, v193
        v_mov_b32 v201, {hx(-2.0*math.sqrt(2.0/math.pi)*LOG2E)}
        v_mov_b32 v200, {hx(-2.0*math.sqrt(2.0/math.pi)*LOG2E*0.044715)}
        s_mov_b32 s60, 0
        s_mov_b32 s61, {MHI}
        s_mov_b32 s62, {hx(2.0 ** (KEXP - 1))}
        s_mov_b32 s63, {hx(2.0 ** (2 * KEXP - 4))}
        s_cmp_lt_u32 s3, 2
        s_cselect_b64 s[70:71], -1, 0
        s_mov_b32 s52, 0x05040100
        s_mov_b32 s53, 0x07060302""")
        for r in range(64, 80, 2):
            a(f"v_mov_b64 v[{r}:{r+1}], 0")
        for u in range(5):
            a(f"v_lshlrev_b32 v{XU[u]}, 16, v{176+u}")
            a(f"v_and_b32 v{XU[u]+1}, 0xffff0000, v{176+u}")

        def trreads():
            for ks in range(5):
                for ct in range(4):
                    for hf in range(2):
                        r = B1R + 4 * ((5 * ct + ks) if p.get("sm", 1) else (4 * ks + ct)) + 2 * hf
                        a(f"ds_read_b64_tr_b16 v[{r}:{r+1}], v{16+ct} offset:{(32*ks + 4*hf)*128}")

        tp2 = 1
        perm = lambda pp: [f"v_perm_b32 v{B2R+4*T+pp}, v{TR+4*(2*pp+1)+T//2}, v{TR+4*(2*pp)+T//2}, s{52+(T&1)}" for T in range(8)]
        p012 = perm(0) + perm(1) + perm(2)
        early = p012[:24 - p.get("npre", 8)]; pre = p012[24 - p.get("npre", 8):]

        def w2tr():
            for pp in range(4):
                a.transp(TR, B2R, pp)
        noln = a.lab("noln"); lp = a.lab("acc"); done = a.lab("acc_ok"); l2 = a.lab("acc_w"); nl2 = a.lab("noln2")
        if p.get("t1f", 1):
            a("v_mov_b32 v48, -1\nds_write2_b32 v22, v48, v48 offset0:0 offset1:2\ns_waitcnt lgkmcnt(0)")
        for d_ in D1:
            a(f"v_mov_b64 v[{d_}:{d_+1}], 0\nv_mov_b64 v[{d_+2}:{d_+3}], 0")
        trf = p.get("trfirst", 0)
        if trf:
            a("s_waitcnt vmcnt(0)")
            a.stamp(15)
            trreads()

        def ldacc():
            for u in range(5):
                a(f"global_load_dwordx4 v[{AB+4*u}:{AB+3+4*u}], v2, s[28:29] offset:{1024*u-2048} sc1")
        a(f"""s_mov_b32 s42, 0
        s_branch {lp}_x
        {lp}:""")
        ldacc()
        a(f"""s_add_u32 s42, s42, 1
        s_cmp_lt_u32 s42, {SPIN}
        s_waitcnt vmcnt(0)
        s_cbranch_scc1 {l2}
        s_branch {done}
        {lp}_x:
        s_cmp_ge_u32 s3, 2
        s_barrier
        s_cbranch_scc1 {nl2}""")

        def cold_noln():
            a(f"{nl2}:")
            if not trf:
                a("s_waitcnt vmcnt(0)")
                a.stamp(15)
                trreads()
            else:
                a("s_nop 15\ns_nop 15")
            a(f"""s_and_b32 s35, s3, 1
            s_mul_i32 s35, s35, s58
            s_cmp_lg_u32 s35, 0
            s_cbranch_scc1 {nl2}_b""")
            w2loads()
            a(f"{nl2}_b:")
            if p.get("kw", 0) & 1:
                a.busy("bw", f"ds_read_b32 v39, v13 offset:{L_GO}", "v_cmp_eq_u32 vcc, 0, v39")
            if early:
                a("s_waitcnt vmcnt(4)")
                a("\n".join(early))
            a(f"s_branch {noln}")
        self.cold.append(cold_noln)
        a.stamp(7)
        a.clk(10)
        ldacc()
        if not trf:
            a("s_waitcnt vmcnt(5)")
            trreads()
        else:
            a("s_nop 15")
        w2loads()
        a(f"{l2}:\nL_dry_in:")
        for u in range(5):
            b = AB + 4 * u
            a(f"""s_waitcnt vmcnt({4-u+8-nT})
            v_add_f64 v[{b}:{b+1}], v[{b}:{b+1}], -s[60:61]
            v_add_f64 v[{b+2}:{b+3}], v[{b+2}:{b+3}], -s[60:61]
            v_cvt_f32_f64 v{28+2*u}, v[{b}:{b+1}]
            v_cvt_f32_f64 v{29+2*u}, v[{b+2}:{b+3}]""")
            a.rnd(28+2*u, f"v{28+2*u}"); a.rnd(29+2*u, f"v{29+2*u}")
            a(f"v_pk_add_f32 v[{28+2*u}:{29+2*u}], v[{28+2*u}:{29+2*u}], v[{XU[u]}:{XU[u]+1}]")
            h0 = HR + 2 * u
            a.rnd(h0, f"v{28+2*u}"); a.rnd(h0+1, f"v{29+2*u}")
            if u == 0:
                a(f"v_pk_mul_f32 v[48:49], v[{h0}:{h0+1}], v[{h0}:{h0+1}]")
            else:
                a(f"v_pk_fma_f32 v[48:49], v[{h0}:{h0+1}], v[{h0}:{h0+1}], v[48:49]")
                a(f"v_pk_add_f32 v[46:47], v[{h0}:{h0+1}], v[{HR if u == 1 else 46}:{HR+1 if u == 1 else 47}]")

        a.clk(11)

        def hook():
            a(f"""v_cmp_ngt_f32 vcc, s63, v48
            s_cbranch_vccnz {lp}
            {done}:""")
            a.stamp(13)
            a.clk(12)
        hfill = []
        if p.get("hpos", 3) == 2:
            hfill = ["; h to LDS", "; (in the wait slots)"]
            for u in range(5):
                hfill += [f"ds_write_b64 v27, v[{HR+2*u}:{HR+2*u+1}] offset:{L_H + 512*u}", f"; {u}"]
        a.ln(28, 40, 46, True, hook, H=HR, fill=hfill)
        a.clk(13)
        a.ln(28, 40, 46, False, fill=(["s_waitcnt vmcnt(4)"] + early[:13]) if early else ())
        a.clk(14)
        assert L_Y == 0
        if p.get("sm", 1):
            a(f"""ds_write2_b32 v26, v40, v41 offset0:0 offset1:32
            ds_write2_b32 v26, v42, v43 offset0:64 offset1:96
            ds_write_b32 v26, v44 offset:512
            {chr(10).join(early[13:])}
            {("", "s_cbranch_execz L_dry_out", "s_cbranch_execz L_dry_1")[p.get("dry", 1)]}
            {noln}:
            s_waitcnt lgkmcnt(0)""")
            bar()
            a("L_dry_1:")
            a.stamp(18)
            a.clk(0)
            a("""ds_read_b128 v[28:31], v23
            ds_read_b128 v[32:35], v23 offset:64
            ds_read_b128 v[36:39], v24""")
            a.clk(1)
            tp = p.get("tp", 0)
            if tp:
                a("s_waitcnt vmcnt(4)")
                a.transp(TR, B2R, 0)
            p1 = [f"v_perm_b32 v{B2R+4*T+1}, v{TR+12+T//2}, v{TR+8+T//2}, s{52+(T&1)}" for T in range(8)] if tp else []
            hw = [f"ds_write_b64 v27, v[{HR+2*u}:{HR+2*u+1}] offset:{L_H + 512*u}" for u in range(5)]
            nw = 0
            if p.get("hpos", 3) == 0:
                a("s_mov_b64 exec, s[70:71]")
                for x_ in hw:
                    a(x_)
                a("s_mov_b64 exec, -1")
                nw = 5
            for kk in range(3):
                a(f"s_waitcnt lgkmcnt({2-kk+nw})")
                for ct in range(4):
                    r = B1R + 4 * (5 * ct + (0, 2, 3)[kk])
                    a(f"v_smfmac_f32_16x16x64_bf16 v[{D1[ct]}:{D1[ct]+3}], v[{28+4*kk}:{31+4*kk}], v[{r}:{r+7}], v204")
                    if p.get("hpos", 3) == 1 and nw < 5 and kk + ct > 0:
                        a(hw[nw]); nw += 1
                    elif p1:
                        a(p1.pop(0))
            while p1:
                a(p1.pop(0))
        else:
            a(f"""ds_write2st64_b32 v26, v40, v41 offset0:0 offset1:1
            ds_write2st64_b32 v26, v42, v43 offset0:2 offset1:3
            ds_write_b32 v26, v44 offset:1024
            {noln}:
            s_waitcnt lgkmcnt(0)
            s_barrier""")
            a.stamp(18)
            for ks in range(5):
                a(f"ds_read_b128 v[{28+4*ks}:{31+4*ks}], v23 offset:{L_Y + 64*ks}")
            for ks in range(5):
                a(f"s_waitcnt lgkmcnt({4-ks})")
                for ct in range(4):
                    c = "0" if ks == 0 else f"v[{48+4*ct}:{51+4*ct}]"
                    r = B1R + 4 * (4 * ks + ct)
                    a(f"v_mfma_f32_16x16x32_bf16 v[{48+4*ct}:{51+4*ct}], v[{28+4*ks}:{31+4*ks}], v[{r}:{r+3}], {c}")
        a.clk(2)
        if p.get("pm"):
            a("s_waitcnt vmcnt(0)\n" + "\n".join(pre[:p["pm"]]))
            pre = pre[p["pm"]:]
        a("""s_lshr_b32 s35, s3, 1
        s_and_b32 s35, s35, s3
        s_mul_i32 s35, s35, s58
        s_cmp_lg_u32 s35, 0""")
        for ct in range(4):
            for b_ in range(2):
                a(f"v_add_f32_dpp v{48+b_}, v{D1[ct]+b_}, v{D1[ct]+2+b_} quad_perm:[0,1,2,3] row_mask:{hex(1 << ct)} bank_mask:0xf")
        idle = a.lab("idle")
        a("""ds_write2_b32 v22, v48, v49 offset0:0 offset1:2
        s_waitcnt vmcnt(0)""")
        sp = p.get("sp", 1) and tp2
        if sp:
            a("\n".join(pre))
        elif p.get("tp", 0) or tp2:
            a.transp(TR, B2R, 2)
        else:
            a.transp(TR, B2R, 0); a.transp(TR, B2R, 1)
        if p.get("t1f", 1):
            t1 = a.lab("t1"); q3 = perm(3)
            rd = [f"ds_read_b64 v[{28+2*w_}:{29+2*w_}], v21 offset:{L_T1 + 512*w_}" for w_ in range(4)]
            a.clk(3)
            a(f"s_cbranch_scc1 {idle}\ns_mov_b32 s42, {SPIN*20}\n{t1}:")
            a("\n".join(rd))
            h3 = p.get("hpos", 3) == 3
            if not h3:
                a("ds_read2_b32 v[202:203], v197 offset0:0 offset1:4")
            a("\n".join(q3))
            a(f"""s_sub_u32 s42, s42, 1
            s_cbranch_scc1 {t1}_x
            s_waitcnt lgkmcnt({2 if h3 else 3})
            v_pk_add_f32 v[28:29], v[28:29], v[30:31]
            s_waitcnt lgkmcnt({0 if h3 else 1})
            v_pk_add_f32 v[32:33], v[32:33], v[34:35]
            v_pk_add_f32 v[28:29], v[28:29], v[32:33]
            v_cmp_u_f32 vcc, v28, v29
            s_cbranch_vccnz {t1}
            {t1}_x:""")
        else:
            if p.get("dry", 1) == 2:
                a("s_cbranch_execz L_dry_2")
            a("s_waitcnt lgkmcnt(0)")
            a.clk(3)
            bar()
            a("L_dry_2:")
            if sp:
                a(perm(3)[0])
            a(f"s_cbranch_scc1 {idle}")
            a.clk(4)
            rd = [f"ds_read_b64 v[{28+2*w_}:{29+2*w_}], v21 offset:{L_T1 + 512*w_}" for w_ in range(4)]
            rd.append("ds_read2_b32 v[202:203], v197 offset0:0 offset1:4")
            if sp:
                q3 = perm(3)
                nn = ["s_nop 0"] if p.get("spn", 1) else []
                for x_ in [rd[0], rd[1], q3[1], rd[2], rd[3], q3[2], rd[4], q3[3], q3[4]] + nn + [q3[5]] + nn + [q3[6]] + nn + [q3[7]]:
                    a(x_)
            else:
                for x_ in rd:
                    a(x_)
                if not (p.get("tp", 0) or tp2):
                    a.transp(TR, B2R, 2)
                a.transp(TR, B2R, 3)
            a.clk(5)
            a(f"""
            s_waitcnt lgkmcnt(3)
            v_pk_add_f32 v[28:29], v[28:29], v[30:31]
            s_waitcnt lgkmcnt(1)
            v_pk_add_f32 v[32:33], v[32:33], v[34:35]
            v_pk_add_f32 v[28:29], v[28:29], v[32:33]""")
        a(f"""
        v_cvt_pk_bf16_f32 v28, 0, v28
        v_cvt_pk_bf16_f32 v29, 0, v29
        v_pk_add_f32 v[28:29], v[28:29], v[194:195]
        v_cvt_pk_bf16_f32 v28, 0, v28
        v_cvt_pk_bf16_f32 v29, 0, v29
        v_pk_mul_f32 v[30:31], v[28:29], v[28:29]
        v_pk_fma_f32 v[30:31], v[30:31], v[200:201], v[200:201] op_sel:[0,0,1] op_sel_hi:[1,0,1]
        v_pk_mul_f32 v[30:31], v[30:31], v[28:29]
        v_exp_f32 v30, v30
        v_exp_f32 v31, v31
        v_add_f32 v30, 1.0, v30
        v_add_f32 v31, 1.0, v31
        v_rcp_f32 v30, v30
        v_rcp_f32 v31, v31
        v_mul_f32 v28, v28, v30
        v_mul_f32 v29, v29, v31
        v_cvt_pk_bf16_f32 v28, v28, v29""")

        def afrag(G):
            for pp in range(4):
                sh = (4 * (G - pp)) % 16
                d = f"row_ror:{sh}" if sh else "quad_perm:[0,1,2,3]"
                a(f"v_mov_b32_dpp v{64+4*G+pp}, v28 {d} row_mask:0xf bank_mask:{hex(1 << G)}")
        a.clk(6)
        afrag(0)
        for G in range(4):
            if G < 3:
                afrag(G + 1)
            for z in range(2):
                c = "0" if G == 0 else f"v[{44+4*z}:{47+4*z}]"
                r = B2R + 4 * (4 * z + G)
                a(f"v_mfma_f32_16x16x32_bf16 v[{44+4*z}:{47+4*z}], v[{64+4*G}:{67+4*G}], v[{r}:{r+3}], {c}")
        a.clk(7)
        if p.get("dry", 1) == 2:
            a("s_cbranch_execz L_dry_3")
        for z in range(2):
            a(f"v_add_f32_dpp v{32+z}, v{46+4*z}, v{44+4*z} row_ror:8 row_mask:0xf bank_mask:0x3")
        for z in range(2):
            a(f"v_add_f32_dpp v{32+z}, v{45+4*z}, v{47+4*z} row_ror:8 row_mask:0xf bank_mask:0xc")
        for z in range(2):
            a(f"""v_cvt_f64_f32 v[{36+2*z}:{37+2*z}], v{32+z}
            v_add_f64 v[{36+2*z}:{37+2*z}], v[{36+2*z}:{37+2*z}], s[60:61]
            global_atomic_add_x2 v[{40+2*z}:{41+2*z}], v25, v[{36+2*z}:{37+2*z}], s[28:29] offset:{1024*z} sc0 sc1""")
        a.stamp(14)
        a.clk(9)
        if p.get("hpos", 3) == 3:
            assert p.get("t1f", 1)
            for u in range(5):
                a(f"ds_write_b64 v27, v[{HR+2*u}:{HR+2*u+1}] offset:{L_H + 512*u}")
            a("s_waitcnt lgkmcnt(0)\ns_barrier\nds_read2_b32 v[202:203], v197 offset0:0 offset1:4")
        s0 = a.lab("nost"); s1 = a.lab("nost")
        a(f"""L_dry_3:
        s_waitcnt vmcnt(1) lgkmcnt(0)
        v_lshl_add_u64 v[40:41], v[40:41], 0, v[36:37]
        v_add_f64 v[40:41], v[40:41], -s[60:61]
        v_cvt_f32_f64 v44, v[40:41]
        s_waitcnt vmcnt(0)
        v_lshl_add_u64 v[42:43], v[42:43], 0, v[38:39]
        v_cmp_gt_f32 s[66:67], s62, |v44|
        v_add_f64 v[42:43], v[42:43], -s[60:61]
        v_cvt_pk_bf16_f32 v44, 0, v44
        v_cvt_f32_f64 v45, v[42:43]
        v_cmp_gt_f32 s[68:69], s62, |v45|
        v_cvt_pk_bf16_f32 v45, 0, v45
        v_pk_add_f32 v[44:45], v[44:45], v[192:193]
        v_cvt_pk_bf16_f32 v44, 0, v44
        v_cvt_pk_bf16_f32 v45, 0, v45
        v_pk_add_f32 v[44:45], v[44:45], v[202:203]
        v_cvt_pk_bf16_f32 v44, v44, v45""")
        a.stamp(10)
        a(f"""s_mov_b64 exec, s[66:67]
        s_cbranch_execz {s0}
        global_store_short v199, v44, s[24:25]
        {s0}:
        s_mov_b64 exec, s[68:69]
        s_cbranch_execz {s1}
        global_store_short_d16_hi v199, v44, s[24:25] offset:8
        {s1}:""")
        if p.get("dry", 1) == 2:
            a("s_cmp_eq_u32 s3, 4\ns_cbranch_scc1 L_dry_out")
        if p.get("latebump"):
            a(f"""s_mov_b64 exec, -1
            s_or_b32 s35, s39, s38
            s_cmp_lg_u32 s35, 0
            s_cbranch_scc1 {idle}
            v_mov_b32 v2, {EP}
            v_mov_b32 v3, s43
            global_store_dword v2, v3, s[28:29] sc1
            {idle}:""")
        else:
            a.finish()
            a(f"""{idle}:
            s_cmp_lg_u32 s34, 6
            s_cbranch_scc1 {idle}_e
            v_mov_b32 v2, {EP}
            v_mov_b32 v3, s43
            global_store_dword v2, v3, s[28:29] sc1
            {idle}_e:""")
        a.finish()
        a.flush_cold()

    def compute(self):
        a = self
        self.sect = "a"
        QF = 144; DR = 160; SR = 16
        a("L_compute:")
        a("v_readfirstlane_b32 s43, v2")
        a.stamp(2)
        for qd in range(4):
            a(f"ds_read_b128 v[{QF+4*qd}:{QF+4*qd+3}], v{200+qd}")
        for qd in range(4):
            a(f"s_waitcnt lgkmcnt({3-qd})")
            for u in range(4):
                t = 4 * u + qd
                c = "0" if qd == 0 else f"v[{DR+4*u}:{DR+4*u+3}]"
                a(f"v_mfma_f32_16x16x32_bf16 v[{DR+4*u}:{DR+4*u+3}], v[{KR+4*t}:{KR+4*t+3}], v[{QF+4*qd}:{QF+4*qd+3}], {c}")
        for u in range(4):
            a(f"v_mov_b32_dpp v{SR+u}, v{DR+4*u} quad_perm:[0,0,0,0] {DPPF}")
        for r in (1, 2, 3):
            for u in range(4):
                a(f"v_add_f32_dpp v{SR+u}, v{DR+4*u+r}, v{SR+u} quad_perm:[{r},{r},{r},{r}] {DPPF}")
        for r in range(16, 20):
            a.rnd(r, f"v{r}")
        a("""v_pk_mul_f32 v[16:17], v[16:17], s[40:41] op_sel_hi:[1,0]
        v_pk_mul_f32 v[18:19], v[18:19], s[40:41] op_sel_hi:[1,0]""")
        for r in range(16, 20):
            a.rnd(r, f"v{r}")
        a(f"""v_max3_f32 v28, v16, v17, v18
        v_max_f32 v28, v28, v19
        v_max_f32_dpp v28, v28, v28 row_ror:4 {DPPF}
        v_max_f32_dpp v28, v28, v28 row_ror:8 {DPPF}
        v_mov_b32 v29, v28
        v_permlane32_swap_b32 v28, v29
        v_max_f32 v28, v28, v29
        v_mov_b32 v29, v28
        v_permlane16_swap_b32 v28, v29
        v_max_f32 v28, v28, v29
        v_pk_add_f32 v[16:17], v[16:17], v[28:29] op_sel_hi:[1,0] neg_lo:[0,1] neg_hi:[0,1]
        v_pk_add_f32 v[18:19], v[18:19], v[28:29] op_sel_hi:[1,0] neg_lo:[0,1] neg_hi:[0,1]
        v_pk_mul_f32 v[16:17], v[16:17], s[48:49] op_sel_hi:[1,0]
        v_pk_mul_f32 v[18:19], v[18:19], s[48:49] op_sel_hi:[1,0]
        v_exp_f32 v16, v16
        v_exp_f32 v17, v17
        v_exp_f32 v18, v18
        v_exp_f32 v19, v19
        v_pk_add_f32 v[30:31], v[16:17], v[18:19]
        v_add_f32 v30, v30, v31
        v_cvt_pk_bf16_f32 v24, 0, v16
        v_cvt_pk_bf16_f32 v25, 0, v17
        v_add_f32_dpp v30, v30, v30 row_ror:4 {DPPF}
        v_cvt_pk_bf16_f32 v26, 0, v18
        v_cvt_pk_bf16_f32 v27, 0, v19
        v_add_f32_dpp v30, v30, v30 row_ror:8 {DPPF}
        v_mov_b32 v31, v30
        v_pk_add_f32 v[16:17], v[16:17], v[24:25] neg_lo:[0,1] neg_hi:[0,1]
        v_pk_add_f32 v[18:19], v[18:19], v[26:27] neg_lo:[0,1] neg_hi:[0,1]
        v_permlane32_swap_b32 v30, v31
        v_add_f32 v30, v30, v31
        v_mov_b32 v31, v30
        v_cvt_pk_bf16_f32 v20, v24, v16
        v_cvt_pk_bf16_f32 v21, v25, v17
        v_permlane16_swap_b32 v30, v31
        v_add_f32 v29, v30, v31
        v_cvt_pk_bf16_f32 v22, v26, v18
        v_cvt_pk_bf16_f32 v23, v27, v19
        ds_write_b64 v12, v[28:29] offset:{L_ML}""")
        a.stamp(4)
        a("s_nop 1\ns_setpc_b64 s[50:51]")

    def ctrl(self):
        a = self
        p = self.p
        WQ = 80
        self.sect = "c"
        a("L_ctrl:")
        a.stamp(1)
        a.selectors()
        a("""s_getreg_b32 s44, hwreg(HW_REG_XCC_ID, 0, 3)
        v_lshl_add_u32 v21, v0, 4, s45
        s_waitcnt vmcnt(22)""")
        a.stamp(2)
        for b_, (src, X) in enumerate(((24, 36), (30, 48))):
            for i in range(5):
                a(f"v_lshlrev_b32 v{X+2*i}, 16, v{src+i}")
                a(f"v_and_b32 v{X+2*i+1}, 0xffff0000, v{src+i}")
            a.ln(X, src, 60, False)
            a(f"""v_lshlrev_b32 v2, 2, v0
            ds_write_b64 v1, v[{src}:{src+1}] offset:{L_Y + b_*YS}
            ds_write_b64 v1, v[{src+2}:{src+3}] offset:{L_Y + b_*YS + 512}
            ds_write_b32 v2, v{src+4} offset:{L_Y + b_*YS + 1024}""")
        a(f"""s_mul_i32 s35, s33, 160
        v_lshrrev_b32 v2, 4, v0
        v_mul_u32_u24 v2, 40, v2
        v_bfe_u32 v3, v0, 3, 1
        v_mul_u32_u24 v3, {YS}, v3
        v_add3_u32 v2, v2, v3, s35
        s_waitcnt lgkmcnt(0)""")
        for i in range(5):
            a(f"ds_read_b64 v[{36+2*i}:{37+2*i}], v2 offset:{L_Y + 8*i}")
        def tagc(w):
            a(f"""s_waitcnt vmcnt({w})
            v_readfirstlane_b32 s43, v15
            s_add_u32 s43, s43, 1
            s_and_b32 s43, s43, 0x1fffffff
            s_mov_b32 s49, 0xffffff00
            v_mov_b32 v13, 0
            v_mov_b32 v245, s43
            v_and_b32 v2, 1, v0
            v_lshl_add_u32 v2, v2, 4, 8
            v_lshrrev_b32 v246, v2, v245
            v_add_u32 v246, s43, v246
            v_and_b32 v246, 0xff, v246
            v_add_u32 v2, 8, v2
            v_min_u32 v2, 31, v2
            v_lshrrev_b32 v247, v2, v245
            v_add_u32 v247, s43, v247
            v_and_b32 v247, 0xff, v247
            v_and_b32 v2, 3, v0
            v_mul_u32_u24 v2, 12, v2""")
            for k in range(4):
                a(f"""v_add_u32 v3, {3*(k+1)}, v2
                v_min_u32 v3, 31, v3
                v_lshrrev_b32 v3, v3, v245
                v_add_u32 v3, s43, v3
                s_lshl_b32 s35, s44, {3-k}
                s_and_b32 s35, s35, 8
                v_and_or_b32 v{56+k}, v3, 7, s35""")
            a(f"""s_lshl_b32 s44, s44, 29
            s_or_b32 s44, s44, s43
            s_mov_b32 s43, s44
            v_mov_b32 v245, s44
    """)
        tagc(21 - self.epos)
        a("""        s_waitcnt lgkmcnt(0)""")
        a.stamp(3)
        FR = 160

        def frag(D, P, odd):
            for r in range(4):
                a(f"v_perm_b32 v{D+r}, v{P}, v{P}, v{(8 if odd else 4)+r}")
        frag(FR, 36, 0)
        for t in range(20):
            if t + 1 < 20:
                frag(FR + 4 * ((t + 1) % 4), 36 + (t + 1) // 2, (t + 1) & 1)
            a(f"s_waitcnt vmcnt({19-t+(2 if t < self.epos else 0)})")
            c = "0" if t == 0 else "v[48:51]"
            a(f"v_mfma_f32_16x16x32_bf16 v[48:51], v[{FR+4*(t%4)}:{FR+4*(t%4)+3}], v[{WQ+4*t}:{WQ+4*t+3}], {c}")
        qfl = p.get("qfl", "") if p["fast"] else "sc1"
        a(f"""v_and_or_b32 v52, v48, -16, v56
        v_and_or_b32 v53, v49, -16, v57
        v_and_or_b32 v54, v50, -16, v58
        v_and_or_b32 v55, v51, -16, v59
        global_store_dwordx4 v21, v[52:55], s[28:29] {qfl}
""")
        oppre = f"""s_lshl_b32 s45, s32, 13
        s_add_u32 s45, s45, {OB}
        s_lshl_b32 s35, s33, 2
        v_and_b32 v2, 3, v0
        v_add_u32 v2, s35, v2
        v_cmp_lt_u32 vcc, 3, v0
        v_cndmask_b32 v2, v2, 32, vcc
        v_lshl_add_u32 v2, v2, 7, s45
        global_load_dword v253, v2, s[28:29] {p.get("prefl", "")}"""
        if p["oppre"] == 1:
            a(oppre)
        a.stamp(4)
        a(self.ROLES)
        qg = a.lab("qg"); qgd = a.lab("qg_ok"); qns = a.lab("qg_nosc1"); qf = a.lab("qg_fast")
        qt = a.lab("qt"); qtd = a.lab("qt_ok")
        zi = a.lab("zinit"); zf = a.lab("zflag")
        self.cold.append(lambda: a(f"""{zi}:
        s_mul_i32 s35, s30, 5120
        s_add_u32 s35, s35, 2048
        v_lshl_add_u32 v2, v0, 4, s35
        s_mov_b32 s35, {INIT1}
        s_cmp_ge_u32 s30, 4
        s_cmov_b32 s35, {INIT2}
        v_mov_b32 v64, 0
        v_mov_b32 v65, s35
        v_mov_b32 v66, 0
        v_mov_b32 v67, s35
        global_store_dwordx4 v2, v[64:67], s[28:29] offset:-2048 sc1
        global_store_dwordx4 v2, v[64:67], s[28:29] offset:-1024 sc1
        global_store_dwordx4 v2, v[64:67], s[28:29] sc1
        global_store_dwordx4 v2, v[64:67], s[28:29] offset:1024 sc1
        global_store_dwordx4 v2, v[64:67], s[28:29] offset:2048 sc1
        s_mul_i32 s35, s30, 5120
        s_add_u32 s35, s35, {PC}
        v_min_u32 v2, 39, v0
        v_lshl_add_u32 v2, v2, 7, s35
        global_store_dword v2, v64, s[28:29] sc1
        s_branch {zi}_r
        {zf}:
        s_lshl_b32 s35, s30, 2
        s_add_u32 s35, s35, {ZF}
        v_mov_b32 v2, s35
        s_waitcnt vmcnt(0)
        global_store_dword v2, v245, s[28:29] sc1
        s_branch {zf}_r"""))
        assert A2 == 4 * 5120
        a(f"""s_and_b32 s58, s34, 31
        s_cmp_eq_u32 s58, 31
        s_cbranch_scc1 {zi}
        {zi}_r:
        v_lshrrev_b32 v3, 5, v0
        v_and_b32 v22, 31, v0
        v_and_b32 v2, 7, v0
        v_lshlrev_b32 v2, 2, v2
        v_add_u32 v23, {ZF}, v2
        s_lshl_b32 s35, s32, 15
        s_lshr_b32 s38, s33, 2
        s_lshl_b32 s38, s38, 9
        s_add_u32 s35, s35, s38
        s_add_u32 s35, s35, {BK}
        v_lshlrev_b32 v2, 12, v3
        v_lshl_add_u32 v2, v22, 4, v2
        v_add_u32 v60, s35, v2
        v_add_u32 v61, 8192, v60
        v_add_u32 v62, 8192, v61
        v_add_u32 v63, 8192, v62
        v_and_b32 v2, 15, v0
        v_lshlrev_b32 v2, 4, v2
        v_and_b32 v22, 16, v0
        v_lshrrev_b32 v22, 1, v22
        v_add_u32 v2, v2, v22
        v_lshl_add_u32 v22, v3, 2, v2
        s_mov_b32 s42, 0
        {"s_branch " + qtd if p["qtrig"] < 0 else ""}
        {qt}:
        ds_read_b128 v[36:39], v13 offset:{L_QT}
        ds_read_b128 v[40:43], v13 offset:{L_QT+16}
        s_add_u32 s42, s42, 1
        s_waitcnt lgkmcnt(0)
        v_min3_u32 v36, v36, v38, v40
        v_min_u32 v36, v36, v42
        v_cmp_eq_u32 vcc, 0, v36
        s_cbranch_vccz {qtd}
        s_cmp_lt_u32 s42, {SPIN*20}
        s_cbranch_scc1 {qt}
        {qtd}:
        s_mov_b32 s42, 0""")
        a.stamp(5)
        if p.get("noq"):
            a(f"v_mov_b32 v36, 0\ns_branch {qgd}")
        a(f"{qg}:")
        for u in range(4):
            a(f"global_load_dwordx4 v[{80+4*u}:{83+4*u}], v{60+u}, s[28:29] sc1")
        a("s_add_u32 s42, s42, 1\ns_waitcnt vmcnt(0)")
        a("v_xor_b32 v36, v56, v80\nv_xor_b32 v37, v57, v81")
        for r in range(82, 96):
            a(f"v_bitop3_b32 v{36+r%2}, v{36+r%2}, v{r}, v{56+r%4} bitop3:0xf6")
        a(f"""v_or_b32 v36, v36, v37
        v_and_b32 v37, 7, v36
        v_and_b32 v36, 15, v36
        v_cmp_ne_u32 vcc, 0, v37
        s_cbranch_vccz {qgd}
        s_cmp_lg_u32 s42, {p['qslow']}
        s_cbranch_scc1 {qns}
        global_store_dwordx4 v21, v[52:55], s[28:29] sc1
        {qns}:
        s_cmp_lt_u32 s42, {SPIN}
        s_cbranch_scc1 {qg}
        {qgd}:""")
        for r in range(80, 96):
            a(f"v_and_b32 v{r}, -16, v{r}")
        a(f"""v_pk_add_f32 v[80:81], v[80:81], v[84:85]
        v_pk_add_f32 v[82:83], v[82:83], v[86:87]
        v_pk_add_f32 v[88:89], v[88:89], v[92:93]
        v_pk_add_f32 v[90:91], v[90:91], v[94:95]
        v_pk_add_f32 v[80:81], v[80:81], v[88:89]
        v_pk_add_f32 v[82:83], v[82:83], v[90:91]
        v_permlane32_swap_b32 v80, v82
        v_permlane32_swap_b32 v81, v83
        v_pk_add_f32 v[80:81], v[80:81], v[82:83]
        v_cvt_pk_bf16_f32 v80, v80, v81
        ds_write_b32 v22, v80 offset:{L_Q}
        v_cmp_ne_u32 vcc, 0, v36
        v_mov_b32 v14, s44
        s_nop 0
        s_cmp_lg_u64 vcc, 0
        s_cselect_b32 s46, 1, {0 if p['fast'] else 1}
        s_cselect_b32 s35, 1, {p['hslow'] + 1 if p['fast'] else 1}
        v_mov_b32 v15, s35
        s_waitcnt lgkmcnt(0)
        ds_write_b64 v13, v[14:15] offset:{L_QF}
        s_cbranch_scc0 {qf}
        global_store_dwordx4 v21, v[52:55], s[28:29] sc1
        {qf}:
        s_cmp_eq_u32 s58, 31
        s_cbranch_scc1 {zf}
        {zf}_r:""")
        if p["oppre"] == 2:
            a(oppre)
        a.stamp(6)
        mw = a.lab("mw"); mwd = a.lab("mw_ok"); msl = a.lab("ml_slow"); msd = a.lab("ml_done")
        a(f"""s_mov_b32 s40, {hx(LOG2E)}
        s_lshl_b32 s35, s33, 4
        s_add_u32 s35, s35, s45
        s_add_u32 s36, s35, 4096
        v_mov_b32 v20, s36
        s_and_b32 s36, s33, 4
        s_lshl_b32 s36, s36, 4
        s_add_u32 s35, s35, s36
        v_lshrrev_b32 v2, 2, v0
        v_lshl_add_u32 v21, v2, 8, s35
        v_and_b32 v2, 2, v0
        v_lshl_add_u32 v21, v2, 5, v21
        v_and_b32 v2, 1, v0
        v_lshl_add_u32 v21, v2, 3, v21
        s_setprio 0
        s_mov_b32 s42, 0
        {mw}:
        ds_read_b128 v[36:39], v13 offset:{L_ML}
        ds_read_b128 v[40:43], v13 offset:{L_ML+16}
        s_add_u32 s42, s42, 1
        s_waitcnt lgkmcnt(0)
        v_min3_u32 v44, v37, v39, v41
        v_min_u32 v44, v44, v43
        v_cmp_eq_u32 vcc, 0, v44
        s_cbranch_vccz {mwd}
        s_cmp_lt_u32 s42, {SPIN*20}
        s_cbranch_scc1 {mw}
        {mwd}:
        s_setprio 3
        v_max3_f32 v44, v36, v38, v40
        v_max_f32 v44, v44, v42""")
        for i in range(4):
            a(f"v_sub_f32 v{36+2*i}, v{36+2*i}, v44")
        for i in range(4):
            a(f"v_mul_f32 v{36+2*i}, s40, v{36+2*i}")
        for i in range(4):
            a(f"v_exp_f32 v{36+2*i}, v{36+2*i}")
        a(f"""v_mul_f32 v46, v36, v37
        v_mov_b32 v45, s44
        v_fmac_f32 v46, v38, v39
        v_mov_b32 v47, s44
        v_fmac_f32 v46, v40, v41
        v_fmac_f32 v46, v42, v43
        s_cmp_lg_u32 s46, 0
        s_cbranch_scc1 {msl}
        global_store_dwordx4 v20, v[44:47], s[28:29]
        s_branch {msd}
        {msl}:
        global_store_dwordx4 v20, v[44:47], s[28:29] sc1
        {msd}:""")
        a.stamp(8)
        a("s_barrier")
        a.clk(30)
        for u in range(8):
            a(f"ds_read_b64 v[{48+2*u}:{49+2*u}], v1 offset:{L_RED + 512*u}")
        osl = a.lab("op_slow"); osd = a.lab("op_done"); nf = a.lab("notfree"); dm = a.lab("dma"); dm2 = a.lab("dma2")
        a(f"""s_cmp_lg_u32 s46, 0
        s_waitcnt lgkmcnt(6)
        v_pk_add_f32 v[48:49], v[48:49], v[50:51]
        v_pk_mul_f32 v[48:49], v[48:49], v[36:37] op_sel_hi:[1,0]
        s_waitcnt lgkmcnt(4)
        v_pk_add_f32 v[52:53], v[52:53], v[54:55]
        v_pk_fma_f32 v[48:49], v[52:53], v[38:39], v[48:49] op_sel_hi:[1,0,1]
        s_waitcnt lgkmcnt(2)
        v_pk_add_f32 v[56:57], v[56:57], v[58:59]
        v_pk_fma_f32 v[48:49], v[56:57], v[40:41], v[48:49] op_sel_hi:[1,0,1]
        s_waitcnt lgkmcnt(0)
        v_pk_add_f32 v[60:61], v[60:61], v[62:63]
        v_pk_fma_f32 v[48:49], v[60:61], v[42:43], v[48:49] op_sel_hi:[1,0,1]
        v_and_or_b32 v48, v48, s49, v246
        v_and_or_b32 v49, v49, s49, v247
        s_cbranch_scc1 {osl}
        global_store_dwordx2 v21, v[48:49], s[28:29]
        {osd}:""")
        self.cold.append(lambda: a(f"""{osl}:
        global_store_dwordx2 v21, v[48:49], s[28:29] sc1
        s_branch {osd}"""))
        a.stamp(10)
        a.clk(31)
        a("""s_cmp_lg_u32 s31, 0
        s_cbranch_scc1 L_ctrl_n""")
        self.ctrl_wo()
        a.flush_cold()
        a(f"""L_ctrl_n:
        {"buffer_wbl2 sc1" if p.get("wbl2") else ""}
        s_cmp_eq_u32 s31, 1
        s_cbranch_scc1 {nf}""")
        a.finish()
        a(f"""{nf}:
        global_load_dword v24, v23, s[28:29] sc1
        s_barrier
        s_waitcnt vmcnt(0)""")
        self.zcheck()
        if p.get("dry", 1):
            a("""s_mov_b64 exec, 0
            s_branch L_dry_in
            L_dry_out:
            s_mov_b64 exec, -1""")
        if p.get("probe", 2) == 2:
            pb = a.lab("probe"); pbd = a.lab("probe_ok")
            nc = p.get("nc", 5)
            R = p.get("R", 27)
            if R == 27:
                a("s_mov_b32 s38, s39")
            elif R > 27:
                a(f"""s_mul_i32 s38, s39, 3
                s_add_u32 s38, s38, s33
                s_sub_u32 s38, s38, 5
                s_cmp_ge_u32 s38, {R}
                s_cselect_b32 s35, {R}, 0
                s_sub_u32 s38, s38, s35""")
            else:
                a(f"s_lshr_b32 s38, s39, 1")
            a(f"""s_mul_i32 s38, s38, 640
            s_add_u32 s38, s38, {PC}
            s_mov_b32 s42, {p['gslow'] * (4 if p.get("ppipe") else 1)}
            s_mov_b64 s[64:65], 0
            s_mov_b64 s[66:67], 0
            s_mov_b32 s68, 0
            {pb}:""")
            if p.get("ppipe"):
                a("s_waitcnt lgkmcnt(10)")
            for c in range(nc):
                if p.get("pskip", 1):
                    sk = a.lab("psk")
                    a(f"s_cmp_eq_u32 s{64+c}, 32\ns_cbranch_scc1 {sk}")
                a(f"s_load_dword s{64+c}, s[28:29], s38 offset:{p.get('pstr', 128)*c} glc")
                if p.get("pskip", 1):
                    a(f"{sk}:")
            assert nc == 5
            a(f"""s_sub_u32 s42, s42, 1
            s_cmp_eq_u32 s42, 0
            s_cbranch_scc1 {pbd}
            s_waitcnt lgkmcnt(0)
            s_and_b64 s[70:71], s[64:65], s[66:67]
            s_and_b32 s70, s70, s68
            s_and_b32 s70, s70, s71
            s_cbranch_scc0 {pb}
            s_bitcmp0_b32 s70, 5
            s_cbranch_scc1 {pb}
            {pbd}:""" if False else f"""s_sub_u32 s42, s42, 1
            s_cmp_eq_u32 s42, 0
            s_cbranch_scc1 {pbd}
            s_waitcnt lgkmcnt(0)
            s_and_b64 s[70:71], s[64:65], s[66:67]
            s_and_b32 s70, s70, s68
            s_and_b32 s70, s70, s71
            s_bitcmp0_b32 s70, 5
            s_cbranch_scc1 {pb}
            {pbd}:""")
            a.stamp(7)
        elif p.get("probe", 2):
            pb = a.lab("probe"); pbd = a.lab("probe_ok")
            a(f"""s_mul_i32 s35, s39, 3
            s_add_u32 s35, s35, s33
            s_and_b32 s36, s35, 7
            s_lshl_b32 s36, s36, 7
            s_bitcmp1_b32 s35, 3
            s_cselect_b32 s35, 5120, 0
            s_add_u32 s38, s35, s36
            s_mov_b32 s42, {p['gslow']}
            {pb}:""")
            for c in range(5):
                a(f"s_load_dword s{64+c}, s[28:29], s38 offset:{1024*c + 4} glc")
            a(f"""s_sub_u32 s42, s42, 1
            s_cmp_eq_u32 s42, 0
            s_waitcnt lgkmcnt(0)
            s_cbranch_scc1 {pbd}
            s_xor_b32 s64, s64, {MHI}
            s_xor_b32 s65, s65, {MHI}
            s_xor_b32 s66, s66, {MHI}
            s_xor_b32 s67, s67, {MHI}
            s_xor_b32 s68, s68, {MHI}
            s_or_b64 s[64:65], s[64:65], s[66:67]
            s_or_b32 s64, s64, s68
            s_or_b32 s64, s64, s65
            s_lshr_b32 s64, s64, 20
            s_cbranch_scc1 {pb}
            {pbd}:""")
            a.stamp(7)
        a("s_barrier")
        a.finish()
        a.flush_cold()

    def zcheck(self):
        a = self
        zc = a.lab("zc"); zr = a.lab("zc_re"); zd = a.lab("zc_ok")
        a(f"""s_mov_b32 s42, 0
        {zc}:
        v_xor_b32 v24, s44, v24
        v_lshlrev_b32 v24, 3, v24
        v_cmp_ne_u32 vcc, 0, v24
        s_cbranch_vccnz {zr}
        {zd}:""")
        self.cold.append(lambda: a(f"""{zr}:
        global_load_dword v24, v23, s[28:29] sc1
        s_add_u32 s42, s42, 1
        s_cmp_ge_u32 s42, {SPIN}
        s_waitcnt vmcnt(0)
        s_cbranch_scc1 {zd}
        s_branch {zc}"""))

    def ctrl_wo(self):
        a = self
        p = self.p
        a("s_barrier")
        if p.get("probe", 2) != 2:
            a("global_load_dword v24, v23, s[28:29] sc1\ns_waitcnt vmcnt(0)")
            self.zcheck()
        else:
            sk = a.lab("ow_sk")
            a(f"""{"s_setprio 0" if p.get("zlate") else ""}
            {"s_nop 15" if p.get("zlate") else ""}
            global_load_dword v24, v23, s[28:29] sc1
            v_mul_u32_u24 v2, 640, v0
            s_lshl_b32 s35, s33, 7
            s_add_u32 s35, s35, {PC}
            v_add_u32 v2, s35, v2
            v_mov_b32 v3, 1
            s_waitcnt vmcnt(0)""")
            self.zcheck()
            a(f"""s_mov_b32 exec_lo, {hex(((1 << p.get("R", 27)) - 1) & 0xffffffff)}
            s_mov_b32 exec_hi, {hex(((1 << p.get("R", 27)) - 1) >> 32)}
            s_barrier
            global_atomic_add v2, v3, s[28:29] sc1""")
            if p.get("b3c", 2):
                a("s_barrier")
            a.stamp(9)
            a.finish()
            return
        a("s_barrier")
        a.finish()

    def write(self, fn):
        self.build()
        body = process(self.L)
        if self.p.get("al", 4):
            from align import align
            body, nfix = align(body, NAME + "_kernel", self.p.get("al", 4))
        H = [HEADER.rstrip(),
             f"; @launch grid=(256,1,1) block=(320,1,1) lds={LDS_SIZE}",
             '.amdgcn_target "amdgcn-amd-amdhsa--gfx950"', ".text", f".globl {NAME}_kernel", ".p2align 8",
             f".type {NAME}_kernel,@function", f"{NAME}_kernel:"]
        T = ['.section .rodata,"a"', ".p2align 6", f".amdhsa_kernel {NAME}_kernel",
             f"  .amdhsa_next_free_vgpr 256", f"  .amdhsa_next_free_sgpr {102 if (self.diag or self.p.get('holdat')) else self.p.get('nsgpr', 102)}", "  .amdhsa_accum_offset 256",
             "  .amdhsa_group_segment_fixed_size 0", "  .amdhsa_kernarg_size 104", "  .amdhsa_user_sgpr_count 2",
             "  .amdhsa_user_sgpr_kernarg_segment_ptr 1", "  .amdhsa_system_sgpr_workgroup_id_x 1",
             "  .amdhsa_float_denorm_mode_32 3", "  .amdhsa_float_denorm_mode_16_64 3", ".end_amdhsa_kernel"]
        lines = [(l if l.endswith(":") or l.startswith(".") or l.startswith(";") else "    " + l) for l in body]
        open(fn, "w").write("\n".join(H + lines + T) + "\n")


if __name__ == "__main__":
    out = sys.argv[1] if len(sys.argv) > 1 else "k25.s"
    kw = {}
    diag = False
    for x in sys.argv[2:]:
        if x == "diag":
            diag = True
        else:
            k, v = x.split("=", 1)
            kw[k] = eval(v)
    G(diag=diag, **kw).write(out)
```
